```python
import torch

def _softmax(x, axis=-1):
    return torch.softmax(x, dim=axis)

def _gelu(x):
    return torch.nn.functional.gelu(x, approximate='tanh')

def _silu(x):
    return torch.nn.functional.silu(x)

def _sigmoid(x):
    return torch.sigmoid(x)

def _layernorm(x, axis=-1, eps=1e-05):
    m = x.mean(dim=axis, keepdim=True)
    v = x.var(dim=axis, keepdim=True, unbiased=False)
    return (x - m) / torch.sqrt(v + eps)

def _scatter_add(tgt, idx, src, axis=0):
    return tgt.clone().index_add_(axis, idx, src)

def _segment_sum(src, seg, n):
    out = torch.zeros((n,) + src.shape[1:], dtype=src.dtype)
    return out.index_add_(0, seg, src)

def _pad(x, pw):
    flat = tuple((v for pair in reversed(pw) for v in pair))
    return torch.nn.functional.pad(x, flat)
kernel_name = 'adaLN_cond__softmax_full_mha__mixer_gmlp__prompt'

def setup_inputs():

    _w = lambda a: (lambda t: t.to(torch.bfloat16) if t.is_floating_point() else t)(torch.as_tensor(a))

    def _A_setup():
        B, S, D = (1, 2048, 1024)
        return {'x': _w((lambda *s: torch.randn(*s, dtype=torch.bfloat16) * 0.05)(B, S, D)), 'wqkv': _w((lambda *s: torch.randn(*s, dtype=torch.bfloat16) * 0.05)(D, 3 * D)), 'wo': _w((lambda *s: torch.randn(*s, dtype=torch.bfloat16) * 0.05)(D, D))}
    _A_in = _A_setup()

    def _B_setup():
        B, S, D, F = (1, 2048, 1024, 3584)
        Fh = F // 2
        return {'x': _w((lambda *s: torch.randn(*s, dtype=torch.bfloat16) * 0.05)(B, S, D)), 'w_in': _w((lambda *s: torch.randn(*s, dtype=torch.bfloat16) * 0.8)(D, 2 * Fh)), 'w_sp': _w(0.01 * (lambda *s: torch.randn(*s, dtype=torch.bfloat16) * 0.8)(S, S)), 'b_sp': _w(1.0 + 0.01 * (lambda *s: torch.randn(*s, dtype=torch.bfloat16) * 0.05)(S)), 'w_out': _w((lambda *s: torch.randn(*s, dtype=torch.bfloat16) * 0.05)(Fh, D))}
    _B_in = _B_setup()
    return {'A_x': _A_in['x'], 'A_wqkv': _A_in['wqkv'], 'A_wo': _A_in['wo'], 'B_x': _B_in['x'], 'B_w_in': _B_in['w_in'], 'B_w_sp': _B_in['w_sp'], 'B_b_sp': _B_in['b_sp'], 'B_w_out': _B_in['w_out'], 'c': _w((lambda *s: torch.randn(*s, dtype=torch.bfloat16) * 0.2)(1, 1024) * 8.0), 'w_mod': _w((lambda *s: torch.randn(*s, dtype=torch.bfloat16) * 0.2)(1024, 6 * 1024) * 1024 ** (-0.5) * 8.0)}

def reference(A_x, A_wqkv, A_wo, B_x, B_w_in, B_w_sp, B_b_sp, B_w_out, c, w_mod):

    def _A_ref(x, wqkv, wo):
        B, S, D = x.shape
        H = 32
        Dh = D // H
        qkv = (lambda x, *d: x.permute(*d))((x @ wqkv).reshape(B, S, 3, H, Dh), 2, 0, 3, 1, 4)
        q, k, v = (qkv[0], qkv[1], qkv[2])
        scale = Dh ** (-0.5)
        scores = torch.einsum('bhqd,bhkd->bhqk', q, k) * scale
        p = _softmax(scores, axis=-1)
        o = torch.einsum('bhqk,bhkd->bhqd', p, v)
        return (lambda x, *d: x.permute(*d))(o, 0, 2, 1, 3).reshape(B, S, D) @ wo

    def _B_ref(x, w_in, w_sp, b_sp, w_out):
        B, S, D = x.shape
        F = w_in.shape[-1]
        Fh = F // 2
        z = _gelu(torch.einsum('bsd,df->bsf', x, w_in))
        z1 = z[..., :Fh].clone()
        z2 = _layernorm(z[..., Fh:], axis=-1)
        g = torch.einsum('ts,bsf->btf', w_sp, z2) + b_sp[None, :, None]
        return torch.einsum('bsf,fd->bsd', z1 * g, w_out)
    x = A_x
    mod = (_silu(c) @ w_mod).reshape(c.shape[0], 6, 1, -1)
    sa, ca, ga, sb, cb, gb = (mod[:, 0].clone(), mod[:, 1].clone(), mod[:, 2].clone(), mod[:, 3].clone(), mod[:, 4].clone(), mod[:, 5].clone())
    h = _layernorm(x, axis=-1) * (1 + ca) + sa
    x = x + ga * _A_ref(h, A_wqkv, A_wo)
    h = _layernorm(x, axis=-1) * (1 + cb) + sb
    x = x + gb * _B_ref(h, B_w_in, B_w_sp, B_b_sp, B_w_out)
    return x
```

```python
import re

TRANS = ("v_exp_f32", "v_log_f32", "v_rcp_f32", "v_rsq_f32", "v_sqrt_f32", "v_sin_f32", "v_cos_f32",
         "v_rcp_iflag_f32", "v_exp_f16", "v_rcp_f16")

_reg_re = re.compile(r"^(-|abs\()?([vsa])(?:(\d+)|\[(\d+):(\d+)\])\)?$")


def regs_of(op):
    op = op.strip()
    if op.startswith("|") and op.endswith("|"):
        op = op[1:-1]
    if op.startswith("-|") and op.endswith("|"):
        op = op[2:-1]
    if op in ("vcc",):
        return {("s", 106), ("s", 107)}
    if op == "vcc_lo":
        return {("s", 106)}
    if op == "vcc_hi":
        return {("s", 107)}
    if op == "exec":
        return {("s", 126), ("s", 127)}
    if op == "exec_lo":
        return {("s", 126)}
    if op == "exec_hi":
        return {("s", 127)}
    if op == "m0":
        return {("s", 124)}
    m = _reg_re.match(op)
    if not m:
        return set()
    k = m.group(2)
    if m.group(3) is not None:
        return {(k, int(m.group(3)))}
    return {(k, i) for i in range(int(m.group(4)), int(m.group(5)) + 1)}


def split_ops(s):
    out, depth, cur = [], 0, ""
    for ch in s:
        if ch in "[(":
            depth += 1
        if ch in "])":
            depth -= 1
        if ch == "," and depth == 0:
            out.append(cur.strip())
            cur = ""
        else:
            cur += ch
    if cur.strip():
        out.append(cur.strip())
    return out


VCC = {("s", 106), ("s", 107)}
EXEC = {("s", 126), ("s", 127)}
M0 = {("s", 124)}


class Ins:
    def __init__(self, text):
        self.text = text
        body = text.split(";")[0].strip()
        self.is_label = body.endswith(":")
        self.is_dir = body.startswith(".") and not self.is_label
        self.empty = body == ""
        self.mn = ""
        self.defs, self.uses = set(), set()
        self.cls = "none"
        self.target = None
        self.passes = 0
        self.srcc = set()
        self.srcab = set()
        self.states = 1
        self.wide_store_data = set()
        self.lane_sel = set()
        self.dpp = False
        self.lds_dma = False
        if self.is_label:
            self.label = body[:-1]
            return
        if self.is_dir or self.empty:
            return
        parts = body.split(None, 1)
        mn = parts[0]
        self.mn = mn
        rest = parts[1] if len(parts) > 1 else ""
        ops = split_ops(rest)
        mods = ""
        if ops:
            last = ops[-1].split(None, 1)
            ops[-1] = last[0]
            mods = last[1] if len(last) > 1 else ""
        self.ops, self.mods = ops, mods
        R = [regs_of(o) for o in ops]
        allr = lambda lst: set().union(*lst) if lst else set()
        base = re.sub(r"_(e32|e64|dpp|sdwa)$", "", mn)
        if mn.startswith("v_mfma"):
            self.cls = "mfma"
            self.passes = 8 if "32x32x16" in mn else (4 if "16x16x32" in mn else None)
            assert self.passes, mn
            self.defs = R[0]
            self.srcab = R[1] | R[2]
            self.srcc = R[3]
            self.uses = self.srcab | self.srcc | EXEC
        elif mn.startswith("v_"):
            self.cls = "trans" if base in TRANS else "valu"
            self.dpp = "_dpp" in mn or "quad_perm" in mods or "row_" in mods
            self.sdwa = "_sdwa" in mn
            if base.startswith("v_cmpx"):
                self.defs = R[0] | EXEC
                self.uses = allr(R[1:])
            elif base.startswith("v_cmp"):
                self.defs = R[0]
                self.uses = allr(R[1:])
            elif base in ("v_readfirstlane_b32",):
                self.defs = R[0]
                self.uses = R[1]
            elif base == "v_readlane_b32":
                self.defs = R[0]
                self.uses = R[1] | R[2]
                self.lane_sel = R[2]
            elif base == "v_writelane_b32":
                self.defs = R[0]
                self.uses = R[0] | R[1] | R[2]
                self.lane_sel = R[2]
            elif base.startswith("v_permlane") and "swap" in base:
                self.defs = R[0] | R[1]
                self.uses = R[0] | R[1]
            elif base in ("v_add_co_u32", "v_sub_co_u32", "v_subrev_co_u32", "v_addc_co_u32", "v_subb_co_u32",
                          "v_mad_u64_u32", "v_div_scale_f32"):
                self.defs = R[0] | R[1]
                self.uses = allr(R[2:])
            elif base in ("v_fmac_f32", "v_dot2c_f32_bf16", "v_pk_fmac_f16", "v_fmac_f16"):
                self.defs = R[0]
                self.uses = allr(R)
            elif base == "v_nop":
                pass
            else:
                self.defs = R[0]
                self.uses = allr(R[1:])
                if self.dpp or self.sdwa:
                    self.uses |= R[0]
            self.uses |= EXEC
        elif mn.startswith("buffer_") or mn.startswith("global_"):
            self.cls = "vmem"
            is_lds = re.search(r"\blds\b", mods) is not None or "load_lds" in mn
            self.lds_dma = is_lds
            if mn.startswith("buffer_wbl2") or mn.startswith("buffer_inv"):
                pass
            elif "load" in mn and not is_lds:
                self.defs = R[0]
                self.uses = allr(R[1:])
            else:
                self.uses = allr(R)
                if "atomic" in mn and re.search(r"\bsc0\b", mods):
                    self.defs = R[0]
                if "store" in mn and ("x3" in mn or "x4" in mn):
                    self.wide_store_data = R[0] if mn.startswith("buffer_") else R[1]
            if is_lds:
                self.uses |= M0
            self.uses |= EXEC
        elif mn.startswith("ds_"):
            self.cls = "ds"
            if "read" in mn or "permute" in mn or "swizzle" in mn or "_rtn" in mn:
                self.defs = R[0]
                self.uses = allr(R[1:])
            else:
                self.uses = allr(R)
            self.uses |= EXEC
        elif mn.startswith("s_"):
            self.cls = "salu"
            if mn == "s_nop":
                self.states = int(ops[0], 0) + 1
                self.cls = "nop"
            elif mn in ("s_branch",) or mn.startswith("s_cbranch"):
                self.cls = "branch"
                self.target = ops[0]
            elif mn in ("s_waitcnt", "s_barrier", "s_endpgm", "s_setprio", "s_sleep"):
                self.cls = "misc"
            elif mn.startswith("s_cmp") or mn.startswith("s_bitcmp"):
                self.uses = allr(R)
            elif mn.startswith("s_load") or mn.startswith("s_buffer_load") or mn.startswith("s_mem"):
                self.cls = "smem"
                self.defs = R[0]
                self.uses = allr(R[1:])
            elif "saveexec" in mn:
                self.defs = R[0] | EXEC
                self.uses = allr(R[1:]) | EXEC
            else:
                self.defs = R[0] if R else set()
                self.uses = allr(R[1:])
                if mn in ("s_addk_i32", "s_mulk_i32"):
                    self.uses |= R[0]
        else:
            raise ValueError("unknown instruction: " + text)


def _vregs(s):
    return {r for r in s if r[0] in "va"}


def _sregs(s):
    return {r for r in s if r[0] == "s"}


def need(p, c):
    n = 0
    pv = p.cls in ("valu", "trans")
    cv = c.cls in ("valu", "trans")
    if pv:
        pd_v, pd_s = _vregs(p.defs), _sregs(p.defs)
        if c.cls == "mfma" and pd_v & (c.srcab | c.srcc):
            n = max(n, 2)
        if c.cls == "mfma" and pd_s & EXEC:
            n = max(n, 4)
        if c.cls == "vmem" and (pd_s - EXEC) & c.uses:
            n = max(n, 5)
        if cv and (pd_s - EXEC) & c.uses:
            n = max(n, 2)
        if cv and pd_s & c.lane_sel:
            n = max(n, 4)
        if cv and c.mn.startswith(("v_readlane", "v_readfirstlane")) and pd_v & c.uses:
            n = max(n, 1)
        if cv and c.mn.startswith(("v_readlane", "v_readfirstlane", "v_writelane", "v_permlane")) and pd_s & EXEC:
            n = max(n, 4)
        if p.cls == "trans" and c.cls == "valu" and pd_v & c.uses:
            n = max(n, 1)
        if p.cls == "trans" and c.cls in ("vmem", "ds") and pd_v & c.uses:
            n = max(n, 1)
        if cv and c.mn.startswith("v_permlane") and pd_v & c.uses:
            n = max(n, 2)
        if cv and c.dpp and pd_v & c.uses:
            n = max(n, 2)
        if cv and c.dpp and pd_s & EXEC:
            n = max(n, 5)
        if cv and getattr(p, "sdwa", False) and pd_v & (c.uses | c.defs):
            n = max(n, 1)
        if c.cls in ("salu", "smem") and (pd_s - EXEC) & c.uses:
            n = max(n, 1)
    if p.cls == "mfma":
        big = 12 if p.passes == 8 else 8
        if c.cls == "mfma":
            if p.defs & c.srcab:
                n = max(n, big)
            if p.defs & c.srcc:
                if not (p.defs == c.srcc and p.passes == c.passes):
                    n = max(n, p.passes + 2)
            if p.defs & c.defs and not (p.defs == c.defs and p.passes == c.passes):
                n = max(n, p.passes + 2)
            if p.defs & c.defs and not (p.defs & c.srcc):
                n = max(n, p.passes + 2)
        elif cv or c.cls in ("vmem", "ds"):
            if p.defs & (c.uses | c.defs):
                n = max(n, big)
        if (cv or c.cls in ("vmem", "ds")) and p.srcc & c.defs:
            n = max(n, 7 if p.passes == 8 else 3)
    if p.cls == "salu" and p.defs & M0 and (c.lds_dma or "addtid" in c.mn):
        n = max(n, 1)
    if p.wide_store_data and p.wide_store_data & c.defs:
        n = max(n, 2 if cv else 1)
    return n


MAXD = 13


def pad_hazards(lines):
    ins = [Ins(l) for l in lines]
    changed = True
    total = 0
    while changed:
        changed = False
        labels = {x.label: i for i, x in enumerate(ins) if x.is_label}
        br = {}
        for i, x in enumerate(ins):
            if x.cls == "branch":
                br.setdefault(labels[x.target], []).append(i)
        out = []
        for i, c in enumerate(ins):
            if c.cls in ("none", "nop", "branch", "misc"):
                out.append(c)
                continue
            short = 0
            stack = [(i - 1, 0)]
            seen = set()
            while stack:
                j, d = stack.pop()
                while j >= 0 and d < MAXD:
                    if (j, d) in seen:
                        break
                    seen.add((j, d))
                    p = ins[j]
                    if p.is_label:
                        for b in br.get(j, []):
                            stack.append((b, d))
                        j -= 1
                        continue
                    if p.is_dir or p.empty:
                        j -= 1
                        continue
                    if p.mn in ("s_branch", "s_endpgm") and not _is_edge(ins, j, br, seen, i):
                        pass
                    k = need(p, c)
                    if k > d:
                        short = max(short, k - d)
                    d += p.states
                    j -= 1
            if short:
                out.append(Ins("    s_nop %d" % (short - 1)))
                total += 1
                changed = True
            out.append(c)
        ins = out
    return [x.text for x in ins], total


def _is_edge(ins, j, br, seen, i):
    return True


class Kern:
    def __init__(self, name):
        self.name = name
        self.lines = []
        self._uid = 0

    def __call__(self, text):
        for l in text.split("\n"):
            l = l.strip()
            if l:
                self.lines.append("    " + l if not l.endswith(":") else l)

    def label(self, name):
        self.lines.append(name + ":")

    def uid(self, base):
        self._uid += 1
        return "L_%s_%s_%d" % (self.name, base, self._uid)

    def comment(self, t):
        self.lines.append("    ; " + t)

    def finish(self, vgprs, sgprs=96, agprs=0, wg_y=False):
        lines, n = pad_hazards(self.lines)
        acc = (vgprs + 3) // 4 * 4
        nfv = acc + agprs if agprs else vgprs
        hdr = [".text", ".globl %s" % self.name, ".p2align 8", ".type %s,@function" % self.name, self.name + ":"]
        desc = [".section .rodata,\"a\"", ".p2align 6", ".amdhsa_kernel %s" % self.name,
                "  .amdhsa_next_free_vgpr %d" % nfv,
                "  .amdhsa_next_free_sgpr %d" % sgprs,
                "  .amdhsa_accum_offset %d" % acc,
                "  .amdhsa_group_segment_fixed_size 0",
                "  .amdhsa_kernarg_size 104",
                "  .amdhsa_user_sgpr_count 2",
                "  .amdhsa_user_sgpr_kernarg_segment_ptr 1",
                "  .amdhsa_system_sgpr_workgroup_id_x 1"]
        if wg_y:
            desc.append("  .amdhsa_system_sgpr_workgroup_id_y 1")
        desc += ["  .amdhsa_float_denorm_mode_32 3", "  .amdhsa_float_denorm_mode_16_64 3",
                 ".end_amdhsa_kernel"]
        for l in lines:
            x = Ins(l)
            for (k, idx) in x.defs | x.uses:
                if k == "v":
                    assert idx < vgprs, (self.name, l, vgprs)
                if k == "a":
                    assert idx < agprs, (self.name, l, agprs)
                if k == "s" and idx < 102:
                    assert idx < sgprs, (self.name, l, sgprs)
        return "\n".join(hdr + lines + desc) + "\n", n


def v(i, n=1):
    return "v%d" % i if n == 1 else "v[%d:%d]" % (i, i + n - 1)


def a(i, n=1):
    return "a%d" % i if n == 1 else "a[%d:%d]" % (i, i + n - 1)


def s(i, n=1):
    return "s%d" % i if n == 1 else "s[%d:%d]" % (i, i + n - 1)
```

```python
from common import *
from gemms import pack16, swap8

OOB = 0x7f000000


def gen_attn(name="attn_kernel", rotmul=2, force_slow=False):
    k = Kern(name)
    END, SLOW, EPI = k.uid("end"), k.uid("slow"), k.uid("epi")
    NSL = 8
    LANE, VOFF, VCUR, VNXT = 1, 4, 5, 6
    QF, NM, S0, S1, P, KA_, KB_, VA_, VB_, O, L, SEL = 8, 16, 32, 48, 64, 72, 76, 80, 84, 88, 104, 108
    S = (S0, S1)
    SRD, SRDO = 24, 28
    S_WAVE, S_HEAD, S_RT, S_KS, S_CNT, S_SLOT, S_KB, S_ST, S_CUR = 3, 20, 21, 40, 41, 42, 43, 44, 45
    k("s_cmp_ge_u32 s2, 256")
    k("s_cbranch_scc1 " + END)
    k("s_load_dwordx2 s[6:7], s[0:1], %d" % KA["ws"])
    k("v_lshrrev_b32 v2, 6, v0")
    k("v_and_b32 v%d, 63, v0" % LANE)
    k("v_readfirstlane_b32 s%d, v2" % S_WAVE)
    k("s_and_b32 s10, s2, 7")
    k("s_lshl_b32 s10, s10, 2")
    k("s_bfe_u32 s11, s2, 0x20003")
    k("s_add_u32 s%d, s10, s11" % S_HEAD)
    k("s_lshr_b32 s12, s2, 5")
    k("s_lshl_b32 s%d, s12, 3" % S_RT)
    k("s_add_u32 s%d, s%d, s%d" % (S_RT, S_RT, S_WAVE))
    k("s_mul_i32 s%d, s12, %d" % (S_KS, rotmul))
    k("s_and_b32 s%d, s%d, 15" % (S_KS, S_KS))
    k("v_lshlrev_b32 v%d, 4, v%d" % (VOFF, LANE))
    k("s_lshl_b32 s%d, s%d, 17" % (S_KB, S_HEAD))
    k("s_waitcnt lgkmcnt(0)")
    srd_ws(k, SRD, 6, "QKV")
    srd_ws(k, SRDO, 6, "O")
    k("s_lshl_b32 s13, s%d, 11" % S_RT)
    k("s_add_u32 s13, s13, s%d" % S_KB)
    k("buffer_load_dwordx4 %s, v%d, %s, s13 offen" % (v(QF, 4), VOFF, s(SRD, 4)))
    k("buffer_load_dwordx4 %s, v%d, %s, s13 offen offset:1024" % (v(QF + 4, 4), VOFF, s(SRD, 4)))
    k("s_lshl_b32 s14, s%d, 10" % S_WAVE)
    k("s_add_u32 s15, s%d, s14" % S_KB)
    k("s_add_u32 s15, s15, 0x400000")
    k("s_mov_b32 s%d, 0" % S_CNT)
    k("s_mov_b32 s%d, s14" % S_SLOT)

    def dma_stage():
        k("s_lshl_b32 s16, s%d, 13" % S_KS)
        k("s_add_u32 s16, s16, s15")
        k("s_cmp_ge_u32 s%d, 16" % S_CNT)
        k("s_cselect_b32 s16, %d, s16" % OOB)
        k("s_add_u32 s17, s16, 0x400000")
        k("s_mov_b32 m0, s%d" % S_SLOT)
        k("buffer_load_dwordx4 v%d, %s, s16 offen lds" % (VOFF, s(SRD, 4)))
        k("s_add_u32 m0, s%d, 8192" % S_SLOT)
        k("buffer_load_dwordx4 v%d, %s, s17 offen lds" % (VOFF, s(SRD, 4)))
        k("s_add_u32 s%d, s%d, 1" % (S_KS, S_KS))
        k("s_and_b32 s%d, s%d, 15" % (S_KS, S_KS))
        k("s_add_u32 s%d, s%d, 1" % (S_CNT, S_CNT))
        k("s_add_u32 s%d, s%d, 16384" % (S_SLOT, S_SLOT))
        k("s_and_b32 s%d, s%d, %d" % (S_SLOT, S_SLOT, NSL * 16384 - 1))

    for _ in range(6):
        dma_stage()
    k("v_bfe_u32 v2, v%d, 2, 1" % LANE)
    k("v_bfe_u32 v3, v%d, 4, 1" % LANE)
    k("v_cmp_eq_u32 vcc, v2, v3")
    k("v_mov_b32 v2, 0x3f803f80")
    k("v_cndmask_b32 v%d, 0, v2, vcc" % SEL)
    for e in range(1, 4):
        k("v_mov_b32 v%d, v%d" % (SEL + e, SEL))

    def zero_state():
        for e in range(16):
            k("v_mov_b32 v%d, 0" % (O + e))
        for e in range(4):
            k("v_mov_b32 v%d, 0" % (L + e))
    zero_state()
    for e in range(4):
        k("v_mov_b32 v%d, 0" % (VB_ + e))
        k("v_mov_b32 v%d, 0" % (P + 4 + e))
    k("v_mov_b32 v%d, v%d" % (VCUR, VOFF))
    k("v_add_u32 v%d, 16384, v%d" % (VNXT, VOFF))
    k("s_mov_b32 s%d, 16384" % S_CUR)
    k("s_waitcnt vmcnt(8)")
    k("s_barrier")
    k("ds_read_b128 %s, v%d" % (v(KA_, 4), VCUR))
    k("ds_read_b128 %s, v%d offset:1024" % (v(KB_, 4), VCUR))
    k("ds_read_b128 %s, v%d offset:8192" % (v(VA_, 4), VCUR))
    k("s_waitcnt lgkmcnt(0)")

    def qk(dst, c):
        return ("v_mfma_f32_32x32x16_bf16 %s, %s, %s, %s" % (v(dst, 16), v(KA_, 4), v(QF, 4), c),
                "v_mfma_f32_32x32x16_bf16 %s, %s, %s, %s" % (v(dst, 16), v(KB_, 4), v(QF + 4, 4), v(dst, 16)))

    def max16(dst, src, first):
        if first:
            k("v_max3_f32 v%d, v%d, v%d, v%d" % (dst, src, src + 1, src + 2))
            k("v_max_f32 v%d, v%d, v%d" % (dst, dst, src + 3))
            r = range(4, 16, 2)
        else:
            r = range(0, 16, 2)
        for e in r:
            k("v_max3_f32 v%d, v%d, v%d, v%d" % (dst, dst, src + e, src + e + 1))

    def set_nm(mreg):
        k("v_mov_b32 v3, v%d" % mreg)
        k("v_permlane32_swap_b32 v%d, v3" % mreg)
        k("v_max_f32 v%d, v%d, v3" % (mreg, mreg))
        for e in range(16):
            k("v_sub_f32 v%d, 0, v%d" % (NM + e, mreg))

    for m in qk(S1, "0"):
        k(m)
    max16(2, S1, True)
    set_nm(2)
    for m in qk(S0, v(NM, 16)):
        k(m)
    k("ds_read_b128 %s, v%d offset:2048" % (v(KA_, 4), VCUR))
    k("ds_read_b128 %s, v%d offset:3072" % (v(KB_, 4), VCUR))
    k("s_mov_b32 s%d, 0" % S_ST)
    k("s_waitcnt lgkmcnt(0)")

    def exps(Sx, q):
        for e in range(4):
            k("v_exp_f32 v%d, v%d" % (Sx + 4 * q + e, Sx + 4 * q + e))
        for e in range(2):
            k("v_cvt_pk_bf16_f32 v%d, v%d, v%d" % (P + 2 * q + e, Sx + 4 * q + 2 * e, Sx + 4 * q + 2 * e + 1))

    def pv(vf, pf):
        k("v_mfma_f32_32x32x16_bf16 %s, %s, %s, %s" % (v(O, 16), v(vf, 4), v(pf, 4), v(O, 16)))
        k("v_mfma_f32_16x16x32_bf16 %s, %s, %s, %s" % (v(L, 4), v(SEL, 4), v(pf, 4), v(L, 4)))

    def addr(tt):
        return (VCUR, tt * 2048) if tt < 4 else (VNXT, (tt - 4) * 2048)

    LOOP = k.uid("loop")
    k.label(LOOP)
    dma_stage()
    for tt in range(4):
        Sc, Sn = S[tt & 1], S[(tt + 1) & 1]
        m1, m3 = qk(Sn, v(NM, 16))
        ra, oa = addr(tt + 2)
        k("s_waitcnt lgkmcnt(3)")
        k(m1)
        k("ds_read_b128 %s, v%d offset:%d" % (v(KA_, 4), ra, oa))
        exps(Sc, 0)
        k("s_waitcnt lgkmcnt(3)")
        pv(VB_, P + 4)
        k("ds_read_b128 %s, v%d offset:%d" % (v(VB_, 4), VCUR, 8192 + tt * 2048 + 1024))
        exps(Sc, 1)
        k("s_waitcnt lgkmcnt(3)")
        k(m3)
        k("ds_read_b128 %s, v%d offset:%d" % (v(KB_, 4), ra, oa + 1024))
        exps(Sc, 2)
        k("s_waitcnt lgkmcnt(3)")
        pv(VA_, P)
        rv, ov = addr(tt + 1)
        k("ds_read_b128 %s, v%d offset:%d" % (v(VA_, 4), rv, 8192 + ov))
        exps(Sc, 3)
    k("v_mov_b32 v%d, v%d" % (VCUR, VNXT))
    k("s_add_u32 s%d, s%d, 16384" % (S_CUR, S_CUR))
    k("s_and_b32 s%d, s%d, %d" % (S_CUR, S_CUR, NSL * 16384 - 1))
    k("v_add_u32 v%d, s%d, v%d" % (VNXT, S_CUR, VOFF))
    k("s_add_u32 s%d, s%d, 1" % (S_ST, S_ST))
    k("s_waitcnt vmcnt(8)")
    k("s_barrier")
    k("s_cmp_lt_u32 s%d, 16" % S_ST)
    k("s_cbranch_scc1 " + LOOP)
    k("s_waitcnt lgkmcnt(0)")
    pv(VB_, P + 4)
    k("v_mov_b32 v2, v%d" % L)
    for e in range(16):
        k("v_fma_f32 v2, v%d, 0, v2" % (O + e))
    k("v_mov_b32 v3, %s" % fhex(2.0 ** 100 if not force_slow else -1.0))
    k("v_cmp_nlt_f32 vcc, v2, v3")
    k("s_cbranch_vccnz " + SLOW)
    k.label(EPI)
    k("v_rcp_f32 v2, v%d" % L)
    k("v_mov_b32 v3, v2")
    for e in range(0, 16, 2):
        k("v_pk_mul_f32 %s, %s, v[2:3]" % (v(O + e, 2), v(O + e, 2)))
    pack16(k, P, O)
    swap8(k, P)
    k("s_lshr_b32 s10, s%d, 2" % S_RT)
    k("s_lshl_b32 s10, s10, 18")
    k("s_lshl_b32 s11, s%d, 13" % S_HEAD)
    k("s_add_u32 s10, s10, s11")
    k("s_and_b32 s11, s%d, 3" % S_RT)
    k("s_lshl_b32 s11, s11, 10")
    k("s_add_u32 s10, s10, s11")
    k("s_add_u32 s11, s10, 4096")
    k("buffer_store_dwordx4 %s, v%d, %s, s10 offen" % (v(P, 4), VOFF, s(SRDO, 4)))
    k("buffer_store_dwordx4 %s, v%d, %s, s11 offen" % (v(P + 4, 4), VOFF, s(SRDO, 4)))
    k.label(END)
    k("s_endpgm")

    k.label(SLOW)
    k("s_waitcnt vmcnt(0)")
    LA, LB = k.uid("slowa"), k.uid("slowb")
    k("s_add_u32 s16, s%d, 0x400000" % S_KB)
    k("s_mov_b32 s%d, 0" % S_ST)
    k("v_mov_b32 v2, 0xff800000")
    k.label(LA)
    k("buffer_load_dwordx4 %s, v%d, %s, s16 offen" % (v(KA_, 4), VOFF, s(SRD, 4)))
    k("buffer_load_dwordx4 %s, v%d, %s, s16 offen offset:1024" % (v(KB_, 4), VOFF, s(SRD, 4)))
    k("s_waitcnt vmcnt(0)")
    for m in qk(S0, "0"):
        k(m)
    max16(2, S0, False)
    k("s_add_u32 s16, s16, 2048")
    k("s_add_u32 s%d, s%d, 1" % (S_ST, S_ST))
    k("s_cmp_lt_u32 s%d, 64" % S_ST)
    k("s_cbranch_scc1 " + LA)
    set_nm(2)
    zero_state()
    k("s_add_u32 s16, s%d, 0x400000" % S_KB)
    k("s_add_u32 s17, s%d, 0x800000" % S_KB)
    k("s_mov_b32 s%d, 0" % S_ST)
    k.label(LB)
    k("buffer_load_dwordx4 %s, v%d, %s, s16 offen" % (v(KA_, 4), VOFF, s(SRD, 4)))
    k("buffer_load_dwordx4 %s, v%d, %s, s16 offen offset:1024" % (v(KB_, 4), VOFF, s(SRD, 4)))
    k("buffer_load_dwordx4 %s, v%d, %s, s17 offen" % (v(VA_, 4), VOFF, s(SRD, 4)))
    k("buffer_load_dwordx4 %s, v%d, %s, s17 offen offset:1024" % (v(VB_, 4), VOFF, s(SRD, 4)))
    k("s_waitcnt vmcnt(0)")
    for m in qk(S0, v(NM, 16)):
        k(m)
    for q in range(4):
        exps(S0, q)
    pv(VA_, P)
    pv(VB_, P + 4)
    k("s_add_u32 s16, s16, 2048")
    k("s_add_u32 s17, s17, 2048")
    k("s_add_u32 s%d, s%d, 1" % (S_ST, S_ST))
    k("s_cmp_lt_u32 s%d, 64" % S_ST)
    k("s_cbranch_scc1 " + LB)
    k("s_branch " + EPI)
    txt, n = k.finish(vgprs=112, sgprs=64)
    return txt, "; @launch kernel=%s grid=(256,1,1) block=(512,1,1) lds=%d" % (name, NSL * 16384)
```

```python
import struct
from asmlib import *

KA = dict(x=0, wqkv=8, wo=16, bx=24, w_in=32, w_sp=40, b_sp=48, w_out=56, c=64, w_mod=72, out=80, dbg=88, ws=96)
SZ = dict(x=4194304, wqkv=6291456, wo=2097152, w_in=7340032, w_sp=8388608, b_sp=4096, w_out=3670016, c=2048,
          w_mod=12582912, out=4194304)

WS = dict(
    MODP=(0x0, 49152),
    ST=(0x10000, 32768),
    ST2=(0x10000, 16384),
    ST3=(0x14000, 16384),
    XN=(0x100000, 0x400000),
    QKV=(0x500000, 0xC00000),
    O=(0x1100000, 0x400000),
    X1=(0x1500000, 0x400000),
    Z1=(0x1900000, 0x700000),
    Z2=(0x2000000, 0x700000),
    U=(0x2700000, 0x700000),
)


def f2u(x):
    return struct.unpack("<I", struct.pack("<f", x))[0]


def fhex(x):
    return "0x%08x" % f2u(x)


def srd_in(k, dst, ptr, size):
    k("s_mov_b32 s%d, s%d" % (dst, ptr))
    k("s_mov_b32 s%d, s%d" % (dst + 1, ptr + 1))
    k("s_mov_b32 s%d, %d" % (dst + 2, size))
    k("s_mov_b32 s%d, 0x20000" % (dst + 3))


def srd_ws(k, dst, wsptr, region):
    off, size = WS[region]
    k("s_add_u32 s%d, s%d, %d" % (dst, wsptr, off))
    k("s_addc_u32 s%d, s%d, 0" % (dst + 1, wsptr + 1))
    k("s_mov_b32 s%d, %d" % (dst + 2, size))
    k("s_mov_b32 s%d, 0x20000" % (dst + 3))


def unpack_bf16(k, lo, hi, src):
    k("v_lshlrev_b32 v%d, 16, v%d" % (lo, src))
    k("v_and_b32 v%d, 0xffff0000, v%d" % (hi, src))
```

```python
from common import *

OOB = 0x7f000000

S_WAVE, S_BM, S_BN, S_ROT = 3, 20, 21, 22
SRD_X, SRD_W = 24, 28
SRD_E0, SRD_E1, SRD_E2, SRD_E3 = 32, 36, 40, 44
V_LANE = 1


def map_16x16(k, ra, rb, T):
    k("s_and_b32 s48, s2, 7")
    k("s_lshr_b32 s49, s2, 3")
    k("s_and_b32 s50, s49, 7")
    k("s_lshr_b32 s51, s49, 3")
    k("s_and_b32 s52, s48, 1")
    k("s_lshl_b32 s52, s52, 3")
    k("s_add_u32 s%d, s52, s50" % S_BM)
    k("s_lshr_b32 s52, s48, 1")
    k("s_lshl_b32 s52, s52, 2")
    k("s_add_u32 s%d, s52, s51" % S_BN)
    _rot(k, ra, rb, T)


def map_16x14(k, ra, rb, T):
    k("s_and_b32 s48, s2, 7")
    k("s_lshr_b32 s49, s2, 3")
    k("s_and_b32 s50, s49, 3")
    k("s_lshr_b32 s51, s49, 2")
    k("s_and_b32 s52, s48, 3")
    k("s_lshl_b32 s52, s52, 2")
    k("s_add_u32 s%d, s52, s50" % S_BM)
    k("s_lshr_b32 s52, s48, 2")
    k("s_mul_i32 s52, s52, 7")
    k("s_add_u32 s%d, s52, s51" % S_BN)
    _rot(k, ra, rb, T)


def _rot(k, ra, rb, T):
    k("s_mul_i32 s50, s50, %d" % ra)
    k("s_mul_i32 s51, s51, %d" % rb)
    k("s_add_u32 s%d, s50, s51" % S_ROT)
    for _ in range(3):
        k("s_cmp_ge_u32 s%d, %d" % (S_ROT, T))
        k("s_cselect_b32 s50, %d, 0" % T)
        k("s_sub_u32 s%d, s%d, s50" % (S_ROT, S_ROT))


class Dma:
    def __init__(self, srd, vreg, consts, stride, ring, slot, sbase):
        self.srd, self.vreg, self.consts, self.stride, self.ring, self.slot, self.sbase = \
            srd, vreg, consts, stride, ring, slot, sbase


def gemm(name, cfg):
    k = Kern(name)
    T, NWG = cfg["T"], cfg["NWG"]
    MT, NT = cfg["MT"], cfg["NT"]
    NS = cfg["NS"]
    END, PROD = k.uid("end"), k.uid("prod")
    k("s_cmp_ge_u32 s2, %d" % NWG)
    k("s_cbranch_scc1 " + END)
    cfg["load_ptrs"](k)
    k("v_lshrrev_b32 v2, 6, v0")
    k("v_and_b32 v%d, 63, v0" % V_LANE)
    k("v_readfirstlane_b32 s%d, v2" % S_WAVE)
    cfg["map"](k)
    k("s_waitcnt lgkmcnt(0)")
    cfg["srds"](k)
    k("s_cmp_ge_u32 s%d, 4" % S_WAVE)
    k("s_cbranch_scc1 " + PROD)

    xr, wr = cfg["x_ring"], cfg["w_ring"]
    ACC = cfg["ACC"]
    FR = cfg["FRAG"]
    fsz = 4 * (MT + NT)
    VX0, VW0, VX, VW = 4, 5, 6, 10
    if cfg["wgrid"] == "2x2":
        k("s_lshr_b32 s48, s%d, 1" % S_WAVE)
        k("s_and_b32 s49, s%d, 1" % S_WAVE)
    else:
        k("s_mov_b32 s48, s%d" % S_WAVE)
        k("s_mov_b32 s49, 0")
    S_WM, S_WN = 48, 49
    if cfg.get("table"):
        cfg["table"](k)
        k("s_waitcnt lgkmcnt(0)")
        k("s_barrier")
    if cfg.get("cons_pre"):
        cfg["cons_pre"](k)
    swz = cfg["x_mode"] == "dma_swz"
    if swz:
        k("v_and_b32 v2, 31, v%d" % V_LANE)
        k("v_lshrrev_b32 v3, 5, v%d" % V_LANE)
        k("v_bfe_u32 v%d, v%d, 1, 3" % (VX0, V_LANE))
        k("v_xor_b32 v%d, v%d, v3" % (VX0, VX0))
        k("v_lshlrev_b32 v%d, 4, v%d" % (VX0, VX0))
        k("v_lshl_add_u32 v%d, v2, 7, v%d" % (VX0, VX0))
        k("s_mul_i32 s50, s%d, %d" % (S_WM, MT * 4096))
        k("s_add_u32 s50, s50, %d" % xr[0])
        k("v_add_u32 v%d, s50, v%d" % (VX0, VX0))
    else:
        k("s_mul_i32 s50, s%d, %d" % (S_WM, MT * 1024))
        k("s_add_u32 s50, s50, %d" % xr[0])
        k("v_lshl_add_u32 v%d, v%d, 4, s50" % (VX0, V_LANE))
    NB = cfg["NB"]
    k("v_lshrrev_b32 v2, 5, v%d" % V_LANE)
    k("v_mul_u32_u24 v%d, %d, v2" % (VW0, 2 * NB * 256))
    k("v_bfe_u32 v2, v%d, 2, 2" % V_LANE)
    k("v_lshl_add_u32 v%d, v2, 6, v%d" % (VW0, VW0))
    k("v_bfe_u32 v2, v%d, 4, 1" % V_LANE)
    k("v_lshl_add_u32 v%d, v2, 5, v%d" % (VW0, VW0))
    k("v_and_b32 v2, 3, v%d" % V_LANE)
    k("v_lshl_add_u32 v%d, v2, 3, v%d" % (VW0, VW0))
    k("s_mul_i32 s50, s%d, %d" % (S_WN, cfg["w_wave_stride"]))
    k("s_add_u32 s50, s50, %d" % wr[0])
    k("v_add_u32 v%d, s50, v%d" % (VW0, VW0))
    for i in range(16 * MT * NT):
        k("v_mov_b32 v%d, 0" % (ACC + i))
    S_XS, S_WS, S_T = 52, 53, 54

    def set_addr():
        k("v_add_u32 v%d, s%d, v%d" % (VX, S_XS, VX0))
        k("v_add_u32 v%d, s%d, v%d" % (VW, S_WS, VW0))
        if swz:
            for ks in range(1, 4):
                k("v_xor_b32 v%d, %d, v%d" % (VX + ks, ks * 32, VX))

    def adv_slots():
        for (sr, ring) in ((S_XS, xr), (S_WS, wr)):
            k("s_add_u32 s%d, s%d, %d" % (sr, sr, ring[1]))
            k("s_cmp_ge_u32 s%d, %d" % (sr, ring[1] * ring[2]))
            k("s_cselect_b32 s%d, 0, s%d" % (sr, sr))

    def reads(ks, f):
        o = []
        base = FR + f * fsz
        xs, ws = [], []
        for i in range(MT):
            if swz:
                xs.append("ds_read_b128 %s, v%d offset:%d" % (v(base + 4 * i, 4), VX + ks, i * 4096))
            else:
                xs.append("ds_read_b128 %s, v%d offset:%d" % (v(base + 4 * i, 4), VX, ks * 4096 + i * 1024))
        for j in range(NT):
            for rd in range(2):
                off = cfg["w_tile_off"](j) + (4 * ks + rd) * NB * 256
                ws.append("ds_read_b64_tr_b16 %s, v%d offset:%d" % (v(base + 4 * MT + 4 * j + 2 * rd, 2), VW, off))
        o.append(xs[0])
        o += ws[0:2]
        o += xs[1:]
        o += ws[2:]
        return o

    def mfmas(f):
        o = []
        base = FR + f * fsz
        for j in range(NT):
            for i in range(MT):
                acc = v(ACC + 16 * (i * NT + j), 16)
                xf, wf = v(base + 4 * i, 4), v(base + 4 * MT + 4 * j, 4)
                if cfg.get("swap_tile", lambda j: False)(j):
                    o.append("v_mfma_f32_32x32x16_bf16 %s, %s, %s, %s" % (acc, xf, wf, acc))
                else:
                    o.append("v_mfma_f32_32x32x16_bf16 %s, %s, %s, %s" % (acc, wf, xf, acc))
        return o

    def interleave(ms, rs, per):
        rs = list(rs)
        for m in ms:
            k(m)
            for _ in range(per):
                if rs:
                    k(rs.pop(0))
        for r in rs:
            k(r)

    k("s_mov_b32 s%d, 0" % S_XS)
    k("s_mov_b32 s%d, 0" % S_WS)
    k("s_mov_b32 s%d, 0" % S_T)
    set_addr()
    k("s_barrier")
    for r in reads(0, 0):
        k(r)
    LOOP = k.uid("cloop")
    nrd = MT + 2 * NT
    per = cfg.get("reads_per_mfma", max(2, -(-nrd // max(1, MT * NT - 1))))
    k.label(LOOP)
    for ks in range(3):
        k("s_waitcnt lgkmcnt(0)")
        interleave(mfmas(ks & 1), reads(ks + 1, (ks + 1) & 1), per)
        if ks == 0:
            adv_slots()
            k("s_add_u32 s%d, s%d, 1" % (S_T, S_T))
    k("s_waitcnt lgkmcnt(0)")
    ms = mfmas(1)
    k(ms[0])
    set_addr()
    k("s_barrier")
    interleave(ms[1:], reads(0, 0), per + 1)
    k("s_cmp_lt_u32 s%d, %d" % (S_T, T))
    k("s_cbranch_scc1 " + LOOP)
    k("s_waitcnt lgkmcnt(0)")
    cfg["epilogue"](k)
    k("s_endpgm")

    k.label(PROD)
    k("s_sub_u32 s%d, s%d, 4" % (S_WAVE, S_WAVE))
    dmas = cfg["dma_setup"](k)
    vg = cfg.get("vg")
    S_KD, S_CD, S_SD = 60, 61, 62
    S_KV, S_CV, S_KT = 63, 64, 65
    S_TMP, S_OFF, S_M = 66, 68, 72
    S_VOFF, S_IT = 76, 77
    nD = sum(len(d.consts) for d in dmas)
    k("s_mov_b32 s%d, s%d" % (S_KD, S_ROT))
    k("s_mov_b32 s%d, 0" % S_CD)
    k("s_mov_b32 s%d, 0" % S_SD)

    def wrap_inc(sr):
        k("s_add_u32 s%d, s%d, 1" % (sr, sr))
        k("s_cmp_ge_u32 s%d, %d" % (sr, T))
        k("s_cselect_b32 s%d, 0, s%d" % (sr, sr))

    def dma_step():
        for n, d in enumerate(dmas):
            k("s_mul_i32 s%d, s%d, %d" % (S_OFF + n, S_KD, d.stride))
            k("s_add_u32 s%d, s%d, s%d" % (S_OFF + n, S_OFF + n, d.sbase))
            k("s_cmp_ge_u32 s%d, %d" % (S_CD, T))
            k("s_cselect_b32 s%d, %d, s%d" % (S_OFF + n, OOB, S_OFF + n))
            k("s_mul_i32 s%d, s%d, %d" % (S_M + n, S_SD, d.slot))
            k("s_lshl_b32 s%d, s%d, 10" % (S_TMP, S_WAVE))
            k("s_add_u32 s%d, s%d, s%d" % (S_M + n, S_M + n, S_TMP))
        for n, d in enumerate(dmas):
            for i, c in enumerate(d.consts):
                k("s_add_u32 m0, s%d, %d" % (S_M + n, d.ring + i * 4096))
                k("s_add_u32 s%d, s%d, %d" % (S_TMP + (i & 1), S_OFF + n, c))
                k("buffer_load_dwordx4 v%d, %s, s%d offen lds" % (d.vreg, s(d.srd, 4), S_TMP + (i & 1)))
        wrap_inc(S_KD)
        k("s_add_u32 s%d, s%d, 1" % (S_CD, S_CD))
        k("s_add_u32 s%d, s%d, 1" % (S_SD, S_SD))
        k("s_cmp_ge_u32 s%d, %d" % (S_SD, NS))
        k("s_cselect_b32 s%d, 0, s%d" % (S_SD, S_SD))

    if vg:
        VR, VOFF, VLDS = vg["regs"], vg["voff"], vg["vlds"]
        k("s_lshl_b32 s%d, s%d, 12" % (S_TMP, S_WAVE))
        k("v_lshl_add_u32 v%d, v%d, 4, s%d" % (VOFF, V_LANE, S_TMP))
        k("v_add_u32 v%d, %d, v%d" % (VLDS, vg["ring"], VOFF))
        k("s_mov_b32 s%d, s%d" % (S_KV, S_ROT))
        k("s_mov_b32 s%d, s%d" % (S_KT, S_ROT))
        k("s_mov_b32 s%d, 0" % S_CV)

        def vg_load(set_):
            k("s_lshl_b32 s%d, s%d, 14" % (S_VOFF, S_KV))
            k("s_add_u32 s%d, s%d, s%d" % (S_VOFF, S_VOFF, vg["sbase"]))
            k("s_cmp_ge_u32 s%d, %d" % (S_CV, T))
            k("s_cselect_b32 s%d, %d, s%d" % (S_VOFF, OOB, S_VOFF))
            for i in range(4):
                k("buffer_load_dwordx4 %s, v%d, %s, s%d offen offset:%d" %
                  (v(VR + 16 * set_ + 4 * i, 4), VOFF, s(vg["srd"], 4), S_VOFF, i * 1024))
            wrap_inc(S_KV)
            k("s_add_u32 s%d, s%d, 1" % (S_CV, S_CV))

        def vg_xform(set_, wait):
            vg["params"](k, S_KT)
            k("s_waitcnt vmcnt(%d) lgkmcnt(0)" % wait)
            for i in range(4):
                vg["xform"](k, VR + 16 * set_ + 4 * i, i)
                k("ds_write_b128 v%d, %s offset:%d" % (VLDS, v(VR + 16 * set_ + 4 * i, 4), set_ * 16384 + i * 1024))
            wrap_inc(S_KT)

        if vg.get("pre_load"):
            vg["pre_load"](k)
        vg_load(0)
        dma_step()
        vg_load(1)
        for _ in range(NS - 2):
            dma_step()
        if vg.get("pre_fin"):
            k("s_waitcnt vmcnt(%d)" % (8 + (NS - 1) * nD))
            vg["pre_fin"](k)
        if cfg.get("table"):
            k("s_barrier")
        vg_xform(0, nD + 4 + (NS - 2) * nD)
        k("s_waitcnt lgkmcnt(0)")
        vg_load(0)
        k("s_waitcnt vmcnt(%d)" % (4 + (NS - 2) * nD + 4))
        k("s_barrier")
        k("s_mov_b32 s%d, 0" % S_IT)
        LOOP = k.uid("ploop")
        k.label(LOOP)
        assert NS == 3 or True
        for u in range(2):
            dma_step()
            vg_xform((u + 1) & 1, 2 * nD + 4)
            k("s_waitcnt lgkmcnt(0)")
            vg_load((u + 1) & 1)
            k("s_waitcnt vmcnt(%d)" % ((NS - 2) * nD + 8))
            k("s_barrier")
        k("s_add_u32 s%d, s%d, 2" % (S_IT, S_IT))
        k("s_cmp_lt_u32 s%d, %d" % (S_IT, T))
        k("s_cbranch_scc1 " + LOOP)
    else:
        for _ in range(NS - 1):
            dma_step()
        if cfg.get("table"):
            k("s_barrier")
        k("s_waitcnt vmcnt(%d)" % ((NS - 2) * nD))
        k("s_barrier")
        k("s_mov_b32 s%d, 0" % S_IT)
        LOOP = k.uid("ploop")
        k.label(LOOP)
        dma_step()
        k("s_waitcnt vmcnt(%d)" % ((NS - 2) * nD))
        k("s_barrier")
        k("s_add_u32 s%d, s%d, 1" % (S_IT, S_IT))
        k("s_cmp_lt_u32 s%d, %d" % (S_IT, T))
        k("s_cbranch_scc1 " + LOOP)
    k("s_waitcnt vmcnt(0)")
    k.label(END)
    k("s_endpgm")
    txt, n = k.finish(vgprs=cfg["vgprs"], sgprs=96)
    return txt, "; @launch kernel=%s grid=(%d,1,1) block=(512,1,1) lds=%d" % (name, NWG, cfg["lds"])
```

```python
from gemm import *
import math

LOG2E = 1.4426950408889634
S_WM, S_WN = 48, 49


def w_voff(k, vreg, NB, ldb):
    k("v_bfe_u32 v2, v%d, 2, 2" % V_LANE)
    k("v_and_b32 v3, 3, v%d" % V_LANE)
    k("v_lshlrev_b32 v%d, 4, v3" % vreg)
    if NB == 2:
        k("v_lshrrev_b32 v3, 5, v%d" % V_LANE)
        k("v_lshl_add_u32 v2, v3, 2, v2")
        k("s_lshl_b32 s50, s%d, 3" % S_WAVE)
        k("v_add_u32 v2, s50, v2")
        k("v_bfe_u32 v3, v%d, 4, 1" % V_LANE)
        k("v_lshl_add_u32 v%d, v3, 6, v%d" % (vreg, vreg))
    elif NB == 8:
        k("s_lshr_b32 s50, s%d, 1" % S_WAVE)
        k("s_lshl_b32 s50, s50, 2")
        k("v_add_u32 v2, s50, v2")
        k("v_lshrrev_b32 v3, 4, v%d" % V_LANE)
        k("v_lshl_add_u32 v%d, v3, 6, v%d" % (vreg, vreg))
        k("s_and_b32 s50, s%d, 1" % S_WAVE)
        k("s_lshl_b32 s50, s50, 8")
        k("v_add_u32 v%d, s50, v%d" % (vreg, vreg))
    else:
        raise ValueError
    k("s_mov_b32 s50, %d" % ldb)
    k("v_mul_lo_u32 v2, v2, s50")
    k("v_add_u32 v%d, v2, v%d" % (vreg, vreg))


def mod_table(TAB, ci, si, T0):
    def f(k):
        k("v_lshlrev_b32 v2, 4, v0")
        for n, (idx, p) in enumerate(((ci, 0), (ci, 1), (si, 0), (si, 1))):
            k("s_mov_b32 s%d, %d" % (56 + n, (p * 6144 + idx * 1024) * 4))
            k("buffer_load_dwordx4 %s, v2, %s, s%d offen" % (v(T0 + 4 * n, 4), s(SRD_E0, 4), 56 + n))
        k("v_lshrrev_b32 v2, 1, v0")
        k("v_lshlrev_b32 v2, 6, v2")
        k("v_and_b32 v3, 1, v0")
        k("v_lshl_add_u32 v2, v3, 4, v2")
        k("v_add_u32 v2, %d, v2" % TAB)
        k("s_waitcnt vmcnt(0)")
        for e in range(4):
            k("v_add_f32 v%d, v%d, v%d" % (T0 + e, T0 + e, T0 + 4 + e))
            k("v_add_f32 v%d, v%d, v%d" % (T0 + 8 + e, T0 + 8 + e, T0 + 12 + e))
        for b in (T0, T0 + 8):
            for e in (0, 2):
                k("v_cvt_pk_bf16_f32 v3, v%d, v%d" % (b + e, b + e + 1))
                unpack_bf16(k, b + e, b + e + 1, 3)
        for e in range(4):
            k("v_add_f32 v%d, 1.0, v%d" % (T0 + e, T0 + e))
        for e in (0, 2):
            k("v_cvt_pk_bf16_f32 v3, v%d, v%d" % (T0 + e, T0 + e + 1))
            unpack_bf16(k, T0 + e, T0 + e + 1, 3)
        k("ds_write_b128 v2, %s" % v(T0, 4))
        k("ds_write_b128 v2, %s offset:32" % v(T0 + 8, 4))
    return f


def pack16(k, P, A):
    for d in range(8):
        k("v_cvt_pk_bf16_f32 v%d, v%d, v%d" % (P + d, A + 2 * d, A + 2 * d + 1))


def swap8(k, P):
    for p in (0, 4):
        k("v_permlane32_swap_b32 v%d, v%d" % (P + p, P + p + 2))
        k("v_permlane32_swap_b32 v%d, v%d" % (P + p + 1, P + p + 3))


def mod_cols_load(k, idx, R, T2):
    k("v_lshrrev_b32 v2, 5, v%d" % V_LANE)
    k("v_lshlrev_b32 v2, 4, v2")
    k("s_lshl_b32 s56, s%d, 8" % S_BN)
    k("s_add_u32 s56, s56, %d" % (idx * 4096))
    k("s_add_u32 s57, s56, %d" % (6144 * 4))
    for jg in range(8):
        k("buffer_load_dwordx4 %s, v2, %s, s56 offen offset:%d" % (v(R + 4 * jg, 4), s(SRD_E0, 4), jg * 32))
        k("buffer_load_dwordx4 %s, v2, %s, s57 offen offset:%d" % (v(T2 + 4 * jg, 4), s(SRD_E0, 4), jg * 32))


def mod_cols_fin(k, R, T2):
    for e in range(0, 32, 2):
        k("v_pk_add_f32 %s, %s, %s" % (v(R + e, 2), v(R + e, 2), v(T2 + e, 2)))
        k("v_cvt_pk_bf16_f32 v3, v%d, v%d" % (R + e, R + e + 1))
        unpack_bf16(k, R + e, R + e + 1, 3)


def gen_g1(rot=(2, 4)):
    TAB = 32768 + 3 * 24576
    FR, ACC = 16, 56

    def load_ptrs(k):
        k("s_load_dwordx2 s[4:5], s[0:1], %d" % KA["wqkv"])
        k("s_load_dwordx2 s[6:7], s[0:1], %d" % KA["ws"])

    def srds(k):
        srd_ws(k, SRD_X, 6, "XN")
        srd_in(k, SRD_W, 4, SZ["wqkv"])
        srd_ws(k, SRD_E0, 6, "MODP")
        srd_ws(k, SRD_E1, 6, "QKV")

    def dma_setup(k):
        w_voff(k, 4, 2, 6144)
        k("s_lshl_b32 s80, s%d, 7" % S_BN)
        k("s_lshl_b32 s81, s%d, 18" % S_BM)
        k("v_lshrrev_b32 v2, 5, v%d" % V_LANE)
        k("v_lshlrev_b32 v7, 6, v2")
        k("s_lshl_b32 s50, s%d, 7" % S_WAVE)
        k("s_add_u32 s50, s50, %d" % TAB)
        k("v_add_u32 v7, s50, v7")
        consts = [(i >> 1) * 2048 + (i & 1) * 32 * 6144 for i in range(6)]
        return [Dma(SRD_W, 4, consts, 64 * 6144, 32768, 24576, 80)]

    PG, TT = 48, 64

    def params(k, skt):
        k("s_lshl_b32 s78, s%d, 9" % skt)
        k("v_add_u32 v8, s78, v7")
        for q in range(4):
            k("ds_read_b128 %s, v8 offset:%d" % (v(PG + 4 * q, 4), q * 16))

    def xform(k, R, i):
        for d in range(4):
            unpack_bf16(k, TT + 2 * d, TT + 2 * d + 1, R + d)
        for d in range(4):
            k("v_pk_fma_f32 %s, %s, %s, %s" % (v(TT + 2 * d, 2), v(TT + 2 * d, 2), v(PG + 2 * d, 2), v(PG + 8 + 2 * d, 2)))
        for d in range(4):
            k("v_cvt_pk_bf16_f32 v%d, v%d, v%d" % (R + d, TT + 2 * d, TT + 2 * d + 1))

    def epilogue(k):
        qs = 32 ** -0.5 * LOG2E
        k("v_lshlrev_b32 v2, 4, v%d" % V_LANE)
        k("s_lshl_b32 s56, s%d, 1" % S_BN)
        k("s_add_u32 s56, s56, s%d" % S_WN)
        k("s_lshl_b32 s56, s56, 17")
        k("s_lshl_b32 s57, s%d, 13" % S_BM)
        k("s_add_u32 s56, s56, s57")
        k("s_lshl_b32 s57, s%d, 12" % S_WM)
        k("s_add_u32 s56, s56, s57")
        k("s_add_u32 s57, s56, 0x400000")
        k("s_add_u32 s58, s56, 0x800000")
        k("s_mov_b32 s60, %s" % fhex(qs))
        k("s_mov_b32 s61, %s" % fhex(qs))
        n = 0
        for j in range(3):
            for i in range(2):
                A = ACC + 16 * (i * 3 + j)
                P = FR + 8 * (n % 4)
                n += 1
                if j == 0:
                    for e in range(0, 16, 2):
                        k("v_pk_mul_f32 %s, %s, s[60:61]" % (v(A + e, 2), v(A + e, 2)))
                pack16(k, P, A)
                if j != 2:
                    swap8(k, P)
                for mf in range(2):
                    k("buffer_store_dwordx4 %s, v2, %s, s%d offen offset:%d" %
                      (v(P + 4 * mf, 4), s(SRD_E1, 4), 56 + j, i * 2048 + mf * 1024))

    cfg = dict(T=16, NWG=256, MT=2, NT=3, NS=3, NB=2, wgrid="2x2", load_ptrs=load_ptrs, srds=srds,
               map=lambda k: map_16x16(k, rot[0], rot[1], 16),
               x_ring=(0, 16384, 2), w_ring=(32768, 24576, 3), x_mode="vg",
               w_wave_stride=256, w_tile_off=lambda j: j * 8192, swap_tile=lambda j: j == 2,
               FRAG=FR, ACC=ACC, table=mod_table(TAB, 1, 0, FR), dma_setup=dma_setup,
               vg=dict(regs=16, voff=5, vlds=6, ring=0, srd=SRD_X, sbase=81, params=params, xform=xform),
               epilogue=epilogue, vgprs=152, lds=TAB + 8192)
    return gemm("g1_kernel", cfg)


def gen_g25(which, rot=(2, 4), NS=5):
    T = 16 if which == 2 else 28
    FR, ACC, GA, XR, T2 = 16, 40, 72, 104, 120
    wname = "wo" if which == 2 else "w_out"

    def load_ptrs(k):
        k("s_load_dwordx2 s[4:5], s[0:1], %d" % KA[wname])
        k("s_load_dwordx2 s[6:7], s[0:1], %d" % KA["ws"])
        k("s_load_dwordx2 s[8:9], s[0:1], %d" % KA["x" if which == 2 else "out"])

    def srds(k):
        srd_ws(k, SRD_X, 6, "O" if which == 2 else "U")
        srd_in(k, SRD_W, 4, SZ[wname])
        srd_ws(k, SRD_E0, 6, "MODP")
        srd_ws(k, SRD_E1, 6, "X1")
        srd_in(k, SRD_E2, 8, SZ["x"])
        srd_ws(k, SRD_E3, 6, "ST2")

    def dma_setup(k):
        w_voff(k, 4, 2, 2048)
        k("s_lshl_b32 s80, s%d, 7" % S_BN)
        k("s_mul_i32 s81, s%d, %d" % (S_BM, T * 16384))
        k("s_lshl_b32 s50, s%d, 10" % S_WAVE)
        k("v_lshl_add_u32 v5, v%d, 4, s50" % V_LANE)
        return [Dma(SRD_X, 5, [i * 4096 for i in range(4)], 16384, 0, 16384, 81),
                Dma(SRD_W, 4, [i * 32 * 2048 for i in range(2)], 64 * 2048, NS * 16384, 8192, 80)]

    def cons_pre(k):
        mod_cols_load(k, 2 if which == 2 else 5, GA, T2)
        k("v_and_b32 v2, 31, v%d" % V_LANE)
        k("v_lshrrev_b32 v3, 5, v%d" % V_LANE)
        k("v_lshlrev_b32 v12, 11, v2")
        k("s_lshl_b32 s58, s%d, 18" % S_BM)
        k("s_lshl_b32 s59, s%d, 16" % S_WAVE)
        k("s_add_u32 s58, s58, s59")
        k("s_lshl_b32 s59, s%d, 7" % S_BN)
        k("s_add_u32 s58, s58, s59")
        k("s_lshl_b32 s59, s%d, 4" % S_BM)
        k("s_add_u32 s59, s59, s%d" % S_BN)
        k("s_lshl_b32 s59, s59, 4")
        k("s_add_u32 s59, s59, s%d" % S_WAVE)
        k("s_lshl_b32 s59, s59, 10")
        if which == 2:
            k("v_lshl_add_u32 v13, v3, 3, v12")
            for jg in range(8):
                k("buffer_load_dwordx2 %s, v13, %s, s58 offen offset:%d" % (v(XR + 2 * jg, 2), s(SRD_E2, 4), jg * 16))
        else:
            k("v_lshlrev_b32 v13, 4, v2")
            k("v_lshl_add_u32 v13, v3, 3, v13")
            for kt in range(4):
                k("s_add_u32 s%d, s59, %d" % (60 + kt, kt * 4096))
            for jg in range(8):
                k("buffer_load_dwordx2 %s, v13, %s, s%d offen offset:%d" %
                  (v(XR + 2 * jg, 2), s(SRD_E1, 4), 60 + (jg >> 1), (jg & 1) * 512))
        k("v_lshl_add_u32 v12, v3, 4, v12")
        k("s_waitcnt vmcnt(8)")
        mod_cols_fin(k, GA, T2)

    def epilogue(k):
        k("s_waitcnt vmcnt(0)")
        TT = T2
        if which == 2:
            for r in (8, 9, 10, 11):
                k("v_mov_b32 v%d, 0" % r)
        k("v_lshlrev_b32 v2, 4, v%d" % V_LANE)
        for j in range(2):
            A = ACC + 16 * j
            for d in range(8):
                unpack_bf16(k, TT + 2 * d, TT + 2 * d + 1, XR + 8 * j + d)
            for d in range(8):
                k("v_pk_fma_f32 %s, %s, %s, %s" % (v(A + 2 * d, 2), v(A + 2 * d, 2), v(GA + 16 * j + 2 * d, 2), v(TT + 2 * d, 2)))
            if which == 2:
                for d in range(8):
                    k("v_pk_add_f32 v[8:9], v[8:9], %s" % v(A + 2 * d, 2))
                    k("v_pk_fma_f32 v[10:11], %s, %s, v[10:11]" % (v(A + 2 * d, 2), v(A + 2 * d, 2)))
            P = FR + 8 * j
            pack16(k, P, A)
            swap8(k, P)
            for p in range(2):
                if which == 2:
                    k("s_add_u32 s60, s59, %d" % ((2 * j + p) * 4096))
                    k("buffer_store_dwordx4 %s, v2, %s, s60 offen" % (v(P + 4 * p, 4), s(SRD_E1, 4)))
                else:
                    k("buffer_store_dwordx4 %s, v12, %s, s58 offen offset:%d" %
                      (v(P + 4 * p, 4), s(SRD_E2, 4), j * 64 + p * 32))
        if which == 2:
            row_stats_atomic(k, 8, 10, SRD_E3, lambda: (
                k("s_lshl_b32 s60, s%d, 10" % S_BM), k("s_lshl_b32 s61, s%d, 8" % S_WAVE), k("s_add_u32 s60, s60, s61")))

    cfg = dict(T=T, NWG=256, MT=1, NT=2, NS=NS, NB=2, wgrid="4x1", load_ptrs=load_ptrs, srds=srds,
               map=lambda k: map_16x16(k, rot[0], rot[1], T),
               x_ring=(0, 16384, NS), w_ring=(NS * 16384, 8192, NS), x_mode="dma_fm",
               w_wave_stride=0, w_tile_off=lambda j: j * 256, reads_per_mfma=5,
               FRAG=FR, ACC=ACC, dma_setup=dma_setup, cons_pre=cons_pre,
               epilogue=epilogue, vgprs=152, lds=NS * 24576)
    return gemm("g%d_kernel" % which, cfg)


def row_stats_atomic(k, S1, S2, srd, base_to_s60):
    k("v_add_f32 v%d, v%d, v%d" % (S1, S1, S1 + 1))
    k("v_add_f32 v%d, v%d, v%d" % (S2, S2, S2 + 1))
    k("v_permlane32_swap_b32 v%d, v%d" % (S1, S2))
    k("v_add_f32 v%d, v%d, v%d" % (S1, S1, S2))
    k("v_and_b32 v2, 31, v%d" % V_LANE)
    k("v_lshrrev_b32 v3, 5, v%d" % V_LANE)
    k("v_lshlrev_b32 v2, 3, v2")
    k("v_lshl_add_u32 v2, v3, 2, v2")
    base_to_s60()
    k("buffer_atomic_add_f32 v%d, v2, %s, s60 offen" % (S1, s(srd, 4)))


def stats_to_affine(k, R, n):
    k("v_mul_f32 v2, %s, v%d" % (fhex(1.0 / n), R))
    k("v_mul_f32 v3, v2, v2")
    k("v_mul_f32 v%d, %s, v%d" % (R + 1, fhex(1.0 / n), R + 1))
    k("v_sub_f32 v3, v%d, v3" % (R + 1))
    k("v_max_f32 v3, 0, v3")
    k("v_add_f32 v3, %s, v3" % fhex(1e-5))
    k("v_rsq_f32 v%d, v3" % R)
    k("v_mul_f32 v%d, v2, v%d" % (R + 1, R))
    k("v_sub_f32 v%d, 0, v%d" % (R + 1, R + 1))


BCAST = "op_sel:[0,0,1] op_sel_hi:[1,0,1]"


def gen_g3(rot=(4, 2)):
    TAB = 32768 + 3 * 32768
    FR, ACC = 16, 64

    def load_ptrs(k):
        k("s_load_dwordx2 s[4:5], s[0:1], %d" % KA["w_in"])
        k("s_load_dwordx2 s[6:7], s[0:1], %d" % KA["ws"])

    def srds(k):
        srd_ws(k, SRD_X, 6, "X1")
        srd_in(k, SRD_W, 4, SZ["w_in"])
        srd_ws(k, SRD_E0, 6, "MODP")
        srd_ws(k, SRD_E1, 6, "Z1")
        srd_ws(k, SRD_E2, 6, "Z2")
        srd_ws(k, SRD_E3, 6, "ST")

    def dma_setup(k):
        w_voff(k, 4, 8, 7168)
        k("s_lshl_b32 s80, s%d, 9" % S_BN)
        k("s_lshl_b32 s81, s%d, 18" % S_BM)
        k("v_lshrrev_b32 v2, 5, v%d" % V_LANE)
        k("v_lshlrev_b32 v7, 6, v2")
        k("s_lshl_b32 s50, s%d, 7" % S_WAVE)
        k("s_add_u32 s50, s50, %d" % TAB)
        k("v_add_u32 v7, s50, v7")
        return [Dma(SRD_W, 4, [i * 8 * 7168 for i in range(8)], 64 * 7168, 32768, 32768, 80)]

    PG, TT, RP = 48, 64, 72

    def pre_load(k):
        k("v_and_b32 v2, 31, v%d" % V_LANE)
        k("v_lshlrev_b32 v2, 3, v2")
        k("s_lshl_b32 s50, s%d, 10" % S_BM)
        for i in range(4):
            k("buffer_load_dwordx2 %s, v2, %s, s50 offen offset:%d" % (v(RP + 2 * i, 2), s(SRD_E3, 4), i * 256))

    def pre_fin(k):
        for i in range(4):
            stats_to_affine(k, RP + 2 * i, 1024)

    def params(k, skt):
        k("s_lshl_b32 s78, s%d, 9" % skt)
        k("v_add_u32 v8, s78, v7")
        for q in range(4):
            k("ds_read_b128 %s, v8 offset:%d" % (v(PG + 4 * q, 4), q * 16))

    def xform(k, R, i):
        for d in range(4):
            unpack_bf16(k, TT + 2 * d, TT + 2 * d + 1, R + d)
        for d in range(4):
            k("v_pk_fma_f32 %s, %s, %s, %s %s" % (v(TT + 2 * d, 2), v(TT + 2 * d, 2), v(RP + 2 * i, 2), v(RP + 2 * i, 2), BCAST))
        for d in range(4):
            k("v_pk_fma_f32 %s, %s, %s, %s" % (v(TT + 2 * d, 2), v(TT + 2 * d, 2), v(PG + 2 * d, 2), v(PG + 8 + 2 * d, 2)))
        for d in range(4):
            k("v_cvt_pk_bf16_f32 v%d, v%d, v%d" % (R + d, TT + 2 * d, TT + 2 * d + 1))

    C0 = -2.0 * math.sqrt(2.0 / math.pi) * LOG2E
    C1 = C0 * 0.044715

    def gelu16(k, A, TT):
        for e in range(0, 16, 2):
            k("v_pk_mul_f32 %s, %s, %s" % (v(TT + e, 2), v(A + e, 2), v(A + e, 2)))
        for e in range(0, 16, 2):
            k("v_pk_fma_f32 %s, %s, s[60:61], v[12:13]" % (v(TT + e, 2), v(TT + e, 2)))
        for e in range(0, 16, 2):
            k("v_pk_mul_f32 %s, %s, %s" % (v(TT + e, 2), v(TT + e, 2), v(A + e, 2)))
        for e in range(16):
            k("v_exp_f32 v%d, v%d" % (TT + e, TT + e))
        for e in range(0, 16, 2):
            k("v_pk_add_f32 %s, %s, 1.0 op_sel_hi:[1,0]" % (v(TT + e, 2), v(TT + e, 2)))
        for e in range(16):
            k("v_rcp_f32 v%d, v%d" % (TT + e, TT + e))
        for e in range(0, 16, 2):
            k("v_pk_mul_f32 %s, %s, %s" % (v(A + e, 2), v(A + e, 2), v(TT + e, 2)))

    def epilogue(k):
        Z2L = k.uid("z2")
        k("s_mov_b32 s60, %s" % fhex(C1))
        k("s_mov_b32 s61, %s" % fhex(C1))
        k("v_mov_b32 v12, %s" % fhex(C0))
        k("v_mov_b32 v13, %s" % fhex(C0))
        k("s_cmp_ge_u32 s%d, 7" % S_BN)
        k("s_cbranch_scc1 " + Z2L)
        k("v_lshlrev_b32 v2, 4, v%d" % V_LANE)
        k("s_lshl_b32 s56, s%d, 1" % S_BM)
        k("s_add_u32 s56, s56, s%d" % S_WM)
        k("s_mul_i32 s56, s56, %d" % (2 * 56 * 2048))
        k("s_lshl_b32 s57, s%d, 1" % S_BN)
        k("s_add_u32 s57, s57, s%d" % S_WN)
        k("s_lshl_b32 s57, s57, 13")
        k("s_add_u32 s56, s56, s57")
        n = 0
        for i in range(2):
            for j in range(4):
                A = ACC + 16 * (i * 4 + j)
                gelu16(k, A, FR)
                P = FR + 16 + 8 * (n % 4)
                n += 1
                pack16(k, P, A)
                k("s_add_u32 s58, s56, %d" % (i * 56 * 2048 + j * 2048))
                for p in range(2):
                    k("buffer_store_dwordx4 %s, v2, %s, s58 offen offset:%d" % (v(P + 4 * p, 4), s(SRD_E1, 4), p * 1024))
        k("s_endpgm")
        k.label(Z2L)
        k("v_bfe_u32 v2, v%d, 2, 3" % V_LANE)
        k("v_lshlrev_b32 v14, 10, v2")
        k("v_and_b32 v2, 3, v%d" % V_LANE)
        k("v_lshl_add_u32 v14, v2, 6, v14")
        k("v_lshrrev_b32 v2, 5, v%d" % V_LANE)
        k("v_lshl_add_u32 v14, v2, 4, v14")
        k("s_sub_u32 s56, s%d, 7" % S_BN)
        k("s_lshl_b32 s56, s56, 1")
        k("s_add_u32 s56, s56, s%d" % S_WN)
        k("s_lshl_b32 s56, s56, 5")
        k("s_lshl_b32 s57, s%d, 1" % S_BM)
        k("s_add_u32 s57, s57, s%d" % S_WM)
        k("s_add_u32 s56, s56, s57")
        k("s_lshl_b32 s56, s56, 14")
        k("s_lshl_b32 s62, s57, 9")
        k("s_add_u32 s62, s62, 16384")
        n = 0
        for i in range(2):
            for r in (8, 9, 10, 11):
                k("v_mov_b32 v%d, 0" % r)
            k("s_add_u32 s58, s56, %d" % (i * 8192))
            for j in range(4):
                A = ACC + 16 * (i * 4 + j)
                gelu16(k, A, FR)
                for d in range(8):
                    k("v_pk_add_f32 v[8:9], v[8:9], %s" % v(A + 2 * d, 2))
                    k("v_pk_fma_f32 v[10:11], %s, %s, v[10:11]" % (v(A + 2 * d, 2), v(A + 2 * d, 2)))
                P = FR + 16 + 8 * (n % 4)
                n += 1
                pack16(k, P, A)
                swap8(k, P)
                for p in range(2):
                    k("buffer_store_dwordx4 %s, v14, %s, s58 offen offset:%d" %
                      (v(P + 4 * p, 4), s(SRD_E2, 4), j * 256 + p * 32))
            row_stats_atomic(k, 8, 10, SRD_E3, lambda: k("s_add_u32 s60, s62, %d" % (i * 256)))
            k("s_mov_b32 s60, %s" % fhex(C1))

    cfg = dict(T=16, NWG=224, MT=2, NT=4, NS=3, NB=8, wgrid="2x2", load_ptrs=load_ptrs, srds=srds,
               map=lambda k: map_16x14(k, rot[0], rot[1], 16),
               x_ring=(0, 16384, 2), w_ring=(32768, 32768, 3), x_mode="vg",
               w_wave_stride=1024, w_tile_off=lambda j: j * 256,
               FRAG=FR, ACC=ACC, table=mod_table(TAB, 4, 3, FR), dma_setup=dma_setup,
               vg=dict(regs=16, voff=5, vlds=6, ring=0, srd=SRD_X, sbase=81, params=params, xform=xform,
                       pre_load=pre_load, pre_fin=pre_fin),
               epilogue=epilogue, vgprs=192, lds=TAB + 8192)
    return gemm("g3_kernel", cfg)


def gen_g4(rot=(8, 4), NS=4):
    WR = NS * 16384
    TAB = WR + 32768
    FR, ACC, Z1R, BR = 16, 48, 112, 144

    def load_ptrs(k):
        k("s_load_dwordx4 s[4:7], s[0:1], %d" % KA["w_sp"])
        k("s_load_dwordx2 s[8:9], s[0:1], %d" % KA["ws"])

    def srds(k):
        srd_in(k, SRD_X, 4, SZ["w_sp"])
        srd_ws(k, SRD_W, 8, "Z2")
        srd_ws(k, SRD_E0, 8, "ST3")
        srd_ws(k, SRD_E1, 8, "Z1")
        srd_ws(k, SRD_E2, 8, "U")
        srd_in(k, SRD_E3, 6, SZ["b_sp"])

    def table(k):
        k("v_lshlrev_b32 v12, 4, v0")
        for q in range(4):
            k("s_mov_b32 s%d, %d" % (56 + q, q * 4096))
            k("buffer_load_dwordx4 %s, v12, %s, s%d offen" % (v(FR + 4 * q, 4), s(SRD_E0, 4), 56 + q))
        k("v_add_u32 v12, %d, v12" % TAB)
        for q in range(4):
            k("s_waitcnt vmcnt(%d)" % (3 - q))
            stats_to_affine(k, FR + 4 * q, 1792)
            stats_to_affine(k, FR + 4 * q + 2, 1792)
            k("ds_write_b128 v12, %s offset:%d" % (v(FR + 4 * q, 4), q * 4096))

    def dma_setup(k):
        k("v_lshrrev_b32 v2, 3, v%d" % V_LANE)
        k("s_lshl_b32 s50, s%d, 3" % S_WAVE)
        k("v_add_u32 v2, s50, v2")
        k("v_bfe_u32 v3, v2, 1, 3")
        k("v_and_b32 v4, 7, v%d" % V_LANE)
        k("v_xor_b32 v3, v3, v4")
        k("v_lshlrev_b32 v3, 4, v3")
        k("v_lshl_add_u32 v4, v2, 12, v3")
        k("s_lshl_b32 s80, s%d, 19" % S_BM)
        k("s_lshl_b32 s81, s%d, 19" % S_BN)
        k("v_bfe_u32 v2, v%d, 2, 2" % V_LANE)
        k("v_lshlrev_b32 v7, 3, v2")
        k("s_lshl_b32 s50, s%d, 7" % S_WAVE)
        k("s_add_u32 s50, s50, %d" % TAB)
        k("v_add_u32 v7, s50, v7")
        return [Dma(SRD_X, 4, [i * 32 * 4096 for i in range(4)], 128, 0, 16384, 80)]

    PG, TT = 48, 64

    def params(k, skt):
        k("s_lshl_b32 s78, s%d, 9" % skt)
        k("v_add_u32 v8, s78, v7")
        for q in range(4):
            k("ds_read_b64 %s, v8 offset:%d" % (v(PG + 2 * q, 2), q * 32))

    def xform(k, R, i):
        for d in range(4):
            unpack_bf16(k, TT + 2 * d, TT + 2 * d + 1, R + d)
        for d in range(4):
            k("v_pk_fma_f32 %s, %s, %s, %s %s" % (v(TT + 2 * d, 2), v(TT + 2 * d, 2), v(PG + 2 * i, 2), v(PG + 2 * i, 2), BCAST))
        for d in range(4):
            k("v_cvt_pk_bf16_f32 v%d, v%d, v%d" % (R + d, TT + 2 * d, TT + 2 * d + 1))

    def cons_pre(k):
        k("v_lshlrev_b32 v12, 4, v%d" % V_LANE)
        k("s_lshl_b32 s56, s%d, 1" % S_BM)
        k("s_add_u32 s56, s56, s%d" % S_WM)
        k("s_mul_i32 s57, s56, %d" % (2 * 56 * 2048))
        k("s_lshl_b32 s58, s%d, 1" % S_BN)
        k("s_add_u32 s58, s58, s%d" % S_WN)
        k("s_lshl_b32 s59, s58, 12")
        k("s_add_u32 s57, s57, s59")
        k("s_add_u32 s59, s57, %d" % (56 * 2048))
        for i in range(2):
            for jp in range(4):
                k("buffer_load_dwordx4 %s, v12, %s, s%d offen offset:%d" %
                  (v(Z1R + 16 * i + 4 * jp, 4), s(SRD_E1, 4), 57 + 2 * i, jp * 1024))
        k("v_and_b32 v2, 31, v%d" % V_LANE)
        k("v_lshlrev_b32 v2, 1, v2")
        k("s_lshl_b32 s60, s56, 7")
        for i in range(2):
            k("buffer_load_ushort v%d, v2, %s, s60 offen offset:%d" % (BR + 2 * i, s(SRD_E3, 4), i * 64))
        k("s_mul_i32 s61, s%d, 28" % S_BM)
        k("s_add_u32 s61, s61, s58")
        k("s_lshl_b32 s61, s61, 4")
        k("s_lshl_b32 s62, s%d, 1" % S_WM)
        k("s_add_u32 s61, s61, s62")
        k("s_lshl_b32 s61, s61, 10")

    def epilogue(k):
        k("s_waitcnt vmcnt(0)")
        for i in range(2):
            k("v_lshlrev_b32 v%d, 16, v%d" % (BR + 2 * i, BR + 2 * i))
            k("v_mov_b32 v%d, v%d" % (BR + 2 * i + 1, BR + 2 * i))
        n = 0
        for i in range(2):
            for j in range(2):
                A = ACC + 16 * (i * 2 + j)
                for d in range(8):
                    unpack_bf16(k, FR + 2 * d, FR + 2 * d + 1, Z1R + 16 * i + 8 * j + d)
                for d in range(8):
                    k("v_pk_add_f32 %s, %s, %s" % (v(A + 2 * d, 2), v(A + 2 * d, 2), v(BR + 2 * i, 2)))
                for d in range(8):
                    k("v_pk_mul_f32 %s, %s, %s" % (v(A + 2 * d, 2), v(A + 2 * d, 2), v(FR + 2 * d, 2)))
                P = FR + 16 + 8 * (n % 2)
                n += 1
                pack16(k, P, A)
                swap8(k, P)
                for p in range(2):
                    k("s_add_u32 s62, s61, %d" % ((2 * j + p) * 4096))
                    k("buffer_store_dwordx4 %s, v12, %s, s62 offen offset:%d" % (v(P + 4 * p, 4), s(SRD_E2, 4), i * 1024))

    cfg = dict(T=32, NWG=224, MT=2, NT=2, NS=NS, NB=4, wgrid="2x2", load_ptrs=load_ptrs, srds=srds,
               map=lambda k: map_16x14(k, rot[0], rot[1], 32),
               x_ring=(0, 16384, NS), w_ring=(WR, 16384, 2), x_mode="dma_swz",
               w_wave_stride=512, w_tile_off=lambda j: j * 256,
               FRAG=FR, ACC=ACC, table=table, dma_setup=dma_setup, cons_pre=cons_pre,
               vg=dict(regs=16, voff=5, vlds=6, ring=WR, srd=SRD_W, sbase=81, params=params, xform=xform),
               epilogue=epilogue, vgprs=152, lds=TAB + 16384)
    return gemm("g4_kernel", cfg)
```

```python
from common import *

LOG2E = 1.4426950408889634


def gen_k1(name="k1_kernel"):
    k = Kern(name)
    END, LN = k.uid("end"), k.uid("ln")
    k("s_cmp_ge_u32 s2, 256")
    k("s_cbranch_scc1 " + END)
    k("s_load_dwordx2 s[4:5], s[0:1], %d" % KA["x"])
    k("s_load_dwordx4 s[8:11], s[0:1], %d" % KA["c"])
    k("s_load_dwordx2 s[6:7], s[0:1], %d" % KA["ws"])
    k("s_cmp_ge_u32 s2, 192")
    k("s_cbranch_scc1 " + LN)
    k("s_lshr_b32 s12, s2, 1")
    k("s_and_b32 s13, s2, 1")
    k("v_lshrrev_b32 v1, 3, v0")
    k("v_and_b32 v2, 7, v0")
    k("s_mov_b32 s14, 12288")
    k("v_mul_lo_u32 v3, v1, s14")
    k("v_lshl_add_u32 v3, v2, 4, v3")
    k("s_mul_i32 s15, s13, %d" % (512 * 12288))
    k("s_lshl_b32 s16, s12, 7")
    k("s_add_u32 s15, s15, s16")
    k("s_lshl_b32 s17, s13, 10")
    k("v_lshlrev_b32 v4, 2, v0")
    k("s_waitcnt lgkmcnt(0)")
    srd_in(k, 20, 8, SZ["c"])
    srd_in(k, 24, 10, SZ["w_mod"])
    srd_ws(k, 28, 6, "MODP")
    k("buffer_load_dword v5, v4, s[20:23], s17 offen")
    for i in range(16):
        k("s_add_u32 s%d, s15, %d" % (32 + i, i * 32 * 12288))
        k("buffer_load_dwordx4 v[%d:%d], v3, s[24:27], s%d offen" % (16 + 4 * i, 19 + 4 * i, 32 + i))
    k("s_waitcnt vmcnt(16)")
    unpack_bf16(k, 6, 7, 5)
    for r in (6, 7):
        k("v_mul_f32 v8, %s, v%d" % (fhex(-LOG2E), r))
        k("v_exp_f32 v8, v8")
        k("v_add_f32 v8, 1.0, v8")
        k("v_rcp_f32 v8, v8")
        k("v_mul_f32 v%d, v%d, v8" % (r, r))
    k("v_cvt_pk_bf16_f32 v5, v6, v7")
    unpack_bf16(k, 6, 7, 5)
    k("v_lshlrev_b32 v8, 3, v0")
    k("ds_write_b64 v8, v[6:7]")
    k("s_waitcnt lgkmcnt(0)")
    k("s_barrier")
    k("v_lshlrev_b32 v8, 2, v1")
    for i in range(16):
        k("ds_read_b32 v%d, v8 offset:%d" % (80 + i, i * 128))
    for j in range(8):
        k("v_mov_b32 v%d, 0" % (96 + j))
    k("s_waitcnt lgkmcnt(0)")
    for i in range(16):
        k("s_waitcnt vmcnt(%d)" % (15 - i))
        for d in range(4):
            unpack_bf16(k, 104, 105, 16 + 4 * i + d)
            k("v_fmac_f32 v%d, v104, v%d" % (96 + 2 * d, 80 + i))
            k("v_fmac_f32 v%d, v105, v%d" % (97 + 2 * d, 80 + i))
    k("v_lshlrev_b32 v8, 5, v0")
    k("ds_write_b128 v8, v[96:99] offset:2048")
    k("ds_write_b128 v8, v[100:103] offset:2064")
    k("s_waitcnt lgkmcnt(0)")
    k("s_barrier")
    k("v_and_b32 v9, 63, v0")
    k("v_lshrrev_b32 v10, 6, v0")
    k("v_lshlrev_b32 v10, 11, v10")
    k("v_lshl_add_u32 v10, v9, 2, v10")
    for i in range(8):
        k("ds_read_b32 v%d, v10 offset:%d" % (80 + i, 2048 + i * 256))
    k("s_waitcnt lgkmcnt(0)")
    for i in range(1, 8):
        k("v_add_f32 v80, v80, v%d" % (80 + i))
    k("ds_write_b32 v4, v80 offset:12288")
    k("s_waitcnt lgkmcnt(0)")
    k("s_barrier")
    k("v_cmp_gt_u32 vcc, 64, v0")
    k("s_and_saveexec_b64 s[50:51], vcc")
    k("s_cbranch_execz " + END)
    for i in range(4):
        k("ds_read_b32 v%d, v4 offset:%d" % (80 + i, 12288 + i * 256))
    k("s_mul_i32 s15, s13, %d" % (6144 * 4))
    k("s_lshl_b32 s16, s12, 8")
    k("s_add_u32 s15, s15, s16")
    k("s_waitcnt lgkmcnt(0)")
    k("v_add_f32 v80, v80, v81")
    k("v_add_f32 v82, v82, v83")
    k("v_add_f32 v80, v80, v82")
    k("buffer_store_dword v80, v4, s[28:31], s15 offen")
    k("s_endpgm")
    k.label(LN)
    k("s_sub_u32 s12, s2, 192")
    k("v_lshrrev_b32 v1, 3, v0")
    k("v_and_b32 v2, 7, v0")
    k("v_lshlrev_b32 v3, 11, v1")
    k("v_lshl_add_u32 v3, v2, 4, v3")
    k("s_lshl_b32 s13, s12, 16")
    k("s_waitcnt lgkmcnt(0)")
    srd_in(k, 20, 4, SZ["x"])
    srd_ws(k, 24, 6, "XN")
    srd_ws(k, 28, 6, "ST")
    for i in range(16):
        k("buffer_load_dwordx4 v[%d:%d], v3, s[20:23], s13 offen offset:%d" % (16 + 4 * i, 19 + 4 * i, i * 128))
    k("v_mov_b32 v5, 0")
    k("v_lshlrev_b32 v4, 2, v0")
    k("s_lshl_b32 s14, s12, 9")
    k("buffer_store_dword v5, v4, s[28:31], s14 offen")
    k("v_lshrrev_b32 v6, 1, v2")
    k("v_lshlrev_b32 v6, 12, v6")
    k("v_and_b32 v7, 1, v2")
    k("v_lshlrev_b32 v7, 9, v7")
    k("v_add_u32 v6, v6, v7")
    k("v_lshl_add_u32 v6, v1, 4, v6")
    k("s_and_b32 s15, s12, 3")
    k("s_lshl_b32 s15, s15, 10")
    k("s_lshr_b32 s16, s12, 2")
    k("s_lshl_b32 s16, s16, 18")
    k("s_add_u32 s15, s15, s16")
    k("v_mov_b32 v8, 0")
    k("v_mov_b32 v9, 0")
    for i in range(16):
        k("s_waitcnt vmcnt(%d)" % (16 - i))
        for d in range(4):
            o = 96 + 8 * i + 2 * d
            unpack_bf16(k, o, o + 1, 16 + 4 * i + d)
            k("v_pk_add_f32 v[8:9], v[8:9], v[%d:%d]" % (o, o + 1))

    def red8(r):
        k("v_add_f32_dpp v%d, v%d, v%d quad_perm:[1,0,3,2] row_mask:0xf bank_mask:0xf" % (r, r, r))
        k("v_add_f32_dpp v%d, v%d, v%d quad_perm:[2,3,0,1] row_mask:0xf bank_mask:0xf" % (r, r, r))
        k("v_add_f32_dpp v%d, v%d, v%d row_half_mirror row_mask:0xf bank_mask:0xf" % (r, r, r))
    k("v_add_f32 v8, v8, v9")
    red8(8)
    k("v_mul_f32 v10, %s, v8" % fhex(-1.0 / 1024))
    k("v_mov_b32 v11, v10")
    k("v_mov_b32 v8, 0")
    k("v_mov_b32 v9, 0")
    for o in range(96, 224, 2):
        k("v_pk_add_f32 v[%d:%d], v[%d:%d], v[10:11]" % (o, o + 1, o, o + 1))
        k("v_pk_fma_f32 v[8:9], v[%d:%d], v[%d:%d], v[8:9]" % (o, o + 1, o, o + 1))
    k("v_add_f32 v8, v8, v9")
    red8(8)
    k("v_mov_b32 v9, %s" % fhex(1e-5))
    k("v_fmac_f32 v9, %s, v8" % fhex(1.0 / 1024))
    k("v_rsq_f32 v10, v9")
    k("v_mov_b32 v11, v10")
    for i in range(16):
        for d in range(4):
            o = 96 + 8 * i + 2 * d
            k("v_pk_mul_f32 v[%d:%d], v[%d:%d], v[10:11]" % (o, o + 1, o, o + 1))
            k("v_cvt_pk_f16_f32 v%d, v%d, v%d" % (16 + 4 * i + d, o, o + 1))
        k("s_add_u32 s%d, s15, %d" % (32 + i, i * 16384))
        k("buffer_store_dwordx4 v[%d:%d], v6, s[24:27], s%d offen" % (16 + 4 * i, 19 + 4 * i, 32 + i))
    k.label(END)
    k("s_endpgm")
    txt, n = k.finish(vgprs=224, sgprs=64)
    return txt, "; @launch kernel=%s grid=(256,1,1) block=(256,1,1) lds=16384" % name
```

```python
import sys
from k1 import gen_k1
from gemms import *
from attn import gen_attn

def build(path, **opt):
    parts = [gen_k1(), gen_g1(), gen_attn(force_slow=opt.get("force_slow", False)), gen_g25(2), gen_g3(), gen_g4(), gen_g25(5)]
    ref = open("adaLN_cond__softmax_full_mha__mixer_gmlp__prompt.s.ref").read().split("\n")
    head = [l for l in ref if l.startswith(";") and "@launch" not in l and "Override" not in l and "grid=ceil" not in l]
    txt = "\n".join(head) + "\n" + "\n".join(p[1] for p in parts) + "\n"
    txt += ".amdgcn_target \"amdgcn-amd-amdhsa--gfx950\"\n" + "\n".join(p[0] for p in parts)
    open(path, "w").write(txt)

if __name__ == "__main__":
    build("adaLN_cond__softmax_full_mha__mixer_gmlp__prompt.s")
    build("slow.s", force_slow=True)
```

```python
import re

TRANS = ("v_exp_f32", "v_log_f32", "v_rcp_f32", "v_rsq_f32", "v_sqrt_f32", "v_sin_f32", "v_cos_f32",
         "v_rcp_iflag_f32", "v_exp_f16", "v_rcp_f16")

_reg_re = re.compile(r"^(-|abs\()?([vsa])(?:(\d+)|\[(\d+):(\d+)\])\)?$")


def regs_of(op):
    op = op.strip()
    if op.startswith("|") and op.endswith("|"):
        op = op[1:-1]
    if op.startswith("-|") and op.endswith("|"):
        op = op[2:-1]
    if op in ("vcc",):
        return {("s", 106), ("s", 107)}
    if op == "vcc_lo":
        return {("s", 106)}
    if op == "vcc_hi":
        return {("s", 107)}
    if op == "exec":
        return {("s", 126), ("s", 127)}
    if op == "exec_lo":
        return {("s", 126)}
    if op == "exec_hi":
        return {("s", 127)}
    if op == "m0":
        return {("s", 124)}
    m = _reg_re.match(op)
    if not m:
        return set()
    k = m.group(2)
    if m.group(3) is not None:
        return {(k, int(m.group(3)))}
    return {(k, i) for i in range(int(m.group(4)), int(m.group(5)) + 1)}


def split_ops(s):
    out, depth, cur = [], 0, ""
    for ch in s:
        if ch in "[(":
            depth += 1
        if ch in "])":
            depth -= 1
        if ch == "," and depth == 0:
            out.append(cur.strip())
            cur = ""
        else:
            cur += ch
    if cur.strip():
        out.append(cur.strip())
    return out


VCC = {("s", 106), ("s", 107)}
EXEC = {("s", 126), ("s", 127)}
M0 = {("s", 124)}


class Ins:
    def __init__(self, text):
        self.text = text
        body = text.split(";")[0].strip()
        self.is_label = body.endswith(":")
        self.is_dir = body.startswith(".") and not self.is_label
        self.empty = body == ""
        self.mn = ""
        self.defs, self.uses = set(), set()
        self.cls = "none"
        self.target = None
        self.passes = 0
        self.srcc = set()
        self.srcab = set()
        self.states = 1
        self.wide_store_data = set()
        self.lane_sel = set()
        self.dpp = False
        self.lds_dma = False
        if self.is_label:
            self.label = body[:-1]
            return
        if self.is_dir or self.empty:
            return
        parts = body.split(None, 1)
        mn = parts[0]
        self.mn = mn
        rest = parts[1] if len(parts) > 1 else ""
        ops = split_ops(rest)
        mods = ""
        if ops:
            last = ops[-1].split(None, 1)
            ops[-1] = last[0]
            mods = last[1] if len(last) > 1 else ""
        self.ops, self.mods = ops, mods
        R = [regs_of(o) for o in ops]
        allr = lambda lst: set().union(*lst) if lst else set()
        base = re.sub(r"_(e32|e64|dpp|sdwa)$", "", mn)
        if mn.startswith("v_mfma"):
            self.cls = "mfma"
            self.passes = 8 if "32x32x16" in mn else (4 if "16x16x32" in mn else None)
            assert self.passes, mn
            self.defs = R[0]
            self.srcab = R[1] | R[2]
            self.srcc = R[3]
            self.uses = self.srcab | self.srcc | EXEC
        elif mn.startswith("v_"):
            self.cls = "trans" if base in TRANS else "valu"
            self.dpp = "_dpp" in mn or "quad_perm" in mods or "row_" in mods
            self.sdwa = "_sdwa" in mn
            if base.startswith("v_cmpx"):
                self.defs = R[0] | EXEC
                self.uses = allr(R[1:])
            elif base.startswith("v_cmp"):
                self.defs = R[0]
                self.uses = allr(R[1:])
            elif base in ("v_readfirstlane_b32",):
                self.defs = R[0]
                self.uses = R[1]
            elif base == "v_readlane_b32":
                self.defs = R[0]
                self.uses = R[1] | R[2]
                self.lane_sel = R[2]
            elif base == "v_writelane_b32":
                self.defs = R[0]
                self.uses = R[0] | R[1] | R[2]
                self.lane_sel = R[2]
            elif base.startswith("v_permlane") and "swap" in base:
                self.defs = R[0] | R[1]
                self.uses = R[0] | R[1]
            elif base in ("v_add_co_u32", "v_sub_co_u32", "v_subrev_co_u32", "v_addc_co_u32", "v_subb_co_u32",
                          "v_mad_u64_u32", "v_div_scale_f32"):
                self.defs = R[0] | R[1]
                self.uses = allr(R[2:])
            elif base in ("v_fmac_f32", "v_dot2c_f32_bf16", "v_pk_fmac_f16", "v_fmac_f16"):
                self.defs = R[0]
                self.uses = allr(R)
            elif base == "v_nop":
                pass
            else:
                self.defs = R[0]
                self.uses = allr(R[1:])
                if self.dpp or self.sdwa:
                    self.uses |= R[0]
            self.uses |= EXEC
        elif mn.startswith("buffer_") or mn.startswith("global_"):
            self.cls = "vmem"
            is_lds = re.search(r"\blds\b", mods) is not None or "load_lds" in mn
            self.lds_dma = is_lds
            if mn.startswith("buffer_wbl2") or mn.startswith("buffer_inv"):
                pass
            elif "load" in mn and not is_lds:
                self.defs = R[0]
                self.uses = allr(R[1:])
            else:
                self.uses = allr(R)
                if "atomic" in mn and re.search(r"\bsc0\b", mods):
                    self.defs = R[0]
                if "store" in mn and ("x3" in mn or "x4" in mn):
                    self.wide_store_data = R[0] if mn.startswith("buffer_") else R[1]
            if is_lds:
                self.uses |= M0
            self.uses |= EXEC
        elif mn.startswith("ds_"):
            self.cls = "ds"
            if "read" in mn or "permute" in mn or "swizzle" in mn or "_rtn" in mn:
                self.defs = R[0]
                self.uses = allr(R[1:])
            else:
                self.uses = allr(R)
            self.uses |= EXEC
        elif mn.startswith("s_"):
            self.cls = "salu"
            if mn == "s_nop":
                self.states = int(ops[0], 0) + 1
                self.cls = "nop"
            elif mn in ("s_branch",) or mn.startswith("s_cbranch"):
                self.cls = "branch"
                self.target = ops[0]
            elif mn in ("s_waitcnt", "s_barrier", "s_endpgm", "s_setprio", "s_sleep"):
                self.cls = "misc"
            elif mn.startswith("s_cmp") or mn.startswith("s_bitcmp"):
                self.uses = allr(R)
            elif mn.startswith("s_load") or mn.startswith("s_buffer_load") or mn.startswith("s_mem"):
                self.cls = "smem"
                self.defs = R[0]
                self.uses = allr(R[1:])
            elif "saveexec" in mn:
                self.defs = R[0] | EXEC
                self.uses = allr(R[1:]) | EXEC
            else:
                self.defs = R[0] if R else set()
                self.uses = allr(R[1:])
                if mn in ("s_addk_i32", "s_mulk_i32"):
                    self.uses |= R[0]
        else:
            raise ValueError("unknown instruction: " + text)


def _vregs(s):
    return {r for r in s if r[0] in "va"}


def _sregs(s):
    return {r for r in s if r[0] == "s"}


def need(p, c):
    n = 0
    pv = p.cls in ("valu", "trans")
    cv = c.cls in ("valu", "trans")
    if pv:
        pd_v, pd_s = _vregs(p.defs), _sregs(p.defs)
        if c.cls == "mfma" and pd_v & (c.srcab | c.srcc):
            n = max(n, 2)
        if c.cls == "mfma" and pd_s & EXEC:
            n = max(n, 4)
        if c.cls == "vmem" and (pd_s - EXEC) & c.uses:
            n = max(n, 5)
        if cv and (pd_s - EXEC) & c.uses:
            n = max(n, 2)
        if cv and pd_s & c.lane_sel:
            n = max(n, 4)
        if cv and c.mn.startswith(("v_readlane", "v_readfirstlane")) and pd_v & c.uses:
            n = max(n, 1)
        if cv and c.mn.startswith(("v_readlane", "v_readfirstlane", "v_writelane", "v_permlane")) and pd_s & EXEC:
            n = max(n, 4)
        if p.cls == "trans" and c.cls == "valu" and pd_v & c.uses:
            n = max(n, 1)
        if p.cls == "trans" and c.cls in ("vmem", "ds") and pd_v & c.uses:
            n = max(n, 1)
        if cv and c.mn.startswith("v_permlane") and pd_v & c.uses:
            n = max(n, 2)
        if cv and c.dpp and pd_v & c.uses:
            n = max(n, 2)
        if cv and c.dpp and pd_s & EXEC:
            n = max(n, 5)
        if cv and getattr(p, "sdwa", False) and pd_v & (c.uses | c.defs):
            n = max(n, 1)
        if c.cls in ("salu", "smem") and (pd_s - EXEC) & c.uses:
            n = max(n, 1)
    if p.cls == "mfma":
        big = 12 if p.passes == 8 else 8
        if c.cls == "mfma":
            if p.defs & c.srcab:
                n = max(n, big)
            if p.defs & c.srcc:
                if not (p.defs == c.srcc and p.passes == c.passes):
                    n = max(n, p.passes + 2)
            if p.defs & c.defs and not (p.defs == c.defs and p.passes == c.passes):
                n = max(n, p.passes + 2)
            if p.defs & c.defs and not (p.defs & c.srcc):
                n = max(n, p.passes + 2)
        elif cv or c.cls in ("vmem", "ds"):
            if p.defs & (c.uses | c.defs):
                n = max(n, big)
        if (cv or c.cls in ("vmem", "ds")) and p.srcc & c.defs:
            n = max(n, 7 if p.passes == 8 else 3)
    if p.cls == "salu" and p.defs & M0 and (c.lds_dma or "addtid" in c.mn):
        n = max(n, 1)
    if p.wide_store_data and p.wide_store_data & c.defs:
        n = max(n, 2 if cv else 1)
    return n


MAXD = 13


def pad_hazards(lines):
    ins = [Ins(l) for l in lines]
    changed = True
    total = 0
    while changed:
        changed = False
        labels = {x.label: i for i, x in enumerate(ins) if x.is_label}
        br = {}
        for i, x in enumerate(ins):
            if x.cls == "branch":
                br.setdefault(labels[x.target], []).append(i)
        out = []
        for i, c in enumerate(ins):
            if c.cls in ("none", "nop", "branch", "misc"):
                out.append(c)
                continue
            short = 0
            stack = [(i - 1, 0)]
            seen = set()
            while stack:
                j, d = stack.pop()
                while j >= 0 and d < MAXD:
                    if (j, d) in seen:
                        break
                    seen.add((j, d))
                    p = ins[j]
                    if p.is_label:
                        for b in br.get(j, []):
                            stack.append((b, d))
                        j -= 1
                        continue
                    if p.is_dir or p.empty:
                        j -= 1
                        continue
                    if p.mn in ("s_branch", "s_endpgm") and not _is_edge(ins, j, br, seen, i):
                        pass
                    k = need(p, c)
                    if k > d:
                        short = max(short, k - d)
                    d += p.states
                    j -= 1
            if short:
                out.append(Ins("    s_nop %d" % (short - 1)))
                total += 1
                changed = True
            out.append(c)
        ins = out
    return [x.text for x in ins], total


def _is_edge(ins, j, br, seen, i):
    return True


class Kern:
    def __init__(self, name):
        self.name = name
        self.lines = []
        self._uid = 0

    def __call__(self, text):
        for l in text.split("\n"):
            l = l.strip()
            if l:
                self.lines.append("    " + l if not l.endswith(":") else l)

    def label(self, name):
        self.lines.append(name + ":")

    def uid(self, base):
        self._uid += 1
        return "L_%s_%s_%d" % (self.name, base, self._uid)

    def comment(self, t):
        self.lines.append("    ; " + t)

    STAMPS = False
    STAMP_V = 250
    kidx = 0

    def stamp(self, i):
        if not Kern.STAMPS:
            return
        self("s_memtime s[88:89]")
        self("s_memrealtime s[90:91]")
        self("s_waitcnt lgkmcnt(0)")
        self("v_writelane_b32 v%d, s88, %d" % (self.STAMP_V, i))
        self("v_writelane_b32 v%d, s90, %d" % (self.STAMP_V, 32 + i))

    def stamp_init(self):
        if not Kern.STAMPS:
            return
        self("v_mov_b32 v%d, 0" % self.STAMP_V)
        self("v_mov_b32 v%d, v0" % (self.STAMP_V + 1))
        self("s_load_dwordx2 s[92:93], s[0:1], 96")
        self.stamp(0)

    def stamp_dump(self, i):
        if not Kern.STAMPS:
            return
        self("s_waitcnt vmcnt(0)")
        self.stamp(i)
        self("s_mov_b64 exec, -1")
        self("s_add_u32 s84, s92, %d" % (0x8000000 + self.kidx * 0x200000))
        self("s_addc_u32 s85, s93, 0")
        self("s_mov_b32 s86, 0x200000")
        self("s_mov_b32 s87, 0x20000")
        self("s_lshl_b32 s88, s2, 12")
        self("v_lshlrev_b32 v%d, 2, v%d" % (self.STAMP_V + 1, self.STAMP_V + 1))
        self("buffer_store_dword v%d, v%d, s[84:87], s88 offen" % (self.STAMP_V, self.STAMP_V + 1))

    def finish(self, vgprs, sgprs=96, agprs=0, wg_y=False):
        if Kern.STAMPS:
            sv = vgprs
            self.lines = [l.replace("v250", "v%d" % sv).replace("v251", "v%d" % (sv + 1)) for l in self.lines]
            vgprs, sgprs = vgprs + 2, 96
        lines, n = pad_hazards(self.lines)
        acc = (vgprs + 3) // 4 * 4
        nfv = acc + agprs if agprs else vgprs
        hdr = [".text", ".globl %s" % self.name, ".p2align 8", ".type %s,@function" % self.name, self.name + ":"]
        desc = [".section .rodata,\"a\"", ".p2align 6", ".amdhsa_kernel %s" % self.name,
                "  .amdhsa_next_free_vgpr %d" % nfv,
                "  .amdhsa_next_free_sgpr %d" % sgprs,
                "  .amdhsa_accum_offset %d" % acc,
                "  .amdhsa_group_segment_fixed_size 0",
                "  .amdhsa_kernarg_size 104",
                "  .amdhsa_user_sgpr_count 2",
                "  .amdhsa_user_sgpr_kernarg_segment_ptr 1",
                "  .amdhsa_system_sgpr_workgroup_id_x 1"]
        if wg_y:
            desc.append("  .amdhsa_system_sgpr_workgroup_id_y 1")
        desc += ["  .amdhsa_float_denorm_mode_32 3", "  .amdhsa_float_denorm_mode_16_64 3",
                 ".end_amdhsa_kernel"]
        for l in lines:
            x = Ins(l)
            for (k, idx) in x.defs | x.uses:
                if k == "v":
                    assert idx < vgprs, (self.name, l, vgprs)
                if k == "a":
                    assert idx < agprs, (self.name, l, agprs)
                if k == "s" and idx < 102:
                    assert idx < sgprs, (self.name, l, sgprs)
        return "\n".join(hdr + lines + desc) + "\n", n


def v(i, n=1):
    return "v%d" % i if n == 1 else "v[%d:%d]" % (i, i + n - 1)


def a(i, n=1):
    return "a%d" % i if n == 1 else "a[%d:%d]" % (i, i + n - 1)


def s(i, n=1):
    return "s%d" % i if n == 1 else "s[%d:%d]" % (i, i + n - 1)
```

```python
from common import *
from gemms import pack16, swap8

OOB = 0x7f000000


def gen_attn(name="attn_kernel", rotmul=2, force_slow=False):
    k = Kern(name)
    END, SLOW, EPI = k.uid("end"), k.uid("slow"), k.uid("epi")
    NSL = 8
    LANE, VOFF, VCUR, VNXT = 1, 4, 5, 6
    QF, NM, S0, S1, P, KA_, KB_, VA_, VB_, O, L, SEL = 8, 16, 32, 48, 64, 72, 76, 80, 84, 88, 104, 108
    S = (S0, S1)
    SRD, SRDO = 24, 28
    S_WAVE, S_HEAD, S_RT, S_KS, S_CNT, S_SLOT, S_KB, S_ST, S_CUR = 3, 20, 21, 40, 41, 42, 43, 44, 45
    k("s_cmp_ge_u32 s2, 256")
    k("s_cbranch_scc1 " + END)
    k.kidx = 2
    k.stamp_init()
    k("s_load_dwordx2 s[6:7], s[0:1], %d" % KA["ws"])
    k("v_lshrrev_b32 v2, 6, v0")
    k("v_and_b32 v%d, 63, v0" % LANE)
    k("v_readfirstlane_b32 s%d, v2" % S_WAVE)
    k("s_and_b32 s10, s2, 7")
    k("s_lshl_b32 s10, s10, 2")
    k("s_bfe_u32 s11, s2, 0x20003")
    k("s_add_u32 s%d, s10, s11" % S_HEAD)
    k("s_lshr_b32 s12, s2, 5")
    k("s_lshl_b32 s%d, s12, 3" % S_RT)
    k("s_add_u32 s%d, s%d, s%d" % (S_RT, S_RT, S_WAVE))
    k("s_mul_i32 s%d, s12, %d" % (S_KS, rotmul))
    k("s_and_b32 s%d, s%d, 15" % (S_KS, S_KS))
    k("v_lshlrev_b32 v%d, 4, v%d" % (VOFF, LANE))
    k("s_lshl_b32 s%d, s%d, 17" % (S_KB, S_HEAD))
    k("s_waitcnt lgkmcnt(0)")
    srd_ws(k, SRD, 6, "QKV")
    srd_ws(k, SRDO, 6, "O")
    k("s_lshl_b32 s13, s%d, 11" % S_RT)
    k("s_add_u32 s13, s13, s%d" % S_KB)
    k("buffer_load_dwordx4 %s, v%d, %s, s13 offen" % (v(QF, 4), VOFF, s(SRD, 4)))
    k("buffer_load_dwordx4 %s, v%d, %s, s13 offen offset:1024" % (v(QF + 4, 4), VOFF, s(SRD, 4)))
    k("s_lshl_b32 s14, s%d, 10" % S_WAVE)
    k("s_add_u32 s15, s%d, s14" % S_KB)
    k("s_add_u32 s15, s15, 0x400000")
    k("s_mov_b32 s%d, 0" % S_CNT)
    k("s_mov_b32 s%d, s14" % S_SLOT)

    def dma_stage():
        k("s_lshl_b32 s16, s%d, 13" % S_KS)
        k("s_add_u32 s16, s16, s15")
        k("s_cmp_ge_u32 s%d, 16" % S_CNT)
        k("s_cselect_b32 s16, %d, s16" % OOB)
        k("s_add_u32 s17, s16, 0x400000")
        k("s_mov_b32 m0, s%d" % S_SLOT)
        k("buffer_load_dwordx4 v%d, %s, s16 offen lds" % (VOFF, s(SRD, 4)))
        k("s_add_u32 m0, s%d, 8192" % S_SLOT)
        k("buffer_load_dwordx4 v%d, %s, s17 offen lds" % (VOFF, s(SRD, 4)))
        k("s_add_u32 s%d, s%d, 1" % (S_KS, S_KS))
        k("s_and_b32 s%d, s%d, 15" % (S_KS, S_KS))
        k("s_add_u32 s%d, s%d, 1" % (S_CNT, S_CNT))
        k("s_add_u32 s%d, s%d, 16384" % (S_SLOT, S_SLOT))
        k("s_and_b32 s%d, s%d, %d" % (S_SLOT, S_SLOT, NSL * 16384 - 1))

    for _ in range(6):
        dma_stage()
    k("v_bfe_u32 v2, v%d, 2, 1" % LANE)
    k("v_bfe_u32 v3, v%d, 4, 1" % LANE)
    k("v_cmp_eq_u32 vcc, v2, v3")
    k("v_mov_b32 v2, 0x3f803f80")
    k("v_cndmask_b32 v%d, 0, v2, vcc" % SEL)
    for e in range(1, 4):
        k("v_mov_b32 v%d, v%d" % (SEL + e, SEL))

    def zero_state():
        for e in range(16):
            k("v_mov_b32 v%d, 0" % (O + e))
        for e in range(4):
            k("v_mov_b32 v%d, 0" % (L + e))
    zero_state()
    for e in range(4):
        k("v_mov_b32 v%d, 0" % (VB_ + e))
        k("v_mov_b32 v%d, 0" % (P + 4 + e))
    k("v_mov_b32 v%d, v%d" % (VCUR, VOFF))
    k("v_add_u32 v%d, 16384, v%d" % (VNXT, VOFF))
    k("s_mov_b32 s%d, 16384" % S_CUR)
    k.stamp(1)
    k("s_waitcnt vmcnt(8)")
    k("s_barrier")
    k.stamp(2)
    k("ds_read_b128 %s, v%d" % (v(KA_, 4), VCUR))
    k("ds_read_b128 %s, v%d offset:1024" % (v(KB_, 4), VCUR))
    k("ds_read_b128 %s, v%d offset:8192" % (v(VA_, 4), VCUR))
    k("s_waitcnt lgkmcnt(0)")

    def qk(dst, c):
        return ("v_mfma_f32_32x32x16_bf16 %s, %s, %s, %s" % (v(dst, 16), v(KA_, 4), v(QF, 4), c),
                "v_mfma_f32_32x32x16_bf16 %s, %s, %s, %s" % (v(dst, 16), v(KB_, 4), v(QF + 4, 4), v(dst, 16)))

    def max16(dst, src, first):
        if first:
            k("v_max3_f32 v%d, v%d, v%d, v%d" % (dst, src, src + 1, src + 2))
            k("v_max_f32 v%d, v%d, v%d" % (dst, dst, src + 3))
            r = range(4, 16, 2)
        else:
            r = range(0, 16, 2)
        for e in r:
            k("v_max3_f32 v%d, v%d, v%d, v%d" % (dst, dst, src + e, src + e + 1))

    def set_nm(mreg):
        k("v_mov_b32 v3, v%d" % mreg)
        k("v_permlane32_swap_b32 v%d, v3" % mreg)
        k("v_max_f32 v%d, v%d, v3" % (mreg, mreg))
        for e in range(16):
            k("v_sub_f32 v%d, 0, v%d" % (NM + e, mreg))

    for m in qk(S1, "0"):
        k(m)
    max16(2, S1, True)
    set_nm(2)
    for m in qk(S0, v(NM, 16)):
        k(m)
    k("ds_read_b128 %s, v%d offset:2048" % (v(KA_, 4), VCUR))
    k("ds_read_b128 %s, v%d offset:3072" % (v(KB_, 4), VCUR))
    k("s_mov_b32 s%d, 0" % S_ST)
    k("s_waitcnt lgkmcnt(0)")

    def exps(Sx, q):
        for e in range(4):
            k("v_exp_f32 v%d, v%d" % (Sx + 4 * q + e, Sx + 4 * q + e))
        for e in range(2):
            k("v_cvt_pk_bf16_f32 v%d, v%d, v%d" % (P + 2 * q + e, Sx + 4 * q + 2 * e, Sx + 4 * q + 2 * e + 1))

    def pv(vf, pf):
        k("v_mfma_f32_32x32x16_bf16 %s, %s, %s, %s" % (v(O, 16), v(vf, 4), v(pf, 4), v(O, 16)))
        k("v_mfma_f32_16x16x32_bf16 %s, %s, %s, %s" % (v(L, 4), v(SEL, 4), v(pf, 4), v(L, 4)))

    def addr(tt):
        return (VCUR, tt * 2048) if tt < 4 else (VNXT, (tt - 4) * 2048)

    LOOP = k.uid("loop")
    k.label(LOOP)
    dma_stage()
    for tt in range(4):
        Sc, Sn = S[tt & 1], S[(tt + 1) & 1]
        m1, m3 = qk(Sn, v(NM, 16))
        ra, oa = addr(tt + 2)
        k("s_waitcnt lgkmcnt(3)")
        k(m1)
        k("ds_read_b128 %s, v%d offset:%d" % (v(KA_, 4), ra, oa))
        exps(Sc, 0)
        k("s_waitcnt lgkmcnt(3)")
        pv(VB_, P + 4)
        k("ds_read_b128 %s, v%d offset:%d" % (v(VB_, 4), VCUR, 8192 + tt * 2048 + 1024))
        exps(Sc, 1)
        k("s_waitcnt lgkmcnt(3)")
        k(m3)
        k("ds_read_b128 %s, v%d offset:%d" % (v(KB_, 4), ra, oa + 1024))
        exps(Sc, 2)
        k("s_waitcnt lgkmcnt(3)")
        pv(VA_, P)
        rv, ov = addr(tt + 1)
        k("ds_read_b128 %s, v%d offset:%d" % (v(VA_, 4), rv, 8192 + ov))
        exps(Sc, 3)
    k("v_mov_b32 v%d, v%d" % (VCUR, VNXT))
    k("s_add_u32 s%d, s%d, 16384" % (S_CUR, S_CUR))
    k("s_and_b32 s%d, s%d, %d" % (S_CUR, S_CUR, NSL * 16384 - 1))
    k("v_add_u32 v%d, s%d, v%d" % (VNXT, S_CUR, VOFF))
    k("s_add_u32 s%d, s%d, 1" % (S_ST, S_ST))
    k("s_waitcnt vmcnt(8)")
    k("s_barrier")
    k("s_cmp_lt_u32 s%d, 16" % S_ST)
    k("s_cbranch_scc1 " + LOOP)
    k("s_waitcnt lgkmcnt(0)")
    k.stamp(3)
    pv(VB_, P + 4)
    k("v_mov_b32 v2, v%d" % L)
    for e in range(16):
        k("v_fma_f32 v2, v%d, 0, v2" % (O + e))
    k("v_mov_b32 v3, %s" % fhex(2.0 ** 100 if not force_slow else -1.0))
    k("v_cmp_nlt_f32 vcc, v2, v3")
    k("s_cbranch_vccnz " + SLOW)
    k.label(EPI)
    k("v_rcp_f32 v2, v%d" % L)
    k("v_mov_b32 v3, v2")
    for e in range(0, 16, 2):
        k("v_pk_mul_f32 %s, %s, v[2:3]" % (v(O + e, 2), v(O + e, 2)))
    pack16(k, P, O)
    swap8(k, P)
    k("s_lshr_b32 s10, s%d, 2" % S_RT)
    k("s_lshl_b32 s10, s10, 18")
    k("s_lshl_b32 s11, s%d, 13" % S_HEAD)
    k("s_add_u32 s10, s10, s11")
    k("s_and_b32 s11, s%d, 3" % S_RT)
    k("s_lshl_b32 s11, s11, 10")
    k("s_add_u32 s10, s10, s11")
    k("s_add_u32 s11, s10, 4096")
    k("buffer_store_dwordx4 %s, v%d, %s, s10 offen" % (v(P, 4), VOFF, s(SRDO, 4)))
    k("buffer_store_dwordx4 %s, v%d, %s, s11 offen" % (v(P + 4, 4), VOFF, s(SRDO, 4)))
    k.stamp(4)
    k.stamp_dump(5)
    k.label(END)
    k("s_endpgm")

    k.label(SLOW)
    k("s_waitcnt vmcnt(0)")
    LA, LB = k.uid("slowa"), k.uid("slowb")
    k("s_add_u32 s16, s%d, 0x400000" % S_KB)
    k("s_mov_b32 s%d, 0" % S_ST)
    k("v_mov_b32 v2, 0xff800000")
    k.label(LA)
    k("buffer_load_dwordx4 %s, v%d, %s, s16 offen" % (v(KA_, 4), VOFF, s(SRD, 4)))
    k("buffer_load_dwordx4 %s, v%d, %s, s16 offen offset:1024" % (v(KB_, 4), VOFF, s(SRD, 4)))
    k("s_waitcnt vmcnt(0)")
    for m in qk(S0, "0"):
        k(m)
    max16(2, S0, False)
    k("s_add_u32 s16, s16, 2048")
    k("s_add_u32 s%d, s%d, 1" % (S_ST, S_ST))
    k("s_cmp_lt_u32 s%d, 64" % S_ST)
    k("s_cbranch_scc1 " + LA)
    set_nm(2)
    zero_state()
    k("s_add_u32 s16, s%d, 0x400000" % S_KB)
    k("s_add_u32 s17, s%d, 0x800000" % S_KB)
    k("s_mov_b32 s%d, 0" % S_ST)
    k.label(LB)
    k("buffer_load_dwordx4 %s, v%d, %s, s16 offen" % (v(KA_, 4), VOFF, s(SRD, 4)))
    k("buffer_load_dwordx4 %s, v%d, %s, s16 offen offset:1024" % (v(KB_, 4), VOFF, s(SRD, 4)))
    k("buffer_load_dwordx4 %s, v%d, %s, s17 offen" % (v(VA_, 4), VOFF, s(SRD, 4)))
    k("buffer_load_dwordx4 %s, v%d, %s, s17 offen offset:1024" % (v(VB_, 4), VOFF, s(SRD, 4)))
    k("s_waitcnt vmcnt(0)")
    for m in qk(S0, v(NM, 16)):
        k(m)
    for q in range(4):
        exps(S0, q)
    pv(VA_, P)
    pv(VB_, P + 4)
    k("s_add_u32 s16, s16, 2048")
    k("s_add_u32 s17, s17, 2048")
    k("s_add_u32 s%d, s%d, 1" % (S_ST, S_ST))
    k("s_cmp_lt_u32 s%d, 64" % S_ST)
    k("s_cbranch_scc1 " + LB)
    k("s_branch " + EPI)
    txt, n = k.finish(vgprs=112, sgprs=64)
    return txt, "; @launch kernel=%s grid=(256,1,1) block=(512,1,1) lds=%d" % (name, NSL * 16384)
```

```python
import struct
from asmlib import *

KA = dict(x=0, wqkv=8, wo=16, bx=24, w_in=32, w_sp=40, b_sp=48, w_out=56, c=64, w_mod=72, out=80, dbg=88, ws=96)
SZ = dict(x=4194304, wqkv=6291456, wo=2097152, w_in=7340032, w_sp=8388608, b_sp=4096, w_out=3670016, c=2048,
          w_mod=12582912, out=4194304)

WS = dict(
    MODP=(0x0, 49152),
    ST=(0x10000, 32768),
    ST2=(0x10000, 16384),
    ST3=(0x14000, 16384),
    XN=(0x100000, 0x400000),
    QKV=(0x500000, 0xC00000),
    O=(0x1100000, 0x400000),
    X1=(0x1500000, 0x400000),
    Z1=(0x1900000, 0x700000),
    Z2=(0x2000000, 0x700000),
    U=(0x2700000, 0x700000),
)


def f2u(x):
    return struct.unpack("<I", struct.pack("<f", x))[0]


def fhex(x):
    return "0x%08x" % f2u(x)


def srd_in(k, dst, ptr, size):
    k("s_mov_b32 s%d, s%d" % (dst, ptr))
    k("s_mov_b32 s%d, s%d" % (dst + 1, ptr + 1))
    k("s_mov_b32 s%d, %d" % (dst + 2, size))
    k("s_mov_b32 s%d, 0x20000" % (dst + 3))


def srd_ws(k, dst, wsptr, region):
    off, size = WS[region]
    k("s_add_u32 s%d, s%d, %d" % (dst, wsptr, off))
    k("s_addc_u32 s%d, s%d, 0" % (dst + 1, wsptr + 1))
    k("s_mov_b32 s%d, %d" % (dst + 2, size))
    k("s_mov_b32 s%d, 0x20000" % (dst + 3))


def unpack_bf16(k, lo, hi, src):
    k("v_lshlrev_b32 v%d, 16, v%d" % (lo, src))
    k("v_and_b32 v%d, 0xffff0000, v%d" % (hi, src))


def srd_ws_sub(k, dst, wsptr, region, s_off, size):
    off, _ = WS[region]
    k("s_add_u32 s%d, s%d, %d" % (dst + 2, s_off, off))
    k("s_add_u32 s%d, s%d, s%d" % (dst, wsptr, dst + 2))
    k("s_addc_u32 s%d, s%d, 0" % (dst + 1, wsptr + 1))
    k("s_mov_b32 s%d, %d" % (dst + 2, size))
    k("s_mov_b32 s%d, 0x20000" % (dst + 3))


WS["SC"] = (0x20000, 14 * 2048 * 4)
```

```python
from common import *

OOB = 0x7f000000

S_WAVE, S_BM, S_BN, S_ROT = 3, 20, 21, 22
SRD_X, SRD_W = 24, 28
SRD_E0, SRD_E1, SRD_E2, SRD_E3 = 32, 36, 40, 44
V_LANE = 1


def map_blocks(k, lg_am, an, xm_bits):
    k("s_and_b32 s48, s2, 7")
    k("s_lshr_b32 s49, s2, 3")
    k("s_and_b32 s50, s49, %d" % ((1 << lg_am) - 1))
    k("s_lshr_b32 s51, s49, %d" % lg_am)
    k("s_and_b32 s52, s48, %d" % ((1 << xm_bits) - 1))
    k("s_lshl_b32 s52, s52, %d" % lg_am)
    k("s_add_u32 s%d, s52, s50" % S_BM)
    k("s_lshr_b32 s52, s48, %d" % xm_bits)
    k("s_mul_i32 s52, s52, %d" % an)
    k("s_add_u32 s%d, s52, s51" % S_BN)


class Dma:
    def __init__(self, srd, pieces, stride, ring, slot, sbase):
        self.srd, self.pieces, self.stride, self.ring, self.slot, self.sbase = srd, pieces, stride, ring, slot, sbase


DBG = dict(no_dsw=False, no_valu=False, l2hit=False, no_cons=False, no_prod=False, no_xf=False, no_mfma=False, no_reads=False)


def gemm(name, cfg):
    k = Kern(name)
    T, NWG = cfg["T"], cfg["NWG"]
    MT, NT = cfg["MT"], cfg["NT"]
    NS = cfg["NS"]
    NP = cfg.get("NP", 4)
    NB_ = 16 // NP
    END, PROD = k.uid("end"), k.uid("prod")
    k("s_cmp_ge_u32 s2, %d" % NWG)
    k("s_cbranch_scc1 " + END)
    k.kidx = cfg.get("kidx", 0)
    k.stamp_init()
    cfg["load_ptrs"](k)
    k("v_lshrrev_b32 v2, 6, v0")
    k("v_and_b32 v%d, 63, v0" % V_LANE)
    k("v_readfirstlane_b32 s%d, v2" % S_WAVE)
    cfg["map"](k)
    k("s_cmp_ge_u32 s%d, 4" % S_WAVE)
    k("s_cbranch_scc1 " + PROD)
    k("s_waitcnt lgkmcnt(0)")
    cfg["srds_c"](k)

    xr, wr = cfg["x_ring"], cfg["w_ring"]
    ACC = cfg["ACC"]
    FR = cfg["FRAG"]
    fsz = 4 * (MT + NT)
    VX0, VW0, VX, VW = 4, 5, 6, 10
    if cfg["wgrid"] == "2x2":
        k("s_lshr_b32 s48, s%d, 1" % S_WAVE)
        k("s_and_b32 s49, s%d, 1" % S_WAVE)
    else:
        k("s_mov_b32 s48, s%d" % S_WAVE)
        k("s_mov_b32 s49, 0")
    S_WM, S_WN = 48, 49
    if cfg.get("table"):
        cfg["table"](k)
        k("s_waitcnt lgkmcnt(0)")
        k("s_barrier")
    if cfg.get("cons_pre"):
        cfg["cons_pre"](k)
    swz = cfg["x_mode"] == "dma_swz"
    if swz:
        k("v_and_b32 v2, 31, v%d" % V_LANE)
        k("v_lshrrev_b32 v3, 5, v%d" % V_LANE)
        k("v_bfe_u32 v%d, v%d, 1, 3" % (VX0, V_LANE))
        k("v_xor_b32 v%d, v%d, v3" % (VX0, VX0))
        k("v_lshlrev_b32 v%d, 4, v%d" % (VX0, VX0))
        k("v_lshl_add_u32 v%d, v2, 7, v%d" % (VX0, VX0))
        k("s_mul_i32 s50, s%d, %d" % (S_WM, MT * 4096))
        k("s_add_u32 s50, s50, %d" % xr[0])
        k("v_add_u32 v%d, s50, v%d" % (VX0, VX0))
    else:
        k("s_mul_i32 s50, s%d, %d" % (S_WM, MT * 1024))
        k("s_add_u32 s50, s50, %d" % xr[0])
        k("v_lshl_add_u32 v%d, v%d, 4, s50" % (VX0, V_LANE))
    W_HH, W_RD, W_KS = cfg["w_strides"]
    k("v_lshrrev_b32 v2, 5, v%d" % V_LANE)
    k("v_mul_u32_u24 v%d, %d, v2" % (VW0, W_HH))
    k("v_bfe_u32 v2, v%d, 2, 2" % V_LANE)
    k("v_lshl_add_u32 v%d, v2, 6, v%d" % (VW0, VW0))
    k("v_bfe_u32 v2, v%d, 4, 1" % V_LANE)
    k("v_lshl_add_u32 v%d, v2, 5, v%d" % (VW0, VW0))
    k("v_and_b32 v2, 3, v%d" % V_LANE)
    k("v_lshl_add_u32 v%d, v2, 3, v%d" % (VW0, VW0))
    k("s_mul_i32 s50, s%d, %d" % (S_WN, cfg["w_wave_stride"]))
    k("s_add_u32 s50, s50, %d" % wr[0])
    k("v_add_u32 v%d, s50, v%d" % (VW0, VW0))
    for i in range(16 * MT * NT):
        k("v_mov_b32 v%d, 0" % (ACC + i))
    S_XS, S_WS, S_T = 52, 53, 54

    def set_addr():
        k("v_add_u32 v%d, s%d, v%d" % (VX, S_XS, VX0))
        k("v_add_u32 v%d, s%d, v%d" % (VW, S_WS, VW0))
        if swz:
            for ks in range(1, 4):
                k("v_xor_b32 v%d, %d, v%d" % (VX + ks, ks * 32, VX))

    def adv_slots():
        for (sr, ring) in ((S_XS, xr), (S_WS, wr)):
            k("s_add_u32 s%d, s%d, %d" % (sr, sr, ring[1]))
            k("s_cmp_ge_u32 s%d, %d" % (sr, ring[1] * ring[2]))
            k("s_cselect_b32 s%d, 0, s%d" % (sr, sr))

    def reads(ks, f):
        o = []
        base = FR + f * fsz
        xs, ws = [], []
        for i in range(MT):
            if swz:
                xs.append("ds_read_b128 %s, v%d offset:%d" % (v(base + 4 * i, 4), VX + ks, i * 4096))
            else:
                xs.append("ds_read_b128 %s, v%d offset:%d" % (v(base + 4 * i, 4), VX, ks * 4096 + i * 1024))
        for j in range(NT):
            for rd in range(2):
                off = cfg["w_tile_off"](j) + ks * W_KS + rd * W_RD
                ws.append("ds_read_b64_tr_b16 %s, v%d offset:%d" % (v(base + 4 * MT + 4 * j + 2 * rd, 2), VW, off))
        o.append(xs[0])
        o += ws[0:2]
        o += xs[1:]
        o += ws[2:]
        return o

    def mfmas(f):
        o = []
        base = FR + f * fsz
        for j in range(NT):
            for i in range(MT):
                acc = v(ACC + 16 * (i * NT + j), 16)
                xf, wf = v(base + 4 * i, 4), v(base + 4 * MT + 4 * j, 4)
                if cfg.get("swap_tile", lambda j: False)(j):
                    o.append("v_mfma_f32_32x32x16_bf16 %s, %s, %s, %s" % (acc, xf, wf, acc))
                else:
                    o.append("v_mfma_f32_32x32x16_bf16 %s, %s, %s, %s" % (acc, wf, xf, acc))
        return o

    def interleave(ms, rs, per):
        rs = list(rs)
        if DBG["no_cons"]:
            return
        if DBG["no_mfma"]:
            ms = []
        if DBG["no_reads"]:
            rs = []
        for m in ms:
            k(m)
            for _ in range(per):
                if rs:
                    k(rs.pop(0))
        for r in rs:
            k(r)

    k("s_mov_b32 s%d, 0" % S_XS)
    k("s_mov_b32 s%d, 0" % S_WS)
    k("s_mov_b32 s%d, 0" % S_T)
    set_addr()
    k.stamp(1)
    k("s_barrier")
    k.stamp(2)
    PD = cfg.get("PD", 1)
    NF = 2 if PD == 1 else 4
    for ks in range(PD):
        for r in reads(ks, ks % NF):
            k(r)
    LOOP = k.uid("cloop")
    nrd = MT + 2 * NT
    per = cfg.get("reads_per_mfma", max(2, -(-nrd // max(1, MT * NT - 1))))
    nbar = cfg.get("mfma_before_barrier", 1)
    k.label(LOOP)
    for ks in range(4):
        ms = mfmas(ks % NF)
        nxt = (ks + PD) % 4
        k("s_waitcnt lgkmcnt(%d)" % min(15, nrd * (PD - 1)))
        if ks + PD == 4:
            for m in ms[:nbar]:
                k(m)
            set_addr()
            if PD > 1:
                k("s_waitcnt lgkmcnt(0)")
            k("s_barrier")
            interleave(ms[nbar:], reads(nxt, nxt % NF), per + 1)
        else:
            interleave(ms, reads(nxt, nxt % NF), per)
        if ks == 0:
            adv_slots()
            k("s_add_u32 s%d, s%d, 1" % (S_T, S_T))
    k("s_cmp_lt_u32 s%d, %d" % (S_T, T))
    k("s_cbranch_scc1 " + LOOP)
    k("s_waitcnt lgkmcnt(0)")
    k.stamp(3)
    cfg["epilogue"](k)
    k.stamp(4)
    k.stamp_dump(5)
    k("s_endpgm")

    k.label(PROD)
    if cfg.get("pprio", 0):
        k("s_setprio %d" % cfg["pprio"])
    k("s_sub_u32 s%d, s%d, 4" % (S_WAVE, S_WAVE))
    dmas = cfg["dma_setup"](k)
    vg = cfg.get("vg")
    S_TMP, S_OFF, S_M = 66, 68, 72
    S_VOFF, S_IT = 76, 77
    nD = sum(len(d.pieces) for d in dmas)
    static_ring = NS in (2, 4)
    for n, d in enumerate(dmas):
        k("s_mov_b32 s%d, s%d" % (S_OFF + n, d.sbase))
        k("s_mul_i32 s%d, s%d, %d" % (S_M + n, S_WAVE, len(d.pieces) * 1024))
        k("s_add_u32 s%d, s%d, %d" % (S_M + n, S_M + n, d.ring))
        if not static_ring:
            k("s_add_u32 s%d, s%d, %d" % (S_M + 2 + n, S_M + n, d.slot * NS))
    if vg:
        VR, VOFF, VLDS = vg["regs"], vg["voff"], vg["vlds"]
        k("s_mul_i32 s%d, s%d, %d" % (S_TMP, S_WAVE, NB_ * 1024))
        k("v_lshl_add_u32 v%d, v%d, 4, s%d" % (VOFF, V_LANE, S_TMP))
        k("v_add_u32 v%d, %d, v%d" % (VLDS, vg["ring"], VOFF))
        k("s_mov_b32 s%d, 0" % S_VOFF)
    k("s_waitcnt lgkmcnt(0)")
    cfg["srds_p"](k)
    k.stamp(1)

    def dma_items(step):
        o = []
        for n, d in enumerate(dmas):
            for i, vreg in enumerate(d.pieces):
                g = []
                if i % 4 == 0:
                    c = (i // 4) * 4096 + ((step % NS) * d.slot if static_ring else 0)
                    g.append("s_add_u32 m0, s%d, %d" % (S_M + n, c) if c else "s_mov_b32 m0, s%d" % (S_M + n))
                g.append("buffer_load_dwordx4 v%d, %s, s%d offen offset:%d lds" % (vreg, s(d.srd, 4), S_OFF + n, (i % 4) * 1024))
                if i == len(d.pieces) - 1:
                    g.append("s_add_u32 s%d, s%d, %d" % (S_OFF + n, S_OFF + n, d.stride))
                    if not static_ring:
                        g.append("s_add_u32 s%d, s%d, %d" % (S_M + n, S_M + n, d.slot))
                        g.append("s_cmp_ge_u32 s%d, s%d" % (S_M + n, S_M + 2 + n))
                        g.append("s_cselect_b32 s%d, %d, 0" % (S_TMP, d.slot * NS))
                        g.append("s_sub_u32 s%d, s%d, s%d" % (S_M + n, S_M + n, S_TMP))
                o.append(g)
        return o

    def emit(groups):
        for g in groups:
            for l in g:
                k(l)

    if vg:
        def vg_items(set_):
            o = []
            for i in range(NB_):
                g = ["buffer_load_dwordx4 %s, v%d, %s, s%d offen offset:%d" %
                     (v(VR + 16 * set_ + 4 * i, 4), VOFF, s(vg["srd"], 4), S_VOFF, i * 1024)]
                if i == NB_ - 1:
                    g.append("s_add_u32 s%d, s%d, 16384" % (S_VOFF, S_VOFF))
                o.append(g)
            return o

        def xform_list(step):
            set_ = step % 4
            o = []
            for i in range(NB_):
                o += vg["xform"](VR + 16 * set_ + 4 * i, i, step % 2)
                o.append("ds_write_b128 v%d, %s offset:%d" % (VLDS, v(VR + 16 * set_ + 4 * i, 4), (step % 2) * 16384 + i * 1024))
            return o

        npre = 0
        if vg.get("pre_load"):
            vg["pre_load"](k)
        emit(vg_items(0))
        emit(dma_items(0))
        emit(vg_items(1))
        if vg.get("pre_fin"):
            k("s_waitcnt vmcnt(%d)" % (2 * NB_ + nD))
            vg["pre_fin"](k)
        for st in range(1, NS - 1):
            emit(dma_items(st))
        emit(vg_items(2))
        k("s_barrier")
        emit([vg["params"](0)])
        emit([vg["params"](1)])
        k("s_waitcnt vmcnt(%d) lgkmcnt(0)" % (2 * NB_ + (NS - 1) * nD))
        k.stamp(2)
        for l in xform_list(0):
            k(l)
        k("s_waitcnt vmcnt(%d) lgkmcnt(0)" % (NB_ + (NS - 2) * nD))
        k.stamp(3)
        k("s_barrier")
        k("s_mov_b32 s%d, 0" % S_IT)
        LOOP = k.uid("ploop")
        k.label(LOOP)
        for u in range(4):
            mem = vg_items((u + 3) % 4) + dma_items(u + NS - 1)
            xf = xform_list(u + 1)
            mem.append(vg["params"](u % 2))
            if DBG["no_prod"]:
                mem, xf = [["s_nop 0"]], []
            if DBG["no_xf"]:
                xf = []
            if DBG["no_dsw"]:
                xf = [l for l in xf if not l.startswith("ds_write")]
            if DBG["no_valu"]:
                xf = [l for l in xf if l.startswith("ds_write")]
            tail = cfg.get("tail", 2)
            par = mem.pop()
            xf = par + xf
            ng = max(1, len(mem) - tail)
            gap = len(xf) / float(ng)
            pos, j = 0.0, 0
            for g in mem:
                emit([g])
                pos += gap
                while j < len(xf) and j < int(pos + 0.5):
                    k(xf[j])
                    j += 1
            if u == 3 and DBG["l2hit"]:
                k("s_mov_b32 s%d, 0" % S_VOFF)
                for n, d in enumerate(dmas):
                    k("s_mov_b32 s%d, s%d" % (S_OFF + n, d.sbase))
            if u == 3:
                k("s_add_u32 s%d, s%d, 4" % (S_IT, S_IT))
                k("s_cmp_lt_u32 s%d, %d" % (S_IT, T))
            k("s_waitcnt vmcnt(%d) lgkmcnt(0)" % (NB_ + nD))
            k("s_barrier")
        k("s_cbranch_scc1 " + LOOP)
    else:
        for st in range(NS - 1):
            emit(dma_items(st))
        if cfg.get("table"):
            k("s_barrier")
        k.stamp(2)
        k("s_waitcnt vmcnt(%d)" % ((NS - 2) * nD))
        k.stamp(3)
        k("s_barrier")
        k("s_mov_b32 s%d, 0" % S_IT)
        LOOP = k.uid("ploop")
        k.label(LOOP)
        U = 4 if static_ring else 1
        for u in range(U):
            if not DBG["no_prod"]:
                emit(dma_items(u + NS - 1))
            if u == U - 1 and DBG["l2hit"]:
                for n, d in enumerate(dmas):
                    k("s_mov_b32 s%d, s%d" % (S_OFF + n, d.sbase))
            if u == U - 1:
                k("s_add_u32 s%d, s%d, %d" % (S_IT, S_IT, U))
                k("s_cmp_lt_u32 s%d, %d" % (S_IT, T))
            k("s_waitcnt vmcnt(%d)" % ((NS - 2) * nD))
            k("s_barrier")
        k("s_cbranch_scc1 " + LOOP)
    k("s_waitcnt vmcnt(0)")
    k.stamp_dump(5)
    k.label(END)
    k("s_endpgm")
    txt, n = k.finish(vgprs=cfg["vgprs"], sgprs=96)
    return txt, "; @launch kernel=%s grid=(%d,1,1) block=(%d,1,1) lds=%d" % (name, NWG, 256 + 64 * NP, cfg["lds"])
```

```python
from gemm import *
import math

LOG2E = 1.4426950408889634
S_WM, S_WN = 48, 49


def w_voff(k, vreg, NB, ldb, lg_rows=4):
    k("v_bfe_u32 v2, v%d, 2, 2" % V_LANE)
    k("v_and_b32 v3, 3, v%d" % V_LANE)
    k("v_lshlrev_b32 v%d, 4, v3" % vreg)
    k("s_lshl_b32 s50, s%d, %d" % (S_WAVE, lg_rows))
    k("v_add_u32 v2, s50, v2")
    if NB == 2:
        k("v_lshrrev_b32 v3, 5, v%d" % V_LANE)
        k("v_lshl_add_u32 v2, v3, 2, v2")
        k("v_bfe_u32 v3, v%d, 4, 1" % V_LANE)
    else:
        k("v_lshrrev_b32 v3, 4, v%d" % V_LANE)
    k("v_lshl_add_u32 v%d, v3, 6, v%d" % (vreg, vreg))
    k("s_mov_b32 s50, %d" % ldb)
    k("v_mul_lo_u32 v2, v2, s50")
    k("v_add_u32 v%d, v2, v%d" % (vreg, vreg))


def kparam_addr(k, TAB, NP=4):
    k("v_lshrrev_b32 v2, 5, v%d" % V_LANE)
    k("v_lshlrev_b32 v7, 6, v2")
    k("s_lshr_b32 s50, s%d, %d" % (S_WAVE, 0 if NP == 4 else 1))
    k("s_lshl_b32 s50, s50, 7")
    k("s_add_u32 s50, s50, %d" % TAB)
    k("v_add_u32 v7, s50, v7")


def kparams(PG):
    def f(par):
        return ["ds_read_b128 %s, v7 offset:%d" % (v(PG + 16 * par + 4 * q, 4), q * 16) for q in range(4)] + \
               ["v_add_u32 v7, 512, v7"]
    return f


MIXLO = "op_sel_hi:[1,0,0]"
MIXHI = "op_sel:[1,0,0] op_sel_hi:[1,0,0]"


def mod_table(TAB, ci, si, T0):
    def f(k):
        k("v_lshlrev_b32 v2, 4, v0")
        for n, (idx, p) in enumerate(((ci, 0), (ci, 1), (si, 0), (si, 1))):
            k("s_mov_b32 s%d, %d" % (56 + n, (p * 6144 + idx * 1024) * 4))
            k("buffer_load_dwordx4 %s, v2, %s, s%d offen" % (v(T0 + 4 * n, 4), s(SRD_E0, 4), 56 + n))
        k("v_lshrrev_b32 v2, 1, v0")
        k("v_lshlrev_b32 v2, 6, v2")
        k("v_and_b32 v3, 1, v0")
        k("v_lshl_add_u32 v2, v3, 4, v2")
        k("v_add_u32 v2, %d, v2" % TAB)
        k("s_waitcnt vmcnt(0)")
        for e in range(4):
            k("v_add_f32 v%d, v%d, v%d" % (T0 + e, T0 + e, T0 + 4 + e))
            k("v_add_f32 v%d, v%d, v%d" % (T0 + 8 + e, T0 + 8 + e, T0 + 12 + e))
        for b in (T0, T0 + 8):
            for e in (0, 2):
                k("v_cvt_pk_bf16_f32 v3, v%d, v%d" % (b + e, b + e + 1))
                unpack_bf16(k, b + e, b + e + 1, 3)
        for e in range(4):
            k("v_add_f32 v%d, 1.0, v%d" % (T0 + e, T0 + e))
        for e in (0, 2):
            k("v_cvt_pk_bf16_f32 v3, v%d, v%d" % (T0 + e, T0 + e + 1))
            unpack_bf16(k, T0 + e, T0 + e + 1, 3)
        k("ds_write_b128 v2, %s" % v(T0, 4))
        k("ds_write_b128 v2, %s offset:32" % v(T0 + 8, 4))
    return f


def pack16(k, P, A):
    for d in range(8):
        k("v_cvt_pk_bf16_f32 v%d, v%d, v%d" % (P + d, A + 2 * d, A + 2 * d + 1))


def swap8(k, P):
    for p in (0, 4):
        k("v_permlane32_swap_b32 v%d, v%d" % (P + p, P + p + 2))
        k("v_permlane32_swap_b32 v%d, v%d" % (P + p + 1, P + p + 3))


def mod_cols_load(k, idx, R, T2):
    k("v_lshrrev_b32 v2, 5, v%d" % V_LANE)
    k("v_lshlrev_b32 v2, 4, v2")
    k("s_lshl_b32 s56, s%d, 8" % S_BN)
    k("s_add_u32 s56, s56, %d" % (idx * 4096))
    k("s_add_u32 s57, s56, %d" % (6144 * 4))
    for jg in range(8):
        k("buffer_load_dwordx4 %s, v2, %s, s56 offen offset:%d" % (v(R + 4 * jg, 4), s(SRD_E0, 4), jg * 32))
        k("buffer_load_dwordx4 %s, v2, %s, s57 offen offset:%d" % (v(T2 + 4 * jg, 4), s(SRD_E0, 4), jg * 32))


def mod_cols_fin(k, R, T2):
    for e in range(0, 32, 2):
        k("v_pk_add_f32 %s, %s, %s" % (v(R + e, 2), v(R + e, 2), v(T2 + e, 2)))
        k("v_cvt_pk_bf16_f32 v3, v%d, v%d" % (R + e, R + e + 1))
        unpack_bf16(k, R + e, R + e + 1, 3)


def gen_g1(NS=4, PD=1, NP=8):
    TAB = 32768 + NS * 24576
    FR = 16
    ACC = FR + (40 if PD == 1 else 80)

    def load_ptrs(k):
        k("s_load_dwordx2 s[4:5], s[0:1], %d" % KA["wqkv"])
        k("s_load_dwordx2 s[6:7], s[0:1], %d" % KA["ws"])

    def srds_c(k):
        srd_ws(k, SRD_E0, 6, "MODP")
        srd_ws(k, SRD_E1, 6, "QKV")

    def srds_p(k):
        srd_ws_sub(k, SRD_X, 6, "XN", 81, 16 * 16384)
        srd_in(k, SRD_W, 4, SZ["wqkv"])

    def dma_setup(k):
        w_voff(k, 8, 2, 6144, 4 if NP == 4 else 3)
        npc = 24 // NP
        for i in range(1, npc):
            k("v_add_u32 v%d, %d, v8" % (8 + i, (i // 3) * 8 * 6144 + (i % 3) * 2048 - (i % 4) * 1024))
        k("s_lshl_b32 s80, s%d, 7" % S_BN)
        k("s_lshl_b32 s81, s%d, 18" % S_BM)
        kparam_addr(k, TAB, NP)
        return [Dma(SRD_W, list(range(8, 8 + npc)), 64 * 6144, 32768, 24576, 80)]

    PG, TT = 80, 112

    def xform(R, i, par):
        G, o = PG + 16 * par, []
        T_ = TT + 8 * (i & 1)
        for d in range(8):
            o.append("v_fma_mix_f32 v%d, v%d, v%d, v%d %s" % (T_ + d, R + d // 2, G + d, G + 8 + d, MIXHI if d & 1 else MIXLO))
        for d in range(4):
            o.append("v_cvt_pk_bf16_f32 v%d, v%d, v%d" % (R + d, T_ + 2 * d, T_ + 2 * d + 1))
        return o

    def epilogue(k):
        qs = 32 ** -0.5 * LOG2E
        k("v_lshlrev_b32 v2, 4, v%d" % V_LANE)
        k("s_lshl_b32 s56, s%d, 1" % S_BN)
        k("s_add_u32 s56, s56, s%d" % S_WN)
        k("s_lshl_b32 s56, s56, 17")
        k("s_lshl_b32 s57, s%d, 13" % S_BM)
        k("s_add_u32 s56, s56, s57")
        k("s_lshl_b32 s57, s%d, 12" % S_WM)
        k("s_add_u32 s56, s56, s57")
        k("s_add_u32 s57, s56, 0x400000")
        k("s_add_u32 s58, s56, 0x800000")
        k("s_mov_b32 s60, %s" % fhex(qs))
        k("s_mov_b32 s61, %s" % fhex(qs))
        n = 0
        for j in range(3):
            for i in range(2):
                A = ACC + 16 * (i * 3 + j)
                P = FR + 8 * (n % 4)
                n += 1
                if j == 0:
                    for e in range(0, 16, 2):
                        k("v_pk_mul_f32 %s, %s, s[60:61]" % (v(A + e, 2), v(A + e, 2)))
                pack16(k, P, A)
                if j != 2:
                    swap8(k, P)
                for mf in range(2):
                    k("buffer_store_dwordx4 %s, v2, %s, s%d offen offset:%d" %
                      (v(P + 4 * mf, 4), s(SRD_E1, 4), 56 + j, i * 2048 + mf * 1024))

    cfg = dict(kidx=1, PD=PD, NP=NP, T=16, NWG=256, MT=2, NT=3, NS=NS, wgrid="2x2", load_ptrs=load_ptrs, srds_c=srds_c, srds_p=srds_p,
               map=lambda k: map_blocks(k, 3, 4, 1),
               x_ring=(0, 16384, 2), w_ring=(32768, 24576, NS), x_mode="vg", w_strides=(3072, 512, 6144),
               w_wave_stride=256, w_tile_off=lambda j: j * 1024, swap_tile=lambda j: j == 2,
               FRAG=FR, ACC=ACC, table=mod_table(TAB, 1, 0, FR), dma_setup=dma_setup,
               vg=dict(regs=16, voff=5, vlds=6, ring=0, srd=SRD_X, params=kparams(PG), xform=xform),
               epilogue=epilogue, vgprs=ACC + 96, lds=TAB + 8192 + 1024)
    return gemm("g1_kernel", cfg)


def gen_g25(which, NS=4, PD=3):
    T = 16 if which == 2 else 28
    FR, ACC, GA, XR, T2 = 16, 64, 96, 128, 144
    wname = "wo" if which == 2 else "w_out"

    def load_ptrs(k):
        k("s_load_dwordx2 s[4:5], s[0:1], %d" % KA[wname])
        k("s_load_dwordx2 s[6:7], s[0:1], %d" % KA["ws"])
        k("s_load_dwordx2 s[8:9], s[0:1], %d" % KA["x" if which == 2 else "out"])

    def srds_c(k):
        srd_ws(k, SRD_E0, 6, "MODP")
        srd_ws(k, SRD_E1, 6, "X1")
        srd_in(k, SRD_E2, 8, SZ["x"])
        srd_ws(k, SRD_E3, 6, "ST2")

    def srds_p(k):
        srd_ws_sub(k, SRD_X, 6, "O" if which == 2 else "U", 81, T * 16384)
        srd_in(k, SRD_W, 4, SZ[wname])

    def dma_setup(k):
        w_voff(k, 8, 2, 2048)
        k("v_add_u32 v9, %d, v8" % (8 * 2048 - 1024))
        k("s_lshl_b32 s80, s%d, 7" % S_BN)
        k("s_mul_i32 s81, s%d, %d" % (S_BM, T * 16384))
        k("s_mov_b32 s82, 0")
        k("s_lshl_b32 s50, s%d, 12" % S_WAVE)
        k("v_lshl_add_u32 v5, v%d, 4, s50" % V_LANE)
        return [Dma(SRD_X, [5, 5, 5, 5], 16384, 0, 16384, 82),
                Dma(SRD_W, [8, 9], 64 * 2048, NS * 16384, 8192, 80)]

    def cons_pre(k):
        mod_cols_load(k, 2 if which == 2 else 5, GA, T2)
        k("v_and_b32 v2, 31, v%d" % V_LANE)
        k("v_lshrrev_b32 v3, 5, v%d" % V_LANE)
        k("v_lshlrev_b32 v12, 11, v2")
        k("s_lshl_b32 s58, s%d, 18" % S_BM)
        k("s_lshl_b32 s59, s%d, 16" % S_WAVE)
        k("s_add_u32 s58, s58, s59")
        k("s_lshl_b32 s59, s%d, 7" % S_BN)
        k("s_add_u32 s58, s58, s59")
        k("s_lshl_b32 s59, s%d, 4" % S_BM)
        k("s_add_u32 s59, s59, s%d" % S_BN)
        k("s_lshl_b32 s59, s59, 4")
        k("s_add_u32 s59, s59, s%d" % S_WAVE)
        k("s_lshl_b32 s59, s59, 10")
        if which == 2:
            k("v_lshl_add_u32 v13, v3, 3, v12")
            for jg in range(8):
                k("buffer_load_dwordx2 %s, v13, %s, s58 offen offset:%d" % (v(XR + 2 * jg, 2), s(SRD_E2, 4), jg * 16))
        else:
            k("v_lshlrev_b32 v13, 4, v2")
            k("v_lshl_add_u32 v13, v3, 3, v13")
            for kt in range(4):
                k("s_add_u32 s%d, s59, %d" % (60 + kt, kt * 4096))
            for jg in range(8):
                k("buffer_load_dwordx2 %s, v13, %s, s%d offen offset:%d" %
                  (v(XR + 2 * jg, 2), s(SRD_E1, 4), 60 + (jg >> 1), (jg & 1) * 512))
        k("v_lshl_add_u32 v12, v3, 4, v12")
        k("s_waitcnt vmcnt(8)")
        mod_cols_fin(k, GA, T2)

    def epilogue(k):
        k("s_waitcnt vmcnt(0)")
        TT = T2
        if which == 2:
            for r in (8, 9, 10, 11):
                k("v_mov_b32 v%d, 0" % r)
        k("v_lshlrev_b32 v2, 4, v%d" % V_LANE)
        for j in range(2):
            A = ACC + 16 * j
            for d in range(8):
                unpack_bf16(k, TT + 2 * d, TT + 2 * d + 1, XR + 8 * j + d)
            for d in range(8):
                k("v_pk_fma_f32 %s, %s, %s, %s" % (v(A + 2 * d, 2), v(A + 2 * d, 2), v(GA + 16 * j + 2 * d, 2), v(TT + 2 * d, 2)))
            if which == 2:
                for d in range(8):
                    k("v_pk_add_f32 v[8:9], v[8:9], %s" % v(A + 2 * d, 2))
                    k("v_pk_fma_f32 v[10:11], %s, %s, v[10:11]" % (v(A + 2 * d, 2), v(A + 2 * d, 2)))
            P = FR + 8 * j
            pack16(k, P, A)
            swap8(k, P)
            for p in range(2):
                if which == 2:
                    k("s_add_u32 s60, s59, %d" % ((2 * j + p) * 4096))
                    k("buffer_store_dwordx4 %s, v2, %s, s60 offen" % (v(P + 4 * p, 4), s(SRD_E1, 4)))
                else:
                    k("buffer_store_dwordx4 %s, v12, %s, s58 offen offset:%d" %
                      (v(P + 4 * p, 4), s(SRD_E2, 4), j * 64 + p * 32))
        if which == 2:
            row_stats_atomic(k, 8, 10, SRD_E3, lambda: (
                k("s_lshl_b32 s60, s%d, 10" % S_BM), k("s_lshl_b32 s61, s%d, 8" % S_WAVE), k("s_add_u32 s60, s60, s61")))

    cfg = dict(kidx=3 if which == 2 else 6, PD=PD, T=T, NWG=256, MT=1, NT=2, NS=NS, wgrid="4x1", load_ptrs=load_ptrs,
               srds_c=srds_c, srds_p=srds_p, map=lambda k: map_blocks(k, 2, 8, 2),
               x_ring=(0, 16384, NS), w_ring=(NS * 16384, 8192, NS), x_mode="dma_fm", w_strides=(1024, 512, 2048),
               w_wave_stride=0, w_tile_off=lambda j: j * 256, reads_per_mfma=5,
               FRAG=FR, ACC=ACC, dma_setup=dma_setup, cons_pre=cons_pre,
               epilogue=epilogue, vgprs=176, lds=NS * 24576)
    return gemm("g%d_kernel" % which, cfg)


def row_stats_atomic(k, S1, S2, srd, base_to_s60):
    k("v_add_f32 v%d, v%d, v%d" % (S1, S1, S1 + 1))
    k("v_add_f32 v%d, v%d, v%d" % (S2, S2, S2 + 1))
    k("v_permlane32_swap_b32 v%d, v%d" % (S1, S2))
    k("v_add_f32 v%d, v%d, v%d" % (S1, S1, S2))
    k("v_and_b32 v2, 31, v%d" % V_LANE)
    k("v_lshrrev_b32 v3, 5, v%d" % V_LANE)
    k("v_lshlrev_b32 v2, 3, v2")
    k("v_lshl_add_u32 v2, v3, 2, v2")
    base_to_s60()
    k("buffer_atomic_add_f32 v%d, v2, %s, s60 offen" % (S1, s(srd, 4)))


def stats_to_affine(k, R, n):
    k("v_mul_f32 v2, %s, v%d" % (fhex(1.0 / n), R))
    k("v_mul_f32 v3, v2, v2")
    k("v_mul_f32 v%d, %s, v%d" % (R + 1, fhex(1.0 / n), R + 1))
    k("v_sub_f32 v3, v%d, v3" % (R + 1))
    k("v_max_f32 v3, 0, v3")
    k("v_add_f32 v3, %s, v3" % fhex(1e-5))
    k("v_rsq_f32 v%d, v3" % R)
    k("v_mul_f32 v%d, v2, v%d" % (R + 1, R))
    k("v_sub_f32 v%d, 0, v%d" % (R + 1, R + 1))


BCAST = "op_sel:[0,0,1] op_sel_hi:[1,0,1]"


def gen_g3(PD=2):
    TAB = 32768 + 3 * 32768
    FR, ACC = 16, 112

    def load_ptrs(k):
        k("s_load_dwordx2 s[4:5], s[0:1], %d" % KA["w_in"])
        k("s_load_dwordx2 s[6:7], s[0:1], %d" % KA["ws"])

    def srds_c(k):
        srd_ws(k, SRD_E0, 6, "MODP")
        srd_ws(k, SRD_E1, 6, "Z1")
        srd_ws(k, SRD_E2, 6, "Z2")
        srd_ws(k, SRD_E3, 6, "ST")
        srd_ws(k, SRD_X, 6, "SC")

    def srds_p(k):
        srd_ws(k, SRD_E3, 6, "ST")
        srd_ws_sub(k, SRD_X, 6, "X1", 81, 16 * 16384)
        srd_in(k, SRD_W, 4, SZ["w_in"])

    def dma_setup(k):
        w_voff(k, 8, 8, 7168)
        for i in range(1, 8):
            k("v_add_u32 v%d, %d, v8" % (8 + i, (i & 3) * (4 * 7168 - 1024) + (i >> 2) * 256))
        k("s_lshl_b32 s80, s%d, 9" % S_BN)
        k("s_lshl_b32 s81, s%d, 18" % S_BM)
        k("s_mov_b32 s82, 0xffff0000")
        kparam_addr(k, TAB)
        return [Dma(SRD_W, list(range(8, 16)), 64 * 7168, 32768, 32768, 80)]

    PG, TT, RP = 80, 112, 128

    def pre_load(k):
        k("v_and_b32 v2, 31, v%d" % V_LANE)
        k("v_lshlrev_b32 v2, 3, v2")
        k("s_lshl_b32 s50, s%d, 10" % S_BM)
        for i in range(4):
            k("buffer_load_dwordx2 %s, v2, %s, s50 offen offset:%d" % (v(RP + 2 * i, 2), s(SRD_E3, 4), i * 256))

    def pre_fin(k):
        for i in range(4):
            stats_to_affine(k, RP + 2 * i, 1024)

    def xform(R, i, par):
        G, o = PG + 16 * par, []
        T_ = TT + 8 * (i & 1)
        for d in range(4):
            o.append("v_lshlrev_b32 v%d, 16, v%d" % (T_ + 2 * d, R + d))
            o.append("v_and_b32 v%d, s82, v%d" % (T_ + 2 * d + 1, R + d))
        for d in range(8):
            o.append("v_fma_f32 v%d, v%d, v%d, v%d" % (T_ + d, T_ + d, RP + 2 * i, RP + 2 * i + 1))
        for d in range(8):
            o.append("v_fma_f32 v%d, v%d, v%d, v%d" % (T_ + d, T_ + d, G + d, G + 8 + d))
        for d in range(4):
            o.append("v_cvt_pk_bf16_f32 v%d, v%d, v%d" % (R + d, T_ + 2 * d, T_ + 2 * d + 1))
        return o

    C0 = -2.0 * math.sqrt(2.0 / math.pi) * LOG2E
    C1 = C0 * 0.044715

    def gelu16(k, A, TT):
        for e in range(0, 16, 2):
            k("v_pk_mul_f32 %s, %s, %s" % (v(TT + e, 2), v(A + e, 2), v(A + e, 2)))
        for e in range(0, 16, 2):
            k("v_pk_fma_f32 %s, %s, s[60:61], v[12:13]" % (v(TT + e, 2), v(TT + e, 2)))
        for e in range(0, 16, 2):
            k("v_pk_mul_f32 %s, %s, %s" % (v(TT + e, 2), v(TT + e, 2), v(A + e, 2)))
        for e in range(16):
            k("v_exp_f32 v%d, v%d" % (TT + e, TT + e))
        for e in range(0, 16, 2):
            k("v_pk_add_f32 %s, %s, 1.0 op_sel_hi:[1,0]" % (v(TT + e, 2), v(TT + e, 2)))
        for e in range(16):
            k("v_rcp_f32 v%d, v%d" % (TT + e, TT + e))
        for e in range(0, 16, 2):
            k("v_pk_mul_f32 %s, %s, %s" % (v(A + e, 2), v(A + e, 2), v(TT + e, 2)))

    def epilogue(k):
        Z2L = k.uid("z2")
        k("s_mov_b32 s60, %s" % fhex(C1))
        k("s_mov_b32 s61, %s" % fhex(C1))
        k("v_mov_b32 v12, %s" % fhex(C0))
        k("v_mov_b32 v13, %s" % fhex(C0))
        k("s_cmp_ge_u32 s%d, 7" % S_BN)
        k("s_cbranch_scc1 " + Z2L)
        k("v_lshlrev_b32 v2, 4, v%d" % V_LANE)
        k("s_lshl_b32 s56, s%d, 1" % S_BM)
        k("s_add_u32 s56, s56, s%d" % S_WM)
        k("s_mul_i32 s56, s56, %d" % (2 * 56 * 2048))
        k("s_lshl_b32 s57, s%d, 1" % S_BN)
        k("s_add_u32 s57, s57, s%d" % S_WN)
        k("s_lshl_b32 s57, s57, 13")
        k("s_add_u32 s56, s56, s57")
        n = 0
        for i in range(2):
            for j in range(4):
                A = ACC + 16 * (i * 4 + j)
                gelu16(k, A, FR)
                P = FR + 16 + 8 * (n % 4)
                n += 1
                pack16(k, P, A)
                k("s_add_u32 s58, s56, %d" % (i * 56 * 2048 + j * 2048))
                for p in range(2):
                    k("buffer_store_dwordx4 %s, v2, %s, s58 offen offset:%d" % (v(P + 4 * p, 4), s(SRD_E1, 4), p * 1024))
        k.stamp(4)
        k.stamp_dump(5)
        k("s_endpgm")
        k.label(Z2L)
        k("v_bfe_u32 v2, v%d, 2, 3" % V_LANE)
        k("v_lshlrev_b32 v14, 10, v2")
        k("v_and_b32 v2, 3, v%d" % V_LANE)
        k("v_lshl_add_u32 v14, v2, 6, v14")
        k("v_lshrrev_b32 v2, 5, v%d" % V_LANE)
        k("v_lshl_add_u32 v14, v2, 4, v14")
        k("s_sub_u32 s56, s%d, 7" % S_BN)
        k("s_lshl_b32 s56, s56, 1")
        k("s_add_u32 s56, s56, s%d" % S_WN)
        k("s_lshl_b32 s56, s56, 5")
        k("s_lshl_b32 s57, s%d, 1" % S_BM)
        k("s_add_u32 s57, s57, s%d" % S_WM)
        k("s_add_u32 s56, s56, s57")
        k("s_lshl_b32 s56, s56, 14")
        k("s_lshl_b32 s62, s57, 9")
        k("s_add_u32 s62, s62, 16384")
        k("s_lshr_b32 s63, s56, 6")
        k("v_and_b32 v15, 31, v%d" % V_LANE)
        k("v_lshlrev_b32 v15, 2, v15")
        n = 0
        for i in range(2):
            for r in (8, 9, 10, 11):
                k("v_mov_b32 v%d, 0" % r)
            k("s_add_u32 s58, s56, %d" % (i * 8192))
            for j in range(4):
                A = ACC + 16 * (i * 4 + j)
                gelu16(k, A, FR)
                for d in range(8):
                    k("v_pk_add_f32 v[8:9], v[8:9], %s" % v(A + 2 * d, 2))
                    k("v_pk_fma_f32 v[10:11], %s, %s, v[10:11]" % (v(A + 2 * d, 2), v(A + 2 * d, 2)))
            k("v_add_f32 v4, v10, v11")
            k("v_mov_b32 v5, v4")
            k("v_permlane32_swap_b32 v4, v5")
            k("v_add_f32 v4, v4, v5")
            k("v_add_f32 v4, %s, v4" % fhex(1e-30))
            k("v_rsq_f32 v4, v4")
            k("v_rcp_f32 v6, v4")
            k("v_mov_b32 v5, v4")
            k("buffer_store_dword v6, v15, %s, s63 offen offset:%d" % (s(SRD_X, 4), i * 128))
            row_stats_atomic(k, 8, 10, SRD_E3, lambda: k("s_add_u32 s60, s62, %d" % (i * 256)))
            k("s_mov_b32 s60, %s" % fhex(C1))
            for j in range(4):
                A = ACC + 16 * (i * 4 + j)
                P = FR + 16 + 8 * (n % 4)
                n += 1
                for d in range(8):
                    k("v_pk_mul_f32 %s, %s, v[4:5]" % (v(A + 2 * d, 2), v(A + 2 * d, 2)))
                for d in range(8):
                    k("v_cvt_pk_f16_f32 v%d, v%d, v%d" % (P + d, A + 2 * d, A + 2 * d + 1))
                swap8(k, P)
                for p in range(2):
                    k("buffer_store_dwordx4 %s, v14, %s, s58 offen offset:%d" %
                      (v(P + 4 * p, 4), s(SRD_E2, 4), j * 256 + p * 32))

    cfg = dict(kidx=4, PD=PD, early=4, T=16, NWG=224, MT=2, NT=4, NS=3, wgrid="2x2", load_ptrs=load_ptrs, srds_c=srds_c, srds_p=srds_p,
               map=lambda k: map_blocks(k, 2, 7, 2),
               x_ring=(0, 16384, 2), w_ring=(32768, 32768, 3), x_mode="vg", w_strides=(2048, 1024, 8192),
               w_wave_stride=4096, w_tile_off=lambda j: j * 256,
               FRAG=FR, ACC=ACC, table=mod_table(TAB, 4, 3, FR), dma_setup=dma_setup,
               vg=dict(regs=16, voff=5, vlds=6, ring=0, srd=SRD_X, params=kparams(PG), xform=xform,
                       pre_load=pre_load, pre_fin=pre_fin),
               epilogue=epilogue, vgprs=240, lds=TAB + 8192 + 1024)
    return gemm("g3_kernel", cfg)


def gen_g4(NS=4, PD=1, NP=8):
    WR = NS * 16384
    TAB = WR + 32768
    FR = 16
    ACC = FR + (32 if PD == 1 else 64)
    Z1R, BR = ACC + 64, ACC + 96

    def load_ptrs(k):
        k("s_load_dwordx4 s[4:7], s[0:1], %d" % KA["w_sp"])
        k("s_load_dwordx2 s[8:9], s[0:1], %d" % KA["ws"])

    def srds_c(k):
        srd_ws(k, SRD_E0, 8, "ST3")
        srd_ws(k, SRD_E1, 8, "Z1")
        srd_ws(k, SRD_E2, 8, "U")
        srd_in(k, SRD_E3, 6, SZ["b_sp"])
        srd_ws(k, SRD_X, 8, "SC")

    def srds_p(k):
        srd_in(k, SRD_X, 4, SZ["w_sp"])
        srd_ws_sub(k, SRD_W, 8, "Z2", 81, 32 * 16384)

    def table(k):
        k("v_lshlrev_b32 v12, 4, v0")
        k("v_lshlrev_b32 v13, 3, v0")
        k("s_lshl_b32 s60, s%d, 13" % S_BN)
        k("s_add_u32 s61, s60, 4096")
        for q in range(4):
            k("s_mov_b32 s%d, %d" % (56 + q, q * 4096))
            k("buffer_load_dwordx4 %s, v12, %s, s%d offen" % (v(FR + 4 * q, 4), s(SRD_E0, 4), 56 + q))
            k("buffer_load_dwordx2 %s, v13, %s, s%d offen offset:%d" % (v(FR + 16 + 2 * q, 2), s(SRD_X, 4), 60 + (q >> 1), (q & 1) * 2048))
        k("v_add_u32 v12, %d, v12" % TAB)
        for q in range(4):
            k("s_waitcnt vmcnt(%d)" % (6 - 2 * q))
            for e in range(2):
                stats_to_affine(k, FR + 4 * q + 2 * e, 1792)
                k("v_mul_f32 v%d, v%d, v%d" % (FR + 4 * q + 2 * e, FR + 4 * q + 2 * e, FR + 16 + 2 * q + e))
            k("ds_write_b128 v12, %s offset:%d" % (v(FR + 4 * q, 4), q * 4096))

    def dma_setup(k):
        k("v_lshrrev_b32 v2, 3, v%d" % V_LANE)
        k("s_lshl_b32 s50, s%d, %d" % (S_WAVE, 5 if NP == 4 else 4))
        k("v_add_u32 v2, s50, v2")
        k("v_bfe_u32 v3, v2, 1, 3")
        k("v_and_b32 v4, 7, v%d" % V_LANE)
        k("v_xor_b32 v3, v3, v4")
        k("v_lshlrev_b32 v3, 4, v3")
        k("v_lshl_add_u32 v8, v2, 12, v3")
        k("v_xor_b32 v9, 64, v8")
        k("v_add_u32 v9, %d, v9" % (8 * 4096 - 1024))
        k("v_add_u32 v10, %d, v8" % (16 * 4096 - 2048))
        k("v_add_u32 v11, %d, v9" % (16 * 4096 - 2048))
        k("s_lshl_b32 s80, s%d, 19" % S_BM)
        k("s_lshl_b32 s81, s%d, 19" % S_BN)
        k("v_bfe_u32 v2, v%d, 2, 2" % V_LANE)
        k("v_lshlrev_b32 v7, 3, v2")
        k("s_lshl_b32 s50, s%d, %d" % (S_WAVE, 7 if NP == 4 else 6))
        k("s_add_u32 s50, s50, %d" % TAB)
        k("v_add_u32 v7, s50, v7")
        return [Dma(SRD_X, [8, 9, 10, 11][:16 // NP], 128, 0, 16384, 80)]

    PG, TT = 80, 112

    def params(par):
        return ["ds_read2_b64 %s, v7 offset0:%d offset1:%d" % (v(PG + 8 * par + 4 * q, 4), q * 8, q * 8 + 4) for q in range(8 // NP)] + \
               ["v_add_u32 v7, 512, v7"]

    def xform(R, i, par):
        G, o = PG + 8 * par + 2 * i, []
        T_ = TT + 8 * (i & 1)
        for d in range(8):
            o.append("v_fma_mix_f32 v%d, v%d, v%d, v%d %s" % (T_ + d, R + d // 2, G, G + 1, MIXHI if d & 1 else MIXLO))
        for d in range(4):
            o.append("v_cvt_pk_bf16_f32 v%d, v%d, v%d" % (R + d, T_ + 2 * d, T_ + 2 * d + 1))
        return o

    def cons_pre(k):
        k("v_lshlrev_b32 v12, 4, v%d" % V_LANE)
        k("s_lshl_b32 s56, s%d, 1" % S_BM)
        k("s_add_u32 s56, s56, s%d" % S_WM)
        k("s_mul_i32 s57, s56, %d" % (2 * 56 * 2048))
        k("s_lshl_b32 s58, s%d, 1" % S_BN)
        k("s_add_u32 s58, s58, s%d" % S_WN)
        k("s_lshl_b32 s59, s58, 12")
        k("s_add_u32 s57, s57, s59")
        k("s_add_u32 s59, s57, %d" % (56 * 2048))
        for i in range(2):
            for jp in range(4):
                k("buffer_load_dwordx4 %s, v12, %s, s%d offen offset:%d" %
                  (v(Z1R + 16 * i + 4 * jp, 4), s(SRD_E1, 4), 57 + 2 * i, jp * 1024))
        k("v_and_b32 v2, 31, v%d" % V_LANE)
        k("v_lshlrev_b32 v2, 1, v2")
        k("s_lshl_b32 s60, s56, 7")
        for i in range(2):
            k("buffer_load_ushort v%d, v2, %s, s60 offen offset:%d" % (BR + 2 * i, s(SRD_E3, 4), i * 64))
        k("s_mul_i32 s61, s%d, 28" % S_BM)
        k("s_add_u32 s61, s61, s58")
        k("s_lshl_b32 s61, s61, 4")
        k("s_lshl_b32 s62, s%d, 1" % S_WM)
        k("s_add_u32 s61, s61, s62")
        k("s_lshl_b32 s61, s61, 10")

    def epilogue(k):
        k("s_waitcnt vmcnt(0)")
        for i in range(2):
            k("v_lshlrev_b32 v%d, 16, v%d" % (BR + 2 * i, BR + 2 * i))
            k("v_mov_b32 v%d, v%d" % (BR + 2 * i + 1, BR + 2 * i))
        n = 0
        for i in range(2):
            for j in range(2):
                A = ACC + 16 * (i * 2 + j)
                for d in range(8):
                    unpack_bf16(k, FR + 2 * d, FR + 2 * d + 1, Z1R + 16 * i + 8 * j + d)
                for d in range(8):
                    k("v_pk_add_f32 %s, %s, %s" % (v(A + 2 * d, 2), v(A + 2 * d, 2), v(BR + 2 * i, 2)))
                for d in range(8):
                    k("v_pk_mul_f32 %s, %s, %s" % (v(A + 2 * d, 2), v(A + 2 * d, 2), v(FR + 2 * d, 2)))
                P = FR + 16 + 8 * (n % 2)
                n += 1
                pack16(k, P, A)
                swap8(k, P)
                for p in range(2):
                    k("s_add_u32 s62, s61, %d" % ((2 * j + p) * 4096))
                    k("buffer_store_dwordx4 %s, v12, %s, s62 offen offset:%d" % (v(P + 4 * p, 4), s(SRD_E2, 4), i * 1024))

    cfg = dict(kidx=5, PD=PD, NP=NP, tail=1, T=32, NWG=224, MT=2, NT=2, NS=NS, wgrid="2x2", load_ptrs=load_ptrs, srds_c=srds_c, srds_p=srds_p,
               map=lambda k: map_blocks(k, 2, 7, 2),
               x_ring=(0, 16384, NS), w_ring=(WR, 16384, 2), x_mode="dma_swz", w_strides=(2048, 1024, 4096),
               w_wave_stride=512, w_tile_off=lambda j: j * 256,
               FRAG=FR, ACC=ACC, table=table, dma_setup=dma_setup, cons_pre=cons_pre,
               vg=dict(regs=16, voff=5, vlds=6, ring=WR, srd=SRD_W, params=params, xform=xform),
               epilogue=epilogue, vgprs=BR + 4, lds=TAB + 16384 + 1024)
    return gemm("g4_kernel", cfg)
```

```python
import sys
from k1 import gen_k1
from gemms import *
from attn import gen_attn

def build(path, **opt):
    Kern.STAMPS = opt.get("stamps", False)
    for key in DBG:
        DBG[key] = opt.get(key, False)
    import gemm, gemms
    ov = opt.get("ov", {})
    gemms.gemm = lambda name, cfg: gemm.gemm(name, dict(cfg, **ov))
    g = opt.get("g", {})
    parts = [gen_k1(), gen_g1(**g.get(1, {})), gen_attn(force_slow=opt.get("force_slow", False), rotmul=0), gen_g25(2, **g.get(2, {})),
             gen_g3(**g.get(3, {})), gen_g4(**g.get(4, {})), gen_g25(5, **g.get(5, {}))]
    ref = open("adaLN_cond__softmax_full_mha__mixer_gmlp__prompt.s.ref").read().split("\n")
    head = [l for l in ref if l.startswith(";") and "@launch" not in l and "Override" not in l and "grid=ceil" not in l]
    txt = "\n".join(head) + "\n" + "\n".join(p[1] for p in parts) + "\n"
    txt += ".amdgcn_target \"amdgcn-amd-amdhsa--gfx950\"\n" + "\n".join(p[0] for p in parts)
    open(path, "w").write(txt)

if __name__ == "__main__":
    build("adaLN_cond__softmax_full_mha__mixer_gmlp__prompt.s")
    build("slow.s", force_slow=True)
    build("stamp.s", stamps=True)
    if len(sys.argv) > 1 and sys.argv[1] == "dbg":
        for key in DBG:
            build("stamp_%s.s" % key, stamps=True, **{key: True})
        build("stamp_np_nr.s", stamps=True, no_prod=True, no_reads=True)
    if len(sys.argv) > 1 and sys.argv[1] == "l2":
        build("stamp_a.s", stamps=True, l2hit=True)
        build("stamp_b.s", stamps=True, l2hit=True, no_cons=True)
        build("stamp_c.s", stamps=True, l2hit=True, no_xf=True)
        build("stamp_d.s", stamps=True, l2hit=True, no_xf=True, no_cons=True)
    if len(sys.argv) > 1 and sys.argv[1] == "l3":
        build("stamp_a.s", stamps=True, l2hit=True, no_dsw=True)
        build("stamp_b.s", stamps=True, l2hit=True, no_cons=True, no_dsw=True)
        build("stamp_c.s", stamps=True, l2hit=True, no_valu=True)
        build("stamp_d.s", stamps=True, l2hit=True, no_valu=True, no_cons=True)
    if len(sys.argv) > 1 and sys.argv[1] == "p":
        build("stamp_a.s", stamps=True, ov=dict(pprio=2))
        build("stamp_b.s", stamps=True, ov=dict(pprio=2), g={1: dict(NP=4, PD=2), 4: dict(NP=4, PD=2)})
        build("stamp_c.s", stamps=True, ov=dict(pprio=2), g={1: dict(NP=4, PD=1), 3: dict(PD=1), 4: dict(NP=4, PD=3)})
```

```python
from common import *
from gemms import pack16, swap8

OOB = 0x7f000000


def gen_attn(name="attn_kernel", force_slow=False, sched=1):
    k = Kern(name)
    END, SLOW, EPI, HELP = k.uid("end"), k.uid("slow"), k.uid("epi"), k.uid("help")
    NSL = 8
    KS, TPS = 1, 4
    LANE, VOFF, VCUR, VNXT, VBASE = 1, 4, 5, 6, 4
    QF, NM, S0, S1, P, KA_, KB_, VA_, VB_, O, L, SEL = 8, 16, 32, 48, 64, 72, 76, 80, 84, 88, 104, 108
    S = (S0, S1)
    SRD, SRDO = 24, 28
    S_WAVE, S_HEAD, S_RT, S_KB, S_ST, S_CUR = 3, 20, 21, 43, 44, 45
    k("s_cmp_ge_u32 s2, 256")
    k("s_cbranch_scc1 " + END)
    k.kidx = 2
    k.stamp_init()
    k("s_load_dwordx2 s[6:7], s[0:1], %d" % KA["ws"])
    k("v_lshrrev_b32 v2, 6, v0")
    k("v_and_b32 v%d, 63, v0" % LANE)
    k("v_readfirstlane_b32 s%d, v2" % S_WAVE)
    k("s_and_b32 s10, s2, 7")
    k("s_lshl_b32 s10, s10, 2")
    k("s_bfe_u32 s11, s2, 0x20003")
    k("s_add_u32 s%d, s10, s11" % S_HEAD)
    k("v_lshlrev_b32 v%d, 4, v%d" % (VOFF, LANE))
    k("s_lshl_b32 s%d, s%d, 17" % (S_KB, S_HEAD))
    k("s_cmp_ge_u32 s%d, 8" % S_WAVE)
    k("s_cbranch_scc1 " + HELP)
    k("s_lshr_b32 s12, s2, 5")
    k("s_lshl_b32 s%d, s12, 3" % S_RT)
    k("s_add_u32 s%d, s%d, s%d" % (S_RT, S_RT, S_WAVE))
    k("s_lshl_b32 s13, s%d, 11" % S_RT)
    k("s_add_u32 s13, s13, s%d" % S_KB)
    k("s_waitcnt lgkmcnt(0)")
    srd_ws(k, SRD, 6, "QKV")
    k("buffer_load_dwordx4 %s, v%d, %s, s13 offen" % (v(QF, 4), VOFF, s(SRD, 4)))
    k("buffer_load_dwordx4 %s, v%d, %s, s13 offen offset:1024" % (v(QF + 4, 4), VOFF, s(SRD, 4)))
    srd_ws(k, SRDO, 6, "O")
    k("v_bfe_u32 v2, v%d, 2, 1" % LANE)
    k("v_bfe_u32 v3, v%d, 4, 1" % LANE)
    k("v_cmp_eq_u32 vcc, v2, v3")
    k("v_mov_b32 v2, 0x3f803f80")
    k("v_cndmask_b32 v%d, 0, v2, vcc" % SEL)
    for e in range(1, 4):
        k("v_mov_b32 v%d, v%d" % (SEL + e, SEL))

    def zero_state():
        for e in range(16):
            k("v_mov_b32 v%d, 0" % (O + e))
        for e in range(4):
            k("v_mov_b32 v%d, 0" % (L + e))
    zero_state()
    for e in range(4):
        k("v_mov_b32 v%d, 0" % (VB_ + e))
        k("v_mov_b32 v%d, 0" % (P + 4 + e))
    k("v_mov_b32 v%d, v%d" % (VCUR, VBASE))
    k("v_add_u32 v%d, 16384, v%d" % (VNXT, VBASE))
    k("s_mov_b32 s%d, 16384" % S_CUR)
    k.stamp(1)
    k("s_waitcnt vmcnt(0)")
    k("s_barrier")
    k.stamp(2)
    k("ds_read_b128 %s, v%d" % (v(KA_, 4), VOFF))
    k("ds_read_b128 %s, v%d offset:1024" % (v(KB_, 4), VOFF))
    k("ds_read_b128 %s, v%d offset:8192" % (v(VA_, 4), VCUR))
    k("s_waitcnt lgkmcnt(0)")

    def qk(dst, c):
        return ("v_mfma_f32_32x32x16_bf16 %s, %s, %s, %s" % (v(dst, 16), v(KA_, 4), v(QF, 4), c),
                "v_mfma_f32_32x32x16_bf16 %s, %s, %s, %s" % (v(dst, 16), v(KB_, 4), v(QF + 4, 4), v(dst, 16)))

    def max16(dst, src, first):
        if first:
            k("v_max3_f32 v%d, v%d, v%d, v%d" % (dst, src, src + 1, src + 2))
            k("v_max_f32 v%d, v%d, v%d" % (dst, dst, src + 3))
            r = range(4, 16, 2)
        else:
            r = range(0, 16, 2)
        for e in r:
            k("v_max3_f32 v%d, v%d, v%d, v%d" % (dst, dst, src + e, src + e + 1))

    def set_nm(mreg):
        k("v_mov_b32 v3, v%d" % mreg)
        k("v_permlane32_swap_b32 v%d, v3" % mreg)
        k("v_max_f32 v%d, v%d, v3" % (mreg, mreg))
        for e in range(16):
            k("v_sub_f32 v%d, 0, v%d" % (NM + e, mreg))

    for m in qk(S1, "0"):
        k(m)
    max16(2, S1, True)
    set_nm(2)
    k("s_waitcnt lgkmcnt(0)")
    for m in qk(S0, v(NM, 16)):
        k(m)
    k("ds_read_b128 %s, v%d offset:2048" % (v(KA_, 4), VCUR))
    k("ds_read_b128 %s, v%d offset:3072" % (v(KB_, 4), VCUR))
    k("s_mov_b32 s%d, 0" % S_ST)
    k("s_waitcnt lgkmcnt(0)")

    def ex(Sx, q, lo=0, hi=4):
        for e in range(lo, hi):
            k("v_exp_f32 v%d, v%d" % (Sx + 4 * q + e, Sx + 4 * q + e))

    def cv(Sx, q):
        for e in range(2):
            k("v_cvt_pk_bf16_f32 v%d, v%d, v%d" % (P + 2 * q + e, Sx + 4 * q + 2 * e, Sx + 4 * q + 2 * e + 1))

    def exps(Sx, q):
        ex(Sx, q)
        cv(Sx, q)

    def pvm(vf, pf):
        k("v_mfma_f32_32x32x16_bf16 %s, %s, %s, %s" % (v(O, 16), v(vf, 4), v(pf, 4), v(O, 16)))

    def lsum(pf):
        k("v_mfma_f32_16x16x32_bf16 %s, %s, %s, %s" % (v(L, 4), v(SEL, 4), v(pf, 4), v(L, 4)))

    def pv(vf, pf):
        pvm(vf, pf)
        lsum(pf)

    def addr(tt):
        return (VCUR, tt * 2048) if tt < TPS else (VNXT, (tt - TPS) * 2048)

    LOOP = k.uid("loop")
    k.label(LOOP)
    for tt in range(TPS):
        Sc, Sn = S[tt & 1], S[(tt + 1) & 1]
        m1, m3 = qk(Sn, v(NM, 16))
        ra, oa = addr(tt + 2)
        rv, ov = addr(tt + 1)
        rKa = "ds_read_b128 %s, v%d offset:%d" % (v(KA_, 4), ra, oa)
        rVb = "ds_read_b128 %s, v%d offset:%d" % (v(VB_, 4), VCUR, 8192 + tt * 2048 + 1024)
        rKb = "ds_read_b128 %s, v%d offset:%d" % (v(KB_, 4), ra, oa + 1024)
        rVa = "ds_read_b128 %s, v%d offset:%d" % (v(VA_, 4), rv, 8192 + ov)
        if sched == 0:
            k("s_waitcnt lgkmcnt(3)"); k(m1); k(rKa); exps(Sc, 0)
            k("s_waitcnt lgkmcnt(3)"); pv(VB_, P + 4); k(rVb); exps(Sc, 1)
            k("s_waitcnt lgkmcnt(3)"); k(m3); k(rKb); exps(Sc, 2)
            k("s_waitcnt lgkmcnt(3)"); pv(VA_, P); k(rVa); exps(Sc, 3)
        else:
            k("s_waitcnt lgkmcnt(2)"); k(m1); k(rKa); ex(Sc, 0)
            pvm(VB_, P + 4); k(rVb); cv(Sc, 0); ex(Sc, 1, 0, 3); lsum(P + 4); ex(Sc, 1, 3, 4); ex(Sc, 2, 0, 1)
            k("s_waitcnt lgkmcnt(2)"); k(m3); k(rKb); cv(Sc, 1); ex(Sc, 2, 1, 4)
            pvm(VA_, P); k(rVa); ex(Sc, 3, 0, 1); cv(Sc, 2); ex(Sc, 3, 1, 3); lsum(P); ex(Sc, 3, 3, 4); cv(Sc, 3)
    k("v_mov_b32 v%d, v%d" % (VCUR, VNXT))
    k("s_add_u32 s%d, s%d, 16384" % (S_CUR, S_CUR))
    k("s_and_b32 s%d, s%d, %d" % (S_CUR, S_CUR, NSL * 16384 - 1))
    k("v_add_u32 v%d, s%d, v%d" % (VNXT, S_CUR, VBASE))
    k("s_add_u32 s%d, s%d, 1" % (S_ST, S_ST))
    k("s_cmp_lt_u32 s%d, 16" % S_ST)
    k("s_barrier")
    k("s_cbranch_scc1 " + LOOP)
    k("s_waitcnt lgkmcnt(0)")
    k.stamp(3)
    pv(VB_, P + 4)
    k("v_mov_b32 v2, v%d" % L)
    for e in range(16):
        k("v_fma_f32 v2, v%d, 0, v2" % (O + e))
    k("v_mov_b32 v3, %s" % fhex(2.0 ** 100 if not force_slow else -1.0))
    k("v_cmp_nlt_f32 vcc, v2, v3")
    k("s_cbranch_vccnz " + SLOW)
    k.label(EPI)
    k("v_rcp_f32 v2, v%d" % L)
    k("v_mov_b32 v3, v2")
    for e in range(0, 16, 2):
        k("v_pk_mul_f32 %s, %s, v[2:3]" % (v(O + e, 2), v(O + e, 2)))
    pack16(k, P, O)
    swap8(k, P)
    k("s_lshr_b32 s10, s%d, 2" % S_RT)
    k("s_lshl_b32 s10, s10, 18")
    k("s_lshl_b32 s11, s%d, 13" % S_HEAD)
    k("s_add_u32 s10, s10, s11")
    k("s_and_b32 s11, s%d, 3" % S_RT)
    k("s_lshl_b32 s11, s11, 10")
    k("s_add_u32 s10, s10, s11")
    k("s_add_u32 s11, s10, 4096")
    k("buffer_store_dwordx4 %s, v%d, %s, s10 offen" % (v(P, 4), VOFF, s(SRDO, 4)))
    k("buffer_store_dwordx4 %s, v%d, %s, s11 offen" % (v(P + 4, 4), VOFF, s(SRDO, 4)))
    k.stamp(4)
    k.stamp_dump(5)
    k.label(END)
    k("s_endpgm")

    k.label(HELP)
    k("s_load_dwordx2 s[8:9], s[0:1], %d" % KA["wo"])
    k("s_load_dwordx4 s[32:35], s[0:1], %d" % KA["w_in"])
    k("s_load_dwordx2 s[36:37], s[0:1], %d" % KA["w_out"])
    k("s_load_dwordx4 s[16:19], s[0:1], %d" % KA["c"])
    k("s_sub_u32 s%d, s%d, 8" % (S_WAVE, S_WAVE))
    k("s_lshl_b32 s12, s%d, 12" % S_WAVE)
    k("s_and_b32 s13, s12, 4096")
    k("s_lshr_b32 s14, s%d, 1" % S_WAVE)
    k("s_add_u32 s14, s14, 1")
    k("s_lshl_b32 s14, s14, 22")
    k("s_add_u32 s13, s13, s14")
    k("s_add_u32 s13, s13, s%d" % S_KB)
    k("v_subrev_u32 v8, 512, v0")
    k("s_bfe_u32 s14, s2, 0x60002")
    k("s_add_u32 s14, s14, 32")
    k("s_and_b32 s15, s2, 3")
    g = Gemv(k, 8, 14, 15, 48, 52, 56, NSL * 16384, 16, 60)
    g.addr()
    k("v_lshlrev_b32 v7, 7, v%d" % LANE)
    k("s_lshl_b32 s46, s2, 13")
    k("s_lshl_b32 s47, s%d, 21" % S_WAVE)
    k("s_add_u32 s46, s46, s47")
    k("s_waitcnt lgkmcnt(0)")
    srd_ws(k, SRD, 6, "QKV")
    ops = []

    def dma(st):
        k("s_add_u32 m0, s12, %d" % ((st % NSL) * 16384))
        for q in range(4):
            k("buffer_load_dwordx4 v%d, %s, s13 offen offset:%d lds" % (VOFF, s(SRD, 4), q * 1024))
            ops.append(("kv", st))
        k("s_add_u32 s13, s13, 8192")

    def wait_for(tag):
        last = max(i for i, o in enumerate(ops) if o == tag)
        k("s_waitcnt vmcnt(%d)" % min(63, len(ops) - 1 - last))

    def pf(ptr, nm):
        srd_in(k, 72, ptr, SZ[nm])
        k("buffer_load_dword v9, v7, s[72:75], s46 offen")
        ops.append(("pf", nm))

    dma(0)
    dma(1)
    srd_in(k, 48, 16, SZ["c"])
    srd_in(k, 52, 18, SZ["w_mod"])
    srd_ws(k, 56, 6, "MODP")
    wait_for(("kv", 1))
    k("s_barrier")
    for st in range(2, 6):
        dma(st)
    for st in range(16):
        if st + 6 < 16:
            dma(st + 6)
        if st == 0:
            g.loads()
            ops.extend([("gv", 0)] * 9)
        if st == 2:
            pf(8, "wo")
        if st == 3:
            pf(32, "w_in")
        if st == 4:
            wait_for(("gv", 0))
            g.silu()
        if st == 5:
            g.mac()
        if st == 6:
            g.red1()
            pf(34, "w_sp")
        if st == 7:
            g.fin()
            ops.append(("st", 0))
        if st == 9:
            pf(36, "w_out")
        if st + 2 < 16:
            wait_for(("kv", st + 2))
        if st == 14:
            break
        k("s_barrier")
    k.stamp_dump(5)
    k("s_endpgm")

    k.label(SLOW)
    k("s_waitcnt vmcnt(0)")
    LA, LB = k.uid("slowa"), k.uid("slowb")
    k("s_add_u32 s16, s%d, 0x400000" % S_KB)
    k("s_mov_b32 s%d, 0" % S_ST)
    k("v_mov_b32 v2, 0xff800000")
    k.label(LA)
    k("buffer_load_dwordx4 %s, v%d, %s, s16 offen" % (v(KA_, 4), VOFF, s(SRD, 4)))
    k("buffer_load_dwordx4 %s, v%d, %s, s16 offen offset:1024" % (v(KB_, 4), VOFF, s(SRD, 4)))
    k("s_waitcnt vmcnt(0)")
    for m in qk(S0, "0"):
        k(m)
    max16(2, S0, False)
    k("s_add_u32 s16, s16, 2048")
    k("s_add_u32 s%d, s%d, 1" % (S_ST, S_ST))
    k("s_cmp_lt_u32 s%d, 64" % S_ST)
    k("s_cbranch_scc1 " + LA)
    set_nm(2)
    zero_state()
    k("s_add_u32 s16, s%d, 0x400000" % S_KB)
    k("s_add_u32 s17, s%d, 0x800000" % S_KB)
    k("s_mov_b32 s%d, 0" % S_ST)
    k.label(LB)
    k("buffer_load_dwordx4 %s, v%d, %s, s16 offen" % (v(KA_, 4), VOFF, s(SRD, 4)))
    k("buffer_load_dwordx4 %s, v%d, %s, s16 offen offset:1024" % (v(KB_, 4), VOFF, s(SRD, 4)))
    k("buffer_load_dwordx4 %s, v%d, %s, s17 offen" % (v(VA_, 4), VOFF, s(SRD, 4)))
    k("buffer_load_dwordx4 %s, v%d, %s, s17 offen offset:1024" % (v(VB_, 4), VOFF, s(SRD, 4)))
    k("s_waitcnt vmcnt(0)")
    for m in qk(S0, v(NM, 16)):
        k(m)
    for q in range(4):
        exps(S0, q)
    pv(VA_, P)
    pv(VB_, P + 4)
    k("s_add_u32 s16, s16, 2048")
    k("s_add_u32 s17, s17, 2048")
    k("s_add_u32 s%d, s%d, 1" % (S_ST, S_ST))
    k("s_cmp_lt_u32 s%d, 64" % S_ST)
    k("s_cbranch_scc1 " + LB)
    k("s_branch " + EPI)
    txt, n = k.finish(vgprs=112, sgprs=80)
    return txt, "; @launch kernel=%s grid=(256,1,1) block=(768,1,1) lds=%d" % (name, NSL * 16384 + 12288)
```

```python
import struct
from asmlib import *

KA = dict(x=0, wqkv=8, wo=16, bx=24, w_in=32, w_sp=40, b_sp=48, w_out=56, c=64, w_mod=72, out=80, dbg=88, ws=96)
SZ = dict(x=4194304, wqkv=6291456, wo=2097152, w_in=7340032, w_sp=8388608, b_sp=4096, w_out=3670016, c=2048,
          w_mod=12582912, out=4194304)

WS = dict(
    MODP=(0x0, 98304),
        XN=(0x100000, 0x400000),
    QKV=(0x500000, 0xC00000),
    O=(0x1100000, 0x400000),
    X1=(0x1500000, 0x400000),
    Z1=(0x1900000, 0x700000),
    Z2=(0x2000000, 0x700000),
    U=(0x2700000, 0x700000),
)


def f2u(x):
    return struct.unpack("<I", struct.pack("<f", x))[0]


def fhex(x):
    return "0x%08x" % f2u(x)


def srd_in(k, dst, ptr, size):
    k("s_mov_b32 s%d, s%d" % (dst, ptr))
    k("s_mov_b32 s%d, s%d" % (dst + 1, ptr + 1))
    k("s_mov_b32 s%d, %d" % (dst + 2, size))
    k("s_mov_b32 s%d, 0x20000" % (dst + 3))


def srd_ws(k, dst, wsptr, region):
    off, size = WS[region]
    k("s_add_u32 s%d, s%d, %d" % (dst, wsptr, off))
    k("s_addc_u32 s%d, s%d, 0" % (dst + 1, wsptr + 1))
    k("s_mov_b32 s%d, %d" % (dst + 2, size))
    k("s_mov_b32 s%d, 0x20000" % (dst + 3))


def unpack_bf16(k, lo, hi, src):
    k("v_lshlrev_b32 v%d, 16, v%d" % (lo, src))
    k("v_and_b32 v%d, 0xffff0000, v%d" % (hi, src))


def srd_ws_sub(k, dst, wsptr, region, s_off, size):
    off, _ = WS[region]
    k("s_add_u32 s%d, s%d, %d" % (dst + 2, s_off, off))
    k("s_add_u32 s%d, s%d, s%d" % (dst, wsptr, dst + 2))
    k("s_addc_u32 s%d, s%d, 0" % (dst + 1, wsptr + 1))
    k("s_mov_b32 s%d, %d" % (dst + 2, size))
    k("s_mov_b32 s%d, 0x20000" % (dst + 3))


WS["EX"] = (0x40000, 0x80000)
WS["EX2"] = (0x40000, 0x40000)
WS["EX3"] = (0x80000, 0x40000)
WS["XF"] = (0x2E00000, 0x400000)
WS["H2"] = (0x3200000, 0x400000)


LOG2E = 1.4426950408889634


class Gemv:
    def __init__(self, k, tid, s_cg, s_kc, srd_c, srd_w, srd_o, lds, V, S):
        self.__dict__.update(locals())

    def addr(self):
        k, V, S = self.k, self.V, self.S
        k("v_lshrrev_b32 v%d, 3, v%d" % (V, self.tid))
        k("v_and_b32 v%d, 7, v%d" % (V + 1, self.tid))
        k("s_mov_b32 s%d, 12288" % S)
        k("v_mul_lo_u32 v%d, v%d, s%d" % (V + 2, V, S))
        k("v_lshl_add_u32 v%d, v%d, 4, v%d" % (V + 2, V + 1, V + 2))
        k("s_mul_i32 s%d, s%d, %d" % (S + 1, self.s_kc, 256 * 12288))
        k("s_lshl_b32 s%d, s%d, 7" % (S, self.s_cg))
        k("s_add_u32 s%d, s%d, s%d" % (S + 1, S + 1, S))
        k("s_lshl_b32 s%d, s%d, 9" % (S + 2, self.s_kc))
        k("v_lshlrev_b32 v%d, 1, v%d" % (V + 3, self.tid))
        for i in range(8):
            k("s_add_u32 s%d, s%d, %d" % (S + 4 + i, S + 1, i * 32 * 12288))

    def loads(self):
        k, V, S = self.k, self.V, self.S
        k("buffer_load_ushort v%d, v%d, %s, s%d offen" % (V + 4, V + 3, s(self.srd_c, 4), S + 2))
        for i in range(8):
            k("buffer_load_dwordx4 %s, v%d, %s, s%d offen" % (v(V + 8 + 4 * i, 4), V + 2, s(self.srd_w, 4), S + 4 + i))

    def silu(self):
        k, V = self.k, self.V
        k("v_lshlrev_b32 v%d, 16, v%d" % (V + 4, V + 4))
        k("v_mul_f32 v%d, %s, v%d" % (V + 5, fhex(-LOG2E), V + 4))
        k("v_exp_f32 v%d, v%d" % (V + 5, V + 5))
        k("v_add_f32 v%d, 1.0, v%d" % (V + 5, V + 5))
        k("v_rcp_f32 v%d, v%d" % (V + 5, V + 5))
        k("v_mul_f32 v%d, v%d, v%d" % (V + 4, V + 4, V + 5))
        k("v_cvt_pk_bf16_f32 v%d, v%d, v%d" % (V + 4, V + 4, V + 4))
        k("v_lshlrev_b32 v%d, 16, v%d" % (V + 4, V + 4))
        k("v_lshlrev_b32 v%d, 2, v%d" % (V + 3, self.tid))
        k("v_add_u32 v%d, %d, v%d" % (V + 3, self.lds, V + 3))
        k("ds_write_b32 v%d, v%d" % (V + 3, V + 4))
        k("s_waitcnt lgkmcnt(0)")

    def mac(self, wait=None):
        k, V = self.k, self.V
        k("v_lshlrev_b32 v%d, 2, v%d" % (V + 5, V))
        k("v_add_u32 v%d, %d, v%d" % (V + 5, self.lds, V + 5))
        for i in range(8):
            k("ds_read_b32 v%d, v%d offset:%d" % (V + 40 + i, V + 5, i * 128))
        for j in range(8):
            k("v_mov_b32 v%d, 0" % (V + 48 + j))
        k("s_waitcnt lgkmcnt(0)")
        for i in range(8):
            if wait:
                wait(i)
            for d in range(4):
                unpack_bf16(k, V + 56 + 2 * (d & 1), V + 57 + 2 * (d & 1), V + 8 + 4 * i + d)
                k("v_fmac_f32 v%d, v%d, v%d" % (V + 48 + 2 * d, V + 56 + 2 * (d & 1), V + 40 + i))
                k("v_fmac_f32 v%d, v%d, v%d" % (V + 49 + 2 * d, V + 57 + 2 * (d & 1), V + 40 + i))
        k("v_lshlrev_b32 v%d, 5, v%d" % (V + 5, self.tid))
        k("v_add_u32 v%d, %d, v%d" % (V + 5, self.lds + 1024, V + 5))
        k("ds_write_b128 v%d, %s" % (V + 5, v(V + 48, 4)))
        k("ds_write_b128 v%d, %s offset:16" % (V + 5, v(V + 52, 4)))
        k("s_waitcnt lgkmcnt(0)")

    def red1(self):
        k, V = self.k, self.V
        k("v_and_b32 v%d, 63, v%d" % (V + 5, self.tid))
        k("v_lshrrev_b32 v%d, 6, v%d" % (V + 6, self.tid))
        k("v_lshlrev_b32 v%d, 11, v%d" % (V + 6, V + 6))
        k("v_lshl_add_u32 v%d, v%d, 2, v%d" % (V + 6, V + 5, V + 6))
        k("v_add_u32 v%d, %d, v%d" % (V + 6, self.lds + 1024, V + 6))
        for i in range(8):
            k("ds_read_b32 v%d, v%d offset:%d" % (V + 40 + i, V + 6, i * 256))
        k("s_waitcnt lgkmcnt(0)")
        for st in (4, 2, 1):
            for i in range(st):
                k("v_add_f32 v%d, v%d, v%d" % (V + 40 + i, V + 40 + i, V + 40 + i + st))
        k("ds_write_b32 v%d, v%d offset:9216" % (V + 3, V + 40))
        k("s_waitcnt lgkmcnt(0)")

    def fin(self):
        k, V, S = self.k, self.V, self.S
        k("v_lshlrev_b32 v%d, 2, v%d" % (V + 5, V + 5))
        k("v_add_u32 v%d, %d, v%d" % (V + 6, self.lds + 9216, V + 5))
        for i in range(4):
            k("ds_read_b32 v%d, v%d offset:%d" % (V + 40 + i, V + 6, i * 256))
        k("s_mul_i32 s%d, s%d, %d" % (S + 1, self.s_kc, 6144 * 4))
        k("s_lshl_b32 s%d, s%d, 8" % (S, self.s_cg))
        k("s_add_u32 s%d, s%d, s%d" % (S + 1, S + 1, S))
        k("s_waitcnt lgkmcnt(0)")
        k("v_add_f32 v%d, v%d, v%d" % (V + 40, V + 40, V + 41))
        k("v_add_f32 v%d, v%d, v%d" % (V + 42, V + 42, V + 43))
        k("v_add_f32 v%d, v%d, v%d" % (V + 40, V + 40, V + 42))
        k("buffer_store_dword v%d, v%d, %s, s%d offen" % (V + 40, V + 5, s(self.srd_o, 4), S + 1))
```

```python
from common import *

OOB = 0x7f000000

S_WAVE, S_BM, S_BN, S_ROT = 3, 20, 21, 22
SRD_X, SRD_W = 24, 28
SRD_E0, SRD_E1, SRD_E2, SRD_E3 = 32, 36, 40, 44
V_LANE = 1


def map_blocks(k, lg_am, an, xm_bits):
    k("s_and_b32 s48, s2, 7")
    k("s_lshr_b32 s49, s2, 3")
    k("s_and_b32 s50, s49, %d" % ((1 << lg_am) - 1))
    k("s_lshr_b32 s51, s49, %d" % lg_am)
    k("s_and_b32 s52, s48, %d" % ((1 << xm_bits) - 1))
    k("s_lshl_b32 s52, s52, %d" % lg_am)
    k("s_add_u32 s%d, s52, s50" % S_BM)
    k("s_lshr_b32 s52, s48, %d" % xm_bits)
    k("s_mul_i32 s52, s52, %d" % an)
    k("s_add_u32 s%d, s52, s51" % S_BN)


class Dma:
    def __init__(self, srd, pieces, stride, ring, slot, sbase):
        self.srd, self.pieces, self.stride, self.ring, self.slot, self.sbase = srd, pieces, stride, ring, slot, sbase


DBG = dict(fine=False, no_dsw=False, no_valu=False, l2hit=False, no_cons=False, no_prod=False, no_xf=False, no_mfma=False, no_reads=False)


def gemm(name, cfg):
    k = Kern(name)
    T, NWG = cfg["T"], cfg["NWG"]
    MT, NT = cfg["MT"], cfg["NT"]
    NS = cfg["NS"]
    NP = cfg.get("NP", 4)
    NB_ = 16 // NP
    END, PROD = k.uid("end"), k.uid("prod")
    k("s_cmp_ge_u32 s2, %d" % NWG)
    k("s_cbranch_scc1 " + END)
    k.kidx = cfg.get("kidx", 0)
    k.stamp_init()
    cfg["load_ptrs"](k)
    k("v_lshrrev_b32 v2, 6, v0")
    k("v_and_b32 v%d, 63, v0" % V_LANE)
    k("v_readfirstlane_b32 s%d, v2" % S_WAVE)
    cfg["map"](k)
    k("s_cmp_ge_u32 s%d, 4" % S_WAVE)
    k("s_cbranch_scc1 " + PROD)
    k("s_waitcnt lgkmcnt(0)")
    cfg["srds_c"](k)

    xr, wr = cfg["x_ring"], cfg["w_ring"]
    ACC = cfg["ACC"]
    FR = cfg["FRAG"]
    fsz = 4 * (MT + NT)
    VX0, VW0, VX, VW = 4, 5, 6, 10
    if cfg["wgrid"] == "2x2":
        k("s_lshr_b32 s48, s%d, 1" % S_WAVE)
        k("s_and_b32 s49, s%d, 1" % S_WAVE)
    else:
        k("s_mov_b32 s48, s%d" % S_WAVE)
        k("s_mov_b32 s49, 0")
    S_WM, S_WN = 48, 49
    if cfg.get("table"):
        cfg["table"](k)
        k("s_waitcnt lgkmcnt(0)")
        k("s_barrier")
    if cfg.get("cons_pre"):
        cfg["cons_pre"](k)
    swz = cfg["x_mode"] == "dma_swz"
    if swz:
        k("v_and_b32 v2, 31, v%d" % V_LANE)
        k("v_lshrrev_b32 v3, 5, v%d" % V_LANE)
        k("v_bfe_u32 v%d, v%d, 1, 3" % (VX0, V_LANE))
        k("v_xor_b32 v%d, v%d, v3" % (VX0, VX0))
        k("v_lshlrev_b32 v%d, 4, v%d" % (VX0, VX0))
        k("v_lshl_add_u32 v%d, v2, 7, v%d" % (VX0, VX0))
        k("s_mul_i32 s50, s%d, %d" % (S_WM, MT * 4096))
        k("s_add_u32 s50, s50, %d" % xr[0])
        k("v_add_u32 v%d, s50, v%d" % (VX0, VX0))
    else:
        k("s_mul_i32 s50, s%d, %d" % (S_WM, MT * 1024))
        k("s_add_u32 s50, s50, %d" % xr[0])
        k("v_lshl_add_u32 v%d, v%d, 4, s50" % (VX0, V_LANE))
    W_HH, W_RD, W_KS = cfg["w_strides"]
    k("v_lshrrev_b32 v2, 5, v%d" % V_LANE)
    k("v_mul_u32_u24 v%d, %d, v2" % (VW0, W_HH))
    k("v_bfe_u32 v2, v%d, 2, 2" % V_LANE)
    k("v_lshl_add_u32 v%d, v2, 6, v%d" % (VW0, VW0))
    k("v_bfe_u32 v2, v%d, 4, 1" % V_LANE)
    k("v_lshl_add_u32 v%d, v2, 5, v%d" % (VW0, VW0))
    k("v_and_b32 v2, 3, v%d" % V_LANE)
    k("v_lshl_add_u32 v%d, v2, 3, v%d" % (VW0, VW0))
    k("s_mul_i32 s50, s%d, %d" % (S_WN, cfg["w_wave_stride"]))
    k("s_add_u32 s50, s50, %d" % wr[0])
    k("v_add_u32 v%d, s50, v%d" % (VW0, VW0))
    for i in range(16 * MT * NT):
        k("v_mov_b32 v%d, 0" % (ACC + i))
    S_XS, S_WS, S_T = 52, 53, 54

    def set_addr():
        k("v_add_u32 v%d, s%d, v%d" % (VX, S_XS, VX0))
        k("v_add_u32 v%d, s%d, v%d" % (VW, S_WS, VW0))
        if swz:
            for ks in range(1, 4):
                k("v_xor_b32 v%d, %d, v%d" % (VX + ks, ks * 32, VX))

    def adv_slots():
        for (sr, ring) in ((S_XS, xr), (S_WS, wr)):
            k("s_add_u32 s%d, s%d, %d" % (sr, sr, ring[1]))
            k("s_cmp_ge_u32 s%d, %d" % (sr, ring[1] * ring[2]))
            k("s_cselect_b32 s%d, 0, s%d" % (sr, sr))

    def reads(ks, f):
        o = []
        base = FR + f * fsz
        xs, ws = [], []
        for i in range(MT):
            if swz:
                xs.append("ds_read_b128 %s, v%d offset:%d" % (v(base + 4 * i, 4), VX + ks, i * 4096))
            else:
                xs.append("ds_read_b128 %s, v%d offset:%d" % (v(base + 4 * i, 4), VX, ks * 4096 + i * 1024))
        for j in range(NT):
            for rd in range(2):
                off = cfg["w_tile_off"](j) + ks * W_KS + rd * W_RD
                ws.append("ds_read_b64_tr_b16 %s, v%d offset:%d" % (v(base + 4 * MT + 4 * j + 2 * rd, 2), VW, off))
        o.append(xs[0])
        o += ws[0:2]
        o += xs[1:]
        o += ws[2:]
        return o

    def mfmas(f):
        o = []
        base = FR + f * fsz
        for j in range(NT):
            for i in range(MT):
                acc = v(ACC + 16 * (i * NT + j), 16)
                xf, wf = v(base + 4 * i, 4), v(base + 4 * MT + 4 * j, 4)
                if cfg.get("swap_tile", lambda j: False)(j):
                    o.append("v_mfma_f32_32x32x16_bf16 %s, %s, %s, %s" % (acc, xf, wf, acc))
                else:
                    o.append("v_mfma_f32_32x32x16_bf16 %s, %s, %s, %s" % (acc, wf, xf, acc))
        return o

    def interleave(ms, rs, per):
        rs = list(rs)
        if DBG["no_cons"]:
            return
        if DBG["no_mfma"]:
            ms = []
        if DBG["no_reads"]:
            rs = []
        for m in ms:
            k(m)
            for _ in range(per):
                if rs:
                    k(rs.pop(0))
        for r in rs:
            k(r)

    k("s_mov_b32 s%d, 0" % S_XS)
    k("s_mov_b32 s%d, 0" % S_WS)
    k("s_mov_b32 s%d, 0" % S_T)
    set_addr()
    k.stamp(1)
    k("s_barrier")
    k.stamp(2)
    PD = cfg.get("PD", 1)
    NF = 2 if PD == 1 else 4
    for ks in range(PD):
        for r in reads(ks, ks % NF):
            k(r)
    if cfg.get("cons_loads"):
        cfg["cons_loads"](k)
    LOOP = k.uid("cloop")
    nrd = MT + 2 * NT
    per = cfg.get("reads_per_mfma", max(2, -(-nrd // max(1, MT * NT - 1))))
    nbar = cfg.get("mfma_before_barrier", 1)
    k.label(LOOP)
    for ks in range(4):
        ms = mfmas(ks % NF)
        nxt = (ks + PD) % 4
        k("s_waitcnt lgkmcnt(%d)" % min(15, nrd * (PD - 1)))
        if ks + PD == 4:
            for m in ms[:nbar]:
                k(m)
            set_addr()
            if PD > 1:
                k("s_waitcnt lgkmcnt(0)")
            k("s_barrier")
            interleave(ms[nbar:], reads(nxt, nxt % NF), per + 1)
        else:
            interleave(ms, reads(nxt, nxt % NF), per)
        if ks == 0:
            adv_slots()
            k("s_add_u32 s%d, s%d, 1" % (S_T, S_T))
    k("s_cmp_lt_u32 s%d, %d" % (S_T, T))
    k("s_cbranch_scc1 " + LOOP)
    k("s_waitcnt lgkmcnt(0)")
    k.stamp(3)
    cfg["epilogue"](k)
    k.stamp(4)
    k.stamp_dump(5)
    k("s_endpgm")

    k.label(PROD)
    if cfg.get("pprio", 0):
        k("s_setprio %d" % cfg["pprio"])
    k("s_sub_u32 s%d, s%d, 4" % (S_WAVE, S_WAVE))
    dmas = cfg["dma_setup"](k)
    vg = cfg.get("vg")
    S_TMP, S_OFF, S_M = 66, 68, 72
    S_VOFF, S_IT = 76, 77
    nD = sum(len(d.pieces) for d in dmas)
    static_ring = NS in (2, 4)
    for n, d in enumerate(dmas):
        k("s_mov_b32 s%d, s%d" % (S_OFF + n, d.sbase))
        k("s_mul_i32 s%d, s%d, %d" % (S_M + n, S_WAVE, len(d.pieces) * 1024))
        k("s_add_u32 s%d, s%d, %d" % (S_M + n, S_M + n, d.ring))
        if not static_ring:
            k("s_add_u32 s%d, s%d, %d" % (S_M + 2 + n, S_M + n, d.slot * NS))
    if vg:
        VR, VOFF, VLDS = vg["regs"], vg["voff"], vg["vlds"]
        k("s_mul_i32 s%d, s%d, %d" % (S_TMP, S_WAVE, NB_ * 1024))
        k("v_lshl_add_u32 v%d, v%d, 4, s%d" % (VOFF, V_LANE, S_TMP))
        k("v_add_u32 v%d, %d, v%d" % (VLDS, vg["ring"], VOFF))
        k("s_mov_b32 s%d, 0" % S_VOFF)
    k("s_waitcnt lgkmcnt(0)")
    cfg["srds_p"](k)
    k.stamp(1)

    def dma_items(step):
        o = []
        for n, d in enumerate(dmas):
            for i, vreg in enumerate(d.pieces):
                g = []
                if i % 4 == 0:
                    c = (i // 4) * 4096 + ((step % NS) * d.slot if static_ring else 0)
                    g.append("s_add_u32 m0, s%d, %d" % (S_M + n, c) if c else "s_mov_b32 m0, s%d" % (S_M + n))
                g.append("buffer_load_dwordx4 v%d, %s, s%d offen offset:%d lds" % (vreg, s(d.srd, 4), S_OFF + n, (i % 4) * 1024))
                if i == len(d.pieces) - 1:
                    g.append("s_add_u32 s%d, s%d, %d" % (S_OFF + n, S_OFF + n, d.stride))
                    if not static_ring:
                        g.append("s_add_u32 s%d, s%d, %d" % (S_M + n, S_M + n, d.slot))
                        g.append("s_cmp_ge_u32 s%d, s%d" % (S_M + n, S_M + 2 + n))
                        g.append("s_cselect_b32 s%d, %d, 0" % (S_TMP, d.slot * NS))
                        g.append("s_sub_u32 s%d, s%d, s%d" % (S_M + n, S_M + n, S_TMP))
                o.append(g)
        return o

    def emit(groups):
        for g in groups:
            for l in g:
                k(l)

    if vg:
        def vg_items(set_):
            o = []
            for i in range(NB_):
                g = ["buffer_load_dwordx4 %s, v%d, %s, s%d offen offset:%d" %
                     (v(VR + 16 * set_ + 4 * i, 4), VOFF, s(vg["srd"], 4), S_VOFF, i * 1024)]
                if i == NB_ - 1:
                    g.append("s_add_u32 s%d, s%d, 16384" % (S_VOFF, S_VOFF))
                o.append(g)
            return o

        def xform_list(step):
            set_ = step % 4
            o = []
            for i in range(NB_):
                o += vg["xform"](VR + 16 * set_ + 4 * i, i, step % 2)
                o.append("ds_write_b128 v%d, %s offset:%d" % (VLDS, v(VR + 16 * set_ + 4 * i, 4), (step % 2) * 16384 + i * 1024))
            return o

        emit(vg_items(0))
        emit(dma_items(0))
        k("s_barrier")
        emit([vg["params"](0)])
        emit([vg["params"](1)])
        emit(vg_items(1))
        k("s_waitcnt vmcnt(%d) lgkmcnt(0)" % (NB_ + nD))
        k.stamp(2)
        for l in xform_list(0):
            k(l)
        for st in range(1, NS - 1):
            emit(dma_items(st))
        emit(vg_items(2))
        k("s_waitcnt vmcnt(%d) lgkmcnt(0)" % (NB_ + (NS - 2) * nD))
        k.stamp(3)
        k("s_barrier")
        k("s_mov_b32 s%d, 0" % S_IT)
        LOOP = k.uid("ploop")
        k.label(LOOP)
        for u in range(4):
            mem = vg_items((u + 3) % 4) + dma_items(u + NS - 1)
            xf = xform_list(u + 1)
            mem.append(vg["params"](u % 2))
            if DBG["no_prod"]:
                mem, xf = [["s_nop 0"]], []
            if DBG["no_xf"]:
                xf = []
            if DBG["no_dsw"]:
                xf = [l for l in xf if not l.startswith("ds_write")]
            if DBG["no_valu"]:
                xf = [l for l in xf if l.startswith("ds_write")]
            tail = cfg.get("tail", 2)
            par = mem.pop()
            xf = par + xf
            ng = max(1, len(mem) - tail)
            gap = len(xf) / float(ng)
            pos, j = 0.0, 0
            for g in mem:
                emit([g])
                pos += gap
                while j < len(xf) and j < int(pos + 0.5):
                    k(xf[j])
                    j += 1
            if u == 3 and DBG["l2hit"]:
                k("s_mov_b32 s%d, 0" % S_VOFF)
                for n, d in enumerate(dmas):
                    k("s_mov_b32 s%d, s%d" % (S_OFF + n, d.sbase))
            if u == 3:
                k("s_add_u32 s%d, s%d, 4" % (S_IT, S_IT))
                k("s_cmp_lt_u32 s%d, %d" % (S_IT, T))
            k("s_waitcnt vmcnt(%d) lgkmcnt(0)" % (NB_ + nD))
            k("s_barrier")
        k("s_cbranch_scc1 " + LOOP)
    else:
        if cfg.get("prod_pre_load"):
            cfg["prod_pre_load"](k)
        for st in range(NS - 1):
            emit(dma_items(st))
        k.stamp(2)
        k("s_waitcnt vmcnt(%d)" % ((NS - 2) * nD))
        if cfg.get("prod_pre_fin"):
            cfg["prod_pre_fin"](k)
        k.stamp(3)
        k("s_barrier")
        k("s_mov_b32 s%d, 0" % S_IT)
        LOOP = k.uid("ploop")
        k.label(LOOP)
        U = 4 if static_ring else 1
        for u in range(U):
            if not DBG["no_prod"]:
                emit(dma_items(u + NS - 1))
            if u == U - 1 and DBG["l2hit"]:
                for n, d in enumerate(dmas):
                    k("s_mov_b32 s%d, s%d" % (S_OFF + n, d.sbase))
            if u == U - 1:
                k("s_add_u32 s%d, s%d, %d" % (S_IT, S_IT, U))
                k("s_cmp_lt_u32 s%d, %d" % (S_IT, T))
            k("s_waitcnt vmcnt(%d)" % ((NS - 2) * nD))
            k("s_barrier")
        k("s_cbranch_scc1 " + LOOP)
    k("s_waitcnt vmcnt(0)")
    k.stamp_dump(5)
    k.label(END)
    k("s_endpgm")
    txt, n = k.finish(vgprs=cfg["vgprs"], sgprs=96)
    return txt, "; @launch kernel=%s grid=(%d,1,1) block=(%d,1,1) lds=%d" % (name, NWG, 256 + 64 * NP, cfg["lds"])
```

```python
from gemm import *
import math

LOG2E = 1.4426950408889634
S_WM, S_WN = 48, 49


def w_voff(k, vreg, NB, ldb, lg_rows=4):
    k("v_bfe_u32 v2, v%d, 2, 2" % V_LANE)
    k("v_and_b32 v3, 3, v%d" % V_LANE)
    k("v_lshlrev_b32 v%d, 4, v3" % vreg)
    k("s_lshl_b32 s50, s%d, %d" % (S_WAVE, lg_rows))
    k("v_add_u32 v2, s50, v2")
    if NB == 2:
        k("v_lshrrev_b32 v3, 5, v%d" % V_LANE)
        k("v_lshl_add_u32 v2, v3, 2, v2")
        k("v_bfe_u32 v3, v%d, 4, 1" % V_LANE)
    else:
        k("v_lshrrev_b32 v3, 4, v%d" % V_LANE)
    k("v_lshl_add_u32 v%d, v3, 6, v%d" % (vreg, vreg))
    k("s_mov_b32 s50, %d" % ldb)
    k("v_mul_lo_u32 v2, v2, s50")
    k("v_add_u32 v%d, v2, v%d" % (vreg, vreg))


def kparam_addr(k, TAB, NP=4):
    k("v_lshrrev_b32 v2, 5, v%d" % V_LANE)
    k("v_lshlrev_b32 v7, 6, v2")
    k("s_lshr_b32 s50, s%d, %d" % (S_WAVE, 0 if NP == 4 else 1))
    k("s_lshl_b32 s50, s50, 7")
    k("s_add_u32 s50, s50, %d" % TAB)
    k("v_add_u32 v7, s50, v7")


def kparams(PG):
    def f(par):
        return ["ds_read_b128 %s, v7 offset:%d" % (v(PG + 16 * par + 4 * q, 4), q * 16) for q in range(4)] + \
               ["v_add_u32 v7, 512, v7"]
    return f


MIXLO = "op_sel_hi:[1,0,0]"
MIXHI = "op_sel:[1,0,0] op_sel_hi:[1,0,0]"


def mod_table(TAB, ci, si, T0, extra=None):
    def f(k):
        k("v_lshlrev_b32 v2, 4, v0")
        for n, (idx, p) in enumerate([(ci, p) for p in range(4)] + [(si, p) for p in range(4)]):
            k("s_mov_b32 s%d, %d" % (56 + n, (p * 6144 + idx * 1024) * 4))
            k("buffer_load_dwordx4 %s, v2, %s, s%d offen" % (v(T0 + 4 * n, 4), s(SRD_E0, 4), 56 + n))
        nx = extra(k) if extra else 0
        k("v_lshrrev_b32 v2, 1, v0")
        k("v_lshlrev_b32 v2, 6, v2")
        k("v_and_b32 v3, 1, v0")
        k("v_lshl_add_u32 v2, v3, 4, v2")
        k("v_add_u32 v2, %d, v2" % TAB)
        k("s_waitcnt vmcnt(%d)" % nx)
        for b in (T0, T0 + 16):
            for (x, y) in ((0, 4), (8, 12), (0, 8)):
                for e in (0, 2):
                    k("v_pk_add_f32 %s, %s, %s" % (v(b + x + e, 2), v(b + x + e, 2), v(b + y + e, 2)))
            for e in (0, 2):
                k("v_cvt_pk_bf16_f32 v3, v%d, v%d" % (b + e, b + e + 1))
                unpack_bf16(k, b + e, b + e + 1, 3)
        for e in range(4):
            k("v_add_f32 v%d, 1.0, v%d" % (T0 + e, T0 + e))
        for e in (0, 2):
            k("v_cvt_pk_bf16_f32 v3, v%d, v%d" % (T0 + e, T0 + e + 1))
            unpack_bf16(k, T0 + e, T0 + e + 1, 3)
        k("ds_write_b128 v2, %s" % v(T0, 4))
        k("ds_write_b128 v2, %s offset:32" % v(T0 + 16, 4))
    return f


def pack16(k, P, A):
    for d in range(8):
        k("v_cvt_pk_bf16_f32 v%d, v%d, v%d" % (P + d, A + 2 * d, A + 2 * d + 1))


def swap8(k, P):
    for p in (0, 4):
        k("v_permlane32_swap_b32 v%d, v%d" % (P + p, P + p + 2))
        k("v_permlane32_swap_b32 v%d, v%d" % (P + p + 1, P + p + 3))


def gen_g1(NS=3, PD=1, NP=8):
    TAB = 32768 + NS * 24576
    FR = 16
    ACC = FR + (40 if PD == 1 else 80)

    def load_ptrs(k):
        k("s_load_dwordx2 s[4:5], s[0:1], %d" % KA["wqkv"])
        k("s_load_dwordx2 s[6:7], s[0:1], %d" % KA["ws"])

    def srds_c(k):
        srd_ws(k, SRD_E0, 6, "MODP")
        srd_ws(k, SRD_E1, 6, "QKV")

    def prefetch(k):
        srd_in(k, SRD_W, 4, SZ["wqkv"])
        k("v_lshlrev_b32 v12, 7, v%d" % V_LANE)
        k("s_lshl_b32 s64, s%d, 8" % S_WAVE)
        k("s_add_u32 s64, s64, s2")
        k("s_add_u32 s64, s64, 192")
        k("s_lshl_b32 s64, s64, 13")
        k("buffer_load_dword v13, v12, %s, s64 offen" % s(SRD_W, 4))
        return 1

    def srds_p(k):
        srd_ws_sub(k, SRD_X, 6, "XN", 81, 16 * 16384)
        srd_in(k, SRD_W, 4, SZ["wqkv"])

    def dma_setup(k):
        w_voff(k, 8, 2, 6144, 4 if NP == 4 else 3)
        npc = 24 // NP
        for i in range(1, npc):
            k("v_add_u32 v%d, %d, v8" % (8 + i, (i // 3) * 8 * 6144 + (i % 3) * 2048 - (i % 4) * 1024))
        k("s_lshl_b32 s80, s%d, 7" % S_BN)
        k("s_lshl_b32 s81, s%d, 18" % S_BM)
        kparam_addr(k, TAB, NP)
        return [Dma(SRD_W, list(range(8, 8 + npc)), 64 * 6144, 32768, 24576, 80)]

    PG, TT = 80, 112

    def xform(R, i, par):
        G, o = PG + 16 * par, []
        T_ = TT + 8 * (i & 1)
        for d in range(8):
            o.append("v_fma_mix_f32 v%d, v%d, v%d, v%d %s" % (T_ + d, R + d // 2, G + d, G + 8 + d, MIXHI if d & 1 else MIXLO))
        for d in range(4):
            o.append("v_cvt_pk_bf16_f32 v%d, v%d, v%d" % (R + d, T_ + 2 * d, T_ + 2 * d + 1))
        return o

    def epilogue(k):
        qs = 32 ** -0.5 * LOG2E
        k("v_lshlrev_b32 v2, 4, v%d" % V_LANE)
        k("s_lshl_b32 s56, s%d, 1" % S_BN)
        k("s_add_u32 s56, s56, s%d" % S_WN)
        k("s_lshl_b32 s56, s56, 17")
        k("s_lshl_b32 s57, s%d, 13" % S_BM)
        k("s_add_u32 s56, s56, s57")
        k("s_lshl_b32 s57, s%d, 12" % S_WM)
        k("s_add_u32 s56, s56, s57")
        k("s_add_u32 s57, s56, 0x400000")
        k("s_add_u32 s58, s56, 0x800000")
        k("s_mov_b32 s60, %s" % fhex(qs))
        k("s_mov_b32 s61, %s" % fhex(qs))
        n = 0
        for j in range(3):
            for i in range(2):
                A = ACC + 16 * (i * 3 + j)
                P = FR + 8 * (n % 4)
                n += 1
                if j == 0:
                    for e in range(0, 16, 2):
                        k("v_pk_mul_f32 %s, %s, s[60:61]" % (v(A + e, 2), v(A + e, 2)))
                pack16(k, P, A)
                if j != 2:
                    swap8(k, P)
                for mf in range(2):
                    k("buffer_store_dwordx4 %s, v2, %s, s%d offen offset:%d" %
                      (v(P + 4 * mf, 4), s(SRD_E1, 4), 56 + j, i * 2048 + mf * 1024))

    cfg = dict(kidx=1, PD=PD, NP=NP, T=16, NWG=256, MT=2, NT=3, NS=NS, wgrid="2x2", load_ptrs=load_ptrs, srds_c=srds_c, srds_p=srds_p,
               map=lambda k: map_blocks(k, 3, 4, 1),
               x_ring=(0, 16384, 2), w_ring=(32768, 24576, NS), x_mode="vg", w_strides=(3072, 512, 6144),
               w_wave_stride=256, w_tile_off=lambda j: j * 1024, swap_tile=lambda j: j == 2,
               FRAG=FR, ACC=ACC, table=mod_table(TAB, 1, 0, FR), cons_loads=prefetch, dma_setup=dma_setup,
               vg=dict(regs=16, voff=5, vlds=6, ring=0, srd=SRD_X, params=kparams(PG), xform=xform),
               epilogue=epilogue, vgprs=ACC + 96, lds=TAB + 8192 + 1024)
    return gemm("g1_kernel", cfg)


def ex_addr(k, vr):
    k("v_lshlrev_b32 v%d, 3, v%d" % (vr, V_LANE))


def both_halves(k, r, t):
    k("v_mov_b32 v%d, v%d" % (t, r))
    k("v_permlane32_swap_b32 v%d, v%d" % (r, t))
    k("v_add_f32 v%d, v%d, v%d" % (r, r, t))


def ex_publish(k, S, vr, srd, soff):
    k("v_add_f32 v%d, v%d, v%d" % (S, S, S + 1))
    k("v_add_f32 v%d, v%d, v%d" % (S + 1, S + 2, S + 3))
    both_halves(k, S, S + 2)
    both_halves(k, S + 1, S + 3)
    k("s_mov_b32 exec_hi, 0")
    k("buffer_store_dwordx2 %s, v%d, %s, s%d offen sc1" % (v(S, 2), vr, s(srd, 4), soff))
    k("s_mov_b32 exec_hi, -1")


def ex_collect(k, R, G, vr, srd, soff, n):
    L, D = k.uid("poll"), k.uid("got")
    k("s_mov_b32 s64, 0")
    k.label(L)
    for q in range(8):
        k("buffer_load_dwordx2 %s, v%d, %s, s%d offen offset:%d sc1" % (v(R + 2 * q, 2), vr, s(srd, 4), soff, q * 512))
    k("s_waitcnt vmcnt(0)")
    k("v_min3_f32 v2, v%d, v%d, v%d" % (R + 1, R + 3, R + 5))
    k("v_min3_f32 v3, v%d, v%d, v%d" % (R + 7, R + 9, R + 11))
    k("v_min3_f32 v2, v2, v%d, v%d" % (R + 13, R + 15))
    k("v_min_f32 v2, v2, v3")
    k("v_cmp_gt_f32 vcc, 0, v2")
    k("s_cbranch_vccz " + D)
    k("s_sleep 2")
    k("s_add_u32 s64, s64, 1")
    k("s_cmp_lt_u32 s64, 0x100000")
    k("s_cbranch_scc1 " + L)
    k.label(D)
    for st in (8, 4, 2):
        for e in range(0, st, 2):
            k("v_pk_add_f32 %s, %s, %s" % (v(R + e, 2), v(R + e, 2), v(R + e + st, 2)))
    both_halves(k, R, R + 2)
    both_halves(k, R + 1, R + 3)
    stats_to_affine(k, R, n)
    k("v_mov_b32 v%d, v%d" % (G, R))
    k("v_mov_b32 v%d, v%d" % (G + 1, R + 1))


def gen_g25(which, NS=4, PD=3):
    T = 16 if which == 2 else 28
    FR, ACC, GA, XR, T2 = 16, 64, 96, 128, 144
    MV = NS * 24576
    wname = "wo" if which == 2 else "w_out"

    def load_ptrs(k):
        k("s_load_dwordx2 s[4:5], s[0:1], %d" % KA[wname])
        k("s_load_dwordx2 s[6:7], s[0:1], %d" % KA["ws"])
        if which == 5:
            k("s_load_dwordx2 s[8:9], s[0:1], %d" % KA["out"])

    def srds_c(k):
        srd_ws(k, SRD_E1, 6, "X1")
        if which == 2:
            srd_ws(k, SRD_E0, 6, "XF")
            srd_ws(k, SRD_E2, 6, "H2")
            srd_ws(k, SRD_E3, 6, "EX2")
        else:
            srd_in(k, SRD_E2, 8, SZ["out"])

    def srds_p(k):
        srd_ws_sub(k, SRD_X, 6, "O" if which == 2 else "U", 81, T * 16384)
        srd_in(k, SRD_W, 4, SZ[wname])
        srd_ws(k, SRD_E0, 6, "MODP")

    def dma_setup(k):
        w_voff(k, 8, 2, 2048)
        k("v_add_u32 v9, %d, v8" % (8 * 2048 - 1024))
        k("s_lshl_b32 s80, s%d, 7" % S_BN)
        k("s_mul_i32 s81, s%d, %d" % (S_BM, T * 16384))
        k("s_mov_b32 s82, 0")
        k("s_lshl_b32 s50, s%d, 12" % S_WAVE)
        k("v_lshl_add_u32 v5, v%d, 4, s50" % V_LANE)
        k("s_lshl_b32 s56, s%d, 8" % S_BN)
        k("s_add_u32 s56, s56, s50")
        k("s_add_u32 s56, s56, %d" % (2 * 4096))
        for p in range(1, 4):
            k("s_add_u32 s%d, s56, %d" % (59 + p, p * 6144 * 4))
        k("v_lshlrev_b32 v12, 2, v%d" % V_LANE)
        k("s_cmp_eq_u32 s%d, 2" % S_WAVE)
        k("s_cselect_b32 s58, 1.0, 0")
        k("s_lshl_b32 s59, s%d, 8" % S_WAVE)
        k("s_add_u32 s59, s59, %d" % MV)
        k("v_add_u32 v13, s59, v12")
        return [Dma(SRD_X, [5, 5, 5, 5], 16384, 0, 16384, 82),
                Dma(SRD_W, [8, 9], 64 * 2048, NS * 16384, 8192, 80)]

    def prod_pre_load(k):
        k("buffer_load_dword v14, v12, %s, s56 offen" % s(SRD_E0, 4))
        for p in range(1, 4):
            k("buffer_load_dword v%d, v12, %s, s%d offen" % (14 + p, s(SRD_E0, 4), 59 + p))

    def prod_pre_fin(k):
        k("v_add_f32 v14, v14, v15")
        k("v_add_f32 v16, v16, v17")
        k("v_add_f32 v14, v14, v16")
        k("v_cvt_pk_bf16_f32 v14, v14, v14")
        k("v_lshlrev_b32 v14, 16, v14")
        k("v_add_f32 v14, s58, v14")
        k("v_cvt_pk_bf16_f32 v14, v14, v14")
        k("v_lshlrev_b32 v14, 16, v14")
        k("ds_write_b32 v13, v14")
        k("s_waitcnt lgkmcnt(0)")

    def cons_pre(k):
        k("v_lshlrev_b32 v11, 4, v%d" % V_LANE)
        k("s_lshl_b32 s59, s%d, 4" % S_BM)
        k("s_add_u32 s59, s59, s%d" % S_BN)
        k("s_lshl_b32 s59, s59, 14")
        k("s_lshl_b32 s57, s%d, 12" % S_WAVE)
        k("s_add_u32 s57, s57, s59")
        k("s_lshl_b32 s58, s%d, 10" % S_WAVE)
        k("s_add_u32 s59, s59, s58")
        for kt in range(4):
            k("s_add_u32 s%d, s59, %d" % (60 + kt, kt * 4096))
        k("v_lshrrev_b32 v3, 5, v%d" % V_LANE)
        k("v_lshlrev_b32 v13, 4, v3")
        k("v_add_u32 v13, %d, v13" % MV)
        if which == 2:
            ex_addr(k, 14)
            k("s_lshl_b32 s56, s%d, 2" % S_BM)
            k("s_add_u32 s56, s56, s%d" % S_WAVE)
            k("s_lshl_b32 s56, s56, 12")
            k("s_lshl_b32 s58, s%d, 8" % S_BN)
            k("s_add_u32 s58, s58, s56")
        else:
            k("v_and_b32 v2, 31, v%d" % V_LANE)
            k("v_lshlrev_b32 v12, 11, v2")
            k("v_lshl_add_u32 v12, v3, 4, v12")
            k("s_lshl_b32 s58, s%d, 18" % S_BM)
            k("s_lshl_b32 s56, s%d, 16" % S_WAVE)
            k("s_add_u32 s58, s58, s56")
            k("s_lshl_b32 s56, s%d, 7" % S_BN)
            k("s_add_u32 s58, s58, s56")

    def cons_loads(k):
        for q in range(4):
            if which == 2:
                k("buffer_load_dwordx4 %s, v11, %s, s%d offen" % (v(XR + 4 * q, 4), s(SRD_E0, 4), 60 + q))
            else:
                k("buffer_load_dwordx4 %s, v11, %s, s57 offen offset:%d" % (v(XR + 4 * q, 4), s(SRD_E1, 4), q * 1024))

    def mv_read(k, R, vec):
        for jg in range(8):
            k("ds_read_b128 %s, v13 offset:%d" % (v(R + 4 * jg, 4), vec * 256 + jg * 32))

    def epilogue(k):
        TT = T2
        mv_read(k, GA, 0 if which == 2 else 3)
        k("s_waitcnt vmcnt(0)")
        if which == 2:
            swap8(k, XR)
            swap8(k, XR + 8)
            for r in (4, 5, 6, 7):
                k("v_mov_b32 v%d, 0" % r)
        for d in range(16):
            unpack_bf16(k, TT + 2 * d, TT + 2 * d + 1, XR + d)
        k("s_waitcnt lgkmcnt(0)")
        for d in range(16):
            k("v_pk_fma_f32 %s, %s, %s, %s" % (v(ACC + 2 * d, 2), v(ACC + 2 * d, 2), v(GA + 2 * d, 2), v(TT + 2 * d, 2)))
        if which == 5:
            for j in range(2):
                P = FR + 8 * j
                pack16(k, P, ACC + 16 * j)
                swap8(k, P)
                for p in range(2):
                    k("buffer_store_dwordx4 %s, v12, %s, s58 offen offset:%d" % (v(P + 4 * p, 4), s(SRD_E2, 4), j * 64 + p * 32))
            return
        for d in range(16):
            k("v_pk_add_f32 v[4:5], v[4:5], %s" % v(ACC + 2 * d, 2))
            k("v_pk_fma_f32 v[6:7], %s, %s, v[6:7]" % (v(ACC + 2 * d, 2), v(ACC + 2 * d, 2)))
        ex_publish(k, 4, 14, SRD_E3, 58)
        mv_read(k, GA, 2)
        mv_read(k, TT, 1)
        for j in range(2):
            P = FR + 8 * j
            pack16(k, P, ACC + 16 * j)
            for p in range(2):
                k("buffer_store_dwordx4 %s, v11, %s, s57 offen offset:%d" % (v(P + 4 * p, 4), s(SRD_E1, 4), (2 * j + p) * 1024))
        k.stamp(6)
        ex_collect(k, FR + 16, 4, 14, SRD_E3, 56, 1024)
        k.stamp(7)
        k("s_waitcnt lgkmcnt(0)")
        for j in range(2):
            for d in range(8 * j, 8 * j + 8):
                k("v_pk_fma_f32 %s, %s, v[4:5], v[4:5] %s" % (v(ACC + 2 * d, 2), v(ACC + 2 * d, 2), BCAST))
            for d in range(8 * j, 8 * j + 8):
                k("v_pk_fma_f32 %s, %s, %s, %s" % (v(ACC + 2 * d, 2), v(ACC + 2 * d, 2), v(GA + 2 * d, 2), v(TT + 2 * d, 2)))
            P = FR + 8 * j
            pack16(k, P, ACC + 16 * j)
            swap8(k, P)
            for p in range(2):
                k("buffer_store_dwordx4 %s, v11, %s, s%d offen" % (v(P + 4 * p, 4), s(SRD_E2, 4), 60 + 2 * j + p))

    cfg = dict(kidx=3 if which == 2 else 6, PD=PD, T=T, NWG=256, MT=1, NT=2, NS=NS, wgrid="4x1", load_ptrs=load_ptrs,
               srds_c=srds_c, srds_p=srds_p, map=lambda k: map_blocks(k, 2, 8, 2),
               x_ring=(0, 16384, NS), w_ring=(NS * 16384, 8192, NS), x_mode="dma_fm", w_strides=(1024, 512, 2048),
               w_wave_stride=0, w_tile_off=lambda j: j * 256, reads_per_mfma=5,
               FRAG=FR, ACC=ACC, dma_setup=dma_setup, cons_pre=cons_pre, cons_loads=cons_loads,
               prod_pre_load=prod_pre_load, prod_pre_fin=prod_pre_fin,
               epilogue=epilogue, vgprs=176, lds=MV + 1024)
    return gemm("g%d_kernel" % which, cfg)


def stats_to_affine(k, R, n):
    k("v_mul_f32 v2, %s, v%d" % (fhex(1.0 / n), R))
    k("v_mul_f32 v3, v2, v2")
    k("v_mul_f32 v%d, %s, v%d" % (R + 1, fhex(1.0 / n), R + 1))
    k("v_sub_f32 v3, v%d, v3" % (R + 1))
    k("v_max_f32 v3, 0, v3")
    k("v_add_f32 v3, %s, v3" % fhex(1e-5))
    k("v_rsq_f32 v%d, v3" % R)
    k("v_mul_f32 v%d, v2, v%d" % (R + 1, R))
    k("v_sub_f32 v%d, 0, v%d" % (R + 1, R + 1))


BCAST = "op_sel:[0,0,1] op_sel_hi:[1,0,1]"


def gen_g3(PD=1):
    FR = 16
    ACC = FR + (48 if PD == 1 else 96)

    def load_ptrs(k):
        k("s_load_dwordx2 s[4:5], s[0:1], %d" % KA["w_in"])
        k("s_load_dwordx2 s[6:7], s[0:1], %d" % KA["ws"])

    def srds_c(k):
        srd_ws(k, SRD_E1, 6, "Z1")
        srd_ws(k, SRD_E2, 6, "Z2")
        srd_ws(k, SRD_E3, 6, "EX3")

    def srds_p(k):
        srd_ws_sub(k, SRD_X, 6, "H2", 81, 16 * 16384)
        srd_in(k, SRD_W, 4, SZ["w_in"])

    def dma_setup(k):
        w_voff(k, 8, 8, 7168)
        for i in range(1, 8):
            k("v_add_u32 v%d, %d, v8" % (8 + i, (i & 3) * (4 * 7168 - 1024) + (i >> 2) * 256))
        k("s_lshl_b32 s80, s%d, 9" % S_BN)
        k("s_lshl_b32 s81, s%d, 18" % S_BM)
        k("s_mov_b32 s82, 0")
        k("s_lshl_b32 s50, s%d, 12" % S_WAVE)
        k("v_lshl_add_u32 v5, v%d, 4, s50" % V_LANE)
        return [Dma(SRD_X, [5, 5, 5, 5], 16384, 0, 16384, 82),
                Dma(SRD_W, list(range(8, 16)), 64 * 7168, 3 * 16384, 32768, 80)]

    C0 = -2.0 * math.sqrt(2.0 / math.pi) * LOG2E
    C1 = C0 * 0.044715

    def gelu16(k, A, TT):
        for e in range(0, 16, 2):
            k("v_pk_mul_f32 %s, %s, %s" % (v(TT + e, 2), v(A + e, 2), v(A + e, 2)))
        for e in range(0, 16, 2):
            k("v_pk_fma_f32 %s, %s, s[60:61], v[12:13]" % (v(TT + e, 2), v(TT + e, 2)))
        for e in range(0, 16, 2):
            k("v_pk_mul_f32 %s, %s, %s" % (v(TT + e, 2), v(TT + e, 2), v(A + e, 2)))
        for e in range(16):
            k("v_exp_f32 v%d, v%d" % (TT + e, TT + e))
        for e in range(0, 16, 2):
            k("v_pk_add_f32 %s, %s, 1.0 op_sel_hi:[1,0]" % (v(TT + e, 2), v(TT + e, 2)))
        for e in range(16):
            k("v_rcp_f32 v%d, v%d" % (TT + e, TT + e))
        for e in range(0, 16, 2):
            k("v_pk_mul_f32 %s, %s, %s" % (v(A + e, 2), v(A + e, 2), v(TT + e, 2)))

    def epilogue(k):
        Z2L = k.uid("z2")
        k("s_mov_b32 s60, %s" % fhex(C1))
        k("s_mov_b32 s61, %s" % fhex(C1))
        k("v_mov_b32 v12, %s" % fhex(C0))
        k("v_mov_b32 v13, %s" % fhex(C0))
        k("s_cmp_ge_u32 s%d, 7" % S_BN)
        k("s_cbranch_scc1 " + Z2L)
        k("v_lshlrev_b32 v2, 4, v%d" % V_LANE)
        k("s_lshl_b32 s56, s%d, 1" % S_BM)
        k("s_add_u32 s56, s56, s%d" % S_WM)
        k("s_mul_i32 s56, s56, %d" % (2 * 56 * 2048))
        k("s_lshl_b32 s57, s%d, 1" % S_BN)
        k("s_add_u32 s57, s57, s%d" % S_WN)
        k("s_lshl_b32 s57, s57, 13")
        k("s_add_u32 s56, s56, s57")
        n = 0
        for i in range(2):
            for j in range(4):
                A = ACC + 16 * (i * 4 + j)
                gelu16(k, A, FR)
                P = FR + 16 + 8 * (n % 4)
                n += 1
                pack16(k, P, A)
                k("s_add_u32 s58, s56, %d" % (i * 56 * 2048 + j * 2048))
                for p in range(2):
                    k("buffer_store_dwordx4 %s, v2, %s, s58 offen offset:%d" % (v(P + 4 * p, 4), s(SRD_E1, 4), p * 1024))
        k.stamp(4)
        k.stamp_dump(5)
        k("s_endpgm")
        k.label(Z2L)
        k("v_bfe_u32 v2, v%d, 2, 3" % V_LANE)
        k("v_lshlrev_b32 v14, 10, v2")
        k("v_and_b32 v2, 3, v%d" % V_LANE)
        k("v_lshl_add_u32 v14, v2, 6, v14")
        k("v_lshrrev_b32 v2, 5, v%d" % V_LANE)
        k("v_lshl_add_u32 v14, v2, 4, v14")
        k("s_sub_u32 s56, s%d, 7" % S_BN)
        k("s_lshl_b32 s56, s56, 1")
        k("s_add_u32 s56, s56, s%d" % S_WN)
        k("s_lshl_b32 s56, s56, 5")
        k("s_lshl_b32 s57, s%d, 1" % S_BM)
        k("s_add_u32 s57, s57, s%d" % S_WM)
        k("s_add_u32 s56, s56, s57")
        k("s_lshl_b32 s56, s56, 14")
        k("s_lshl_b32 s62, s57, 13")
        k("s_lshr_b32 s63, s56, 19")
        k("s_lshl_b32 s63, s63, 8")
        k("s_add_u32 s63, s63, s62")
        ex_addr(k, 8)
        for i in range(2):
            for r in (4, 5, 6, 7):
                k("v_mov_b32 v%d, 0" % r)
            for j in range(4):
                A = ACC + 16 * (i * 4 + j)
                gelu16(k, A, FR)
                for d in range(8):
                    k("v_pk_add_f32 v[4:5], v[4:5], %s" % v(A + 2 * d, 2))
                    k("v_pk_fma_f32 v[6:7], %s, %s, v[6:7]" % (v(A + 2 * d, 2), v(A + 2 * d, 2)))
            ex_publish(k, 4, 8, SRD_E3, 63)
            k("s_add_u32 s63, s63, 4096")
        n = 0
        k.stamp(6)
        for i in range(2):
            ex_collect(k, FR, 4, 8, SRD_E3, 62, 1792)
            k.stamp(7 + i)
            k("s_add_u32 s62, s62, 4096")
            k("s_add_u32 s58, s56, %d" % (i * 8192))
            for j in range(4):
                A = ACC + 16 * (i * 4 + j)
                P = FR + 16 + 8 * (n % 4)
                n += 1
                for d in range(8):
                    k("v_pk_fma_f32 %s, %s, v[4:5], v[4:5] %s" % (v(A + 2 * d, 2), v(A + 2 * d, 2), BCAST))
                pack16(k, P, A)
                swap8(k, P)
                for p in range(2):
                    k("buffer_store_dwordx4 %s, v14, %s, s58 offen offset:%d" %
                      (v(P + 4 * p, 4), s(SRD_E2, 4), j * 256 + p * 32))

    cfg = dict(kidx=4, PD=PD, T=16, NWG=224, MT=2, NT=4, NS=3, wgrid="2x2", load_ptrs=load_ptrs, srds_c=srds_c, srds_p=srds_p,
               map=lambda k: map_blocks(k, 2, 7, 2),
               x_ring=(0, 16384, 3), w_ring=(3 * 16384, 32768, 3), x_mode="dma_fm", w_strides=(2048, 1024, 8192),
               w_wave_stride=4096, w_tile_off=lambda j: j * 256,
               FRAG=FR, ACC=ACC, dma_setup=dma_setup,
               epilogue=epilogue, vgprs=ACC + 128, lds=3 * 49152)
    return gemm("g3_kernel", cfg)


def gen_g4(NS=4, PD=2):
    WR = NS * 16384
    FR = 16
    ACC = FR + (32 if PD == 1 else 64)
    Z1R, BR = ACC + 64, ACC + 96

    def load_ptrs(k):
        k("s_load_dwordx4 s[4:7], s[0:1], %d" % KA["w_sp"])
        k("s_load_dwordx2 s[8:9], s[0:1], %d" % KA["ws"])

    def srds_c(k):
        srd_ws(k, SRD_E1, 8, "Z1")
        srd_ws(k, SRD_E2, 8, "U")
        srd_in(k, SRD_E3, 6, SZ["b_sp"])

    def srds_p(k):
        srd_in(k, SRD_X, 4, SZ["w_sp"])
        srd_ws_sub(k, SRD_W, 8, "Z2", 81, 32 * 16384)

    def dma_setup(k):
        k("v_lshrrev_b32 v2, 3, v%d" % V_LANE)
        k("s_lshl_b32 s50, s%d, 5" % S_WAVE)
        k("v_add_u32 v2, s50, v2")
        k("v_bfe_u32 v3, v2, 1, 3")
        k("v_and_b32 v4, 7, v%d" % V_LANE)
        k("v_xor_b32 v3, v3, v4")
        k("v_lshlrev_b32 v3, 4, v3")
        k("v_lshl_add_u32 v8, v2, 12, v3")
        k("v_xor_b32 v9, 64, v8")
        k("v_add_u32 v9, %d, v9" % (8 * 4096 - 1024))
        k("v_add_u32 v10, %d, v8" % (16 * 4096 - 2048))
        k("v_add_u32 v11, %d, v9" % (16 * 4096 - 2048))
        k("s_lshl_b32 s80, s%d, 19" % S_BM)
        k("s_lshl_b32 s81, s%d, 19" % S_BN)
        k("s_mov_b32 s82, 0")
        k("s_lshl_b32 s50, s%d, 12" % S_WAVE)
        k("v_lshl_add_u32 v5, v%d, 4, s50" % V_LANE)
        return [Dma(SRD_X, [8, 9, 10, 11], 128, 0, 16384, 80),
                Dma(SRD_W, [5, 5, 5, 5], 16384, WR, 16384, 82)]

    def cons_pre(k):
        k("v_lshlrev_b32 v12, 4, v%d" % V_LANE)
        k("s_lshl_b32 s56, s%d, 1" % S_BM)
        k("s_add_u32 s56, s56, s%d" % S_WM)
        k("s_mul_i32 s57, s56, %d" % (2 * 56 * 2048))
        k("s_lshl_b32 s58, s%d, 1" % S_BN)
        k("s_add_u32 s58, s58, s%d" % S_WN)
        k("s_lshl_b32 s59, s58, 12")
        k("s_add_u32 s57, s57, s59")
        k("s_add_u32 s59, s57, %d" % (56 * 2048))
        k("v_and_b32 v13, 31, v%d" % V_LANE)
        k("v_lshlrev_b32 v13, 1, v13")
        k("s_lshl_b32 s60, s56, 7")
        k("s_mul_i32 s61, s%d, 28" % S_BM)
        k("s_add_u32 s61, s61, s58")
        k("s_lshl_b32 s61, s61, 4")
        k("s_lshl_b32 s62, s%d, 1" % S_WM)
        k("s_add_u32 s61, s61, s62")
        k("s_lshl_b32 s61, s61, 10")

    def cons_loads(k):
        for i in range(2):
            for jp in range(4):
                k("buffer_load_dwordx4 %s, v12, %s, s%d offen offset:%d" %
                  (v(Z1R + 16 * i + 4 * jp, 4), s(SRD_E1, 4), 57 + 2 * i, jp * 1024))
        for i in range(2):
            k("buffer_load_ushort v%d, v13, %s, s60 offen offset:%d" % (BR + 2 * i, s(SRD_E3, 4), i * 64))

    def epilogue(k):
        k("s_waitcnt vmcnt(0)")
        for i in range(2):
            k("v_lshlrev_b32 v%d, 16, v%d" % (BR + 2 * i, BR + 2 * i))
            k("v_mov_b32 v%d, v%d" % (BR + 2 * i + 1, BR + 2 * i))
        n = 0
        for i in range(2):
            for j in range(2):
                A = ACC + 16 * (i * 2 + j)
                for d in range(8):
                    unpack_bf16(k, FR + 2 * d, FR + 2 * d + 1, Z1R + 16 * i + 8 * j + d)
                for d in range(8):
                    k("v_pk_add_f32 %s, %s, %s" % (v(A + 2 * d, 2), v(A + 2 * d, 2), v(BR + 2 * i, 2)))
                for d in range(8):
                    k("v_pk_mul_f32 %s, %s, %s" % (v(A + 2 * d, 2), v(A + 2 * d, 2), v(FR + 2 * d, 2)))
                P = FR + 16 + 8 * (n % 2)
                n += 1
                pack16(k, P, A)
                swap8(k, P)
                for p in range(2):
                    k("s_add_u32 s62, s61, %d" % ((2 * j + p) * 4096))
                    k("buffer_store_dwordx4 %s, v12, %s, s62 offen offset:%d" % (v(P + 4 * p, 4), s(SRD_E2, 4), i * 1024))

    cfg = dict(kidx=5, PD=PD, T=32, NWG=224, MT=2, NT=2, NS=NS, wgrid="2x2", load_ptrs=load_ptrs, srds_c=srds_c, srds_p=srds_p,
               map=lambda k: map_blocks(k, 2, 7, 2),
               x_ring=(0, 16384, NS), w_ring=(WR, 16384, NS), x_mode="dma_swz", w_strides=(2048, 1024, 4096),
               w_wave_stride=512, w_tile_off=lambda j: j * 256,
               FRAG=FR, ACC=ACC, dma_setup=dma_setup, cons_pre=cons_pre, cons_loads=cons_loads,
               epilogue=epilogue, vgprs=BR + 4, lds=2 * WR)
    return gemm("g4_kernel", cfg)
```

```python
from common import *
from gemms import stats_to_affine, BCAST


def gen_k1(name="k1_kernel"):
    k = Kern(name)
    END, LN, PF = k.uid("end"), k.uid("ln"), k.uid("pf")
    k("s_cmp_ge_u32 s2, 432")
    k("s_cbranch_scc1 " + END)
    k.kidx = 0
    k.stamp_init()
    k("s_load_dwordx4 s[56:59], s[0:1], %d" % KA["x"])
    k("s_load_dwordx4 s[8:11], s[0:1], %d" % KA["c"])
    k("s_load_dwordx2 s[6:7], s[0:1], %d" % KA["ws"])
    k("s_cmp_lt_u32 s2, 256")
    k("s_cbranch_scc1 " + LN)
    k("s_cmp_ge_u32 s2, 384")
    k("s_cbranch_scc1 " + PF)
    k("s_bfe_u32 s12, s2, 0x50002")
    k("s_and_b32 s13, s2, 3")
    g = Gemv(k, 0, 12, 13, 20, 24, 28, 0, 8, 32)
    g.addr()
    k("s_waitcnt lgkmcnt(0)")
    srd_in(k, 20, 8, SZ["c"])
    srd_in(k, 24, 10, SZ["w_mod"])
    g.loads()
    srd_ws(k, 28, 6, "MODP")
    k.stamp(1)
    k("s_waitcnt vmcnt(8)")
    k.stamp(2)
    g.silu()
    k("s_barrier")
    g.mac(lambda i: k("s_waitcnt vmcnt(%d)" % (7 - i)))
    k.stamp(3)
    k("s_barrier")
    g.red1()
    k("s_barrier")
    g.fin()
    k.stamp(4)
    k.stamp_dump(5)
    k("s_endpgm")
    k.label(PF)
    k("s_sub_u32 s12, s2, 384")
    k("s_lshl_b32 s12, s12, 15")
    k("v_lshlrev_b32 v1, 7, v0")
    k("s_waitcnt lgkmcnt(0)")
    srd_in(k, 20, 58, SZ["wqkv"])
    k("buffer_load_dword v2, v1, s[20:23], s12 offen")
    k.stamp(1); k.stamp(2); k.stamp(3); k.stamp(4)
    k.stamp_dump(5)
    k("s_endpgm")
    k.label(LN)
    k("v_bfe_u32 v1, v0, 3, 3")
    k("v_and_b32 v2, 7, v0")
    k("v_lshrrev_b32 v5, 6, v0")
    k("v_lshlrev_b32 v3, 11, v1")
    k("v_lshl_add_u32 v3, v2, 4, v3")
    k("v_lshl_add_u32 v3, v5, 9, v3")
    k("s_lshl_b32 s13, s2, 14")
    k("v_lshrrev_b32 v6, 1, v2")
    k("v_lshlrev_b32 v6, 12, v6")
    k("v_and_b32 v7, 1, v2")
    k("v_lshl_add_u32 v6, v7, 9, v6")
    k("v_lshl_add_u32 v6, v1, 4, v6")
    k("v_lshl_add_u32 v6, v5, 16, v6")
    k("s_lshr_b32 s15, s2, 4")
    k("s_lshl_b32 s15, s15, 18")
    k("s_bfe_u32 s16, s2, 0x20002")
    k("s_lshl_b32 s16, s16, 10")
    k("s_add_u32 s15, s15, s16")
    k("s_and_b32 s16, s2, 3")
    k("s_lshl_b32 s16, s16, 7")
    k("s_add_u32 s15, s15, s16")
    for n in range(4):
        k("s_add_u32 s%d, s15, %d" % (32 + n, n * 16384))
    k("s_waitcnt lgkmcnt(0)")
    srd_in(k, 20, 56, SZ["x"])
    for n in range(4):
        k("buffer_load_dwordx4 v[%d:%d], v3, s[20:23], s13 offen offset:%d" % (16 + 4 * n, 19 + 4 * n, n * 128))
    srd_ws(k, 24, 6, "XN")
    srd_ws(k, 28, 6, "EX")
    srd_ws(k, 52, 6, "XF")
    k("s_and_b32 s16, s2, 129")
    k("s_cmp_eq_u32 s16, 129")
    k("s_movk_i32 s17, 256")
    k("s_cselect_b32 s16, 192, s17")
    k("v_mov_b32 v8, 0")
    k("v_cmp_le_u32 vcc, s16, v0")
    k("v_cndmask_b32 v9, -1.0, v8, vcc")
    k("v_lshlrev_b32 v4, 3, v0")
    k("s_lshl_b32 s14, s2, 11")
    k("buffer_store_dwordx2 v[8:9], v4, s[28:31], s14 offen")
    for r in (10, 11, 12, 13):
        k("v_mov_b32 v%d, 0" % r)
    k.stamp(1)
    for n in range(4):
        k("s_waitcnt vmcnt(4)")
        if n == 0:
            k.stamp(2)
        k("buffer_store_dwordx4 v[%d:%d], v6, s[52:55], s%d offen" % (16 + 4 * n, 19 + 4 * n, 32 + n))
        for d in range(4):
            o = 32 + 8 * n + 2 * d
            unpack_bf16(k, o, o + 1, 16 + 4 * n + d)
            k("v_pk_add_f32 v[10:11], v[10:11], v[%d:%d]" % (o, o + 1))
            k("v_pk_fma_f32 v[12:13], v[%d:%d], v[%d:%d], v[12:13]" % (o, o + 1, o, o + 1))
    k("v_add_f32 v10, v10, v11")
    k("v_add_f32 v11, v12, v13")
    for m in ("quad_perm:[1,0,3,2]", "quad_perm:[2,3,0,1]", "row_half_mirror"):
        for r in (10, 11):
            k("v_add_f32_dpp v%d, v%d, v%d %s row_mask:0xf bank_mask:0xf" % (r, r, r, m))
    k("v_lshlrev_b32 v7, 5, v1")
    k("v_lshl_add_u32 v8, v5, 3, v7")
    k("ds_write_b64 v8, v[10:11]")
    k("s_waitcnt lgkmcnt(0)")
    k("s_barrier")
    k.stamp(3)
    k("ds_read_b128 v[8:11], v7")
    k("ds_read_b128 v[12:15], v7 offset:16")
    k("s_waitcnt lgkmcnt(0)")
    k("v_pk_add_f32 v[8:9], v[8:9], v[10:11]")
    k("v_pk_add_f32 v[12:13], v[12:13], v[14:15]")
    k("v_pk_add_f32 v[8:9], v[8:9], v[12:13]")
    stats_to_affine(k, 8, 1024)
    for n in range(4):
        for d in range(4):
            o = 32 + 8 * n + 2 * d
            k("v_pk_fma_f32 v[%d:%d], v[%d:%d], v[8:9], v[8:9] %s" % (o, o + 1, o, o + 1, BCAST))
            k("v_cvt_pk_f16_f32 v%d, v%d, v%d" % (16 + 4 * n + d, o, o + 1))
        k("buffer_store_dwordx4 v[%d:%d], v6, s[24:27], s%d offen" % (16 + 4 * n, 19 + 4 * n, 32 + n))
    k.stamp(4)
    k.stamp_dump(5)
    k.label(END)
    k("s_endpgm")
    txt, n = k.finish(vgprs=72, sgprs=64)
    return txt, "; @launch kernel=%s grid=(432,1,1) block=(256,1,1) lds=12288" % name
```

```python
import sys
from k1 import gen_k1
from gemms import *
from attn import gen_attn

def build(path, **opt):
    Kern.STAMPS = opt.get("stamps", False)
    for key in DBG:
        DBG[key] = opt.get(key, False)
    import gemm, gemms
    ov = opt.get("ov", {})
    gemms.gemm = lambda name, cfg: gemm.gemm(name, dict(cfg, **ov))
    g = opt.get("g", {})
    parts = [gen_k1(), gen_g1(**g.get(1, {})), gen_attn(force_slow=opt.get("force_slow", False), **g.get("a", {})), gen_g25(2, **g.get(2, {})),
             gen_g3(**g.get(3, {})), gen_g4(**g.get(4, {})), gen_g25(5, **g.get(5, {}))]
    ref = open("adaLN_cond__softmax_full_mha__mixer_gmlp__prompt.s.ref").read().split("\n")
    head = [l for l in ref if l.startswith(";") and "@launch" not in l and "Override" not in l and "grid=ceil" not in l]
    txt = "\n".join(head) + "\n" + "\n".join(p[1] for p in parts) + "\n"
    txt += ".amdgcn_target \"amdgcn-amd-amdhsa--gfx950\"\n" + "\n".join(p[0] for p in parts)
    open(path, "w").write(txt)

if __name__ == "__main__":
    build("adaLN_cond__softmax_full_mha__mixer_gmlp__prompt.s")
    build("slow.s", force_slow=True)
    build("stamp.s", stamps=True)
```

```python
from common import *
from gemms import pack16, swap8

OOB = 0x7f000000


def gen_attn(name="attn_kernel", force_slow=False, sched=1):
    k = Kern(name)
    END, SLOW, EPI, HELP = k.uid("end"), k.uid("slow"), k.uid("epi"), k.uid("help")
    NSL = 8
    KS, TPS = 1, 4
    LANE, VOFF, VCUR, VNXT, VBASE = 1, 4, 5, 6, 4
    QF, NM, S0, S1, P, KA_, KB_, VA_, VB_, O, L, SEL = 8, 16, 32, 48, 64, 72, 76, 80, 84, 88, 104, 108
    S = (S0, S1)
    SRD, SRDO = 24, 28
    S_WAVE, S_HEAD, S_RT, S_KB, S_ST, S_CUR = 3, 20, 21, 43, 44, 45
    k("s_cmp_ge_u32 s2, 256")
    k("s_cbranch_scc1 " + END)
    k.kidx = 2
    k.stamp_init()
    k("s_load_dwordx2 s[6:7], s[0:1], %d" % KA["ws"])
    k("v_lshrrev_b32 v2, 6, v0")
    k("v_and_b32 v%d, 63, v0" % LANE)
    k("v_readfirstlane_b32 s%d, v2" % S_WAVE)
    k("s_and_b32 s10, s2, 7")
    k("s_lshl_b32 s10, s10, 2")
    k("s_bfe_u32 s11, s2, 0x20003")
    k("s_add_u32 s%d, s10, s11" % S_HEAD)
    k("v_lshlrev_b32 v%d, 4, v%d" % (VOFF, LANE))
    k("s_lshl_b32 s%d, s%d, 17" % (S_KB, S_HEAD))
    k("s_cmp_ge_u32 s%d, 8" % S_WAVE)
    k("s_cbranch_scc1 " + HELP)
    k("s_lshr_b32 s12, s2, 5")
    k("s_lshl_b32 s%d, s12, 3" % S_RT)
    k("s_add_u32 s%d, s%d, s%d" % (S_RT, S_RT, S_WAVE))
    k("s_lshl_b32 s13, s%d, 11" % S_RT)
    k("s_add_u32 s13, s13, s%d" % S_KB)
    k("s_waitcnt lgkmcnt(0)")
    srd_ws(k, SRD, 6, "QKV")
    k("buffer_load_dwordx4 %s, v%d, %s, s13 offen" % (v(QF, 4), VOFF, s(SRD, 4)))
    k("buffer_load_dwordx4 %s, v%d, %s, s13 offen offset:1024" % (v(QF + 4, 4), VOFF, s(SRD, 4)))
    srd_ws(k, SRDO, 6, "O")
    k("v_bfe_u32 v2, v%d, 2, 1" % LANE)
    k("v_bfe_u32 v3, v%d, 4, 1" % LANE)
    k("v_cmp_eq_u32 vcc, v2, v3")
    k("v_mov_b32 v2, 0x3f803f80")
    k("v_cndmask_b32 v%d, 0, v2, vcc" % SEL)
    for e in range(1, 4):
        k("v_mov_b32 v%d, v%d" % (SEL + e, SEL))

    def zero_state():
        for e in range(16):
            k("v_mov_b32 v%d, 0" % (O + e))
        for e in range(4):
            k("v_mov_b32 v%d, 0" % (L + e))
    zero_state()
    for e in range(4):
        k("v_mov_b32 v%d, 0" % (VB_ + e))
        k("v_mov_b32 v%d, 0" % (P + 4 + e))
    k("v_mov_b32 v%d, v%d" % (VCUR, VBASE))
    k("v_add_u32 v%d, 16384, v%d" % (VNXT, VBASE))
    k("s_mov_b32 s%d, 16384" % S_CUR)
    k.stamp(1)
    k("s_waitcnt vmcnt(0)")
    k("s_barrier")
    k.stamp(2)
    k("ds_read_b128 %s, v%d" % (v(KA_, 4), VOFF))
    k("ds_read_b128 %s, v%d offset:1024" % (v(KB_, 4), VOFF))
    k("ds_read_b128 %s, v%d offset:8192" % (v(VA_, 4), VCUR))
    k("s_waitcnt lgkmcnt(0)")

    def qk(dst, c):
        return ("v_mfma_f32_32x32x16_bf16 %s, %s, %s, %s" % (v(dst, 16), v(KA_, 4), v(QF, 4), c),
                "v_mfma_f32_32x32x16_bf16 %s, %s, %s, %s" % (v(dst, 16), v(KB_, 4), v(QF + 4, 4), v(dst, 16)))

    def max16(dst, src, first):
        if first:
            k("v_max3_f32 v%d, v%d, v%d, v%d" % (dst, src, src + 1, src + 2))
            k("v_max_f32 v%d, v%d, v%d" % (dst, dst, src + 3))
            r = range(4, 16, 2)
        else:
            r = range(0, 16, 2)
        for e in r:
            k("v_max3_f32 v%d, v%d, v%d, v%d" % (dst, dst, src + e, src + e + 1))

    def set_nm(mreg):
        k("v_mov_b32 v3, v%d" % mreg)
        k("v_permlane32_swap_b32 v%d, v3" % mreg)
        k("v_max_f32 v%d, v%d, v3" % (mreg, mreg))
        for e in range(16):
            k("v_sub_f32 v%d, 0, v%d" % (NM + e, mreg))

    for m in qk(S1, "0"):
        k(m)
    max16(2, S1, True)
    set_nm(2)
    k("s_waitcnt lgkmcnt(0)")
    for m in qk(S0, v(NM, 16)):
        k(m)
    k("ds_read_b128 %s, v%d offset:2048" % (v(KA_, 4), VCUR))
    k("ds_read_b128 %s, v%d offset:3072" % (v(KB_, 4), VCUR))
    k("s_mov_b32 s%d, 0" % S_ST)
    k("s_waitcnt lgkmcnt(0)")

    def ex(Sx, q, lo=0, hi=4):
        for e in range(lo, hi):
            k("v_exp_f32 v%d, v%d" % (Sx + 4 * q + e, Sx + 4 * q + e))

    def cv(Sx, q):
        for e in range(2):
            k("v_cvt_pk_bf16_f32 v%d, v%d, v%d" % (P + 2 * q + e, Sx + 4 * q + 2 * e, Sx + 4 * q + 2 * e + 1))

    def exps(Sx, q):
        ex(Sx, q)
        cv(Sx, q)

    def pvm(vf, pf):
        k("v_mfma_f32_32x32x16_bf16 %s, %s, %s, %s" % (v(O, 16), v(vf, 4), v(pf, 4), v(O, 16)))

    def lsum(pf):
        k("v_mfma_f32_16x16x32_bf16 %s, %s, %s, %s" % (v(L, 4), v(SEL, 4), v(pf, 4), v(L, 4)))

    def pv(vf, pf):
        pvm(vf, pf)
        lsum(pf)

    def addr(tt):
        return (VCUR, tt * 2048) if tt < TPS else (VNXT, (tt - TPS) * 2048)

    LOOP = k.uid("loop")
    k.label(LOOP)
    for tt in range(TPS):
        Sc, Sn = S[tt & 1], S[(tt + 1) & 1]
        m1, m3 = qk(Sn, v(NM, 16))
        ra, oa = addr(tt + 2)
        rv, ov = addr(tt + 1)
        rKa = "ds_read_b128 %s, v%d offset:%d" % (v(KA_, 4), ra, oa)
        rVb = "ds_read_b128 %s, v%d offset:%d" % (v(VB_, 4), VCUR, 8192 + tt * 2048 + 1024)
        rKb = "ds_read_b128 %s, v%d offset:%d" % (v(KB_, 4), ra, oa + 1024)
        rVa = "ds_read_b128 %s, v%d offset:%d" % (v(VA_, 4), rv, 8192 + ov)
        if sched == 0:
            k("s_waitcnt lgkmcnt(3)"); k(m1); k(rKa); exps(Sc, 0)
            k("s_waitcnt lgkmcnt(3)"); pv(VB_, P + 4); k(rVb); exps(Sc, 1)
            k("s_waitcnt lgkmcnt(3)"); k(m3); k(rKb); exps(Sc, 2)
            k("s_waitcnt lgkmcnt(3)"); pv(VA_, P); k(rVa); exps(Sc, 3)
        else:
            k("s_waitcnt lgkmcnt(2)"); k(m1); k(rKa); ex(Sc, 0)
            pvm(VB_, P + 4); k(rVb); cv(Sc, 0); ex(Sc, 1, 0, 3); lsum(P + 4); ex(Sc, 1, 3, 4); ex(Sc, 2, 0, 1)
            k("s_waitcnt lgkmcnt(2)"); k(m3); k(rKb); cv(Sc, 1); ex(Sc, 2, 1, 4)
            pvm(VA_, P); k(rVa); ex(Sc, 3, 0, 1); cv(Sc, 2); ex(Sc, 3, 1, 3); lsum(P); ex(Sc, 3, 3, 4); cv(Sc, 3)
    k("v_mov_b32 v%d, v%d" % (VCUR, VNXT))
    k("s_add_u32 s%d, s%d, 16384" % (S_CUR, S_CUR))
    k("s_and_b32 s%d, s%d, %d" % (S_CUR, S_CUR, NSL * 16384 - 1))
    k("v_add_u32 v%d, s%d, v%d" % (VNXT, S_CUR, VBASE))
    k("s_add_u32 s%d, s%d, 1" % (S_ST, S_ST))
    k("s_cmp_lt_u32 s%d, 16" % S_ST)
    k("s_barrier")
    k("s_cbranch_scc1 " + LOOP)
    k("s_waitcnt lgkmcnt(0)")
    k.stamp(3)
    pv(VB_, P + 4)
    k("v_mov_b32 v2, v%d" % L)
    for e in range(16):
        k("v_fma_f32 v2, v%d, 0, v2" % (O + e))
    k("v_mov_b32 v3, %s" % fhex(2.0 ** 100 if not force_slow else -1.0))
    k("v_cmp_nlt_f32 vcc, v2, v3")
    k("s_cbranch_vccnz " + SLOW)
    k.label(EPI)
    k("v_rcp_f32 v2, v%d" % L)
    k("v_mov_b32 v3, v2")
    for e in range(0, 16, 2):
        k("v_pk_mul_f32 %s, %s, v[2:3]" % (v(O + e, 2), v(O + e, 2)))
    pack16(k, P, O)
    swap8(k, P)
    k("s_lshr_b32 s10, s%d, 2" % S_RT)
    k("s_lshl_b32 s10, s10, 18")
    k("s_lshl_b32 s11, s%d, 13" % S_HEAD)
    k("s_add_u32 s10, s10, s11")
    k("s_and_b32 s11, s%d, 3" % S_RT)
    k("s_lshl_b32 s11, s11, 10")
    k("s_add_u32 s10, s10, s11")
    k("s_add_u32 s11, s10, 4096")
    k("buffer_store_dwordx4 %s, v%d, %s, s10 offen" % (v(P, 4), VOFF, s(SRDO, 4)))
    k("buffer_store_dwordx4 %s, v%d, %s, s11 offen" % (v(P + 4, 4), VOFF, s(SRDO, 4)))
    k.stamp(4)
    k.stamp_dump(5)
    k.label(END)
    k("s_endpgm")

    k.label(HELP)
    k("s_load_dwordx2 s[8:9], s[0:1], %d" % KA["wo"])
    k("s_load_dwordx4 s[32:35], s[0:1], %d" % KA["w_in"])
    k("s_load_dwordx2 s[36:37], s[0:1], %d" % KA["w_out"])
    k("s_load_dwordx4 s[16:19], s[0:1], %d" % KA["c"])
    k("s_sub_u32 s%d, s%d, 8" % (S_WAVE, S_WAVE))
    k("s_lshl_b32 s12, s%d, 12" % S_WAVE)
    k("s_and_b32 s13, s12, 4096")
    k("s_lshr_b32 s14, s%d, 1" % S_WAVE)
    k("s_add_u32 s14, s14, 1")
    k("s_lshl_b32 s14, s14, 22")
    k("s_add_u32 s13, s13, s14")
    k("s_add_u32 s13, s13, s%d" % S_KB)
    k("v_subrev_u32 v8, 512, v0")
    k("s_bfe_u32 s14, s2, 0x60002")
    k("s_add_u32 s14, s14, 32")
    k("s_and_b32 s15, s2, 3")
    g = Gemv(k, 8, 14, 15, 48, 52, 56, NSL * 16384, 16, 60)
    g.addr()
    STG = NSL * 16384 + 12288
    k("s_lshl_b32 s46, s2, 2")
    k("s_add_u32 s46, s46, s%d" % S_WAVE)
    k("s_add_u32 s47, s12, %d" % STG)
    k("v_lshrrev_b32 v9, 3, v%d" % LANE)
    k("v_and_b32 v10, 7, v%d" % LANE)
    k("v_lshlrev_b32 v10, 4, v10")
    k("v_bfe_u32 v2, v%d, 2, 2" % LANE)
    k("v_and_b32 v3, 3, v%d" % LANE)
    k("v_lshlrev_b32 v3, 3, v3")
    k("v_lshl_add_u32 v3, v2, 7, v3")
    k("v_add_u32 v3, s47, v3")
    k("v_lshrrev_b32 v2, 5, v%d" % LANE)
    k("v_lshl_add_u32 v11, v2, 10, v3")
    k("v_bfe_u32 v2, v%d, 4, 1" % LANE)
    k("v_lshl_add_u32 v11, v2, 5, v11")
    k("v_lshrrev_b32 v2, 4, v%d" % LANE)
    k("v_lshl_add_u32 v12, v2, 10, v3")
    k("v_lshlrev_b32 v13, 4, v2")
    k("v_and_b32 v2, 15, v%d" % LANE)
    k("v_lshl_add_u32 v13, v2, 7, v13")
    k("v_add_u32 v13, s47, v13")
    k("s_waitcnt lgkmcnt(0)")
    srd_ws(k, SRD, 6, "QKV")
    ops = []

    def dma(st):
        k("s_add_u32 m0, s12, %d" % ((st % NSL) * 16384))
        for q in range(4):
            k("buffer_load_dwordx4 v%d, %s, s13 offen offset:%d lds" % (VOFF, s(SRD, 4), q * 1024))
            ops.append(("kv", st))
        k("s_add_u32 s13, s13, 8192")

    def wait_for(tag):
        last = max(i for i, o in enumerate(ops) if o == tag)
        k("s_waitcnt vmcnt(%d)" % min(63, len(ops) - 1 - last))

    ROUNDS = [(8, "wo", 2048, 16, 512, "WOF", 0), (32, "w_in", 7168, 56, 1792, "WINF", 0),
              (32, "w_in", 7168, 56, 1792, "WINF", 1024), (34, "w_sp", 4096, 32, 2048, "WSPF", 0),
              (34, "w_sp", 4096, 32, 2048, "WSPF", 1024), (36, "w_out", 2048, 16, 896, "WOUTF", 0)]
    RB = 80

    def unit_ids(r):
        ptr, nm, ld, ncg, nu, dst, u0 = ROUNDS[r]
        k("s_add_u32 s41, s46, %d" % u0)
        if ncg == 56:
            k("s_mul_i32 s38, s41, 9363")
            k("s_lshr_b32 s38, s38, 19")
            k("s_mul_i32 s39, s38, 56")
            k("s_sub_u32 s39, s41, s39")
        else:
            k("s_lshr_b32 s38, s41, %d" % (ncg.bit_length() - 1))
            k("s_and_b32 s39, s41, %d" % (ncg - 1))
        k("s_cmp_ge_u32 s41, %d" % nu)
        k("s_cselect_b32 s40, %d, 0" % OOB)

    def rp_load(r, touch=False):
        ptr, nm, ld, ncg, nu, dst, u0 = ROUNDS[r]
        unit_ids(r)
        srd_in(k, 72, ptr, SZ[nm])
        k("s_mov_b32 s42, %d" % ld)
        if touch:
            k("v_and_b32 v14, 31, v%d" % LANE)
            k("v_mul_lo_u32 v14, v14, s42")
        else:
            k("v_mul_lo_u32 v14, v9, s42")
            k("v_add_u32 v14, v14, v10")
        k("s_mul_i32 s42, s38, %d" % (32 * ld))
        k("s_lshl_b32 s41, s39, 7")
        k("s_add_u32 s42, s42, s41")
        k("s_or_b32 s42, s42, s40")
        if touch:
            k("buffer_load_dword v15, v14, s[72:75], s42 offen")
            ops.append(("tc", r))
            return
        for q in range(4):
            k("s_add_u32 m0, s47, %d" % (q * 1024))
            k("s_add_u32 s41, s42, %d" % (q * 8 * ld))
            k("buffer_load_dwordx4 v14, s[72:75], s41 offen lds")
            ops.append(("rp", r))

    def rp_store(r):
        ptr, nm, ld, ncg, nu, dst, u0 = ROUNDS[r]
        wait_for(("rp", r))
        for b in range(4):
            if dst in ("WOF", "WOUTF"):
                for rd in range(2):
                    k("ds_read_b64_tr_b16 %s, v11 offset:%d" % (v(RB + 4 * b + 2 * rd, 2), (b >> 1) * 2048 + rd * 512 + (b & 1) * 64))
            elif dst == "WINF":
                for rd in range(2):
                    k("ds_read_b64_tr_b16 %s, v12 offset:%d" % (v(RB + 4 * b + 2 * rd, 2), rd * 512 + b * 32))
            else:
                k("ds_read_b128 %s, v13 offset:%d" % (v(RB + 4 * b, 4), (b & 1) * 2048 + (b >> 1) * 64))
        unit_ids(r)
        srd_ws(k, 76, 6, dst)
        if dst in ("WOF", "WOUTF"):
            k("s_mul_i32 s42, s39, %d" % ((16 if dst == "WOF" else 28) * 8192))
            k("s_lshl_b32 s41, s38, 12")
            k("s_add_u32 s42, s42, s41")
            k("s_or_b32 s42, s42, s40")
            offs = [("s42", b * 1024) for b in range(4)]
        elif dst == "WSPF":
            k("s_lshr_b32 s42, s38, 2")
            k("s_lshl_b32 s42, s42, 5")
            k("s_add_u32 s42, s42, s39")
            k("s_lshl_b32 s42, s42, 14")
            k("s_and_b32 s41, s38, 3")
            k("s_lshl_b32 s41, s41, 11")
            k("s_add_u32 s42, s42, s41")
            k("s_or_b32 s42, s42, s40")
            k("s_add_u32 s41, s42, 8192")
            offs = [("s42", 0), ("s42", 1024), ("s41", 0), ("s41", 1024)]
        else:
            offs = []
            k("s_cmp_ge_u32 s39, 28")
            k("s_cselect_b32 s21, 28, 0")
            k("s_cselect_b32 s22, 7168, 0")
            k("s_sub_u32 s21, s39, s21")
            k("s_lshl_b32 s21, s21, 2")
            k("s_mul_i32 s41, s38, 14336")
            k("s_add_u32 s22, s22, s41")
            k("s_or_b32 s22, s22, s40")
            for b in range(4):
                k("s_add_u32 s41, s21, %d" % b)
                k("s_mul_i32 s42, s41, 147")
                k("s_lshr_b32 s42, s42, 10")
                k("s_mul_i32 s42, s42, %d" % (458752 - 7 * 1024))
                k("s_lshl_b32 s41, s41, 10")
                k("s_add_u32 s41, s41, s42")
                k("s_add_u32 s%d, s41, s22" % (28 + b))
                offs.append(("s%d" % (28 + b), 0))
        k("s_waitcnt lgkmcnt(0)")
        for b in range(4):
            k("buffer_store_dwordx4 %s, v%d, s[76:79], %s offen offset:%d sc1" % (v(RB + 4 * b, 4), VOFF, offs[b][0], offs[b][1]))
            ops.append(("st", r))

    dma(0)
    dma(1)
    srd_in(k, 48, 16, SZ["c"])
    srd_in(k, 52, 18, SZ["w_mod"])
    srd_ws(k, 56, 6, "MODP")
    wait_for(("kv", 1))
    k("s_barrier")
    for st in range(2, 6):
        dma(st)
    for st in range(16):
        if st + 6 < 16:
            dma(st + 6)
        if st % 2 == 0:
            r = st // 2 - 1
            if 0 <= r - 1 < len(ROUNDS):
                rp_store(r - 1)
            if 0 <= r < len(ROUNDS):
                rp_load(r)
            if st == 0:
                rp_load(0, True)
            if r + 2 < len(ROUNDS):
                rp_load(r + 2, True)
        if st in (1, 3, 5, 7):
            g.loads(st - 1, st + 1)
            ops.extend([("gv", st)] * (3 if st == 1 else 2))
        if st == 9:
            wait_for(("gv", 1))
            g.silu()
        if st == 11:
            wait_for(("gv", 7))
            g.mac()
        if st == 12:
            g.red1()
        if st == 13:
            g.fin()
            ops.append(("st", 99))
        if st + 2 < 16:
            wait_for(("kv", st + 2))
        k.stamp(8 + st)
        if st == 14:
            break
        k("s_barrier")
    k.stamp_dump(5)
    k("s_endpgm")

    k.label(SLOW)
    k("s_waitcnt vmcnt(0)")
    LA, LB = k.uid("slowa"), k.uid("slowb")
    k("s_add_u32 s16, s%d, 0x400000" % S_KB)
    k("s_mov_b32 s%d, 0" % S_ST)
    k("v_mov_b32 v2, 0xff800000")
    k.label(LA)
    k("buffer_load_dwordx4 %s, v%d, %s, s16 offen" % (v(KA_, 4), VOFF, s(SRD, 4)))
    k("buffer_load_dwordx4 %s, v%d, %s, s16 offen offset:1024" % (v(KB_, 4), VOFF, s(SRD, 4)))
    k("s_waitcnt vmcnt(0)")
    for m in qk(S0, "0"):
        k(m)
    max16(2, S0, False)
    k("s_add_u32 s16, s16, 2048")
    k("s_add_u32 s%d, s%d, 1" % (S_ST, S_ST))
    k("s_cmp_lt_u32 s%d, 64" % S_ST)
    k("s_cbranch_scc1 " + LA)
    set_nm(2)
    zero_state()
    k("s_add_u32 s16, s%d, 0x400000" % S_KB)
    k("s_add_u32 s17, s%d, 0x800000" % S_KB)
    k("s_mov_b32 s%d, 0" % S_ST)
    k.label(LB)
    k("buffer_load_dwordx4 %s, v%d, %s, s16 offen" % (v(KA_, 4), VOFF, s(SRD, 4)))
    k("buffer_load_dwordx4 %s, v%d, %s, s16 offen offset:1024" % (v(KB_, 4), VOFF, s(SRD, 4)))
    k("buffer_load_dwordx4 %s, v%d, %s, s17 offen" % (v(VA_, 4), VOFF, s(SRD, 4)))
    k("buffer_load_dwordx4 %s, v%d, %s, s17 offen offset:1024" % (v(VB_, 4), VOFF, s(SRD, 4)))
    k("s_waitcnt vmcnt(0)")
    for m in qk(S0, v(NM, 16)):
        k(m)
    for q in range(4):
        exps(S0, q)
    pv(VA_, P)
    pv(VB_, P + 4)
    k("s_add_u32 s16, s16, 2048")
    k("s_add_u32 s17, s17, 2048")
    k("s_add_u32 s%d, s%d, 1" % (S_ST, S_ST))
    k("s_cmp_lt_u32 s%d, 64" % S_ST)
    k("s_cbranch_scc1 " + LB)
    k("s_branch " + EPI)
    txt, n = k.finish(vgprs=112, sgprs=80)
    return txt, "; @launch kernel=%s grid=(256,1,1) block=(768,1,1) lds=%d" % (name, NSL * 16384 + 12288 + 16384)
```

```python
import struct
from asmlib import *

KA = dict(x=0, wqkv=8, wo=16, bx=24, w_in=32, w_sp=40, b_sp=48, w_out=56, c=64, w_mod=72, out=80, dbg=88, ws=96)
SZ = dict(x=4194304, wqkv=6291456, wo=2097152, w_in=7340032, w_sp=8388608, b_sp=4096, w_out=3670016, c=2048,
          w_mod=12582912, out=4194304)

WS = dict(
    MODP=(0x0, 98304),
        XN=(0x100000, 0x400000),
    QKV=(0x500000, 0xC00000),
    O=(0x1100000, 0x400000),
    X1=(0x1500000, 0x400000),
    Z1=(0x1900000, 0x700000),
    Z2=(0x2000000, 0x700000),
    U=(0x2700000, 0x700000),
)


def f2u(x):
    return struct.unpack("<I", struct.pack("<f", x))[0]


def fhex(x):
    return "0x%08x" % f2u(x)


def srd_in(k, dst, ptr, size):
    k("s_mov_b32 s%d, s%d" % (dst, ptr))
    k("s_mov_b32 s%d, s%d" % (dst + 1, ptr + 1))
    k("s_mov_b32 s%d, %d" % (dst + 2, size))
    k("s_mov_b32 s%d, 0x20000" % (dst + 3))


def srd_ws(k, dst, wsptr, region):
    off, size = WS[region]
    k("s_add_u32 s%d, s%d, %d" % (dst, wsptr, off))
    k("s_addc_u32 s%d, s%d, 0" % (dst + 1, wsptr + 1))
    k("s_mov_b32 s%d, %d" % (dst + 2, size))
    k("s_mov_b32 s%d, 0x20000" % (dst + 3))


def unpack_bf16(k, lo, hi, src):
    k("v_lshlrev_b32 v%d, 16, v%d" % (lo, src))
    k("v_and_b32 v%d, 0xffff0000, v%d" % (hi, src))


def srd_ws_sub(k, dst, wsptr, region, s_off, size):
    off, _ = WS[region]
    k("s_add_u32 s%d, s%d, %d" % (dst + 2, s_off, off))
    k("s_add_u32 s%d, s%d, s%d" % (dst, wsptr, dst + 2))
    k("s_addc_u32 s%d, s%d, 0" % (dst + 1, wsptr + 1))
    k("s_mov_b32 s%d, %d" % (dst + 2, size))
    k("s_mov_b32 s%d, 0x20000" % (dst + 3))


WS["EX"] = (0x3600000, 0x100000)
WS["EX2"] = (0x3600000, 0x40000)
WS["EX3"] = (0x3640000, 0x80000)
WS["FL"] = (0x36C0000, 0x10000)
WS["XF"] = (0x2E00000, 0x400000)
WS["H2"] = (0x3200000, 0x400000)


LOG2E = 1.4426950408889634


class Gemv:
    def __init__(self, k, tid, s_cg, s_kc, srd_c, srd_w, srd_o, lds, V, S):
        self.__dict__.update(locals())

    def addr(self):
        k, V, S = self.k, self.V, self.S
        k("v_lshrrev_b32 v%d, 3, v%d" % (V, self.tid))
        k("v_and_b32 v%d, 7, v%d" % (V + 1, self.tid))
        k("s_mov_b32 s%d, 12288" % S)
        k("v_mul_lo_u32 v%d, v%d, s%d" % (V + 2, V, S))
        k("v_lshl_add_u32 v%d, v%d, 4, v%d" % (V + 2, V + 1, V + 2))
        k("s_mul_i32 s%d, s%d, %d" % (S + 1, self.s_kc, 256 * 12288))
        k("s_lshl_b32 s%d, s%d, 7" % (S, self.s_cg))
        k("s_add_u32 s%d, s%d, s%d" % (S + 1, S + 1, S))
        k("s_lshl_b32 s%d, s%d, 9" % (S + 2, self.s_kc))
        k("v_lshlrev_b32 v%d, 1, v%d" % (V + 3, self.tid))
        for i in range(8):
            k("s_add_u32 s%d, s%d, %d" % (S + 4 + i, S + 1, i * 32 * 12288))

    def loads(self, lo=0, hi=8):
        k, V, S = self.k, self.V, self.S
        if lo == 0:
            k("buffer_load_ushort v%d, v%d, %s, s%d offen" % (V + 4, V + 3, s(self.srd_c, 4), S + 2))
        for i in range(lo, hi):
            k("buffer_load_dwordx4 %s, v%d, %s, s%d offen" % (v(V + 8 + 4 * i, 4), V + 2, s(self.srd_w, 4), S + 4 + i))

    def silu(self):
        k, V = self.k, self.V
        k("v_lshlrev_b32 v%d, 16, v%d" % (V + 4, V + 4))
        k("v_mul_f32 v%d, %s, v%d" % (V + 5, fhex(-LOG2E), V + 4))
        k("v_exp_f32 v%d, v%d" % (V + 5, V + 5))
        k("v_add_f32 v%d, 1.0, v%d" % (V + 5, V + 5))
        k("v_rcp_f32 v%d, v%d" % (V + 5, V + 5))
        k("v_mul_f32 v%d, v%d, v%d" % (V + 4, V + 4, V + 5))
        k("v_cvt_pk_bf16_f32 v%d, v%d, v%d" % (V + 4, V + 4, V + 4))
        k("v_lshlrev_b32 v%d, 16, v%d" % (V + 4, V + 4))
        k("v_lshlrev_b32 v%d, 2, v%d" % (V + 3, self.tid))
        k("v_add_u32 v%d, %d, v%d" % (V + 3, self.lds, V + 3))
        k("ds_write_b32 v%d, v%d" % (V + 3, V + 4))
        k("s_waitcnt lgkmcnt(0)")

    def mac(self, wait=None):
        k, V = self.k, self.V
        k("v_lshlrev_b32 v%d, 2, v%d" % (V + 5, V))
        k("v_add_u32 v%d, %d, v%d" % (V + 5, self.lds, V + 5))
        for i in range(8):
            k("ds_read_b32 v%d, v%d offset:%d" % (V + 40 + i, V + 5, i * 128))
        for j in range(8):
            k("v_mov_b32 v%d, 0" % (V + 48 + j))
        k("s_waitcnt lgkmcnt(0)")
        for i in range(8):
            if wait:
                wait(i)
            for d in range(4):
                unpack_bf16(k, V + 56 + 2 * (d & 1), V + 57 + 2 * (d & 1), V + 8 + 4 * i + d)
                k("v_fmac_f32 v%d, v%d, v%d" % (V + 48 + 2 * d, V + 56 + 2 * (d & 1), V + 40 + i))
                k("v_fmac_f32 v%d, v%d, v%d" % (V + 49 + 2 * d, V + 57 + 2 * (d & 1), V + 40 + i))
        k("v_lshlrev_b32 v%d, 5, v%d" % (V + 5, self.tid))
        k("v_add_u32 v%d, %d, v%d" % (V + 5, self.lds + 1024, V + 5))
        k("ds_write_b128 v%d, %s" % (V + 5, v(V + 48, 4)))
        k("ds_write_b128 v%d, %s offset:16" % (V + 5, v(V + 52, 4)))
        k("s_waitcnt lgkmcnt(0)")

    def red1(self):
        k, V = self.k, self.V
        k("v_and_b32 v%d, 63, v%d" % (V + 5, self.tid))
        k("v_lshrrev_b32 v%d, 6, v%d" % (V + 6, self.tid))
        k("v_lshlrev_b32 v%d, 11, v%d" % (V + 6, V + 6))
        k("v_lshl_add_u32 v%d, v%d, 2, v%d" % (V + 6, V + 5, V + 6))
        k("v_add_u32 v%d, %d, v%d" % (V + 6, self.lds + 1024, V + 6))
        for i in range(8):
            k("ds_read_b32 v%d, v%d offset:%d" % (V + 40 + i, V + 6, i * 256))
        k("s_waitcnt lgkmcnt(0)")
        for st in (4, 2, 1):
            for i in range(st):
                k("v_add_f32 v%d, v%d, v%d" % (V + 40 + i, V + 40 + i, V + 40 + i + st))
        k("ds_write_b32 v%d, v%d offset:9216" % (V + 3, V + 40))
        k("s_waitcnt lgkmcnt(0)")

    def fin(self):
        k, V, S = self.k, self.V, self.S
        k("v_lshlrev_b32 v%d, 2, v%d" % (V + 5, V + 5))
        k("v_add_u32 v%d, %d, v%d" % (V + 6, self.lds + 9216, V + 5))
        for i in range(4):
            k("ds_read_b32 v%d, v%d offset:%d" % (V + 40 + i, V + 6, i * 256))
        k("s_mul_i32 s%d, s%d, %d" % (S + 1, self.s_kc, 6144 * 4))
        k("s_lshl_b32 s%d, s%d, 8" % (S, self.s_cg))
        k("s_add_u32 s%d, s%d, s%d" % (S + 1, S + 1, S))
        k("s_waitcnt lgkmcnt(0)")
        k("v_add_f32 v%d, v%d, v%d" % (V + 40, V + 40, V + 41))
        k("v_add_f32 v%d, v%d, v%d" % (V + 42, V + 42, V + 43))
        k("v_add_f32 v%d, v%d, v%d" % (V + 40, V + 40, V + 42))
        k("buffer_store_dword v%d, v%d, %s, s%d offen" % (V + 40, V + 5, s(self.srd_o, 4), S + 1))


WS["WOF"] = (0x3800000, 0x200000)
WS["WOUTF"] = (0x3A00000, 0x380000)
WS["WINF"] = (0x3E00000, 0x700000)
WS["WSPF"] = (0x4600000, 0x800000)
```

```python
from common import *

OOB = 0x7f000000

S_WAVE, S_BM, S_BN, S_ROT = 3, 20, 21, 22
SRD_X, SRD_W = 24, 28
SRD_E0, SRD_E1, SRD_E2, SRD_E3 = 32, 36, 40, 44
V_LANE = 1


def map_blocks(k, lg_am, an, xm_bits):
    k("s_and_b32 s48, s2, 7")
    k("s_lshr_b32 s49, s2, 3")
    k("s_and_b32 s50, s49, %d" % ((1 << lg_am) - 1))
    k("s_lshr_b32 s51, s49, %d" % lg_am)
    if DBG["fine"] and an == 8:
        k("s_xor_b32 s51, s51, 5")
    k("s_and_b32 s52, s48, %d" % ((1 << xm_bits) - 1))
    k("s_lshl_b32 s52, s52, %d" % lg_am)
    k("s_add_u32 s%d, s52, s50" % S_BM)
    k("s_lshr_b32 s52, s48, %d" % xm_bits)
    k("s_mul_i32 s52, s52, %d" % an)
    k("s_add_u32 s%d, s52, s51" % S_BN)


class Dma:
    def __init__(self, srd, pieces, stride, ring, slot, sbase):
        self.srd, self.pieces, self.stride, self.ring, self.slot, self.sbase = srd, pieces, stride, ring, slot, sbase
        self.half_last = False

    def wave_bytes(self):
        return len(self.pieces) * 1024 - (512 if self.half_last else 0)


DBG = dict(fine=False, no_dsw=False, no_valu=False, l2hit=False, no_cons=False, no_prod=False, no_xf=False, no_mfma=False, no_reads=False)


def cons_phase(k, cfg, sb=0):
    T, MT, NT = cfg["T"], cfg["MT"], cfg["NT"]
    xr, wr = cfg["x_ring"], cfg["w_ring"]
    ACC = cfg["ACC"]
    FR = cfg["FRAG"]
    fsz = 4 * (MT + NT)
    VX0, VW0, VX, VW = 4, 5, 6, 10
    if cfg["wgrid"] == "2x2":
        k("s_lshr_b32 s48, s%d, 1" % S_WAVE)
        k("s_and_b32 s49, s%d, 1" % S_WAVE)
    else:
        k("s_mov_b32 s48, s%d" % S_WAVE)
        k("s_mov_b32 s49, 0")
    S_WM, S_WN = 48, 49
    if cfg.get("table"):
        cfg["table"](k)
        k("s_waitcnt lgkmcnt(0)")
        k("s_barrier")
    if cfg.get("cons_pre"):
        cfg["cons_pre"](k)
    swz = cfg["x_mode"] == "dma_swz"
    if swz:
        k("v_and_b32 v2, 31, v%d" % V_LANE)
        k("v_lshrrev_b32 v3, 5, v%d" % V_LANE)
        k("v_bfe_u32 v%d, v%d, 1, 3" % (VX0, V_LANE))
        k("v_xor_b32 v%d, v%d, v3" % (VX0, VX0))
        k("v_lshlrev_b32 v%d, 4, v%d" % (VX0, VX0))
        k("v_lshl_add_u32 v%d, v2, 7, v%d" % (VX0, VX0))
        k("s_mul_i32 s50, s%d, %d" % (S_WM, MT * 4096))
        k("s_add_u32 s50, s50, %d" % xr[0])
        k("v_add_u32 v%d, s50, v%d" % (VX0, VX0))
    else:
        k("s_mul_i32 s50, s%d, %d" % (S_WM, MT * 1024))
        k("s_add_u32 s50, s50, %d" % xr[0])
        k("v_lshl_add_u32 v%d, v%d, 4, s50" % (VX0, V_LANE))
    blk32 = cfg.get("w_mode") == "blk32"
    wfm = cfg.get("w_mode") == "fm"
    if wfm:
        k("v_lshlrev_b32 v%d, 4, v%d" % (VW0, V_LANE))
    elif blk32:
        k("v_bfe_u32 v2, v%d, 4, 1" % V_LANE)
        k("v_mul_u32_u24 v%d, 1152, v2" % VW0)
        k("v_lshrrev_b32 v2, 5, v%d" % V_LANE)
        k("v_lshl_add_u32 v%d, v2, 8, v%d" % (VW0, VW0))
        k("v_and_b32 v2, 15, v%d" % V_LANE)
        k("v_lshl_add_u32 v%d, v2, 3, v%d" % (VW0, VW0))
    else:
        W_HH, W_RD, W_KS = cfg["w_strides"]
        k("v_lshrrev_b32 v2, 5, v%d" % V_LANE)
        k("v_mul_u32_u24 v%d, %d, v2" % (VW0, W_HH))
        k("v_bfe_u32 v2, v%d, 2, 2" % V_LANE)
        k("v_lshl_add_u32 v%d, v2, 6, v%d" % (VW0, VW0))
        k("v_bfe_u32 v2, v%d, 4, 1" % V_LANE)
        k("v_lshl_add_u32 v%d, v2, 5, v%d" % (VW0, VW0))
        k("v_and_b32 v2, 3, v%d" % V_LANE)
        k("v_lshl_add_u32 v%d, v2, 3, v%d" % (VW0, VW0))
    k("s_mul_i32 s50, s%d, %d" % (S_WN, cfg["w_wave_stride"]))
    k("s_add_u32 s50, s50, %d" % wr[0])
    k("v_add_u32 v%d, s50, v%d" % (VW0, VW0))
    for i in range(16 * MT * NT):
        k("v_mov_b32 v%d, 0" % (ACC + i))
    S_XS, S_WS, S_T = 52, 53, 54

    def set_addr():
        k("v_add_u32 v%d, s%d, v%d" % (VX, S_XS, VX0))
        k("v_add_u32 v%d, s%d, v%d" % (VW, S_WS, VW0))
        if swz:
            for ks in range(1, 4):
                k("v_xor_b32 v%d, %d, v%d" % (VX + ks, ks * 32, VX))
        if blk32:
            k("v_xor_b32 v%d, 128, v%d" % (VW + 1, VW))

    def adv_slots():
        for (sr, ring) in ((S_XS, xr), (S_WS, wr)):
            k("s_add_u32 s%d, s%d, %d" % (sr, sr, ring[1]))
            k("s_cmp_ge_u32 s%d, %d" % (sr, ring[1] * ring[2]))
            k("s_cselect_b32 s%d, 0, s%d" % (sr, sr))

    def reads(ks, f):
        o = []
        base = FR + f * fsz
        xs, ws = [], []
        for i in range(MT):
            if swz:
                xs.append("ds_read_b128 %s, v%d offset:%d" % (v(base + 4 * i, 4), VX + ks, i * 4096))
            else:
                xs.append("ds_read_b128 %s, v%d offset:%d" % (v(base + 4 * i, 4), VX, ks * 4096 + i * 1024))
        if wfm:
            ws = ["ds_read_b128 %s, v%d offset:%d" % (v(base + 4 * MT + 4 * j, 4), VW, (ks * NT + j) * 1024) for j in range(NT)]
            return xs[:1] + ws[:1] + xs[1:] + ws[1:]
        for j in range(NT):
            for rd in range(2):
                if blk32:
                    reg, off = VW + rd, cfg["w_tile_off"](j) + (ks >> 1) * 8192 + (ks & 1) * 512
                else:
                    reg, off = VW, cfg["w_tile_off"](j) + ks * W_KS + rd * W_RD
                ws.append("ds_read_b64_tr_b16 %s, v%d offset:%d" % (v(base + 4 * MT + 4 * j + 2 * rd, 2), reg, off))
        o.append(xs[0])
        o += ws[0:2]
        o += xs[1:]
        o += ws[2:]
        return o

    def mfmas(f):
        o = []
        base = FR + f * fsz
        for j in range(NT):
            for i in range(MT):
                acc = v(ACC + 16 * (i * NT + j), 16)
                xf, wf = v(base + 4 * i, 4), v(base + 4 * MT + 4 * j, 4)
                if cfg.get("swap_tile", lambda j: False)(j):
                    o.append("v_mfma_f32_32x32x16_bf16 %s, %s, %s, %s" % (acc, xf, wf, acc))
                else:
                    o.append("v_mfma_f32_32x32x16_bf16 %s, %s, %s, %s" % (acc, wf, xf, acc))
        return o

    def interleave(ms, rs, per):
        rs = list(rs)
        if DBG["no_cons"]:
            return
        if DBG["no_mfma"]:
            ms = []
        if DBG["no_reads"]:
            rs = []
        for m in ms:
            k(m)
            for _ in range(per):
                if rs:
                    k(rs.pop(0))
        for r in rs:
            k(r)

    k("s_mov_b32 s%d, 0" % S_XS)
    k("s_mov_b32 s%d, 0" % S_WS)
    k("s_mov_b32 s%d, 0" % S_T)
    set_addr()
    k.stamp(sb + 1)
    k("s_barrier")
    k.stamp(sb + 2)
    PD = cfg.get("PD", 1)
    NF = 2 if PD == 1 else 4
    for ks in range(PD):
        for r in reads(ks, ks % NF):
            k(r)
    if cfg.get("cons_loads"):
        cfg["cons_loads"](k)
    LOOP = k.uid("cloop")
    nrd = MT + (NT if wfm else 2 * NT)
    per = cfg.get("reads_per_mfma", max(2, -(-nrd // max(1, MT * NT - 1))))
    nbar = cfg.get("mfma_before_barrier", 1)
    k.label(LOOP)
    for ks in range(4):
        ms = mfmas(ks % NF)
        nxt = (ks + PD) % 4
        k("s_waitcnt lgkmcnt(%d)" % min(15, nrd * (PD - 1)))
        if ks + PD == 4:
            for m in ms[:nbar]:
                k(m)
            set_addr()
            if PD > 1:
                k("s_waitcnt lgkmcnt(0)")
            k("s_barrier")
            interleave(ms[nbar:], reads(nxt, nxt % NF), per + 1)
        else:
            interleave(ms, reads(nxt, nxt % NF), per)
        if ks == 0:
            adv_slots()
            k("s_add_u32 s%d, s%d, 1" % (S_T, S_T))
    k("s_cmp_lt_u32 s%d, %d" % (S_T, T))
    k("s_cbranch_scc1 " + LOOP)
    k("s_waitcnt lgkmcnt(0)")
    k.stamp(sb + 3)
    cfg["epilogue"](k)
    k.stamp(sb + 4)


def cons_phase16(k, cfg, sb=0):
    T, NT = cfg["T"], cfg["NT"]
    xr, wr = cfg["x_ring"], cfg["w_ring"]
    ACC, FR = cfg["ACC"], cfg["FRAG"]
    tr = cfg["w_mode"] == "tr16"
    VX0, VW0, VX, VW = 4, 5, 6, 10
    XF, WF, RW = FR, FR + 16, 7
    D = cfg.get("D", 6 if tr else 7)
    PAUSE = cfg.get("pause", 3)
    NI = 2 * NT
    if cfg.get("cons_pre"):
        cfg["cons_pre"](k)
    k("s_lshl_b32 s50, s%d, 11" % S_WAVE)
    k("s_add_u32 s50, s50, %d" % xr[0])
    k("v_lshl_add_u32 v%d, v%d, 4, s50" % (VX0, V_LANE))
    if tr:
        k("v_lshrrev_b32 v2, 5, v%d" % V_LANE)
        k("v_lshlrev_b32 v%d, 9, v2" % VW0)
        k("v_and_b32 v2, 31, v%d" % V_LANE)
        k("v_lshl_add_u32 v%d, v2, 3, v%d" % (VW0, VW0))
    else:
        k("v_lshlrev_b32 v%d, 4, v%d" % (VW0, V_LANE))
    k("v_add_u32 v%d, %d, v%d" % (VW0, wr[0], VW0))
    for i in range(8 * NT):
        k("v_mov_b32 v%d, 0" % (ACC + i))
    S_XS, S_WS, S_T = 52, 53, 54

    def set_addr():
        k("v_add_u32 v%d, s%d, v%d" % (VX, S_XS, VX0))
        k("v_add_u32 v%d, s%d, v%d" % (VW, S_WS, VW0))

    def reads(n):
        ks, ct = n // NT, n % NT
        o = []
        if ct == 0:
            for rt in range(2):
                o.append("ds_read_b128 %s, v%d offset:%d" % (v(XF + 8 * ks + 4 * rt, 4), VX, ks * 8192 + rt * 1024))
        w = WF + 4 * (n % RW)
        if tr:
            for rd in range(2):
                o.append("ds_read_b64_tr_b16 %s, v%d offset:%d" % (v(w + 2 * rd, 2), VW, n * 1024 + rd * 256))
        else:
            o.append("ds_read_b128 %s, v%d offset:%d" % (v(w, 4), VW, n * 1024))
        return o

    after = [[] for _ in range(NI)]
    nb = NI - D + PAUSE
    for n in range(NI - D):
        after[n].append(n + D)
    pend = list(range(NI, NI + D))
    left = NI - nb
    for n in range(nb, NI):
        take = -(-len(pend) // (NI - n))
        after[n] += pend[:take]
        pend = pend[take:]
    for n in range(NI):
        for m in after[n]:
            assert m - RW <= n
    q = []
    for m in range(D):
        q += [m] * len(reads(m))
    waits = {}
    for rep in range(2):
        for n in range(NI):
            g = rep * NI + n
            idx = [i for i, o in enumerate(q) if o <= g]
            waits[(rep, n)] = len(q) - 1 - max(idx) if idx else None
            if idx:
                q = q[max(idx) + 1:]
            if n == nb:
                q = []
            for m in after[n]:
                q += [rep * NI + m] * len(reads(m % NI))
    k("s_mov_b32 s%d, 0" % S_XS)
    k("s_mov_b32 s%d, 0" % S_WS)
    k("s_mov_b32 s%d, 0" % S_T)
    set_addr()
    k.stamp(sb + 1)
    k("s_barrier")
    k.stamp(sb + 2)
    for m in range(D):
        for r in reads(m):
            k(r)
    if cfg.get("cons_loads"):
        cfg["cons_loads"](k)
    LOOP = k.uid("cloop")
    k.label(LOOP)
    for n in range(NI):
        ks, ct = n // NT, n % NT
        assert waits[(0, n)] == waits[(1, n)]
        if waits[(1, n)] is not None:
            assert waits[(1, n)] <= 15
            k("s_waitcnt lgkmcnt(%d)" % waits[(1, n)])
        rs = [r for m in after[n] for r in reads(m % NI)]
        for rt in range(2):
            acc = v(ACC + 4 * (ct * 2 + rt), 4)
            k("v_mfma_f32_16x16x32_bf16 %s, %s, %s, %s" % (acc, v(WF + 4 * (n % RW), 4), v(XF + 8 * ks + 4 * rt, 4), acc))
            if rt == 0 and n == nb:
                set_addr()
                k("s_waitcnt lgkmcnt(0)")
                k("s_barrier")
            if rt == 0 and n != nb:
                own = v(WF + 4 * (n % RW), 4)[2:].split(":")[0]
                early = [r for r in rs if all(m - RW < n for m in after[n])][:(len(rs) + 1) // 2]
                for r in early:
                    k(r)
                rs = rs[len(early):]
        for r in rs:
            k(r)
        if n == 1:
            for (sr, ring) in ((S_XS, xr), (S_WS, wr)):
                k("s_add_u32 s%d, s%d, %d" % (sr, sr, ring[1]))
                k("s_cmp_ge_u32 s%d, %d" % (sr, ring[1] * ring[2]))
                k("s_cselect_b32 s%d, 0, s%d" % (sr, sr))
        if n == 2:
            k("s_add_u32 s%d, s%d, 1" % (S_T, S_T))
            k("s_cmp_lt_u32 s%d, %d" % (S_T, T))
    k("s_cbranch_scc1 " + LOOP)
    k("s_waitcnt lgkmcnt(0)")
    k.stamp(sb + 3)
    cfg["epilogue"](k)
    k.stamp(sb + 4)


def prod_phase(k, cfg, sb=0, first=False):
    T, NS = cfg["T"], cfg["NS"]
    dmas = cfg["dma_setup"](k)
    S_TMP, S_OFF, S_M, S_IT = 66, 68, 72, 77
    for n, d in enumerate(dmas):
        k("s_mov_b32 s%d, s%d" % (S_OFF + n, d.sbase))
        k("s_mul_i32 s%d, s%d, %d" % (S_M + n, S_WAVE, d.wave_bytes()))
        k("s_add_u32 s%d, s%d, %d" % (S_M + n, S_M + n, d.ring))
        k("s_add_u32 s%d, s%d, %d" % (S_M + 2 + n, S_M + n, d.slot * NS))
    if first:
        k("s_waitcnt lgkmcnt(0)")
    cfg["srds_p"](k)
    k.stamp(sb + 1)

    def step(which):
        cnt = 0
        for n, d in enumerate(dmas):
            if n not in which:
                continue
            for i, vreg in enumerate(d.pieces):
                if i % 4 == 0:
                    c = (i // 4) * 4096
                    k("s_add_u32 m0, s%d, %d" % (S_M + n, c) if c else "s_mov_b32 m0, s%d" % (S_M + n))
                half = d.half_last and i == len(d.pieces) - 1
                if half:
                    k("s_mov_b32 exec_hi, 0")
                k("buffer_load_dwordx4 v%d, %s, s%d offen offset:%d%s lds" %
                  (vreg, s(d.srd, 4), S_OFF + n, (i % 4) * 1024, " sc1" if getattr(d, "dep", False) else ""))
                if half:
                    k("s_mov_b32 exec_hi, -1")
                cnt += 1
            k("s_add_u32 s%d, s%d, %d" % (S_OFF + n, S_OFF + n, d.stride))
            k("s_add_u32 s%d, s%d, %d" % (S_M + n, S_M + n, d.slot))
            k("s_cmp_ge_u32 s%d, s%d" % (S_M + n, S_M + 2 + n))
            k("s_cselect_b32 s%d, %d, 0" % (S_TMP, d.slot * NS))
            k("s_sub_u32 s%d, s%d, s%d" % (S_M + n, S_M + n, S_TMP))
        return cnt

    allops = list(range(len(dmas)))
    nD = sum(len(d.pieces) for d in dmas)
    pl = cfg.get("poll")
    ops = []

    def issue(which, st):
        ops.extend([st] * step(which))

    def wait_step(st):
        last = max(i for i, o in enumerate(ops) if o == st)
        k("s_waitcnt vmcnt(%d)" % min(63, len(ops) - 1 - last))

    if pl:
        dep = [n for n in allops if getattr(dmas[n], "dep", False)]
        free = [n for n in allops if n not in dep]
        early = NS - 1 - min(NS - 1, cfg.get("late_free", 0))
        for st in range(early):
            issue(free, st)
        pl.setup(k)
        for st in range(early, NS - 1):
            issue(free, st)
        for st in range(NS - 1):
            pl.need(k)
            if st == 0:
                k.stamp(sb + 2)
            issue(dep, st)
    else:
        if cfg.get("prod_pre_load"):
            cfg["prod_pre_load"](k)
        for st in range(NS - 1):
            issue(allops, st)
        k.stamp(sb + 2)
    wait_step(0)
    if cfg.get("prod_pre_fin"):
        cfg["prod_pre_fin"](k)
    k.stamp(sb + 3)
    k("s_barrier")
    npeel = NS - 3 if pl else 0
    for t in range(npeel):
        pl.need(k)
        issue(allops, t + NS - 1)
        wait_step(t + 1)
        k("s_barrier")
    k("s_mov_b32 s%d, %d" % (S_IT, npeel))
    LOOP = k.uid("ploop")
    k.label(LOOP)
    if pl:
        pl.need(k)
    step(allops)
    k("s_add_u32 s%d, s%d, 1" % (S_IT, S_IT))
    k("s_cmp_lt_u32 s%d, %d" % (S_IT, T - (NS - 1)))
    k("s_waitcnt vmcnt(%d)" % ((NS - 2) * nD))
    k("s_barrier")
    k("s_cbranch_scc1 " + LOOP)
    for r in range(NS - 3, -1, -1):
        k("s_waitcnt vmcnt(%d)" % (r * nD))
        k("s_barrier")
    k("s_barrier")
    k.stamp(sb + 4)


def gemm(name, cfg):
    k = Kern(name)
    T, NWG = cfg["T"], cfg["NWG"]
    MT, NT = cfg["MT"], cfg["NT"]
    NS = cfg["NS"]
    NP = cfg.get("NP", 4)
    NB_ = 16 // NP
    END, PROD = k.uid("end"), k.uid("prod")
    k("s_cmp_ge_u32 s2, %d" % NWG)
    k("s_cbranch_scc1 " + END)
    k.kidx = cfg.get("kidx", 0)
    k.stamp_init()
    cfg["load_ptrs"](k)
    k("v_lshrrev_b32 v2, 6, v0")
    k("v_and_b32 v%d, 63, v0" % V_LANE)
    k("v_readfirstlane_b32 s%d, v2" % S_WAVE)
    cfg["map"](k)
    k("s_cmp_ge_u32 s%d, 4" % S_WAVE)
    k("s_cbranch_scc1 " + PROD)
    k("s_waitcnt lgkmcnt(0)")
    cfg["srds_c"](k)

    cons_phase(k, cfg)
    k.stamp_dump(5)
    k("s_endpgm")

    k.label(PROD)
    if cfg.get("pprio", 0):
        k("s_setprio %d" % cfg["pprio"])
    k("s_sub_u32 s%d, s%d, 4" % (S_WAVE, S_WAVE))
    dmas = cfg["dma_setup"](k)
    vg = cfg.get("vg")
    S_TMP, S_OFF, S_M = 66, 68, 72
    S_VOFF, S_IT = 76, 77
    nD = sum(len(d.pieces) for d in dmas)
    static_ring = NS in (2, 4)
    for n, d in enumerate(dmas):
        k("s_mov_b32 s%d, s%d" % (S_OFF + n, d.sbase))
        k("s_mul_i32 s%d, s%d, %d" % (S_M + n, S_WAVE, len(d.pieces) * 1024))
        k("s_add_u32 s%d, s%d, %d" % (S_M + n, S_M + n, d.ring))
        if not static_ring:
            k("s_add_u32 s%d, s%d, %d" % (S_M + 2 + n, S_M + n, d.slot * NS))
    if vg:
        VR, VOFF, VLDS = vg["regs"], vg["voff"], vg["vlds"]
        k("s_mul_i32 s%d, s%d, %d" % (S_TMP, S_WAVE, NB_ * 1024))
        k("v_lshl_add_u32 v%d, v%d, 4, s%d" % (VOFF, V_LANE, S_TMP))
        k("v_add_u32 v%d, %d, v%d" % (VLDS, vg["ring"], VOFF))
        k("s_mov_b32 s%d, 0" % S_VOFF)
    k("s_waitcnt lgkmcnt(0)")
    cfg["srds_p"](k)
    k.stamp(1)

    def dma_items(step):
        o = []
        for n, d in enumerate(dmas):
            for i, vreg in enumerate(d.pieces):
                g = []
                if i % 4 == 0:
                    c = (i // 4) * 4096 + ((step % NS) * d.slot if static_ring else 0)
                    g.append("s_add_u32 m0, s%d, %d" % (S_M + n, c) if c else "s_mov_b32 m0, s%d" % (S_M + n))
                g.append("buffer_load_dwordx4 v%d, %s, s%d offen offset:%d lds" % (vreg, s(d.srd, 4), S_OFF + n, (i % 4) * 1024))
                if i == len(d.pieces) - 1:
                    g.append("s_add_u32 s%d, s%d, %d" % (S_OFF + n, S_OFF + n, d.stride))
                    if not static_ring:
                        g.append("s_add_u32 s%d, s%d, %d" % (S_M + n, S_M + n, d.slot))
                        g.append("s_cmp_ge_u32 s%d, s%d" % (S_M + n, S_M + 2 + n))
                        g.append("s_cselect_b32 s%d, %d, 0" % (S_TMP, d.slot * NS))
                        g.append("s_sub_u32 s%d, s%d, s%d" % (S_M + n, S_M + n, S_TMP))
                o.append(g)
        return o

    def emit(groups):
        for g in groups:
            for l in g:
                k(l)

    if vg:
        def vg_items(set_):
            o = []
            for i in range(NB_):
                g = ["buffer_load_dwordx4 %s, v%d, %s, s%d offen offset:%d" %
                     (v(VR + 16 * set_ + 4 * i, 4), VOFF, s(vg["srd"], 4), S_VOFF, i * 1024)]
                if i == NB_ - 1:
                    g.append("s_add_u32 s%d, s%d, 16384" % (S_VOFF, S_VOFF))
                o.append(g)
            return o

        def xform_list(step):
            set_ = step % 4
            o = []
            for i in range(NB_):
                o += vg["xform"](VR + 16 * set_ + 4 * i, i, step % 2)
                o.append("ds_write_b128 v%d, %s offset:%d" % (VLDS, v(VR + 16 * set_ + 4 * i, 4), (step % 2) * 16384 + i * 1024))
            return o

        emit(vg_items(0))
        emit(dma_items(0))
        k("s_barrier")
        emit([vg["params"](0)])
        emit([vg["params"](1)])
        emit(vg_items(1))
        k("s_waitcnt vmcnt(%d) lgkmcnt(0)" % (NB_ + nD))
        k.stamp(2)
        for l in xform_list(0):
            k(l)
        for st in range(1, NS - 1):
            emit(dma_items(st))
        emit(vg_items(2))
        k("s_waitcnt vmcnt(%d) lgkmcnt(0)" % (NB_ + (NS - 2) * nD))
        k.stamp(3)
        k("s_barrier")
        k("s_mov_b32 s%d, 0" % S_IT)
        LOOP = k.uid("ploop")
        k.label(LOOP)
        for u in range(4):
            mem = vg_items((u + 3) % 4) + dma_items(u + NS - 1)
            xf = xform_list(u + 1)
            mem.append(vg["params"](u % 2))
            if DBG["no_prod"]:
                mem, xf = [["s_nop 0"]], []
            if DBG["no_xf"]:
                xf = []
            if DBG["no_dsw"]:
                xf = [l for l in xf if not l.startswith("ds_write")]
            if DBG["no_valu"]:
                xf = [l for l in xf if l.startswith("ds_write")]
            tail = cfg.get("tail", 2)
            par = mem.pop()
            xf = par + xf
            ng = max(1, len(mem) - tail)
            gap = len(xf) / float(ng)
            pos, j = 0.0, 0
            for g in mem:
                emit([g])
                pos += gap
                while j < len(xf) and j < int(pos + 0.5):
                    k(xf[j])
                    j += 1
            if u == 3 and DBG["l2hit"]:
                k("s_mov_b32 s%d, 0" % S_VOFF)
                for n, d in enumerate(dmas):
                    k("s_mov_b32 s%d, s%d" % (S_OFF + n, d.sbase))
            if u == 3:
                k("s_add_u32 s%d, s%d, 4" % (S_IT, S_IT))
                k("s_cmp_lt_u32 s%d, %d" % (S_IT, T))
            k("s_waitcnt vmcnt(%d) lgkmcnt(0)" % (NB_ + nD))
            k("s_barrier")
        k("s_cbranch_scc1 " + LOOP)
    else:
        if cfg.get("prod_pre_load"):
            cfg["prod_pre_load"](k)
        for st in range(NS - 1):
            emit(dma_items(st))
        k.stamp(2)
        k("s_waitcnt vmcnt(%d)" % ((NS - 2) * nD))
        if cfg.get("prod_pre_fin"):
            cfg["prod_pre_fin"](k)
        k.stamp(3)
        k("s_barrier")
        k("s_mov_b32 s%d, 0" % S_IT)
        LOOP = k.uid("ploop")
        k.label(LOOP)
        U = 4 if static_ring else 1
        for u in range(U):
            if not DBG["no_prod"]:
                emit(dma_items(u + NS - 1))
            if u == U - 1 and DBG["l2hit"]:
                for n, d in enumerate(dmas):
                    k("s_mov_b32 s%d, s%d" % (S_OFF + n, d.sbase))
            if u == U - 1:
                k("s_add_u32 s%d, s%d, %d" % (S_IT, S_IT, U))
                k("s_cmp_lt_u32 s%d, %d" % (S_IT, T))
            k("s_waitcnt vmcnt(%d)" % ((NS - 2) * nD))
            k("s_barrier")
        k("s_cbranch_scc1 " + LOOP)
    k("s_waitcnt vmcnt(0)")
    k.stamp_dump(5)
    k.label(END)
    k("s_endpgm")
    txt, n = k.finish(vgprs=cfg["vgprs"], sgprs=96)
    return txt, "; @launch kernel=%s grid=(%d,1,1) block=(%d,1,1) lds=%d" % (name, NWG, 256 + 64 * NP, cfg["lds"])
```

```python
from common import *
from gemms import stats_to_affine, BCAST


def gen_k1(name="k1_kernel"):
    k = Kern(name)
    END, LN, PF = k.uid("end"), k.uid("ln"), k.uid("pf")
    k("s_cmp_ge_u32 s2, 432")
    k("s_cbranch_scc1 " + END)
    k.kidx = 0
    k.stamp_init()
    k("s_load_dwordx4 s[56:59], s[0:1], %d" % KA["x"])
    k("s_load_dwordx4 s[8:11], s[0:1], %d" % KA["c"])
    k("s_load_dwordx2 s[6:7], s[0:1], %d" % KA["ws"])
    k("s_cmp_lt_u32 s2, 256")
    k("s_cbranch_scc1 " + LN)
    k("s_cmp_ge_u32 s2, 384")
    k("s_cbranch_scc1 " + PF)
    k("s_bfe_u32 s12, s2, 0x50002")
    k("s_and_b32 s13, s2, 3")
    g = Gemv(k, 0, 12, 13, 20, 24, 28, 0, 8, 32)
    g.addr()
    k("s_waitcnt lgkmcnt(0)")
    srd_in(k, 20, 8, SZ["c"])
    srd_in(k, 24, 10, SZ["w_mod"])
    g.loads()
    srd_ws(k, 28, 6, "MODP")
    k.stamp(1)
    k("s_waitcnt vmcnt(8)")
    k.stamp(2)
    g.silu()
    k("s_barrier")
    g.mac(lambda i: k("s_waitcnt vmcnt(%d)" % (7 - i)))
    k.stamp(3)
    k("s_barrier")
    g.red1()
    k("s_barrier")
    g.fin()
    k.stamp(4)
    k.stamp_dump(5)
    k("s_endpgm")
    k.label(PF)
    k("s_sub_u32 s12, s2, 384")
    k("s_lshl_b32 s12, s12, 15")
    k("v_lshlrev_b32 v1, 7, v0")
    k("s_waitcnt lgkmcnt(0)")
    srd_in(k, 20, 58, SZ["wqkv"])
    k("buffer_load_dword v2, v1, s[20:23], s12 offen")
    k.stamp(1); k.stamp(2); k.stamp(3); k.stamp(4)
    k.stamp_dump(5)
    k("s_endpgm")
    k.label(LN)
    k("v_bfe_u32 v1, v0, 3, 3")
    k("v_and_b32 v2, 7, v0")
    k("v_lshrrev_b32 v5, 6, v0")
    k("v_lshlrev_b32 v3, 11, v1")
    k("v_lshl_add_u32 v3, v2, 4, v3")
    k("v_lshl_add_u32 v3, v5, 9, v3")
    k("s_lshl_b32 s13, s2, 14")
    k("v_lshrrev_b32 v6, 1, v2")
    k("v_lshlrev_b32 v6, 12, v6")
    k("v_and_b32 v7, 1, v2")
    k("v_lshl_add_u32 v6, v7, 9, v6")
    k("v_lshl_add_u32 v6, v1, 4, v6")
    k("v_lshl_add_u32 v6, v5, 16, v6")
    k("s_lshr_b32 s15, s2, 4")
    k("s_lshl_b32 s15, s15, 18")
    k("s_bfe_u32 s16, s2, 0x20002")
    k("s_lshl_b32 s16, s16, 10")
    k("s_add_u32 s15, s15, s16")
    k("s_and_b32 s16, s2, 3")
    k("s_lshl_b32 s16, s16, 7")
    k("s_add_u32 s15, s15, s16")
    for n in range(4):
        k("s_add_u32 s%d, s15, %d" % (32 + n, n * 16384))
    k("s_waitcnt lgkmcnt(0)")
    srd_in(k, 20, 56, SZ["x"])
    for n in range(4):
        k("buffer_load_dwordx4 v[%d:%d], v3, s[20:23], s13 offen offset:%d" % (16 + 4 * n, 19 + 4 * n, n * 128))
    srd_ws(k, 24, 6, "XN")
    srd_ws(k, 28, 6, "EX")
    srd_ws(k, 52, 6, "XF")
    for r in (8, 9, 10, 11):
        k("v_mov_b32 v%d, -1.0" % r)
    k("v_lshlrev_b32 v4, 4, v0")
    k("s_lshl_b32 s14, s2, 12")
    k("buffer_store_dwordx4 v[8:11], v4, s[28:31], s14 offen")
    for r in (10, 11, 12, 13):
        k("v_mov_b32 v%d, 0" % r)
    k.stamp(1)
    for n in range(4):
        k("s_waitcnt vmcnt(4)")
        if n == 0:
            k.stamp(2)
        k("buffer_store_dwordx4 v[%d:%d], v6, s[52:55], s%d offen" % (16 + 4 * n, 19 + 4 * n, 32 + n))
        for d in range(4):
            o = 32 + 8 * n + 2 * d
            unpack_bf16(k, o, o + 1, 16 + 4 * n + d)
            k("v_pk_add_f32 v[10:11], v[10:11], v[%d:%d]" % (o, o + 1))
            k("v_pk_fma_f32 v[12:13], v[%d:%d], v[%d:%d], v[12:13]" % (o, o + 1, o, o + 1))
    k("v_add_f32 v10, v10, v11")
    k("v_add_f32 v11, v12, v13")
    for m in ("quad_perm:[1,0,3,2]", "quad_perm:[2,3,0,1]", "row_half_mirror"):
        for r in (10, 11):
            k("v_add_f32_dpp v%d, v%d, v%d %s row_mask:0xf bank_mask:0xf" % (r, r, r, m))
    k("v_lshlrev_b32 v7, 5, v1")
    k("v_lshl_add_u32 v8, v5, 3, v7")
    k("ds_write_b64 v8, v[10:11]")
    k("s_waitcnt lgkmcnt(0)")
    k("s_barrier")
    k.stamp(3)
    k("ds_read_b128 v[8:11], v7")
    k("ds_read_b128 v[12:15], v7 offset:16")
    k("s_waitcnt lgkmcnt(0)")
    k("v_pk_add_f32 v[8:9], v[8:9], v[10:11]")
    k("v_pk_add_f32 v[12:13], v[12:13], v[14:15]")
    k("v_pk_add_f32 v[8:9], v[8:9], v[12:13]")
    stats_to_affine(k, 8, 1024)
    for n in range(4):
        for d in range(4):
            o = 32 + 8 * n + 2 * d
            k("v_pk_fma_f32 v[%d:%d], v[%d:%d], v[8:9], v[8:9] %s" % (o, o + 1, o, o + 1, BCAST))
            k("v_cvt_pk_f16_f32 v%d, v%d, v%d" % (16 + 4 * n + d, o, o + 1))
        k("buffer_store_dwordx4 v[%d:%d], v6, s[24:27], s%d offen" % (16 + 4 * n, 19 + 4 * n, 32 + n))
    k.stamp(4)
    k.stamp_dump(5)
    k.label(END)
    k("s_endpgm")
    txt, n = k.finish(vgprs=72, sgprs=64)
    return txt, "; @launch kernel=%s grid=(432,1,1) block=(256,1,1) lds=12288" % name
```

```python
from gemm import *
from gemms import (w_voff, pack16, swap8, ex_addr, both_halves, ex_publish, stats_to_affine, BCAST)
import math

S_WM, S_WN = 48, 49
P_WO, P_WS, P_WIN, P_WSP, P_BSP, P_WOUT, P_OUT = 4, 6, 8, 10, 12, 14, 16
MV = 3 * 45056
X1R, FR, Z1R = 16, 32, 192
FL2, FL3, FL4 = 0, 4096, 8192


def ex_collect(k, R, G, vr, srd, soff, n, nq, nb=1, bstride=0):
    L, D = k.uid("poll"), k.uid("got")
    k("s_mov_b32 s64, 0")
    offs = {}
    nxt = 65
    for b in range(nb):
        for hi in range((nq + 7) // 8):
            c = b * bstride + hi * 4096
            if c == 0:
                offs[(b, hi)] = soff
            else:
                k("s_add_u32 s%d, s%d, %d" % (nxt, soff, c))
                offs[(b, hi)] = nxt
                nxt += 1
    k.label(L)
    for b in range(nb):
        for q in range(nq):
            k("buffer_load_dwordx2 %s, v%d, %s, s%d offen offset:%d sc1" %
              (v(R[b] + 2 * q, 2), vr, s(srd, 4), offs[(b, q // 8)], (q & 7) * 512))
    k("s_waitcnt vmcnt(0)")
    k("v_mov_b32 v2, 0")
    for b in range(nb):
        for q in range(0, nq, 2):
            k("v_min3_f32 v2, v2, v%d, v%d" % (R[b] + 2 * q + 1, R[b] + 2 * q + 3))
    k("v_cmp_gt_f32 vcc, 0, v2")
    k("s_cbranch_vccz " + D)
    k("s_sleep 2")
    k("s_add_u32 s64, s64, 1")
    k("s_cmp_lt_u32 s64, 0x100000")
    k("s_cbranch_scc1 " + L)
    k.label(D)
    for b in range(nb):
        Rb = R[b]
        m = nq
        while m > 1:
            h = (m + 1) // 2
            for e in range(m - h):
                k("v_pk_add_f32 %s, %s, %s" % (v(Rb + 2 * e, 2), v(Rb + 2 * e, 2), v(Rb + 2 * (e + h), 2)))
            m = h
        both_halves(k, Rb, Rb + 2)
        both_halves(k, Rb + 1, Rb + 3)
        stats_to_affine(k, Rb, n)
        k("v_mov_b32 v%d, v%d" % (G + 2 * b, Rb))
        k("v_mov_b32 v%d, v%d" % (G + 2 * b + 1, Rb + 1))


def signal(k, base, s_group, s_member, st=None, swap_wave=False):
    srd_ws(k, SRD_E0, P_WS, "FL")
    k("s_lshl_b32 s56, s%d, 8" % s_group)
    k("s_lshl_b32 s57, s%d, 4" % s_member)
    k("s_add_u32 s56, s56, s57")
    if swap_wave:
        k("s_lshl_b32 s57, s%d, 1" % S_WN)
        k("s_add_u32 s57, s57, s%d" % S_WM)
        k("s_lshl_b32 s57, s57, 2")
    else:
        k("s_lshl_b32 s57, s%d, 2" % S_WAVE)
    k("s_add_u32 s56, s56, s57")
    k("s_add_u32 s56, s56, %d" % base)
    k("v_mov_b32 v2, 0")
    k("v_mov_b32 v3, 1.0")
    k("s_waitcnt vmcnt(0)")
    if st:
        k.stamp(st)
    k("s_mov_b64 exec, 1")
    k("buffer_store_dword v3, v2, %s, s56 offen sc1" % s(SRD_E0, 4))
    k("s_mov_b64 exec, -1")
    k("s_barrier")


class Poll:
    def __init__(self, base, s_group, bits):
        self.base, self.s_group, self.bits = base, s_group, bits

    def setup(self, k):
        srd_ws(k, SRD_E0, P_WS, "FL")
        k("s_lshl_b32 s56, s%d, 8" % self.s_group)
        k("s_add_u32 s56, s56, %d" % self.base)
        k("v_lshlrev_b32 v16, 2, v%d" % V_LANE)
        k("s_mov_b32 s58, 0")
        k("s_mov_b32 s59, %d" % (self.bits or 4))
        k("s_mov_b32 s60, %d" % (3 * 147))
        k("s_barrier")

    def need(self, k):
        L, D = k.uid("wait"), k.uid("go")
        k("s_cmp_ge_u32 s58, s59")
        k("s_cbranch_scc1 " + D)
        k("s_mov_b32 s64, 0")
        k.label(L)
        k("buffer_load_dword v17, v16, %s, s56 offen sc1" % s(SRD_E0, 4))
        k("s_waitcnt vmcnt(0)")
        k("v_cmp_gt_f32 s[62:63], 0, v17")
        k("s_add_u32 s64, s64, 1")
        k("s_nop 3")
        k("s_ff1_i32_b64 s58, s[62:63]")
        k("s_cmp_ge_u32 s58, s59")
        k("s_cbranch_scc1 " + D)
        k("s_sleep 3")
        k("s_cmp_lt_u32 s64, 0x100000")
        k("s_cbranch_scc1 " + L)
        k.label(D)
        if self.bits:
            k("s_add_u32 s59, s59, %d" % self.bits)
        else:
            k("s_add_u32 s60, s60, %d" % (4 * 147))
            k("s_lshr_b32 s59, s60, 10")
            k("s_lshl_b32 s59, s59, 2")
            k("s_add_u32 s59, s59, 4")


def dep(d):
    d.dep = True
    return d


def lin_voff(k):
    k("s_mov_b32 s82, 0")
    k("s_lshl_b32 s50, s%d, 12" % S_WAVE)
    k("v_lshl_add_u32 v5, v%d, 4, s50" % V_LANE)


def cfg25(which, PD=3, NS=5):
    T = 16 if which == 2 else 28
    ACC, GA, XR, T2 = 80, 112, 144, 160

    def srds_c(k):
        if which == 2:
            srd_ws(k, SRD_E1, P_WS, "XF")
            srd_ws(k, SRD_E2, P_WS, "H2")
            srd_ws(k, SRD_E3, P_WS, "EX2")
        else:
            srd_in(k, SRD_E2, P_OUT, SZ["out"])

    def srds_p(k):
        srd_ws_sub(k, SRD_X, P_WS, "O" if which == 2 else "U", 81, T * 16384)
        srd_ws_sub(k, SRD_W, P_WS, "WOF" if which == 2 else "WOUTF", 80, T * 8192)
        if which == 2:
            srd_ws(k, SRD_E0, P_WS, "MODP")

    def dma_setup(k):
        k("s_lshl_b32 s50, s%d, 11" % S_WAVE)
        k("v_lshl_add_u32 v8, v%d, 4, s50" % V_LANE)
        k("s_mul_i32 s80, s%d, %d" % (S_BN, T * 8192))
        k("s_mul_i32 s81, s%d, %d" % (S_BM, T * 16384))
        lin_voff(k)
        if which == 2:
            k("s_lshl_b32 s56, s%d, 8" % S_BN)
            k("s_add_u32 s56, s56, s50")
            k("s_add_u32 s56, s56, %d" % (2 * 4096))
            for p in range(1, 4):
                k("s_add_u32 s%d, s56, %d" % (59 + p, p * 6144 * 4))
            k("v_lshlrev_b32 v12, 2, v%d" % V_LANE)
            k("s_cmp_eq_u32 s%d, 2" % S_WAVE)
            k("s_cselect_b32 s58, 1.0, 0")
            k("s_lshl_b32 s59, s%d, 8" % S_WAVE)
            k("s_add_u32 s59, s59, %d" % MV)
            k("v_add_u32 v13, s59, v12")
        x = Dma(SRD_X, [5, 5, 5, 5], 16384, 0, 16384, 82)
        return [dep(x) if which == 5 else x, Dma(SRD_W, [8, 8], 8192, NS * 16384, 8192, 82)]

    def prod_pre_load(k):
        k("buffer_load_dword v14, v12, %s, s56 offen" % s(SRD_E0, 4))
        for p in range(1, 4):
            k("buffer_load_dword v%d, v12, %s, s%d offen" % (14 + p, s(SRD_E0, 4), 59 + p))

    def prod_pre_fin(k):
        k("v_add_f32 v14, v14, v15")
        k("v_add_f32 v16, v16, v17")
        k("v_add_f32 v14, v14, v16")
        k("v_cvt_pk_bf16_f32 v14, v14, v14")
        k("v_lshlrev_b32 v14, 16, v14")
        k("v_add_f32 v14, s58, v14")
        k("v_cvt_pk_bf16_f32 v14, v14, v14")
        k("v_lshlrev_b32 v14, 16, v14")
        k("ds_write_b32 v13, v14")
        k("s_waitcnt lgkmcnt(0)")

    def cons_pre(k):
        k("v_lshrrev_b32 v3, 5, v%d" % V_LANE)
        k("v_lshlrev_b32 v13, 4, v3")
        k("v_add_u32 v13, %d, v13" % MV)
        if which == 2:
            k("v_lshlrev_b32 v11, 4, v%d" % V_LANE)
            k("s_lshl_b32 s59, s%d, 4" % S_BM)
            k("s_add_u32 s59, s59, s%d" % S_BN)
            k("s_lshl_b32 s59, s59, 14")
            k("s_lshl_b32 s58, s%d, 10" % S_WAVE)
            k("s_add_u32 s59, s59, s58")
            for kt in range(4):
                k("s_add_u32 s%d, s59, %d" % (60 + kt, kt * 4096))
            k("s_add_u32 s57, s59, s58")
            k("s_add_u32 s55, s57, 8192")
            k("v_bfe_u32 v2, v%d, 4, 1" % V_LANE)
            k("v_lshlrev_b32 v12, 10, v2")
            k("v_lshl_add_u32 v12, v3, 8, v12")
            k("v_and_b32 v2, 15, v%d" % V_LANE)
            k("v_lshl_add_u32 v12, v2, 4, v12")
            ex_addr(k, 14)
            k("s_lshl_b32 s56, s%d, 2" % S_BM)
            k("s_add_u32 s56, s56, s%d" % S_WAVE)
            k("s_lshl_b32 s56, s56, 12")
            k("s_lshl_b32 s58, s%d, 8" % S_BN)
            k("s_add_u32 s58, s58, s56")
        else:
            k("v_and_b32 v2, 31, v%d" % V_LANE)
            k("v_lshlrev_b32 v12, 11, v2")
            k("v_lshl_add_u32 v12, v3, 4, v12")
            k("s_lshl_b32 s58, s%d, 18" % S_BM)
            k("s_lshl_b32 s56, s%d, 16" % S_WAVE)
            k("s_add_u32 s58, s58, s56")
            k("s_lshl_b32 s56, s%d, 7" % S_BN)
            k("s_add_u32 s58, s58, s56")

    def cons_loads(k):
        for q in range(4):
            k("buffer_load_dwordx4 %s, v11, %s, s%d offen" % (v(XR + 4 * q, 4), s(SRD_E1, 4), 60 + q))

    def mv_read(k, R, vec):
        for jg in range(8):
            k("ds_read_b128 %s, v13 offset:%d" % (v(R + 4 * jg, 4), vec * 256 + jg * 32))

    def epilogue(k):
        TT = T2
        mv_read(k, GA, 0 if which == 2 else 3)
        src = X1R
        if which == 2:
            src = XR
            k("s_waitcnt vmcnt(0)")
            swap8(k, XR)
            swap8(k, XR + 8)
            for r in (4, 5, 6, 7):
                k("v_mov_b32 v%d, 0" % r)
        for d in range(16):
            unpack_bf16(k, TT + 2 * d, TT + 2 * d + 1, src + d)
        k("s_waitcnt lgkmcnt(0)")
        for d in range(16):
            k("v_pk_fma_f32 %s, %s, %s, %s" % (v(ACC + 2 * d, 2), v(ACC + 2 * d, 2), v(GA + 2 * d, 2), v(TT + 2 * d, 2)))
        if which == 5:
            for j in range(2):
                P = FR + 8 * j
                pack16(k, P, ACC + 16 * j)
                swap8(k, P)
                for p in range(2):
                    k("buffer_store_dwordx4 %s, v12, %s, s58 offen offset:%d" % (v(P + 4 * p, 4), s(SRD_E2, 4), j * 64 + p * 32))
            return
        for d in range(16):
            k("v_pk_add_f32 v[4:5], v[4:5], %s" % v(ACC + 2 * d, 2))
            k("v_pk_fma_f32 v[6:7], %s, %s, v[6:7]" % (v(ACC + 2 * d, 2), v(ACC + 2 * d, 2)))
        ex_publish(k, 4, 14, SRD_E3, 58)
        mv_read(k, GA, 2)
        mv_read(k, TT, 1)
        for j in range(2):
            pack16(k, X1R + 8 * j, ACC + 16 * j)
        k.stamp(24)
        ex_collect(k, [FR + 16], 4, 14, SRD_E3, 56, 1024, 8)
        k.stamp(25)
        k("s_waitcnt lgkmcnt(0)")
        for j in range(2):
            for d in range(8 * j, 8 * j + 8):
                k("v_pk_fma_f32 %s, %s, v[4:5], v[4:5] %s" % (v(ACC + 2 * d, 2), v(ACC + 2 * d, 2), BCAST))
            for d in range(8 * j, 8 * j + 8):
                k("v_pk_fma_f32 %s, %s, %s, %s" % (v(ACC + 2 * d, 2), v(ACC + 2 * d, 2), v(GA + 2 * d, 2), v(TT + 2 * d, 2)))
            P = FR + 8 * j
            pack16(k, P, ACC + 16 * j)
            swap8(k, P)
            for p in range(2):
                k("buffer_store_dwordx4 %s, v12, %s, s%d offen offset:%d sc1" % (v(P + 4 * p, 4), s(SRD_E2, 4), 55 if j else 57, p * 512))
        k.stamp(26)
        signal(k, FL2, S_BM, S_BN, 5)

    c = dict(PD=PD, T=T, MT=1, NT=2, NS=NS, wgrid="4x1", srds_c=srds_c, srds_p=srds_p,
             map=lambda k: map_blocks(k, 2, 8, 2),
             x_ring=(0, 16384, NS), w_ring=(NS * 16384, 8192, NS), x_mode="dma_fm", w_mode="fm",
             w_wave_stride=0, reads_per_mfma=3,
             FRAG=FR, ACC=ACC, dma_setup=dma_setup, cons_pre=cons_pre, epilogue=epilogue)
    if which == 2:
        c.update(cons_loads=cons_loads, prod_pre_load=prod_pre_load, prod_pre_fin=prod_pre_fin)
    else:
        c.update(poll=Poll(FL4, S_BM, None))
    return c


C0 = -2.0 * math.sqrt(2.0 / math.pi) * LOG2E
C1 = C0 * 0.044715


def gelu(k, A, n, TT):
    for e in range(0, n, 2):
        k("v_pk_mul_f32 %s, %s, %s" % (v(TT + e, 2), v(A + e, 2), v(A + e, 2)))
    for e in range(0, n, 2):
        k("v_pk_fma_f32 %s, %s, s[60:61], v[12:13]" % (v(TT + e, 2), v(TT + e, 2)))
    for e in range(0, n, 2):
        k("v_pk_mul_f32 %s, %s, %s" % (v(TT + e, 2), v(TT + e, 2), v(A + e, 2)))
    for e in range(n):
        k("v_exp_f32 v%d, v%d" % (TT + e, TT + e))
    for e in range(0, n, 2):
        k("v_pk_add_f32 %s, %s, 1.0 op_sel_hi:[1,0]" % (v(TT + e, 2), v(TT + e, 2)))
    for e in range(n):
        k("v_rcp_f32 v%d, v%d" % (TT + e, TT + e))
    for e in range(0, n, 2):
        k("v_pk_mul_f32 %s, %s, %s" % (v(A + e, 2), v(A + e, 2), v(TT + e, 2)))


def pack8(k, P, A):
    for d in range(4):
        k("v_cvt_pk_bf16_f32 v%d, v%d, v%d" % (P + d, A + 2 * d, A + 2 * d + 1))


def swap16(k, P):
    k("v_permlane16_swap_b32 v%d, v%d" % (P, P + 2))
    k("v_permlane16_swap_b32 v%d, v%d" % (P + 1, P + 3))


def cfg3():
    ACC = 80

    def srds_c(k):
        srd_ws(k, SRD_E2, P_WS, "Z2")
        srd_ws(k, SRD_E3, P_WS, "EX3")

    def srds_p(k):
        srd_ws_sub(k, SRD_X, P_WS, "H2", 81, 16 * 16384)
        srd_ws_sub(k, SRD_W, P_WS, "WINF", 80, 16 * 28672)

    def dma_setup(k):
        k("s_mul_i32 s50, s%d, 7168" % S_WAVE)
        k("v_lshl_add_u32 v8, v%d, 4, s50" % V_LANE)
        k("v_add_u32 v9, 4096, v8")
        k("s_mul_i32 s80, s%d, %d" % (S_BN, 16 * 28672))
        k("s_lshl_b32 s81, s%d, 18" % S_BM)
        lin_voff(k)
        return [dep(Dma(SRD_X, [5, 5, 5, 5], 16384, 0, 16384, 82)),
                Dma(SRD_W, [8, 8, 8, 8, 9, 9, 9], 28672, 3 * 16384, 28672, 82)]

    def epilogue(k):
        Z2A = ACC + 56
        k("s_mov_b32 s60, %s" % fhex(C1))
        k("s_mov_b32 s61, %s" % fhex(C1))
        k("v_mov_b32 v12, %s" % fhex(C0))
        k("v_mov_b32 v13, %s" % fhex(C0))
        k("s_lshl_b32 s57, s%d, 2" % S_BM)
        k("s_add_u32 s57, s57, s%d" % S_WAVE)
        k("s_lshl_b32 s62, s57, 12")
        k("s_lshl_b32 s63, s%d, 8" % S_BN)
        k("s_add_u32 s63, s63, s62")
        ex_addr(k, 14)
        for r in range(4, 12):
            k("v_mov_b32 v%d, 0" % r)
        for (a, n) in ((0, 24), (24, 32)):
            gelu(k, Z2A + a, n, FR)
            for e in range(a, a + n, 2):
                S = 4 + 4 * ((e >> 2) & 1)
                k("v_pk_add_f32 %s, %s, %s" % (v(S, 2), v(S, 2), v(Z2A + e, 2)))
                k("v_pk_fma_f32 %s, %s, %s, %s" % (v(S + 2, 2), v(Z2A + e, 2), v(Z2A + e, 2), v(S + 2, 2)))
        for r in (4, 6, 8, 10):
            k("v_add_f32 v%d, v%d, v%d" % (r, r, r + 1))
        k("v_permlane16_swap_b32 v4, v8")
        k("v_permlane16_swap_b32 v6, v10")
        k("v_mov_b32 v5, v8")
        k("v_mov_b32 v7, v10")
        ex_publish(k, 4, 14, SRD_E3, 63)
        k.stamp(27)

        def z1(a, n):
            gelu(k, ACC + a, n, FR)
            for e in range(a, a + n, 8):
                pack8(k, Z1R + e // 2, ACC + e)
        z1(0, 32)
        k.stamp(28)
        k("v_and_b32 v2, 19, v%d" % V_LANE)
        k("v_lshlrev_b32 v15, 5, v2")
        k("v_bfe_u32 v2, v%d, 2, 1" % V_LANE)
        k("v_lshl_add_u32 v15, v2, 8, v15")
        k("v_bfe_u32 v2, v%d, 3, 1" % V_LANE)
        k("v_lshl_add_u32 v15, v2, 7, v15")
        k("v_lshrrev_b32 v2, 5, v%d" % V_LANE)
        k("v_lshl_add_u32 v15, v2, 4, v15")
        k("s_lshl_b32 s56, s%d, 6" % S_BN)
        k("s_add_u32 s56, s56, s57")
        k("s_mul_i32 s56, s56, 7168")
        k("s_add_u32 s58, s56, 4096")
        ex_collect(k, [FR], 4, 14, SRD_E3, 62, 1792, 8)
        k("v_mov_b32 v6, v4")
        k("v_mov_b32 v7, v5")
        k("v_permlane16_swap_b32 v4, v6")
        k("v_permlane16_swap_b32 v5, v7")
        for ct in range(7):
            A = Z2A + 8 * ct
            P = FR + 16 + 4 * (ct % 4)
            for e in range(0, 8, 2):
                G = v(4 + 2 * (e >> 2), 2)
                k("v_pk_fma_f32 %s, %s, %s, %s %s" % (v(A + e, 2), v(A + e, 2), G, G, BCAST))
            pack8(k, P, A)
            swap16(k, P)
            k("buffer_store_dwordx4 %s, v15, %s, s%d offen offset:%d sc1" % (v(P, 4), s(SRD_E2, 4), 56 if ct < 4 else 58, (ct & 3) * 1024))
        k.stamp(29)
        signal(k, FL3, S_BN, S_BM, 11)
        k.stamp(12)
        z1(32, 24)

    return dict(T=16, NT=14, NS=3, srds_c=srds_c, srds_p=srds_p, m16=True,
                x_ring=(0, 16384, 3), w_ring=(3 * 16384, 28672, 3), w_mode="fm16",
                FRAG=FR, ACC=ACC, dma_setup=dma_setup, epilogue=epilogue, poll=Poll(FL2, S_BM, 4))


def cfg4(NS=4):
    WR = NS * 16384
    ACC, BR = 80, 136

    def srds_c(k):
        srd_ws(k, SRD_E2, P_WS, "U")
        srd_in(k, SRD_E3, P_BSP, SZ["b_sp"])

    def srds_p(k):
        srd_ws_sub(k, SRD_X, P_WS, "WSPF", 80, 32 * 16384)
        srd_ws_sub(k, SRD_W, P_WS, "Z2", 81, 32 * 14336)

    def dma_setup(k):
        k("s_mul_i32 s50, s%d, 3584" % S_WAVE)
        k("v_lshl_add_u32 v8, v%d, 4, s50" % V_LANE)
        k("s_lshl_b32 s80, s%d, 19" % S_BM)
        k("s_mul_i32 s81, s%d, %d" % (S_BN, 32 * 14336))
        lin_voff(k)
        w = dep(Dma(SRD_W, [8, 8, 8, 8], 14336, WR, 14336, 82))
        w.half_last = True
        return [Dma(SRD_X, [5, 5, 5, 5], 16384, 0, 16384, 82), w]

    def cons_pre(k):
        k("v_lshlrev_b32 v12, 4, v%d" % V_LANE)
        k("v_and_b32 v13, 15, v%d" % V_LANE)
        k("v_lshlrev_b32 v13, 1, v13")
        k("s_lshl_b32 s60, s%d, 2" % S_BM)
        k("s_add_u32 s60, s60, s%d" % S_WAVE)
        k("s_lshl_b32 s60, s60, 6")
        k("s_mul_i32 s61, s%d, %d" % (S_BM, 28 * 16384))
        k("s_mul_i32 s62, s%d, %d" % (S_BN, 7 * 4096))
        k("s_add_u32 s61, s61, s62")
        k("s_lshl_b32 s62, s%d, 10" % S_WAVE)
        k("s_add_u32 s61, s61, s62")

    def cons_loads(k):
        for i in range(2):
            k("buffer_load_ushort v%d, v13, %s, s60 offen offset:%d" % (BR + 2 * i, s(SRD_E3, 4), i * 32))

    def epilogue(k):
        k("s_waitcnt vmcnt(0)")
        for i in range(2):
            k("v_lshlrev_b32 v%d, 16, v%d" % (BR + 2 * i, BR + 2 * i))
            k("v_mov_b32 v%d, v%d" % (BR + 2 * i + 1, BR + 2 * i))
        for ct in range(7):
            A = ACC + 8 * ct
            TT = FR + 8 * (ct & 1)
            P = FR + 16 + 4 * (ct % 4)
            for d in range(4):
                unpack_bf16(k, TT + 2 * d, TT + 2 * d + 1, Z1R + 4 * ct + d)
            for e in range(0, 8, 2):
                k("v_pk_add_f32 %s, %s, %s" % (v(A + e, 2), v(A + e, 2), v(BR + 2 * (e >> 2), 2)))
            for e in range(0, 8, 2):
                k("v_pk_mul_f32 %s, %s, %s" % (v(A + e, 2), v(A + e, 2), v(TT + e, 2)))
            pack8(k, P, A)
            swap16(k, P)
            k("s_add_u32 s62, s61, %d" % (ct * 4096))
            k("buffer_store_dwordx4 %s, v12, %s, s62 offen sc1" % (v(P, 4), s(SRD_E2, 4)))
        k.stamp(30)
        signal(k, FL4, S_BM, S_BN, 17)

    return dict(T=32, NT=7, NS=NS, srds_c=srds_c, srds_p=srds_p, m16=True,
                x_ring=(0, 16384, NS), w_ring=(WR, 14336, NS), w_mode="tr16",
                FRAG=FR, ACC=ACC, dma_setup=dma_setup, cons_pre=cons_pre, cons_loads=cons_loads,
                epilogue=epilogue, poll=Poll(FL3, S_BN, 2))


def gen_m2(name="m2_kernel", late=(2, 0, 0), ns=(5, 4, 5)):
    k = Kern(name)
    END, PROD = k.uid("end"), k.uid("prod")
    phases = [cfg25(2, NS=ns[0]), cfg3(), cfg4(ns[1]), cfg25(5, NS=ns[2])]
    for c, l in zip(phases[1:], late):
        c["late_free"] = l
    k("s_cmp_ge_u32 s2, 256")
    k("s_cbranch_scc1 " + END)
    k.kidx = 3
    k.stamp_init()
    k("s_load_dwordx2 s[6:7], s[0:1], %d" % KA["ws"])
    k("s_load_dwordx2 s[12:13], s[0:1], %d" % KA["b_sp"])
    k("s_load_dwordx2 s[16:17], s[0:1], %d" % KA["out"])
    k("v_lshrrev_b32 v2, 6, v0")
    k("v_and_b32 v%d, 63, v0" % V_LANE)
    k("v_readfirstlane_b32 s%d, v2" % S_WAVE)
    map_blocks(k, 2, 8, 2)
    k("s_cmp_ge_u32 s%d, 4" % S_WAVE)
    k("s_cbranch_scc1 " + PROD)
    for role in ("c", "p"):
        if role == "p":
            k.label(PROD)
            k("s_sub_u32 s%d, s%d, 4" % (S_WAVE, S_WAVE))
        for n, c in enumerate(phases):
            if role == "c":
                if n == 0:
                    k("s_waitcnt lgkmcnt(0)")
                c["srds_c"](k)
                (cons_phase16 if c.get("m16") else cons_phase)(k, c, 6 * n)
            else:
                prod_phase(k, c, 6 * n, first=(n == 0))
        k.stamp_dump(31)
        if role == "c":
            k("s_endpgm")
    k.label(END)
    k("s_endpgm")
    txt, n = k.finish(vgprs=220, sgprs=96)
    return txt, "; @launch kernel=%s grid=(256,1,1) block=(512,1,1) lds=%d" % (name, MV + 1024)
```

```python
import sys
from k1 import gen_k1
from gemms import *
from attn import gen_attn
from m2 import gen_m2

def build(path, **opt):
    Kern.STAMPS = opt.get("stamps", False)
    for key in DBG:
        DBG[key] = opt.get(key, False)
    import gemm, gemms
    ov = opt.get("ov", {})
    gemms.gemm = lambda name, cfg: gemm.gemm(name, dict(cfg, **ov))
    g = opt.get("g", {})
    parts = [gen_k1(), gen_g1(**g.get(1, {})), gen_attn(force_slow=opt.get("force_slow", False), **g.get("a", {})), gen_m2(**g.get("m", {}))]
    ref = open("adaLN_cond__softmax_full_mha__mixer_gmlp__prompt.s.ref").read().split("\n")
    head = [l for l in ref if l.startswith(";") and "@launch" not in l and "Override" not in l and "grid=ceil" not in l]
    txt = "\n".join(head) + "\n" + "\n".join(p[1] for p in parts) + "\n"
    txt += ".amdgcn_target \"amdgcn-amd-amdhsa--gfx950\"\n" + "\n".join(p[0] for p in parts)
    open(path, "w").write(txt)

if __name__ == "__main__":
    build("adaLN_cond__softmax_full_mha__mixer_gmlp__prompt.s")
    build("slow.s", force_slow=True)
    build("stamp.s", stamps=True)
    if len(sys.argv) > 1 and sys.argv[1] == "m":
        build("stamp_a.s", stamps=True, g={"m": dict(ns=(4, 4, 4))})
        build("stamp_b.s", stamps=True, g={"m": dict(ns=(6, 3, 6))})
    if len(sys.argv) > 1 and sys.argv[1] == "x":
        build("stamp_a.s", stamps=True, fine=True)
```

```python
import re

TRANS = ("v_exp_f32", "v_log_f32", "v_rcp_f32", "v_rsq_f32", "v_sqrt_f32", "v_sin_f32", "v_cos_f32",
         "v_rcp_iflag_f32", "v_exp_f16", "v_rcp_f16")

_reg_re = re.compile(r"^(-|abs\()?([vsa])(?:(\d+)|\[(\d+):(\d+)\])\)?$")


def regs_of(op):
    op = op.strip()
    if op.startswith("|") and op.endswith("|"):
        op = op[1:-1]
    if op.startswith("-|") and op.endswith("|"):
        op = op[2:-1]
    if op in ("vcc",):
        return {("s", 106), ("s", 107)}
    if op == "vcc_lo":
        return {("s", 106)}
    if op == "vcc_hi":
        return {("s", 107)}
    if op == "exec":
        return {("s", 126), ("s", 127)}
    if op == "exec_lo":
        return {("s", 126)}
    if op == "exec_hi":
        return {("s", 127)}
    if op == "m0":
        return {("s", 124)}
    m = _reg_re.match(op)
    if not m:
        return set()
    k = m.group(2)
    if m.group(3) is not None:
        return {(k, int(m.group(3)))}
    return {(k, i) for i in range(int(m.group(4)), int(m.group(5)) + 1)}


def split_ops(s):
    out, depth, cur = [], 0, ""
    for ch in s:
        if ch in "[(":
            depth += 1
        if ch in "])":
            depth -= 1
        if ch == "," and depth == 0:
            out.append(cur.strip())
            cur = ""
        else:
            cur += ch
    if cur.strip():
        out.append(cur.strip())
    return out


VCC = {("s", 106), ("s", 107)}
EXEC = {("s", 126), ("s", 127)}
M0 = {("s", 124)}


class Ins:
    def __init__(self, text):
        self.text = text
        body = text.split(";")[0].strip()
        self.is_label = body.endswith(":")
        self.is_dir = body.startswith(".") and not self.is_label
        self.empty = body == ""
        self.mn = ""
        self.defs, self.uses = set(), set()
        self.cls = "none"
        self.target = None
        self.passes = 0
        self.srcc = set()
        self.srcab = set()
        self.states = 1
        self.wide_store_data = set()
        self.lane_sel = set()
        self.dpp = False
        self.lds_dma = False
        if self.is_label:
            self.label = body[:-1]
            return
        if self.is_dir or self.empty:
            return
        parts = body.split(None, 1)
        mn = parts[0]
        self.mn = mn
        rest = parts[1] if len(parts) > 1 else ""
        ops = split_ops(rest)
        mods = ""
        if ops:
            last = ops[-1].split(None, 1)
            ops[-1] = last[0]
            mods = last[1] if len(last) > 1 else ""
        self.ops, self.mods = ops, mods
        R = [regs_of(o) for o in ops]
        allr = lambda lst: set().union(*lst) if lst else set()
        base = re.sub(r"_(e32|e64|dpp|sdwa)$", "", mn)
        if mn.startswith("v_mfma"):
            self.cls = "mfma"
            self.passes = 8 if "32x32x16" in mn else (4 if "16x16x32" in mn else None)
            assert self.passes, mn
            self.defs = R[0]
            self.srcab = R[1] | R[2]
            self.srcc = R[3]
            self.uses = self.srcab | self.srcc | EXEC
        elif mn.startswith("v_"):
            self.cls = "trans" if base in TRANS else "valu"
            self.dpp = "_dpp" in mn or "quad_perm" in mods or "row_" in mods
            self.sdwa = "_sdwa" in mn
            if base.startswith("v_cmpx"):
                self.defs = R[0] | EXEC
                self.uses = allr(R[1:])
            elif base.startswith("v_cmp"):
                self.defs = R[0]
                self.uses = allr(R[1:])
            elif base in ("v_readfirstlane_b32",):
                self.defs = R[0]
                self.uses = R[1]
            elif base == "v_readlane_b32":
                self.defs = R[0]
                self.uses = R[1] | R[2]
                self.lane_sel = R[2]
            elif base == "v_writelane_b32":
                self.defs = R[0]
                self.uses = R[0] | R[1] | R[2]
                self.lane_sel = R[2]
            elif base.startswith("v_permlane") and "swap" in base:
                self.defs = R[0] | R[1]
                self.uses = R[0] | R[1]
            elif base in ("v_add_co_u32", "v_sub_co_u32", "v_subrev_co_u32", "v_addc_co_u32", "v_subb_co_u32",
                          "v_mad_u64_u32", "v_div_scale_f32"):
                self.defs = R[0] | R[1]
                self.uses = allr(R[2:])
            elif base in ("v_fmac_f32", "v_dot2c_f32_bf16", "v_pk_fmac_f16", "v_fmac_f16"):
                self.defs = R[0]
                self.uses = allr(R)
            elif base == "v_nop":
                pass
            else:
                self.defs = R[0]
                self.uses = allr(R[1:])
                if self.dpp or self.sdwa:
                    self.uses |= R[0]
            self.uses |= EXEC
        elif mn.startswith("buffer_") or mn.startswith("global_"):
            self.cls = "vmem"
            is_lds = re.search(r"\blds\b", mods) is not None or "load_lds" in mn
            self.lds_dma = is_lds
            if mn.startswith("buffer_wbl2") or mn.startswith("buffer_inv"):
                pass
            elif "load" in mn and not is_lds:
                self.defs = R[0]
                self.uses = allr(R[1:])
            else:
                self.uses = allr(R)
                if "atomic" in mn and re.search(r"\bsc0\b", mods):
                    self.defs = R[0]
                if "store" in mn and ("x3" in mn or "x4" in mn):
                    self.wide_store_data = R[0] if mn.startswith("buffer_") else R[1]
            if is_lds:
                self.uses |= M0
            self.uses |= EXEC
        elif mn.startswith("ds_"):
            self.cls = "ds"
            if "read" in mn or "permute" in mn or "swizzle" in mn or "_rtn" in mn:
                self.defs = R[0]
                self.uses = allr(R[1:])
            else:
                self.uses = allr(R)
            self.uses |= EXEC
        elif mn.startswith("s_"):
            self.cls = "salu"
            if mn == "s_nop":
                self.states = int(ops[0], 0) + 1
                self.cls = "nop"
            elif mn in ("s_branch",) or mn.startswith("s_cbranch"):
                self.cls = "branch"
                self.target = ops[0]
            elif mn in ("s_waitcnt", "s_barrier", "s_endpgm", "s_setprio", "s_sleep"):
                self.cls = "misc"
            elif mn.startswith("s_cmp") or mn.startswith("s_bitcmp"):
                self.uses = allr(R)
            elif mn.startswith("s_load") or mn.startswith("s_buffer_load") or mn.startswith("s_mem"):
                self.cls = "smem"
                self.defs = R[0]
                self.uses = allr(R[1:])
            elif "saveexec" in mn:
                self.defs = R[0] | EXEC
                self.uses = allr(R[1:]) | EXEC
            else:
                self.defs = R[0] if R else set()
                self.uses = allr(R[1:])
                if mn in ("s_addk_i32", "s_mulk_i32"):
                    self.uses |= R[0]
        else:
            raise ValueError("unknown instruction: " + text)


def _vregs(s):
    return {r for r in s if r[0] in "va"}


def _sregs(s):
    return {r for r in s if r[0] == "s"}


def need(p, c):
    n = 0
    pv = p.cls in ("valu", "trans")
    cv = c.cls in ("valu", "trans")
    if pv:
        pd_v, pd_s = _vregs(p.defs), _sregs(p.defs)
        if c.cls == "mfma" and pd_v & (c.srcab | c.srcc):
            n = max(n, 2)
        if c.cls == "mfma" and pd_s & EXEC:
            n = max(n, 4)
        if c.cls == "vmem" and (pd_s - EXEC) & c.uses:
            n = max(n, 5)
        if cv and (pd_s - EXEC) & c.uses:
            n = max(n, 2)
        if cv and pd_s & c.lane_sel:
            n = max(n, 4)
        if cv and c.mn.startswith(("v_readlane", "v_readfirstlane")) and pd_v & c.uses:
            n = max(n, 1)
        if cv and c.mn.startswith(("v_readlane", "v_readfirstlane", "v_writelane", "v_permlane")) and pd_s & EXEC:
            n = max(n, 4)
        if p.cls == "trans" and c.cls == "valu" and pd_v & c.uses:
            n = max(n, 1)
        if p.cls == "trans" and c.cls in ("vmem", "ds") and pd_v & c.uses:
            n = max(n, 1)
        if cv and c.mn.startswith("v_permlane") and pd_v & c.uses:
            n = max(n, 2)
        if cv and c.dpp and pd_v & c.uses:
            n = max(n, 2)
        if cv and c.dpp and pd_s & EXEC:
            n = max(n, 5)
        if cv and getattr(p, "sdwa", False) and pd_v & (c.uses | c.defs):
            n = max(n, 1)
        if c.cls in ("salu", "smem") and (pd_s - EXEC) & c.uses:
            n = max(n, 1)
    if p.cls == "mfma":
        big = 12 if p.passes == 8 else 8
        if c.cls == "mfma":
            if p.defs & c.srcab:
                n = max(n, big)
            if p.defs & c.srcc:
                if not (p.defs == c.srcc and p.passes == c.passes):
                    n = max(n, p.passes + 2)
            if p.defs & c.defs and not (p.defs == c.defs and p.passes == c.passes):
                n = max(n, p.passes + 2)
            if p.defs & c.defs and not (p.defs & c.srcc):
                n = max(n, p.passes + 2)
        elif cv or c.cls in ("vmem", "ds"):
            if p.defs & (c.uses | c.defs):
                n = max(n, big)
        if (cv or c.cls in ("vmem", "ds")) and p.srcc & c.defs:
            n = max(n, 7 if p.passes == 8 else 3)
    if p.cls == "salu" and p.defs & M0 and (c.lds_dma or "addtid" in c.mn):
        n = max(n, 1)
    if p.wide_store_data and p.wide_store_data & c.defs:
        n = max(n, 2 if cv else 1)
    return n


MAXD = 13


def pad_hazards(lines):
    ins = [Ins(l) for l in lines]
    changed = True
    total = 0
    while changed:
        changed = False
        labels = {x.label: i for i, x in enumerate(ins) if x.is_label}
        br = {}
        for i, x in enumerate(ins):
            if x.cls == "branch":
                br.setdefault(labels[x.target], []).append(i)
        out = []
        for i, c in enumerate(ins):
            if c.cls in ("none", "nop", "branch", "misc"):
                out.append(c)
                continue
            short = 0
            stack = [(i - 1, 0)]
            seen = set()
            while stack:
                j, d = stack.pop()
                while j >= 0 and d < MAXD:
                    if (j, d) in seen:
                        break
                    seen.add((j, d))
                    p = ins[j]
                    if p.is_label:
                        for b in br.get(j, []):
                            stack.append((b, d))
                        j -= 1
                        continue
                    if p.is_dir or p.empty:
                        j -= 1
                        continue
                    if p.mn in ("s_branch", "s_endpgm") and not _is_edge(ins, j, br, seen, i):
                        pass
                    k = need(p, c)
                    if k > d:
                        short = max(short, k - d)
                    d += p.states
                    j -= 1
            if short:
                out.append(Ins("    s_nop %d" % (short - 1)))
                total += 1
                changed = True
            out.append(c)
        ins = out
    return [x.text for x in ins], total


def _is_edge(ins, j, br, seen, i):
    return True


class Kern:
    def __init__(self, name):
        self.name = name
        self.lines = []
        self._uid = 0

    def __call__(self, text):
        for l in text.split("\n"):
            l = l.strip()
            if l:
                self.lines.append("    " + l if not l.endswith(":") else l)

    def label(self, name):
        self.lines.append(name + ":")

    def uid(self, base):
        self._uid += 1
        return "L_%s_%s_%d" % (self.name, base, self._uid)

    def comment(self, t):
        self.lines.append("    ; " + t)

    STAMPS = False
    STAMP_V = 250
    kidx = 0

    def stamp(self, i):
        if not Kern.STAMPS:
            return
        self("s_memtime s[88:89]")
        self("s_memrealtime s[90:91]")
        self("s_waitcnt lgkmcnt(0)")
        self("v_writelane_b32 v%d, s88, %d" % (self.STAMP_V, i))
        self("v_writelane_b32 v%d, s90, %d" % (self.STAMP_V, 32 + i))

    def stamp_init(self):
        if not Kern.STAMPS:
            return
        self("v_mov_b32 v%d, 0" % self.STAMP_V)
        self("v_mov_b32 v%d, v0" % (self.STAMP_V + 1))
        self("s_load_dwordx2 s[92:93], s[0:1], 96")
        self.stamp(0)

    def stamp_dump(self, i):
        if not Kern.STAMPS:
            return
        self("s_waitcnt vmcnt(0)")
        self.stamp(i)
        self("s_mov_b64 exec, -1")
        self("s_add_u32 s84, s92, %d" % (0x8000000 + self.kidx * 0x400000))
        self("s_addc_u32 s85, s93, 0")
        self("s_mov_b32 s86, 0x400000")
        self("s_mov_b32 s87, 0x20000")
        self("s_lshl_b32 s88, s2, 12")
        self("v_lshlrev_b32 v%d, 2, v%d" % (self.STAMP_V + 1, self.STAMP_V + 1))
        self("buffer_store_dword v%d, v%d, s[84:87], s88 offen" % (self.STAMP_V, self.STAMP_V + 1))

    def finish(self, vgprs, sgprs=96, agprs=0, wg_y=False):
        if Kern.STAMPS:
            sv = vgprs
            self.lines = [l.replace("v250", "v%d" % sv).replace("v251", "v%d" % (sv + 1)) for l in self.lines]
            vgprs, sgprs = vgprs + 2, max(96, sgprs)
        lines, n = pad_hazards(self.lines)
        acc = (vgprs + 3) // 4 * 4
        nfv = acc + agprs if agprs else vgprs
        hdr = [".text", ".globl %s" % self.name, ".p2align 8", ".type %s,@function" % self.name, self.name + ":"]
        desc = [".section .rodata,\"a\"", ".p2align 6", ".amdhsa_kernel %s" % self.name,
                "  .amdhsa_next_free_vgpr %d" % nfv,
                "  .amdhsa_next_free_sgpr %d" % sgprs,
                "  .amdhsa_accum_offset %d" % acc,
                "  .amdhsa_group_segment_fixed_size 0",
                "  .amdhsa_kernarg_size 104",
                "  .amdhsa_user_sgpr_count 2",
                "  .amdhsa_user_sgpr_kernarg_segment_ptr 1",
                "  .amdhsa_system_sgpr_workgroup_id_x 1"]
        if wg_y:
            desc.append("  .amdhsa_system_sgpr_workgroup_id_y 1")
        desc += ["  .amdhsa_float_denorm_mode_32 3", "  .amdhsa_float_denorm_mode_16_64 3",
                 ".end_amdhsa_kernel"]
        for l in lines:
            x = Ins(l)
            for (k, idx) in x.defs | x.uses:
                if k == "v":
                    assert idx < vgprs, (self.name, l, vgprs)
                if k == "a":
                    assert idx < agprs, (self.name, l, agprs)
                if k == "s" and idx < 102:
                    assert idx < sgprs, (self.name, l, sgprs)
        return "\n".join(hdr + lines + ["L_%s_codeend:" % self.name] + desc) + "\n", n


def v(i, n=1):
    return "v%d" % i if n == 1 else "v[%d:%d]" % (i, i + n - 1)


def a(i, n=1):
    return "a%d" % i if n == 1 else "a[%d:%d]" % (i, i + n - 1)


def s(i, n=1):
    return "s%d" % i if n == 1 else "s[%d:%d]" % (i, i + n - 1)
```

```python
from common import *
from gemms import pack16, swap8
from sync import FL1

OOB = 0x7f000000


NSL = 8
STG = NSL * 16384 + 12288
ATT_LDS = STG + 16384


def emit_attn(k, COMP, HELP, poll, force_slow=False, sched=1, sb=8):
    SLOW, EPI = k.uid("slow"), k.uid("epi")
    KS, TPS = 1, 4
    LANE, VOFF, VCUR, VNXT, VBASE = 1, 4, 5, 6, 4
    QF, NM, S0, S1, P, KA_, KB_, VA_, VB_, O, L, SEL = 8, 16, 32, 48, 64, 72, 76, 80, 84, 88, 104, 108
    S = (S0, S1)
    SRD, SRDO = 24, 28
    S_WAVE, S_HEAD, S_RT, S_KB, S_ST, S_CUR = 3, 21, 23, 43, 44, 45

    def ids():
        k("v_lshlrev_b32 v%d, 4, v%d" % (VOFF, LANE))
        k("s_lshl_b32 s%d, s%d, 17" % (S_KB, S_HEAD))
        srd_ws(k, SRD, 6, "QKV")
    k.label(COMP)
    ids()
    k("s_lshl_b32 s%d, s20, 3" % S_RT)
    k("s_add_u32 s%d, s%d, s19" % (S_RT, S_RT))
    k("s_lshl_b32 s13, s19, 11")
    k("s_add_u32 s13, s13, %d" % STG)
    k("v_add_u32 v7, s13, v%d" % VOFF)
    srd_ws(k, SRDO, 6, "O")
    srd_ws(k, 32, 6, "FL")
    k("s_lshl_b32 s46, s%d, 5" % S_HEAD)
    k("s_lshl_b32 s47, s20, 2")
    k("s_add_u32 s46, s46, s47")
    k("s_add_u32 s46, s46, s19")
    k("s_lshl_b32 s46, s46, 7")
    k("s_add_u32 s46, s46, %d" % FL1)
    k("s_cmp_lt_u32 s19, 4")
    k("s_cselect_b32 s47, 0, -1")
    k("v_mov_b32 v112, 0")
    k("v_mov_b32 v113, 1.0")
    k("v_bfe_u32 v2, v%d, 2, 1" % LANE)
    k("v_bfe_u32 v3, v%d, 4, 1" % LANE)
    k("v_cmp_eq_u32 vcc, v2, v3")
    k("v_mov_b32 v2, 0x3f803f80")
    k("v_cndmask_b32 v%d, 0, v2, vcc" % SEL)
    for e in range(1, 4):
        k("v_mov_b32 v%d, v%d" % (SEL + e, SEL))

    def zero_state():
        for e in range(16):
            k("v_mov_b32 v%d, 0" % (O + e))
        for e in range(4):
            k("v_mov_b32 v%d, 0" % (L + e))
    zero_state()
    for e in range(4):
        k("v_mov_b32 v%d, 0" % (VB_ + e))
        k("v_mov_b32 v%d, 0" % (P + 4 + e))
    k("v_mov_b32 v%d, v%d" % (VCUR, VBASE))
    k("v_add_u32 v%d, 16384, v%d" % (VNXT, VBASE))
    k("s_mov_b32 s%d, 16384" % S_CUR)
    k.stamp(sb + 1)
    k("s_waitcnt lgkmcnt(0)")
    k("s_barrier")
    k.stamp(sb + 2)
    k("ds_read_b128 %s, v7" % v(QF, 4))
    k("ds_read_b128 %s, v7 offset:1024" % v(QF + 4, 4))
    k("ds_read_b128 %s, v%d" % (v(KA_, 4), VOFF))
    k("ds_read_b128 %s, v%d offset:1024" % (v(KB_, 4), VOFF))
    k("ds_read_b128 %s, v%d offset:8192" % (v(VA_, 4), VCUR))
    k("s_waitcnt lgkmcnt(0)")

    def qk(dst, c):
        return ("v_mfma_f32_32x32x16_bf16 %s, %s, %s, %s" % (v(dst, 16), v(KA_, 4), v(QF, 4), c),
                "v_mfma_f32_32x32x16_bf16 %s, %s, %s, %s" % (v(dst, 16), v(KB_, 4), v(QF + 4, 4), v(dst, 16)))

    def max16(dst, src, first):
        if first:
            k("v_max3_f32 v%d, v%d, v%d, v%d" % (dst, src, src + 1, src + 2))
            k("v_max_f32 v%d, v%d, v%d" % (dst, dst, src + 3))
            r = range(4, 16, 2)
        else:
            r = range(0, 16, 2)
        for e in r:
            k("v_max3_f32 v%d, v%d, v%d, v%d" % (dst, dst, src + e, src + e + 1))

    def set_nm(mreg):
        k("v_mov_b32 v3, v%d" % mreg)
        k("v_permlane32_swap_b32 v%d, v3" % mreg)
        k("v_max_f32 v%d, v%d, v3" % (mreg, mreg))
        for e in range(16):
            k("v_sub_f32 v%d, 0, v%d" % (NM + e, mreg))

    for m in qk(S1, "0"):
        k(m)
    max16(2, S1, True)
    set_nm(2)
    k("s_waitcnt lgkmcnt(0)")
    for m in qk(S0, v(NM, 16)):
        k(m)
    k("ds_read_b128 %s, v%d offset:2048" % (v(KA_, 4), VCUR))
    k("ds_read_b128 %s, v%d offset:3072" % (v(KB_, 4), VCUR))
    k("s_mov_b32 s%d, 0" % S_ST)
    k("s_waitcnt lgkmcnt(0)")

    def ex(Sx, q, lo=0, hi=4):
        for e in range(lo, hi):
            k("v_exp_f32 v%d, v%d" % (Sx + 4 * q + e, Sx + 4 * q + e))

    def cv(Sx, q):
        for e in range(2):
            k("v_cvt_pk_bf16_f32 v%d, v%d, v%d" % (P + 2 * q + e, Sx + 4 * q + 2 * e, Sx + 4 * q + 2 * e + 1))

    def exps(Sx, q):
        ex(Sx, q)
        cv(Sx, q)

    def pvm(vf, pf):
        k("v_mfma_f32_32x32x16_bf16 %s, %s, %s, %s" % (v(O, 16), v(vf, 4), v(pf, 4), v(O, 16)))

    def lsum(pf):
        k("v_mfma_f32_16x16x32_bf16 %s, %s, %s, %s" % (v(L, 4), v(SEL, 4), v(pf, 4), v(L, 4)))

    def pv(vf, pf):
        pvm(vf, pf)
        lsum(pf)

    def addr(tt):
        return (VCUR, tt * 2048) if tt < TPS else (VNXT, (tt - TPS) * 2048)

    LOOP = k.uid("loop")
    k.label(LOOP)
    for tt in range(TPS):
        if tt == 2:
            NS_ = k.uid("nosig")
            k("s_cmp_lg_u32 s%d, s47" % S_ST)
            k("s_cbranch_scc1 " + NS_)
            k("s_waitcnt vmcnt(0)")
            k("s_mov_b64 exec, 1")
            k("buffer_store_dword v113, v112, s[32:35], s46 offen sc1")
            k("s_mov_b64 exec, -1")
            k.label(NS_)
            k("s_barrier")
        Sc, Sn = S[tt & 1], S[(tt + 1) & 1]
        m1, m3 = qk(Sn, v(NM, 16))
        ra, oa = addr(tt + 2)
        rv, ov = addr(tt + 1)
        rKa = "ds_read_b128 %s, v%d offset:%d" % (v(KA_, 4), ra, oa)
        rVb = "ds_read_b128 %s, v%d offset:%d" % (v(VB_, 4), VCUR, 8192 + tt * 2048 + 1024)
        rKb = "ds_read_b128 %s, v%d offset:%d" % (v(KB_, 4), ra, oa + 1024)
        rVa = "ds_read_b128 %s, v%d offset:%d" % (v(VA_, 4), rv, 8192 + ov)
        if sched == 0:
            k("s_waitcnt lgkmcnt(3)"); k(m1); k(rKa); exps(Sc, 0)
            k("s_waitcnt lgkmcnt(3)"); pv(VB_, P + 4); k(rVb); exps(Sc, 1)
            k("s_waitcnt lgkmcnt(3)"); k(m3); k(rKb); exps(Sc, 2)
            k("s_waitcnt lgkmcnt(3)"); pv(VA_, P); k(rVa); exps(Sc, 3)
        else:
            k("s_waitcnt lgkmcnt(2)"); k(m1); k(rKa); ex(Sc, 0)
            pvm(VB_, P + 4); k(rVb); cv(Sc, 0); ex(Sc, 1, 0, 3); lsum(P + 4); ex(Sc, 1, 3, 4); ex(Sc, 2, 0, 1)
            k("s_waitcnt lgkmcnt(2)"); k(m3); k(rKb); cv(Sc, 1); ex(Sc, 2, 1, 4)
            pvm(VA_, P); k(rVa); ex(Sc, 3, 0, 1); cv(Sc, 2); ex(Sc, 3, 1, 3); lsum(P); ex(Sc, 3, 3, 4); cv(Sc, 3)
    k("v_mov_b32 v%d, v%d" % (VCUR, VNXT))
    k("s_add_u32 s%d, s%d, 16384" % (S_CUR, S_CUR))
    k("s_and_b32 s%d, s%d, %d" % (S_CUR, S_CUR, NSL * 16384 - 1))
    k("v_add_u32 v%d, s%d, v%d" % (VNXT, S_CUR, VBASE))
    k("s_add_u32 s%d, s%d, 1" % (S_ST, S_ST))
    k("s_cmp_lt_u32 s%d, 16" % S_ST)
    k("s_cbranch_scc1 " + LOOP)
    k("s_waitcnt lgkmcnt(0)")
    k.stamp(sb + 3)
    pv(VB_, P + 4)
    k("v_mov_b32 v2, v%d" % L)
    for e in range(16):
        k("v_fma_f32 v2, v%d, 0, v2" % (O + e))
    k("v_mov_b32 v3, %s" % fhex(2.0 ** 100 if not force_slow else -1.0))
    k("v_cmp_nlt_f32 vcc, v2, v3")
    k("s_cbranch_vccnz " + SLOW)
    k.label(EPI)
    k("v_rcp_f32 v2, v%d" % L)
    k("v_mov_b32 v3, v2")
    for e in range(0, 16, 2):
        k("v_pk_mul_f32 %s, %s, v[2:3]" % (v(O + e, 2), v(O + e, 2)))
    pack16(k, P, O)
    swap8(k, P)
    k("s_lshr_b32 s10, s%d, 2" % S_RT)
    k("s_lshl_b32 s10, s10, 18")
    k("s_lshl_b32 s11, s%d, 13" % S_HEAD)
    k("s_add_u32 s10, s10, s11")
    k("s_and_b32 s11, s%d, 3" % S_RT)
    k("s_lshl_b32 s11, s11, 10")
    k("s_add_u32 s10, s10, s11")
    k("s_add_u32 s11, s10, 4096")
    k("buffer_store_dwordx4 %s, v%d, %s, s10 offen" % (v(P, 4), VOFF, s(SRDO, 4)))
    k("buffer_store_dwordx4 %s, v%d, %s, s11 offen" % (v(P + 4, 4), VOFF, s(SRDO, 4)))
    k.stamp(sb + 4)
    k.stamp_dump(31)
    k("s_endpgm")

    k.label(HELP)
    k("s_load_dwordx2 s[8:9], s[0:1], %d" % KA["wo"])
    k("s_load_dwordx4 s[32:35], s[0:1], %d" % KA["w_in"])
    k("s_load_dwordx2 s[36:37], s[0:1], %d" % KA["w_out"])
    k("s_load_dwordx4 s[80:83], s[0:1], %d" % KA["c"])
    ids()
    k("s_sub_u32 s%d, s19, 8" % S_WAVE)
    k("s_lshl_b32 s12, s%d, 12" % S_WAVE)
    k("s_and_b32 s13, s12, 4096")
    k("s_lshr_b32 s14, s%d, 1" % S_WAVE)
    k("s_add_u32 s14, s14, 1")
    k("s_lshl_b32 s14, s14, 22")
    k("s_add_u32 s13, s13, s14")
    k("s_add_u32 s13, s13, s%d" % S_KB)
    k("s_add_u32 s11, s20, 1")
    k("s_and_b32 s11, s11, 7")
    k("s_lshl_b32 s18, s11, 2")
    k("s_lshl_b32 s11, s11, 14")
    k("v_subrev_u32 v8, 512, v0")
    k("s_bfe_u32 s14, s2, 0x60002")
    k("s_add_u32 s14, s14, 32")
    k("s_and_b32 s15, s2, 3")
    g = Gemv(k, 8, 14, 15, 48, 52, 56, NSL * 16384, 16, 60)
    g.addr()
    k("s_lshl_b32 s46, s2, 2")
    k("s_add_u32 s46, s46, s%d" % S_WAVE)
    k("s_add_u32 s47, s12, %d" % STG)
    k("v_lshrrev_b32 v9, 3, v%d" % LANE)
    k("v_and_b32 v10, 7, v%d" % LANE)
    k("v_lshlrev_b32 v10, 4, v10")
    k("v_bfe_u32 v2, v%d, 2, 2" % LANE)
    k("v_and_b32 v3, 3, v%d" % LANE)
    k("v_lshlrev_b32 v3, 3, v3")
    k("v_lshl_add_u32 v3, v2, 7, v3")
    k("v_add_u32 v3, s47, v3")
    k("v_lshrrev_b32 v2, 5, v%d" % LANE)
    k("v_lshl_add_u32 v11, v2, 10, v3")
    k("v_bfe_u32 v2, v%d, 4, 1" % LANE)
    k("v_lshl_add_u32 v11, v2, 5, v11")
    k("v_lshrrev_b32 v2, 4, v%d" % LANE)
    k("v_lshl_add_u32 v12, v2, 10, v3")
    k("v_lshlrev_b32 v13, 4, v2")
    k("v_and_b32 v2, 15, v%d" % LANE)
    k("v_lshl_add_u32 v13, v2, 7, v13")
    k("v_add_u32 v13, s47, v13")
    k("s_waitcnt lgkmcnt(0)")
    ops = []

    def dma(st):
        poll.need(k)
        k("s_add_u32 m0, s12, %d" % ((st % NSL) * 16384))
        k("s_add_u32 s10, s13, s11")
        for q in range(4):
            k("buffer_load_dwordx4 v%d, %s, s10 offen offset:%d sc1 lds" % (VOFF, s(SRD, 4), q * 1024))
            ops.append(("kv", st))
        k("s_add_u32 s11, s11, 8192")
        k("s_and_b32 s11, s11, 0x1ffff")

    def wait_for(tag):
        last = max(i for i, o in enumerate(ops) if o == tag)
        k("s_waitcnt vmcnt(%d)" % min(63, len(ops) - 1 - last))

    ROUNDS = [(8, "wo", 2048, 16, 512, "WOF", 0), (32, "w_in", 7168, 56, 1792, "WINF", 0),
              (32, "w_in", 7168, 56, 1792, "WINF", 1024), (34, "w_sp", 4096, 32, 2048, "WSPF", 0),
              (34, "w_sp", 4096, 32, 2048, "WSPF", 1024), (36, "w_out", 2048, 16, 896, "WOUTF", 0)]
    RB = 80

    def unit_ids(r):
        ptr, nm, ld, ncg, nu, dst, u0 = ROUNDS[r]
        k("s_add_u32 s41, s46, %d" % u0)
        if ncg == 56:
            k("s_mul_i32 s38, s41, 9363")
            k("s_lshr_b32 s38, s38, 19")
            k("s_mul_i32 s39, s38, 56")
            k("s_sub_u32 s39, s41, s39")
        else:
            k("s_lshr_b32 s38, s41, %d" % (ncg.bit_length() - 1))
            k("s_and_b32 s39, s41, %d" % (ncg - 1))
        k("s_cmp_ge_u32 s41, %d" % nu)
        k("s_cselect_b32 s40, %d, 0" % OOB)

    def rp_load(r, touch=False):
        ptr, nm, ld, ncg, nu, dst, u0 = ROUNDS[r]
        unit_ids(r)
        srd_in(k, 72, ptr, SZ[nm])
        k("s_mov_b32 s42, %d" % ld)
        if touch:
            k("v_and_b32 v14, 31, v%d" % LANE)
            k("v_mul_lo_u32 v14, v14, s42")
        else:
            k("v_mul_lo_u32 v14, v9, s42")
            k("v_add_u32 v14, v14, v10")
        k("s_mul_i32 s42, s38, %d" % (32 * ld))
        k("s_lshl_b32 s41, s39, 7")
        k("s_add_u32 s42, s42, s41")
        k("s_or_b32 s42, s42, s40")
        if touch:
            k("buffer_load_dword v15, v14, s[72:75], s42 offen")
            ops.append(("tc", r))
            return
        for q in range(4):
            k("s_add_u32 m0, s47, %d" % (q * 1024))
            k("s_add_u32 s41, s42, %d" % (q * 8 * ld))
            k("buffer_load_dwordx4 v14, s[72:75], s41 offen lds")
            ops.append(("rp", r))

    def rp_store(r):
        ptr, nm, ld, ncg, nu, dst, u0 = ROUNDS[r]
        wait_for(("rp", r))
        for b in range(4):
            if dst in ("WOF", "WOUTF"):
                for rd in range(2):
                    k("ds_read_b64_tr_b16 %s, v11 offset:%d" % (v(RB + 4 * b + 2 * rd, 2), (b >> 1) * 2048 + rd * 512 + (b & 1) * 64))
            elif dst == "WINF":
                for rd in range(2):
                    k("ds_read_b64_tr_b16 %s, v12 offset:%d" % (v(RB + 4 * b + 2 * rd, 2), rd * 512 + b * 32))
            else:
                k("ds_read_b128 %s, v13 offset:%d" % (v(RB + 4 * b, 4), (b & 1) * 2048 + (b >> 1) * 64))
        unit_ids(r)
        srd_ws(k, 76, 6, dst)
        if dst in ("WOF", "WOUTF"):
            k("s_mul_i32 s42, s39, %d" % ((16 if dst == "WOF" else 28) * 8192))
            k("s_lshl_b32 s41, s38, 12")
            k("s_add_u32 s42, s42, s41")
            k("s_or_b32 s42, s42, s40")
            offs = [("s42", b * 1024) for b in range(4)]
        elif dst == "WSPF":
            k("s_lshr_b32 s42, s38, 2")
            k("s_lshl_b32 s42, s42, 5")
            k("s_add_u32 s42, s42, s39")
            k("s_lshl_b32 s42, s42, 14")
            k("s_and_b32 s41, s38, 3")
            k("s_lshl_b32 s41, s41, 11")
            k("s_add_u32 s42, s42, s41")
            k("s_or_b32 s42, s42, s40")
            k("s_add_u32 s41, s42, 8192")
            offs = [("s42", 0), ("s42", 1024), ("s41", 0), ("s41", 1024)]
        else:
            offs = []
            k("s_cmp_ge_u32 s39, 28")
            k("s_cselect_b32 s16, 28, 0")
            k("s_cselect_b32 s17, 7168, 0")
            k("s_sub_u32 s16, s39, s16")
            k("s_lshl_b32 s16, s16, 2")
            k("s_mul_i32 s41, s38, 14336")
            k("s_add_u32 s17, s17, s41")
            k("s_or_b32 s17, s17, s40")
            for b in range(4):
                k("s_add_u32 s41, s16, %d" % b)
                k("s_mul_i32 s42, s41, 147")
                k("s_lshr_b32 s42, s42, 10")
                k("s_mul_i32 s42, s42, %d" % (458752 - 7 * 1024))
                k("s_lshl_b32 s41, s41, 10")
                k("s_add_u32 s41, s41, s42")
                k("s_add_u32 s%d, s41, s17" % (28 + b))
                offs.append(("s%d" % (28 + b), 0))
        k("s_waitcnt lgkmcnt(0)")
        for b in range(4):
            k("buffer_store_dwordx4 %s, v%d, s[76:79], %s offen offset:%d sc1" % (v(RB + 4 * b, 4), VOFF, offs[b][0], offs[b][1]))
            ops.append(("st", r))

    srd_in(k, 48, 80, SZ["c"])
    srd_in(k, 52, 82, SZ["w_mod"])
    srd_ws(k, 56, 6, "MODP")
    poll.setup(k)
    k("s_barrier")
    k("s_barrier")
    nxt = 2
    for it in range(1, 16):
        while nxt < 16 and nxt <= it + 5 and nxt <= 2 * it + 1:
            dma(nxt)
            nxt += 1
            if it == 1 and nxt == 3:
                k.stamp(sb + 1)
        st = it - 1
        if st == 0:
            rp_load(0, True)
        if st % 2 == 0:
            r = st // 2 - 1
            if 0 <= r - 1 < len(ROUNDS):
                rp_store(r - 1)
            if 0 <= r < len(ROUNDS):
                rp_load(r)
            if r + 2 < len(ROUNDS):
                rp_load(r + 2, True)
        if st in (1, 3, 5, 7):
            g.loads(st - 1, st + 1)
            ops.extend([("gv", st)] * (3 if st == 1 else 2))
        if st == 9:
            wait_for(("gv", 1))
            g.silu()
        if st == 11:
            wait_for(("gv", 7))
            g.mac()
        if st == 12:
            code_prefetch(k, "m2_kernel", 8, 100, 16)
            ops.append(("cp", 0))
            g.red1()
        if st == 13:
            g.fin()
            ops.append(("st", 99))
        if it + 1 < 16:
            wait_for(("kv", it + 1))
        k.stamp(sb + 7 + it)
        if it == 15:
            break
        k("s_barrier")
    k.stamp_dump(31)
    k("s_endpgm")

    k.label(SLOW)
    k("s_waitcnt vmcnt(0)")
    LA, LB = k.uid("slowa"), k.uid("slowb")
    k("s_add_u32 s16, s%d, 0x400000" % S_KB)
    k("s_mov_b32 s%d, 0" % S_ST)
    k("v_mov_b32 v2, 0xff800000")
    k.label(LA)
    k("buffer_load_dwordx4 %s, v%d, %s, s16 offen sc1" % (v(KA_, 4), VOFF, s(SRD, 4)))
    k("buffer_load_dwordx4 %s, v%d, %s, s16 offen offset:1024 sc1" % (v(KB_, 4), VOFF, s(SRD, 4)))
    k("s_waitcnt vmcnt(0)")
    for m in qk(S0, "0"):
        k(m)
    max16(2, S0, False)
    k("s_add_u32 s16, s16, 2048")
    k("s_add_u32 s%d, s%d, 1" % (S_ST, S_ST))
    k("s_cmp_lt_u32 s%d, 64" % S_ST)
    k("s_cbranch_scc1 " + LA)
    set_nm(2)
    zero_state()
    k("s_add_u32 s16, s%d, 0x400000" % S_KB)
    k("s_add_u32 s17, s%d, 0x800000" % S_KB)
    k("s_mov_b32 s%d, 0" % S_ST)
    k.label(LB)
    k("buffer_load_dwordx4 %s, v%d, %s, s16 offen sc1" % (v(KA_, 4), VOFF, s(SRD, 4)))
    k("buffer_load_dwordx4 %s, v%d, %s, s16 offen offset:1024 sc1" % (v(KB_, 4), VOFF, s(SRD, 4)))
    k("buffer_load_dwordx4 %s, v%d, %s, s17 offen sc1" % (v(VA_, 4), VOFF, s(SRD, 4)))
    k("buffer_load_dwordx4 %s, v%d, %s, s17 offen offset:1024 sc1" % (v(VB_, 4), VOFF, s(SRD, 4)))
    k("s_waitcnt vmcnt(0)")
    for m in qk(S0, v(NM, 16)):
        k(m)
    for q in range(4):
        exps(S0, q)
    pv(VA_, P)
    pv(VB_, P + 4)
    k("s_add_u32 s16, s16, 2048")
    k("s_add_u32 s17, s17, 2048")
    k("s_add_u32 s%d, s%d, 1" % (S_ST, S_ST))
    k("s_cmp_lt_u32 s%d, 64" % S_ST)
    k("s_cbranch_scc1 " + LB)
    k("s_branch " + EPI)
```

```python
import struct
from asmlib import *

KA = dict(x=0, wqkv=8, wo=16, bx=24, w_in=32, w_sp=40, b_sp=48, w_out=56, c=64, w_mod=72, out=80, dbg=88, ws=96)
SZ = dict(x=4194304, wqkv=6291456, wo=2097152, w_in=7340032, w_sp=8388608, b_sp=4096, w_out=3670016, c=2048,
          w_mod=12582912, out=4194304)

WS = dict(
    MODP=(0x0, 98304),
        XN=(0x100000, 0x400000),
    QKV=(0x500000, 0xC00000),
    O=(0x1100000, 0x400000),
    X1=(0x1500000, 0x400000),
    Z1=(0x1900000, 0x700000),
    Z2=(0x2000000, 0x700000),
    U=(0x2700000, 0x700000),
)


def f2u(x):
    return struct.unpack("<I", struct.pack("<f", x))[0]


def fhex(x):
    return "0x%08x" % f2u(x)


def srd_in(k, dst, ptr, size):
    k("s_mov_b32 s%d, s%d" % (dst, ptr))
    k("s_mov_b32 s%d, s%d" % (dst + 1, ptr + 1))
    k("s_mov_b32 s%d, %d" % (dst + 2, size))
    k("s_mov_b32 s%d, 0x20000" % (dst + 3))


def srd_ws(k, dst, wsptr, region):
    off, size = WS[region]
    k("s_add_u32 s%d, s%d, %d" % (dst, wsptr, off))
    k("s_addc_u32 s%d, s%d, 0" % (dst + 1, wsptr + 1))
    k("s_mov_b32 s%d, %d" % (dst + 2, size))
    k("s_mov_b32 s%d, 0x20000" % (dst + 3))


def unpack_bf16(k, lo, hi, src):
    k("v_lshlrev_b32 v%d, 16, v%d" % (lo, src))
    k("v_and_b32 v%d, 0xffff0000, v%d" % (hi, src))


def srd_ws_sub(k, dst, wsptr, region, s_off, size):
    off, _ = WS[region]
    k("s_add_u32 s%d, s%d, %d" % (dst + 2, s_off, off))
    k("s_add_u32 s%d, s%d, s%d" % (dst, wsptr, dst + 2))
    k("s_addc_u32 s%d, s%d, 0" % (dst + 1, wsptr + 1))
    k("s_mov_b32 s%d, %d" % (dst + 2, size))
    k("s_mov_b32 s%d, 0x20000" % (dst + 3))


WS["EX"] = (0x3600000, 0x100000)
WS["EX2"] = (0x3600000, 0x40000)
WS["EX3"] = (0x3640000, 0x40000)
WS["FL"] = (0x3680000, 0x40000)
WS["XF"] = (0x2E00000, 0x400000)
WS["H2"] = (0x3200000, 0x400000)


LOG2E = 1.4426950408889634


class Gemv:
    def __init__(self, k, tid, s_cg, s_kc, srd_c, srd_w, srd_o, lds, V, S):
        self.__dict__.update(locals())

    def addr(self):
        k, V, S = self.k, self.V, self.S
        k("v_lshrrev_b32 v%d, 3, v%d" % (V, self.tid))
        k("v_and_b32 v%d, 7, v%d" % (V + 1, self.tid))
        k("s_mov_b32 s%d, 12288" % S)
        k("v_mul_lo_u32 v%d, v%d, s%d" % (V + 2, V, S))
        k("v_lshl_add_u32 v%d, v%d, 4, v%d" % (V + 2, V + 1, V + 2))
        k("s_mul_i32 s%d, s%d, %d" % (S + 1, self.s_kc, 256 * 12288))
        k("s_lshl_b32 s%d, s%d, 7" % (S, self.s_cg))
        k("s_add_u32 s%d, s%d, s%d" % (S + 1, S + 1, S))
        k("s_lshl_b32 s%d, s%d, 9" % (S + 2, self.s_kc))
        k("v_lshlrev_b32 v%d, 1, v%d" % (V + 3, self.tid))
        for i in range(8):
            k("s_add_u32 s%d, s%d, %d" % (S + 4 + i, S + 1, i * 32 * 12288))

    def loads(self, lo=0, hi=8):
        k, V, S = self.k, self.V, self.S
        if lo == 0:
            k("buffer_load_ushort v%d, v%d, %s, s%d offen" % (V + 4, V + 3, s(self.srd_c, 4), S + 2))
        for i in range(lo, hi):
            k("buffer_load_dwordx4 %s, v%d, %s, s%d offen" % (v(V + 8 + 4 * i, 4), V + 2, s(self.srd_w, 4), S + 4 + i))

    def silu(self):
        k, V = self.k, self.V
        k("v_lshlrev_b32 v%d, 16, v%d" % (V + 4, V + 4))
        k("v_mul_f32 v%d, %s, v%d" % (V + 5, fhex(-LOG2E), V + 4))
        k("v_exp_f32 v%d, v%d" % (V + 5, V + 5))
        k("v_add_f32 v%d, 1.0, v%d" % (V + 5, V + 5))
        k("v_rcp_f32 v%d, v%d" % (V + 5, V + 5))
        k("v_mul_f32 v%d, v%d, v%d" % (V + 4, V + 4, V + 5))
        k("v_cvt_pk_bf16_f32 v%d, v%d, v%d" % (V + 4, V + 4, V + 4))
        k("v_lshlrev_b32 v%d, 16, v%d" % (V + 4, V + 4))
        k("v_lshlrev_b32 v%d, 2, v%d" % (V + 3, self.tid))
        k("v_add_u32 v%d, %d, v%d" % (V + 3, self.lds, V + 3))
        k("ds_write_b32 v%d, v%d" % (V + 3, V + 4))
        k("s_waitcnt lgkmcnt(0)")

    def mac(self, wait=None):
        k, V = self.k, self.V
        k("v_lshlrev_b32 v%d, 2, v%d" % (V + 5, V))
        k("v_add_u32 v%d, %d, v%d" % (V + 5, self.lds, V + 5))
        for i in range(8):
            k("ds_read_b32 v%d, v%d offset:%d" % (V + 40 + i, V + 5, i * 128))
        for j in range(8):
            k("v_mov_b32 v%d, 0" % (V + 48 + j))
        k("s_waitcnt lgkmcnt(0)")
        for i in range(8):
            if wait:
                wait(i)
            for d in range(4):
                unpack_bf16(k, V + 56 + 2 * (d & 1), V + 57 + 2 * (d & 1), V + 8 + 4 * i + d)
                k("v_fmac_f32 v%d, v%d, v%d" % (V + 48 + 2 * d, V + 56 + 2 * (d & 1), V + 40 + i))
                k("v_fmac_f32 v%d, v%d, v%d" % (V + 49 + 2 * d, V + 57 + 2 * (d & 1), V + 40 + i))
        k("v_lshlrev_b32 v%d, 5, v%d" % (V + 5, self.tid))
        k("v_add_u32 v%d, %d, v%d" % (V + 5, self.lds + 1024, V + 5))
        k("ds_write_b128 v%d, %s" % (V + 5, v(V + 48, 4)))
        k("ds_write_b128 v%d, %s offset:16" % (V + 5, v(V + 52, 4)))
        k("s_waitcnt lgkmcnt(0)")

    def red1(self):
        k, V = self.k, self.V
        k("v_and_b32 v%d, 63, v%d" % (V + 5, self.tid))
        k("v_lshrrev_b32 v%d, 6, v%d" % (V + 6, self.tid))
        k("v_lshlrev_b32 v%d, 11, v%d" % (V + 6, V + 6))
        k("v_lshl_add_u32 v%d, v%d, 2, v%d" % (V + 6, V + 5, V + 6))
        k("v_add_u32 v%d, %d, v%d" % (V + 6, self.lds + 1024, V + 6))
        for i in range(8):
            k("ds_read_b32 v%d, v%d offset:%d" % (V + 40 + i, V + 6, i * 256))
        k("s_waitcnt lgkmcnt(0)")
        for st in (4, 2, 1):
            for i in range(st):
                k("v_add_f32 v%d, v%d, v%d" % (V + 40 + i, V + 40 + i, V + 40 + i + st))
        k("ds_write_b32 v%d, v%d offset:9216" % (V + 3, V + 40))
        k("s_waitcnt lgkmcnt(0)")

    def fin(self, mods=""):
        k, V, S = self.k, self.V, self.S
        k("v_lshlrev_b32 v%d, 2, v%d" % (V + 5, V + 5))
        k("v_add_u32 v%d, %d, v%d" % (V + 6, self.lds + 9216, V + 5))
        for i in range(4):
            k("ds_read_b32 v%d, v%d offset:%d" % (V + 40 + i, V + 6, i * 256))
        k("s_mul_i32 s%d, s%d, %d" % (S + 1, self.s_kc, 6144 * 4))
        k("s_lshl_b32 s%d, s%d, 8" % (S, self.s_cg))
        k("s_add_u32 s%d, s%d, s%d" % (S + 1, S + 1, S))
        k("s_waitcnt lgkmcnt(0)")
        k("v_add_f32 v%d, v%d, v%d" % (V + 40, V + 40, V + 41))
        k("v_add_f32 v%d, v%d, v%d" % (V + 42, V + 42, V + 43))
        k("v_add_f32 v%d, v%d, v%d" % (V + 40, V + 40, V + 42))
        k("buffer_store_dword v%d, v%d, %s, s%d offen%s" % (V + 40, V + 5, s(self.srd_o, 4), S + 1, mods))


WS["WOF"] = (0x3800000, 0x200000)
WS["WOUTF"] = (0x3A00000, 0x380000)
WS["WINF"] = (0x3E00000, 0x700000)
WS["WSPF"] = (0x4600000, 0x800000)
WS["H"] = (0x1500000, 0x400000)
WS["WQF"] = (0x1900000, 0x600000)


def code_prefetch(k, target, vidx, vt, st):
    PC = k.uid("pc")
    k("s_getpc_b64 s[%d:%d]" % (st, st + 1))
    k.label(PC)
    k("s_add_u32 s%d, s%d, %s-%s" % (st, st, target, PC))
    k("s_addc_u32 s%d, s%d, 0" % (st + 1, st + 1))
    k("v_lshlrev_b32 v%d, 7, v%d" % (vt, vidx))
    k("v_min_u32 v%d, L_%s_codeend-%s-4, v%d" % (vt, target, target, vt))
    k("v_mov_b32 v%d, s%d" % (vt + 1, st + 1))
    k("v_add_co_u32 v%d, vcc, s%d, v%d" % (vt, st, vt))
    k("v_addc_co_u32 v%d, vcc, 0, v%d, vcc" % (vt + 1, vt + 1))
    k("global_load_dword v%d, v[%d:%d], off" % (vt + 2, vt, vt + 1))
WS["PAD"] = (0x20000, 256)
```

```python
from common import *

OOB = 0x7f000000

S_WAVE, S_BM, S_BN, S_ROT = 3, 20, 21, 22
SRD_X, SRD_W = 24, 28
SRD_E0, SRD_E1, SRD_E2, SRD_E3 = 32, 36, 40, 44
V_LANE = 1


def map_blocks(k, lg_am, an, xm_bits):
    k("s_and_b32 s48, s2, 7")
    k("s_lshr_b32 s49, s2, 3")
    k("s_and_b32 s50, s49, %d" % ((1 << lg_am) - 1))
    k("s_lshr_b32 s51, s49, %d" % lg_am)
    if DBG["fine"] and an == 8:
        k("s_xor_b32 s51, s51, 5")
    k("s_and_b32 s52, s48, %d" % ((1 << xm_bits) - 1))
    k("s_lshl_b32 s52, s52, %d" % lg_am)
    k("s_add_u32 s%d, s52, s50" % S_BM)
    k("s_lshr_b32 s52, s48, %d" % xm_bits)
    k("s_mul_i32 s52, s52, %d" % an)
    k("s_add_u32 s%d, s52, s51" % S_BN)


class Dma:
    def __init__(self, srd, pieces, stride, ring, slot, sbase):
        self.srd, self.pieces, self.stride, self.ring, self.slot, self.sbase = srd, pieces, stride, ring, slot, sbase
        self.half_last = False

    def wave_bytes(self):
        return len(self.pieces) * 1024 - (512 if self.half_last else 0)


DBG = dict(fine=False, no_dsw=False, no_valu=False, l2hit=False, no_cons=False, no_prod=False, no_xf=False, no_mfma=False, no_reads=False)


def cons_phase(k, cfg, sb=0):
    T, MT, NT = cfg["T"], cfg["MT"], cfg["NT"]
    xr, wr = cfg["x_ring"], cfg["w_ring"]
    ACC = cfg["ACC"]
    FR = cfg["FRAG"]
    fsz = 4 * (MT + NT)
    VX0, VW0, VX, VW = 4, 5, 6, 10
    if cfg["wgrid"] == "2x2":
        k("s_lshr_b32 s48, s%d, 1" % S_WAVE)
        k("s_and_b32 s49, s%d, 1" % S_WAVE)
    else:
        k("s_mov_b32 s48, s%d" % S_WAVE)
        k("s_mov_b32 s49, 0")
    S_WM, S_WN = 48, 49
    if cfg.get("table"):
        cfg["table"](k)
        k("s_waitcnt lgkmcnt(0)")
        k("s_barrier")
    if cfg.get("cons_pre"):
        cfg["cons_pre"](k)
    swz = cfg["x_mode"] == "dma_swz"
    if swz:
        k("v_and_b32 v2, 31, v%d" % V_LANE)
        k("v_lshrrev_b32 v3, 5, v%d" % V_LANE)
        k("v_bfe_u32 v%d, v%d, 1, 3" % (VX0, V_LANE))
        k("v_xor_b32 v%d, v%d, v3" % (VX0, VX0))
        k("v_lshlrev_b32 v%d, 4, v%d" % (VX0, VX0))
        k("v_lshl_add_u32 v%d, v2, 7, v%d" % (VX0, VX0))
        k("s_mul_i32 s50, s%d, %d" % (S_WM, MT * 4096))
        k("s_add_u32 s50, s50, %d" % xr[0])
        k("v_add_u32 v%d, s50, v%d" % (VX0, VX0))
    else:
        k("s_mul_i32 s50, s%d, %d" % (S_WM, MT * 1024))
        k("s_add_u32 s50, s50, %d" % xr[0])
        k("v_lshl_add_u32 v%d, v%d, 4, s50" % (VX0, V_LANE))
    blk32 = cfg.get("w_mode") == "blk32"
    wfm = cfg.get("w_mode") == "fm"
    if wfm:
        k("v_lshlrev_b32 v%d, 4, v%d" % (VW0, V_LANE))
    elif blk32:
        k("v_bfe_u32 v2, v%d, 4, 1" % V_LANE)
        k("v_mul_u32_u24 v%d, 1152, v2" % VW0)
        k("v_lshrrev_b32 v2, 5, v%d" % V_LANE)
        k("v_lshl_add_u32 v%d, v2, 8, v%d" % (VW0, VW0))
        k("v_and_b32 v2, 15, v%d" % V_LANE)
        k("v_lshl_add_u32 v%d, v2, 3, v%d" % (VW0, VW0))
    else:
        W_HH, W_RD, W_KS = cfg["w_strides"]
        k("v_lshrrev_b32 v2, 5, v%d" % V_LANE)
        k("v_mul_u32_u24 v%d, %d, v2" % (VW0, W_HH))
        k("v_bfe_u32 v2, v%d, 2, 2" % V_LANE)
        k("v_lshl_add_u32 v%d, v2, 6, v%d" % (VW0, VW0))
        k("v_bfe_u32 v2, v%d, 4, 1" % V_LANE)
        k("v_lshl_add_u32 v%d, v2, 5, v%d" % (VW0, VW0))
        k("v_and_b32 v2, 3, v%d" % V_LANE)
        k("v_lshl_add_u32 v%d, v2, 3, v%d" % (VW0, VW0))
    k("s_mul_i32 s50, s%d, %d" % (S_WN, cfg["w_wave_stride"]))
    k("s_add_u32 s50, s50, %d" % wr[0])
    k("v_add_u32 v%d, s50, v%d" % (VW0, VW0))
    for i in range(16 * MT * NT):
        k("v_mov_b32 v%d, 0" % (ACC + i))
    S_XS, S_WS, S_T = 52, 53, 54

    def set_addr():
        k("v_add_u32 v%d, s%d, v%d" % (VX, S_XS, VX0))
        k("v_add_u32 v%d, s%d, v%d" % (VW, S_WS, VW0))
        if swz:
            for ks in range(1, 4):
                k("v_xor_b32 v%d, %d, v%d" % (VX + ks, ks * 32, VX))
        if blk32:
            k("v_xor_b32 v%d, 128, v%d" % (VW + 1, VW))

    def adv_slots():
        for (sr, ring) in ((S_XS, xr), (S_WS, wr)):
            k("s_add_u32 s%d, s%d, %d" % (sr, sr, ring[1]))
            k("s_cmp_ge_u32 s%d, %d" % (sr, ring[1] * ring[2]))
            k("s_cselect_b32 s%d, 0, s%d" % (sr, sr))

    def reads(ks, f):
        o = []
        base = FR + f * fsz
        xs, ws = [], []
        for i in range(MT):
            if swz:
                xs.append("ds_read_b128 %s, v%d offset:%d" % (v(base + 4 * i, 4), VX + ks, i * 4096))
            else:
                xs.append("ds_read_b128 %s, v%d offset:%d" % (v(base + 4 * i, 4), VX, ks * cfg.get("x_ks", 4096) + i * 1024))
        if wfm:
            ws = ["ds_read_b128 %s, v%d offset:%d" % (v(base + 4 * MT + 4 * j, 4), VW, (ks * NT + j) * 1024) for j in range(NT)]
            return xs[:1] + ws[:1] + xs[1:] + ws[1:]
        for j in range(NT):
            for rd in range(2):
                if blk32:
                    reg, off = VW + rd, cfg["w_tile_off"](j) + (ks >> 1) * 8192 + (ks & 1) * 512
                else:
                    reg, off = VW, cfg["w_tile_off"](j) + ks * W_KS + rd * W_RD
                ws.append("ds_read_b64_tr_b16 %s, v%d offset:%d" % (v(base + 4 * MT + 4 * j + 2 * rd, 2), reg, off))
        o.append(xs[0])
        o += ws[0:2]
        o += xs[1:]
        o += ws[2:]
        return o

    def mfmas(f):
        o = []
        base = FR + f * fsz
        for j in range(NT):
            for i in range(MT):
                acc = v(ACC + 16 * (i * NT + j), 16)
                xf, wf = v(base + 4 * i, 4), v(base + 4 * MT + 4 * j, 4)
                if cfg.get("swap_tile", lambda j: False)(j):
                    o.append("v_mfma_f32_32x32x16_bf16 %s, %s, %s, %s" % (acc, xf, wf, acc))
                else:
                    o.append("v_mfma_f32_32x32x16_bf16 %s, %s, %s, %s" % (acc, wf, xf, acc))
        return o

    def interleave(ms, rs, per):
        rs = list(rs)
        if DBG["no_cons"]:
            return
        if DBG["no_mfma"]:
            ms = []
        if DBG["no_reads"]:
            rs = []
        for m in ms:
            k(m)
            for _ in range(per):
                if rs:
                    k(rs.pop(0))
        for r in rs:
            k(r)

    k("s_mov_b32 s%d, 0" % S_XS)
    k("s_mov_b32 s%d, 0" % S_WS)
    k("s_mov_b32 s%d, 0" % S_T)
    set_addr()
    k.stamp(sb + 1)
    k("s_barrier")
    k.stamp(sb + 2)
    PD = cfg.get("PD", 1)
    NF = 2 if PD == 1 else 4
    for ks in range(PD):
        for r in reads(ks, ks % NF):
            k(r)
    if cfg.get("cons_loads"):
        cfg["cons_loads"](k)
    LOOP = k.uid("cloop")
    nrd = MT + (NT if wfm else 2 * NT)
    per = cfg.get("reads_per_mfma", max(2, -(-nrd // max(1, MT * NT - 1))))
    nbar = cfg.get("mfma_before_barrier", 1)
    k.label(LOOP)
    for ks in range(4):
        ms = mfmas(ks % NF)
        nxt = (ks + PD) % 4
        k("s_waitcnt lgkmcnt(%d)" % min(15, nrd * (PD - 1)))
        if ks + PD == 4:
            for m in ms[:nbar]:
                k(m)
            set_addr()
            if PD > 1:
                k("s_waitcnt lgkmcnt(0)")
            k("s_barrier")
            interleave(ms[nbar:], reads(nxt, nxt % NF), per + 1)
        else:
            interleave(ms, reads(nxt, nxt % NF), per)
        if ks == 0:
            adv_slots()
            k("s_add_u32 s%d, s%d, 1" % (S_T, S_T))
    k("s_cmp_lt_u32 s%d, %d" % (S_T, T))
    k("s_cbranch_scc1 " + LOOP)
    k("s_waitcnt lgkmcnt(0)")
    k.stamp(sb + 3)
    cfg["epilogue"](k)
    k.stamp(sb + 4)


def cons_phase16(k, cfg, sb=0):
    T, NT = cfg["T"], cfg["NT"]
    xr, wr = cfg["x_ring"], cfg["w_ring"]
    ACC, FR = cfg["ACC"], cfg["FRAG"]
    tr = cfg["w_mode"] == "tr16"
    VX0, VW0, VX, VW = 4, 5, 6, 10
    XF, WF, RW = FR, FR + 16, 7
    D = cfg.get("D", 6 if tr else 7)
    PAUSE = cfg.get("pause", 3)
    NI = 2 * NT
    if cfg.get("cons_pre"):
        cfg["cons_pre"](k)
    k("s_lshl_b32 s50, s%d, 11" % S_WAVE)
    k("s_add_u32 s50, s50, %d" % xr[0])
    k("v_lshl_add_u32 v%d, v%d, 4, s50" % (VX0, V_LANE))
    if tr:
        k("v_lshrrev_b32 v2, 5, v%d" % V_LANE)
        k("v_lshlrev_b32 v%d, 9, v2" % VW0)
        k("v_and_b32 v2, 31, v%d" % V_LANE)
        k("v_lshl_add_u32 v%d, v2, 3, v%d" % (VW0, VW0))
    else:
        k("v_lshlrev_b32 v%d, 4, v%d" % (VW0, V_LANE))
    k("v_add_u32 v%d, %d, v%d" % (VW0, wr[0], VW0))
    for i in range(8 * NT):
        k("v_mov_b32 v%d, 0" % (ACC + i))
    S_XS, S_WS, S_T = 52, 53, 54

    def set_addr():
        k("v_add_u32 v%d, s%d, v%d" % (VX, S_XS, VX0))
        k("v_add_u32 v%d, s%d, v%d" % (VW, S_WS, VW0))

    def reads(n):
        ks, ct = n // NT, n % NT
        o = []
        if ct == 0:
            for rt in range(2):
                o.append("ds_read_b128 %s, v%d offset:%d" % (v(XF + 8 * ks + 4 * rt, 4), VX, ks * 8192 + rt * 1024))
        w = WF + 4 * (n % RW)
        if tr:
            for rd in range(2):
                o.append("ds_read_b64_tr_b16 %s, v%d offset:%d" % (v(w + 2 * rd, 2), VW, n * 1024 + rd * 256))
        else:
            o.append("ds_read_b128 %s, v%d offset:%d" % (v(w, 4), VW, n * 1024))
        return o

    after = [[] for _ in range(NI)]
    nb = NI - D + PAUSE
    for n in range(NI - D):
        after[n].append(n + D)
    pend = list(range(NI, NI + D))
    left = NI - nb
    for n in range(nb, NI):
        take = -(-len(pend) // (NI - n))
        after[n] += pend[:take]
        pend = pend[take:]
    for n in range(NI):
        for m in after[n]:
            assert m - RW <= n
    q = []
    for m in range(D):
        q += [m] * len(reads(m))
    waits = {}
    for rep in range(2):
        for n in range(NI):
            g = rep * NI + n
            idx = [i for i, o in enumerate(q) if o <= g]
            waits[(rep, n)] = len(q) - 1 - max(idx) if idx else None
            if idx:
                q = q[max(idx) + 1:]
            if n == nb:
                q = []
            for m in after[n]:
                q += [rep * NI + m] * len(reads(m % NI))
    k("s_mov_b32 s%d, 0" % S_XS)
    k("s_mov_b32 s%d, 0" % S_WS)
    k("s_mov_b32 s%d, 0" % S_T)
    set_addr()
    k.stamp(sb + 1)
    k("s_barrier")
    k.stamp(sb + 2)
    for m in range(D):
        for r in reads(m):
            k(r)
    if cfg.get("cons_loads"):
        cfg["cons_loads"](k)
    book = []
    for (sr, ring) in ((S_XS, xr), (S_WS, wr)):
        book += ["s_add_u32 s%d, s%d, %d" % (sr, sr, ring[1]), "s_cmp_ge_u32 s%d, %d" % (sr, ring[1] * ring[2]),
                 "s_cselect_b32 s%d, 0, s%d" % (sr, sr)]
    book += ["s_add_u32 s%d, s%d, 1" % (S_T, S_T), "s_cmp_lt_u32 s%d, %d" % (S_T, T)]
    assert len(book) <= nb
    LOOP = k.uid("cloop")
    k.label(LOOP)
    for n in range(NI):
        ks, ct = n // NT, n % NT
        assert waits[(0, n)] == waits[(1, n)]
        if waits[(1, n)] is not None:
            assert waits[(1, n)] <= 15
            WG_ = cfg.get("wgroup", 1)
            if n % WG_ == 0:
                nr = sum(len(reads(m)) for m in range(n + 1, min(NI, n + WG_)) if waits[(1, m)] is not None)
                k("s_waitcnt lgkmcnt(%d)" % max(0, waits[(1, n)] - nr))
        rs = [r for m in after[n] for r in reads(m % NI)]
        for rt in range(2):
            acc = v(ACC + 4 * (ct * 2 + rt), 4)
            k("v_mfma_f32_16x16x32_bf16 %s, %s, %s, %s" % (acc, v(WF + 4 * (n % RW), 4), v(XF + 8 * ks + 4 * rt, 4), acc))
            if rt == 0 and n == nb:
                set_addr()
                k("s_waitcnt lgkmcnt(0)")
                k("s_barrier")
            if rt == 0 and n != nb:
                own = v(WF + 4 * (n % RW), 4)[2:].split(":")[0]
                early = [r for r in rs if all(m - RW < n for m in after[n])][:(len(rs) + 1) // 2]
                for r in early:
                    k(r)
                rs = rs[len(early):]
        for r in rs:
            k(r)
        if n < len(book):
            k(book[n])
    k("s_cbranch_scc1 " + LOOP)
    k("s_waitcnt lgkmcnt(0)")
    k.stamp(sb + 3)
    cfg["epilogue"](k)
    k.stamp(sb + 4)


def prod_phase(k, cfg, sb=0, first=False):
    T, NS = cfg["T"], cfg["NS"]
    dmas = cfg["dma_setup"](k)
    S_TMP, S_OFF, S_M, S_IT = 66, 68, 72, 77
    for n, d in enumerate(dmas):
        k("s_mov_b32 s%d, s%d" % (S_OFF + n, d.sbase))
        k("s_mul_i32 s%d, s%d, %d" % (S_M + n, S_WAVE, d.wave_bytes()))
        k("s_add_u32 s%d, s%d, %d" % (S_M + n, S_M + n, d.ring))
        k("s_add_u32 s%d, s%d, %d" % (S_M + 2 + n, S_M + n, d.slot * NS))
    if first:
        k("s_waitcnt lgkmcnt(0)")
    cfg["srds_p"](k)
    k.stamp(sb + 1)

    def step(which):
        cnt = 0
        for n, d in enumerate(dmas):
            if n not in which:
                continue
            for i, vreg in enumerate(d.pieces):
                if i % 4 == 0:
                    c = (i // 4) * 4096
                    k("s_add_u32 m0, s%d, %d" % (S_M + n, c) if c else "s_mov_b32 m0, s%d" % (S_M + n))
                half = d.half_last and i == len(d.pieces) - 1
                if half:
                    k("s_mov_b32 exec_hi, 0")
                k("buffer_load_dwordx4 v%d, %s, s%d offen offset:%d%s lds" %
                  (vreg, s(d.srd, 4), S_OFF + n, (i % 4) * 1024, " sc1" if getattr(d, "dep", False) else ""))
                if half:
                    k("s_mov_b32 exec_hi, -1")
                cnt += 1
            k("s_add_u32 s%d, s%d, %d" % (S_OFF + n, S_OFF + n, d.stride))
            k("s_add_u32 s%d, s%d, %d" % (S_M + n, S_M + n, d.slot))
            k("s_cmp_ge_u32 s%d, s%d" % (S_M + n, S_M + 2 + n))
            k("s_cselect_b32 s%d, %d, 0" % (S_TMP, d.slot * NS))
            k("s_sub_u32 s%d, s%d, s%d" % (S_M + n, S_M + n, S_TMP))
        return cnt

    allops = list(range(len(dmas)))
    nD = sum(len(d.pieces) for d in dmas)
    pl = cfg.get("poll")
    ops = []

    def issue(which, st):
        ops.extend([st] * step(which))

    def wait_step(st):
        last = max(i for i, o in enumerate(ops) if o == st)
        k("s_waitcnt vmcnt(%d)" % min(63, len(ops) - 1 - last))

    if pl:
        dep = [n for n in allops if getattr(dmas[n], "dep", False)]
        free = [n for n in allops if n not in dep]
        early = NS - 1 - min(NS - 1, cfg.get("late_free", 0))
        for st in range(early):
            issue(free, st)
        pl.setup(k)
        for st in range(early, NS - 1):
            issue(free, st)
        for st in range(NS - 1):
            pl.need(k)
            if st == 0:
                k.stamp(sb + 2)
            issue(dep, st)
    else:
        if cfg.get("prod_pre_load"):
            cfg["prod_pre_load"](k)
        for st in range(NS - 1):
            issue(allops, st)
        k.stamp(sb + 2)
    wait_step(0)
    if cfg.get("prod_pre_fin"):
        cfg["prod_pre_fin"](k)
    k.stamp(sb + 3)
    k("s_barrier")
    npeel = NS - 3 if pl else 0
    for t in range(npeel):
        pl.need(k)
        issue(allops, t + NS - 1)
        wait_step(t + 1)
        k("s_barrier")
    k("s_mov_b32 s%d, %d" % (S_IT, npeel))
    LOOP = k.uid("ploop")
    k.label(LOOP)
    if pl:
        pl.need(k)
    if not DBG["no_prod"]:
        step(allops)
    if DBG["l2hit"]:
        for n, d in enumerate(dmas):
            k("s_cmp_ge_u32 s%d, %d" % (S_OFF + n, 6 * d.stride))
            k("s_cselect_b32 s%d, 0, s%d" % (S_OFF + n, S_OFF + n))
    k("s_add_u32 s%d, s%d, 1" % (S_IT, S_IT))
    k("s_cmp_lt_u32 s%d, %d" % (S_IT, T - (NS - 1)))
    k("s_waitcnt vmcnt(%d)" % ((NS - 2) * nD))
    k("s_barrier")
    k("s_cbranch_scc1 " + LOOP)
    for r in range(NS - 3, -1, -1):
        k("s_waitcnt vmcnt(%d)" % (r * nD))
        k("s_barrier")
    k("s_barrier")
    k.stamp(sb + 4)


def gemm(name, cfg):
    k = Kern(name)
    T, NWG = cfg["T"], cfg["NWG"]
    MT, NT = cfg["MT"], cfg["NT"]
    NS = cfg["NS"]
    NP = cfg.get("NP", 4)
    NB_ = 16 // NP
    END, PROD = k.uid("end"), k.uid("prod")
    k("s_cmp_ge_u32 s2, %d" % NWG)
    k("s_cbranch_scc1 " + END)
    k.kidx = cfg.get("kidx", 0)
    k.stamp_init()
    cfg["load_ptrs"](k)
    k("v_lshrrev_b32 v2, 6, v0")
    k("v_and_b32 v%d, 63, v0" % V_LANE)
    k("v_readfirstlane_b32 s%d, v2" % S_WAVE)
    cfg["map"](k)
    k("s_cmp_ge_u32 s%d, 4" % S_WAVE)
    k("s_cbranch_scc1 " + PROD)
    k("s_waitcnt lgkmcnt(0)")
    cfg["srds_c"](k)

    cons_phase(k, cfg)
    k.stamp_dump(5)
    k("s_endpgm")

    k.label(PROD)
    if cfg.get("pprio", 0):
        k("s_setprio %d" % cfg["pprio"])
    k("s_sub_u32 s%d, s%d, 4" % (S_WAVE, S_WAVE))
    dmas = cfg["dma_setup"](k)
    vg = cfg.get("vg")
    S_TMP, S_OFF, S_M = 66, 68, 72
    S_VOFF, S_IT = 76, 77
    nD = sum(len(d.pieces) for d in dmas)
    static_ring = NS in (2, 4)
    for n, d in enumerate(dmas):
        k("s_mov_b32 s%d, s%d" % (S_OFF + n, d.sbase))
        k("s_mul_i32 s%d, s%d, %d" % (S_M + n, S_WAVE, len(d.pieces) * 1024))
        k("s_add_u32 s%d, s%d, %d" % (S_M + n, S_M + n, d.ring))
        if not static_ring:
            k("s_add_u32 s%d, s%d, %d" % (S_M + 2 + n, S_M + n, d.slot * NS))
    if vg:
        VR, VOFF, VLDS = vg["regs"], vg["voff"], vg["vlds"]
        k("s_mul_i32 s%d, s%d, %d" % (S_TMP, S_WAVE, NB_ * 1024))
        k("v_lshl_add_u32 v%d, v%d, 4, s%d" % (VOFF, V_LANE, S_TMP))
        k("v_add_u32 v%d, %d, v%d" % (VLDS, vg["ring"], VOFF))
        k("s_mov_b32 s%d, 0" % S_VOFF)
    k("s_waitcnt lgkmcnt(0)")
    cfg["srds_p"](k)
    k.stamp(1)

    def dma_items(step):
        o = []
        for n, d in enumerate(dmas):
            for i, vreg in enumerate(d.pieces):
                g = []
                if i % 4 == 0:
                    c = (i // 4) * 4096 + ((step % NS) * d.slot if static_ring else 0)
                    g.append("s_add_u32 m0, s%d, %d" % (S_M + n, c) if c else "s_mov_b32 m0, s%d" % (S_M + n))
                g.append("buffer_load_dwordx4 v%d, %s, s%d offen offset:%d lds" % (vreg, s(d.srd, 4), S_OFF + n, (i % 4) * 1024))
                if i == len(d.pieces) - 1:
                    g.append("s_add_u32 s%d, s%d, %d" % (S_OFF + n, S_OFF + n, d.stride))
                    if not static_ring:
                        g.append("s_add_u32 s%d, s%d, %d" % (S_M + n, S_M + n, d.slot))
                        g.append("s_cmp_ge_u32 s%d, s%d" % (S_M + n, S_M + 2 + n))
                        g.append("s_cselect_b32 s%d, %d, 0" % (S_TMP, d.slot * NS))
                        g.append("s_sub_u32 s%d, s%d, s%d" % (S_M + n, S_M + n, S_TMP))
                o.append(g)
        return o

    def emit(groups):
        for g in groups:
            for l in g:
                k(l)

    if vg:
        def vg_items(set_):
            o = []
            for i in range(NB_):
                g = ["buffer_load_dwordx4 %s, v%d, %s, s%d offen offset:%d" %
                     (v(VR + 16 * set_ + 4 * i, 4), VOFF, s(vg["srd"], 4), S_VOFF, i * 1024)]
                if i == NB_ - 1:
                    g.append("s_add_u32 s%d, s%d, 16384" % (S_VOFF, S_VOFF))
                o.append(g)
            return o

        def xform_list(step):
            set_ = step % 4
            o = []
            for i in range(NB_):
                o += vg["xform"](VR + 16 * set_ + 4 * i, i, step % 2)
                o.append("ds_write_b128 v%d, %s offset:%d" % (VLDS, v(VR + 16 * set_ + 4 * i, 4), (step % 2) * 16384 + i * 1024))
            return o

        emit(vg_items(0))
        emit(dma_items(0))
        k("s_barrier")
        emit([vg["params"](0)])
        emit([vg["params"](1)])
        emit(vg_items(1))
        k("s_waitcnt vmcnt(%d) lgkmcnt(0)" % (NB_ + nD))
        k.stamp(2)
        for l in xform_list(0):
            k(l)
        for st in range(1, NS - 1):
            emit(dma_items(st))
        emit(vg_items(2))
        k("s_waitcnt vmcnt(%d) lgkmcnt(0)" % (NB_ + (NS - 2) * nD))
        k.stamp(3)
        k("s_barrier")
        k("s_mov_b32 s%d, 0" % S_IT)
        LOOP = k.uid("ploop")
        k.label(LOOP)
        for u in range(4):
            mem = vg_items((u + 3) % 4) + dma_items(u + NS - 1)
            xf = xform_list(u + 1)
            mem.append(vg["params"](u % 2))
            if DBG["no_prod"]:
                mem, xf = [["s_nop 0"]], []
            if DBG["no_xf"]:
                xf = []
            if DBG["no_dsw"]:
                xf = [l for l in xf if not l.startswith("ds_write")]
            if DBG["no_valu"]:
                xf = [l for l in xf if l.startswith("ds_write")]
            tail = cfg.get("tail", 2)
            par = mem.pop()
            xf = par + xf
            ng = max(1, len(mem) - tail)
            gap = len(xf) / float(ng)
            pos, j = 0.0, 0
            for g in mem:
                emit([g])
                pos += gap
                while j < len(xf) and j < int(pos + 0.5):
                    k(xf[j])
                    j += 1
            if u == 3 and DBG["l2hit"]:
                k("s_mov_b32 s%d, 0" % S_VOFF)
                for n, d in enumerate(dmas):
                    k("s_mov_b32 s%d, s%d" % (S_OFF + n, d.sbase))
            if u == 3:
                k("s_add_u32 s%d, s%d, 4" % (S_IT, S_IT))
                k("s_cmp_lt_u32 s%d, %d" % (S_IT, T))
            k("s_waitcnt vmcnt(%d) lgkmcnt(0)" % (NB_ + nD))
            k("s_barrier")
        k("s_cbranch_scc1 " + LOOP)
    else:
        if cfg.get("prod_pre_load"):
            cfg["prod_pre_load"](k)
        for st in range(NS - 1):
            emit(dma_items(st))
        k.stamp(2)
        k("s_waitcnt vmcnt(%d)" % ((NS - 2) * nD))
        if cfg.get("prod_pre_fin"):
            cfg["prod_pre_fin"](k)
        k.stamp(3)
        k("s_barrier")
        k("s_mov_b32 s%d, 0" % S_IT)
        LOOP = k.uid("ploop")
        k.label(LOOP)
        U = 4 if static_ring else 1
        for u in range(U):
            if not DBG["no_prod"]:
                emit(dma_items(u + NS - 1))
            if u == U - 1 and DBG["l2hit"]:
                for n, d in enumerate(dmas):
                    k("s_mov_b32 s%d, s%d" % (S_OFF + n, d.sbase))
            if u == U - 1:
                k("s_add_u32 s%d, s%d, %d" % (S_IT, S_IT, U))
                k("s_cmp_lt_u32 s%d, %d" % (S_IT, T))
            k("s_waitcnt vmcnt(%d)" % ((NS - 2) * nD))
            k("s_barrier")
        k("s_cbranch_scc1 " + LOOP)
    k("s_waitcnt vmcnt(0)")
    k.stamp_dump(5)
    k.label(END)
    k("s_endpgm")
    txt, n = k.finish(vgprs=cfg["vgprs"], sgprs=96)
    return txt, "; @launch kernel=%s grid=(%d,1,1) block=(%d,1,1) lds=%d" % (name, NWG, 256 + 64 * NP, cfg["lds"])
```

```python
from common import *
from gemms import stats_to_affine, BCAST


def gen_k1(name="k1_kernel"):
    k = Kern(name)
    END, LN, RP = k.uid("end"), k.uid("ln"), k.uid("rp")
    k("s_cmp_ge_u32 s2, 384")
    k("s_cbranch_scc1 " + END)
    k.kidx = 0
    k.stamp_init()
    k("s_load_dwordx4 s[56:59], s[0:1], %d" % KA["x"])
    k("s_load_dwordx4 s[8:11], s[0:1], %d" % KA["c"])
    k("s_load_dwordx4 s[4:7], s[0:1], %d" % KA["dbg"])
    k("s_cmp_ge_u32 s2, 128")
    k("s_cbranch_scc1 " + LN)
    k("s_lshr_b32 s12, s2, 2")
    k("s_and_b32 s13, s2, 3")
    g = Gemv(k, 0, 12, 13, 20, 24, 28, 0, 8, 32)
    g.addr()
    k("s_waitcnt lgkmcnt(0)")
    srd_in(k, 20, 8, SZ["c"])
    srd_in(k, 24, 10, SZ["w_mod"])
    g.loads()
    srd_ws(k, 28, 6, "MODP")
    srd_in(k, 48, 4, 256)
    k.stamp(1)
    k("s_waitcnt vmcnt(8)")
    k.stamp(2)
    g.silu()
    k("s_barrier")
    g.mac(lambda i: k("s_waitcnt vmcnt(%d)" % (7 - i)))
    k.stamp(3)
    k("s_barrier")
    g.red1()
    k("s_barrier")
    k("v_cmp_gt_u32 vcc, 64, v0")
    k("s_and_saveexec_b64 s[60:61], vcc")
    k("s_cbranch_execz " + END)
    g.fin(" sc1")
    NL = k.uid("notlast")
    k("v_mov_b32 v2, 0")
    k("v_mov_b32 v3, 1")
    k("s_waitcnt vmcnt(0)")
    k("s_mov_b64 exec, 1")
    k("buffer_atomic_add v3, v2, s[48:51], 0 offen sc0")
    k("s_waitcnt vmcnt(0)")
    k("v_cmp_eq_u32 vcc, 127, v3")
    k("s_cbranch_vccz " + NL)
    k("buffer_store_dword v3, v2, s[48:51], 0 offen offset:128 sc1")
    k.label(NL)
    k.stamp(4)
    k.stamp_dump(5)
    k("s_endpgm")

    k.label(LN)
    k("s_sub_u32 s12, s2, 128")
    k("v_bfe_u32 v1, v0, 3, 3")
    k("v_and_b32 v2, 7, v0")
    k("v_lshrrev_b32 v5, 6, v0")
    k("v_lshlrev_b32 v3, 11, v1")
    k("v_lshl_add_u32 v3, v2, 4, v3")
    k("v_lshl_add_u32 v3, v5, 9, v3")
    k("s_lshl_b32 s13, s12, 14")
    k("v_lshrrev_b32 v6, 1, v2")
    k("v_lshlrev_b32 v6, 12, v6")
    k("v_lshl_add_u32 v6, v5, 16, v6")
    k("v_and_b32 v7, 1, v2")
    k("v_lshlrev_b32 v7, 9, v7")
    k("v_lshl_add_u32 v7, v1, 4, v7")
    k("v_lshl_add_u32 v64, v6, 1, v7")
    k("v_add_u32 v6, v6, v7")
    k("v_lshlrev_b32 v65, 6, v2")
    k("v_lshl_add_u32 v65, v5, 11, v65")
    k("s_and_b32 s16, s12, 3")
    k("s_lshl_b32 s16, s16, 7")
    k("s_lshr_b32 s15, s12, 4")
    k("s_lshl_b32 s15, s15, 18")
    k("s_bfe_u32 s17, s12, 0x20002")
    k("s_lshl_b32 s17, s17, 10")
    k("s_add_u32 s15, s15, s17")
    k("s_add_u32 s15, s15, s16")
    k("s_lshr_b32 s18, s12, 5")
    k("s_lshl_b32 s18, s18, 19")
    k("s_bfe_u32 s17, s12, 0x30002")
    k("s_lshl_b32 s17, s17, 10")
    k("s_add_u32 s18, s18, s17")
    k("s_add_u32 s18, s18, s16")
    for n in range(4):
        k("s_add_u32 s%d, s15, %d" % (32 + n, n * 16384))
        k("s_add_u32 s%d, s18, %d" % (36 + n, n * 32768))
    k("s_waitcnt lgkmcnt(0)")
    srd_in(k, 20, 56, SZ["x"])
    for n in range(4):
        k("buffer_load_dwordx4 v[%d:%d], v3, s[20:23], s13 offen offset:%d" % (16 + 4 * n, 19 + 4 * n, n * 128))
    srd_ws(k, 24, 6, "H")
    srd_ws(k, 28, 6, "EX")
    srd_ws(k, 52, 6, "XF")
    srd_in(k, 48, 4, 256)
    srd_ws(k, 44, 6, "MODP")
    for r in (8, 9, 10, 11):
        k("v_mov_b32 v%d, -1.0" % r)
    k("v_lshlrev_b32 v4, 4, v0")
    k("s_lshl_b32 s14, s12, 12")
    k("buffer_store_dwordx4 v[8:11], v4, s[28:31], s14 offen")
    for r in (10, 11, 12, 13):
        k("v_mov_b32 v%d, 0" % r)
    k.stamp(1)
    for n in range(4):
        k("s_waitcnt vmcnt(4)")
        k("buffer_store_dwordx4 v[%d:%d], v6, s[52:55], s%d offen" % (16 + 4 * n, 19 + 4 * n, 32 + n))
        for d in range(4):
            o = 32 + 8 * n + 2 * d
            unpack_bf16(k, o, o + 1, 16 + 4 * n + d)
            k("v_pk_add_f32 v[10:11], v[10:11], v[%d:%d]" % (o, o + 1))
            k("v_pk_fma_f32 v[12:13], v[%d:%d], v[%d:%d], v[12:13]" % (o, o + 1, o, o + 1))
    k("v_readfirstlane_b32 s3, v5")
    k("v_and_b32 v100, 63, v0")
    srd_in(k, 40, 58, SZ["wqkv"])
    k("v_lshrrev_b32 v2, 3, v100")
    k("s_mov_b32 s16, 6144")
    k("v_mul_lo_u32 v101, v2, s16")
    k("v_and_b32 v2, 7, v100")
    k("v_lshl_add_u32 v101, v2, 4, v101")
    k("s_lshl_b32 s19, s3, 13")
    k("s_add_u32 s19, s19, 12288")
    for u in range(2):
        k("s_mul_i32 s14, s12, 6")
        k("s_add_u32 s14, s14, s3")
        k("s_add_u32 s14, s14, %d" % (4 * u))
        k("s_mul_i32 s%d, s14, 10923" % (68 + 2 * u))
        k("s_lshr_b32 s%d, s%d, 19" % (68 + 2 * u, 68 + 2 * u))
        k("s_mul_i32 s15, s%d, 48" % (68 + 2 * u))
        k("s_sub_u32 s%d, s14, s15" % (69 + 2 * u))
        k("s_mul_i32 s15, s%d, %d" % (68 + 2 * u, 32 * 6144))
        k("s_lshl_b32 s16, s%d, 7" % (69 + 2 * u))
        k("s_add_u32 s15, s15, s16")
        if u:
            k("s_cmp_ge_u32 s3, 2")
            k("s_cselect_b32 s72, 0x7f000000, 0")
            k("s_or_b32 s15, s15, s72")
        for q in range(4):
            k("s_add_u32 m0, s19, %d" % (u * 4096 + q * 1024))
            k("s_add_u32 s16, s15, %d" % (q * 8 * 6144))
            k("buffer_load_dwordx4 v101, s[40:43], s16 offen lds")
    k("v_add_f32 v10, v10, v11")
    k("v_add_f32 v11, v12, v13")
    for m in ("quad_perm:[1,0,3,2]", "quad_perm:[2,3,0,1]", "row_half_mirror"):
        for r in (10, 11):
            k("v_add_f32_dpp v%d, v%d, v%d %s row_mask:0xf bank_mask:0xf" % (r, r, r, m))
    k("v_lshlrev_b32 v7, 5, v1")
    k("v_lshl_add_u32 v8, v5, 3, v7")
    k("ds_write_b64 v8, v[10:11] offset:8192")
    k("s_waitcnt lgkmcnt(0)")
    srd_ws(k, 40, 6, "WQF")
    k("v_bfe_u32 v2, v100, 2, 2")
    k("v_and_b32 v3, 3, v100")
    k("v_lshlrev_b32 v101, 3, v3")
    k("v_lshl_add_u32 v101, v2, 7, v101")
    k("v_lshrrev_b32 v2, 5, v100")
    k("v_lshl_add_u32 v101, v2, 10, v101")
    k("v_bfe_u32 v2, v100, 4, 1")
    k("v_lshl_add_u32 v101, v2, 5, v101")
    k("v_add_u32 v101, s19, v101")
    k("v_lshlrev_b32 v100, 4, v100")
    for u in range(2):
        k("s_and_b32 s15, s%d, 15" % (69 + 2 * u))
        k("s_mul_i32 s15, s15, %d" % (2 * 196608))
        k("s_mul_i32 s16, s%d, 6144" % (68 + 2 * u))
        k("s_add_u32 s15, s15, s16")
        k("s_lshr_b32 s16, s%d, 4" % (69 + 2 * u))
        k("s_lshl_b32 s16, s16, 10")
        k("s_add_u32 s15, s15, s16")
        if u:
            k("s_or_b32 s15, s15, s72")
        k("s_add_u32 s16, s15, 196608")
        k("s_waitcnt vmcnt(4)")
        for b in range(4):
            for rd in range(2):
                k("ds_read_b64_tr_b16 %s, v101 offset:%d" %
                  (v(68 + 16 * u + 4 * b + 2 * rd, 2), u * 4096 + (b >> 1) * 2048 + rd * 512 + (b & 1) * 64))
        for b in range(4):
            k("s_waitcnt lgkmcnt(%d)" % (6 - 2 * b))
            k("buffer_store_dwordx4 %s, v100, s[40:43], s%d offen offset:%d sc1" % (v(68 + 16 * u + 4 * b, 4), 15 + (b & 1), (b >> 1) * 3072))
    code_prefetch(k, "m1_kernel", 0, 104, 74)
    k.stamp(2)
    W, GO = k.uid("wait"), k.uid("go")
    k("s_cmp_lg_u32 s3, 3")
    k("s_cbranch_scc1 " + GO)
    k("v_mov_b32 v9, 0")
    k("s_mov_b32 s16, 0")
    k.label(W)
    k("buffer_load_dword v14, v9, s[48:51], 0 offen offset:128 sc1")
    k("s_waitcnt vmcnt(0)")
    k("v_cmp_eq_u32 vcc, 0, v14")
    k("s_cbranch_vccz " + GO)
    k("s_sleep 4")
    k("s_add_u32 s16, s16, 1")
    k("s_cmp_lt_u32 s16, 0x100000")
    k("s_cbranch_scc1 " + W)
    k.label(GO)
    k("s_waitcnt lgkmcnt(0)")
    k("s_barrier")
    k.stamp(3)
    T0 = 68
    for n, (idx, p) in enumerate([(1, p) for p in range(4)] + [(0, p) for p in range(4)]):
        k("s_mov_b32 s%d, %d" % (60 + n, (p * 6144 + idx * 1024) * 4))
        k("buffer_load_dwordx4 %s, v4, s[44:47], s%d offen sc1" % (v(T0 + 4 * n, 4), 60 + n))
    k("ds_read_b128 v[8:11], v7 offset:8192")
    k("ds_read_b128 v[12:15], v7 offset:8208")
    k("s_waitcnt lgkmcnt(0)")
    k("v_pk_add_f32 v[8:9], v[8:9], v[10:11]")
    k("v_pk_add_f32 v[12:13], v[12:13], v[14:15]")
    k("v_pk_add_f32 v[8:9], v[8:9], v[12:13]")
    stats_to_affine(k, 8, 1024)
    for o in range(32, 64, 2):
        k("v_pk_fma_f32 v[%d:%d], v[%d:%d], v[8:9], v[8:9] %s" % (o, o + 1, o, o + 1, BCAST))
    k("v_lshrrev_b32 v2, 1, v0")
    k("v_lshlrev_b32 v2, 6, v2")
    k("v_and_b32 v3, 1, v0")
    k("v_lshl_add_u32 v2, v3, 4, v2")
    k("s_waitcnt vmcnt(0)")
    for b in (T0, T0 + 16):
        for (x, y) in ((0, 4), (8, 12), (0, 8)):
            for e in (0, 2):
                k("v_pk_add_f32 %s, %s, %s" % (v(b + x + e, 2), v(b + x + e, 2), v(b + y + e, 2)))
        for e in (0, 2):
            k("v_cvt_pk_bf16_f32 v3, v%d, v%d" % (b + e, b + e + 1))
            unpack_bf16(k, b + e, b + e + 1, 3)
    for e in range(4):
        k("v_add_f32 v%d, 1.0, v%d" % (T0 + e, T0 + e))
    for e in (0, 2):
        k("v_cvt_pk_bf16_f32 v3, v%d, v%d" % (T0 + e, T0 + e + 1))
        unpack_bf16(k, T0 + e, T0 + e + 1, 3)
    k("ds_write_b128 v2, %s" % v(T0, 4))
    k("ds_write_b128 v2, %s offset:32" % v(T0 + 16, 4))
    k("s_waitcnt lgkmcnt(0)")
    k("s_barrier")
    for n in range(2):
        for q in range(4):
            k("ds_read_b128 %s, v65 offset:%d" % (v(T0 + 16 * n + 4 * q, 4), n * 512 + q * 16))
    for n in range(4):
        G = T0 + 16 * (n & 1)
        k("s_waitcnt lgkmcnt(%d)" % (4 if n < 3 else 0))
        for d in range(4):
            o = 32 + 8 * n + 2 * d
            k("v_pk_fma_f32 v[%d:%d], v[%d:%d], %s, %s" % (o, o + 1, o, o + 1, v(G + 2 * d, 2), v(G + 8 + 2 * d, 2)))
        if n < 2:
            for q in range(4):
                k("ds_read_b128 %s, v65 offset:%d" % (v(G + 4 * q, 4), (n + 2) * 512 + q * 16))
        for d in range(4):
            o = 32 + 8 * n + 2 * d
            k("v_cvt_pk_bf16_f32 v%d, v%d, v%d" % (16 + 4 * n + d, o, o + 1))
        k("buffer_store_dwordx4 v[%d:%d], v64, s[24:27], s%d offen" % (16 + 4 * n, 19 + 4 * n, 36 + n))
    k.stamp(4)
    k.stamp_dump(5)
    k.label(END)
    k("s_endpgm")
    txt, n = k.finish(vgprs=108, sgprs=80)
    return txt, "; @launch kernel=%s grid=(384,1,1) block=(256,1,1) lds=%d" % (name, 12288 + 32768)
```

```python
from sync import *
from gemms import pack16, swap8, MIXLO, MIXHI
from attn import emit_attn, ATT_LDS, STG
from m2 import dep

NS1 = 3
PAR = NS1 * 45056


def gen_m1(name="m1_kernel", force_slow=False):
    k = Kern(name)
    END, REST, PROD, COMP, HELP = [k.uid(x) for x in ("end", "rest", "prod", "comp", "help")]
    FR, ACC = 16, 56
    k("s_cmp_ge_u32 s2, 256")
    k("s_cbranch_scc1 " + END)
    k.kidx = 1
    k.stamp_init()
    k("s_load_dwordx2 s[6:7], s[0:1], %d" % KA["ws"])
    k("v_lshrrev_b32 v2, 6, v0")
    k("v_and_b32 v%d, 63, v0" % V_LANE)
    k("v_readfirstlane_b32 s19, v2")
    map_blocks(k, 2, 8, 1)
    k("s_mov_b32 s%d, s19" % S_WAVE)
    k("s_cmp_ge_u32 s19, 8")
    k("s_cbranch_scc1 " + PROD)
    k("s_cmp_lt_u32 s19, 4")
    k("s_cbranch_scc1 " + REST)

    k("s_waitcnt lgkmcnt(0)")
    for _ in range(17):
        k("s_barrier")
    k("s_branch " + COMP)

    def epilogue(k):
        qs = 32 ** -0.5 * LOG2E
        k("v_lshlrev_b32 v2, 4, v%d" % V_LANE)
        k("s_lshl_b32 s56, s%d, 17" % S_BN)
        k("s_lshl_b32 s57, s%d, 14" % S_BM)
        k("s_add_u32 s56, s56, s57")
        k("s_lshl_b32 s59, s%d, 12" % S_WAVE)
        k("s_add_u32 s56, s56, s59")
        k("s_add_u32 s57, s56, 0x400000")
        k("s_add_u32 s58, s56, 0x800000")
        k("s_add_u32 s62, s59, %d" % STG)
        k("v_add_u32 v4, s62, v2")
        k("s_lshr_b32 s62, s%d, 1" % S_WAVE)
        k("s_lshl_b32 s62, s62, 13")
        k("s_add_u32 s62, s62, s59")
        k("v_add_u32 v3, s62, v2")
        k("s_mov_b32 s60, %s" % fhex(qs))
        k("s_mov_b32 s61, %s" % fhex(qs))
        n = 0
        for j in (1, 2, 0):
            for i in range(2):
                A = ACC + 16 * (i * 3 + j)
                P = FR + 8 * (n % 4)
                n += 1
                if j == 0:
                    for e in range(0, 16, 2):
                        k("v_pk_mul_f32 %s, %s, s[60:61]" % (v(A + e, 2), v(A + e, 2)))
                    if i == 0:
                        k("s_waitcnt lgkmcnt(4)")
                pack16(k, P, A)
                if j != 2:
                    swap8(k, P)
                for mf in range(2):
                    o = i * 2048 + mf * 1024
                    if j:
                        k("buffer_store_dwordx4 %s, v2, %s, s%d offen offset:%d sc1" % (v(P + 4 * mf, 4), s(SRD_E1, 4), 56 + j, o))
                        k("ds_write_b128 v3, %s offset:%d" % (v(P + 4 * mf, 4), (j - 1) * 8192 + o))
                    else:
                        k("ds_write_b128 v4, %s offset:%d" % (v(P + 4 * mf, 4), o))
        k("s_waitcnt lgkmcnt(0)")

    def srds_p(k):
        srd_ws_sub(k, SRD_X, 6, "H", 81, 16 * 32768)
        srd_ws_sub(k, SRD_W, 6, "WQF", 80, 16 * 12288)

    def dma_setup(k):
        k("s_mul_i32 s50, s%d, 3072" % S_WAVE)
        k("v_lshl_add_u32 v8, v%d, 4, s50" % V_LANE)
        k("s_mul_i32 s80, s%d, %d" % (S_BN, 16 * 12288))
        k("s_lshl_b32 s81, s%d, 19" % S_BM)
        k("s_mov_b32 s82, 0")
        k("s_lshl_b32 s50, s%d, 13" % S_WAVE)
        k("v_lshl_add_u32 v5, v%d, 4, s50" % V_LANE)
        k("v_add_u32 v6, 4096, v5")
        return [Dma(SRD_X, [5, 5, 5, 5, 6, 6, 6, 6], 32768, 0, 32768, 82),
                Dma(SRD_W, [8, 8, 8], 12288, NS1 * 32768, 12288, 82)]

    cfg = dict(PD=1, T=16, MT=2, NT=3, NS=NS1, wgrid="4x1", srds_p=srds_p, x_ks=8192,
               x_ring=(0, 32768, NS1), w_ring=(NS1 * 32768, 12288, NS1), x_mode="dma_fm", w_mode="fm",
               w_wave_stride=0, swap_tile=lambda j: j == 2,
               FRAG=FR, ACC=ACC, dma_setup=dma_setup, epilogue=epilogue)

    k.label(PROD)
    k("s_sub_u32 s%d, s19, 8" % S_WAVE)
    prod_phase(k, cfg, 0, first=True)
    k("s_branch " + HELP)

    k.label(REST)
    k("s_waitcnt lgkmcnt(0)")
    srd_ws(k, SRD_E1, 6, "QKV")
    cons_phase(k, cfg, 0)
    pr = dict(srd=96, off=94, seen=95, tmp=101, acc=100, cnt=4, va=96, vv=97, vl=98)
    emit_attn(k, COMP, HELP, Poll(FL1, 21, 2048, 1024, regs=pr, s_rot=18, lg=5, barrier=False, lds=ATT_LDS), force_slow=force_slow)
    k.label(END)
    k("s_endpgm")
    txt, n = k.finish(vgprs=152, sgprs=102)
    return txt, "; @launch kernel=%s grid=(256,1,1) block=(768,1,1) lds=%d" % (name, ATT_LDS + 64)
```

```python
from gemm import *
from gemms import (w_voff, pack16, swap8, ex_addr, both_halves, ex_publish, stats_to_affine, BCAST)
from sync import *
import math

S_WM, S_WN = 48, 49
P_WO, P_WS, P_WIN, P_WSP, P_BSP, P_WOUT, P_OUT = 4, 6, 8, 10, 12, 14, 16
MV = 3 * 45056
X1R, FR, Z1R = 16, 32, 192


def ex_collect(k, R, G, vr, srd, soff, n, nq, nb=1, bstride=0):
    L, D = k.uid("poll"), k.uid("got")
    k("s_mov_b32 s64, 0")
    offs = {}
    nxt = 65
    for b in range(nb):
        for hi in range((nq + 7) // 8):
            c = b * bstride + hi * 4096
            if c == 0:
                offs[(b, hi)] = soff
            else:
                k("s_add_u32 s%d, s%d, %d" % (nxt, soff, c))
                offs[(b, hi)] = nxt
                nxt += 1
    k.label(L)
    for b in range(nb):
        for q in range(nq):
            k("buffer_load_dwordx2 %s, v%d, %s, s%d offen offset:%d sc1" %
              (v(R[b] + 2 * q, 2), vr, s(srd, 4), offs[(b, q // 8)], (q & 7) * 512))
    k("s_waitcnt vmcnt(0)")
    k("v_mov_b32 v2, 0")
    for b in range(nb):
        for q in range(0, nq, 2):
            k("v_min3_f32 v2, v2, v%d, v%d" % (R[b] + 2 * q + 1, R[b] + 2 * q + 3))
    k("v_cmp_gt_f32 vcc, 0, v2")
    k("s_cbranch_vccz " + D)
    k("s_sleep 2")
    k("s_add_u32 s64, s64, 1")
    k("s_cmp_lt_u32 s64, 0x100000")
    k("s_cbranch_scc1 " + L)
    k.label(D)
    for b in range(nb):
        Rb = R[b]
        m = nq
        while m > 1:
            h = (m + 1) // 2
            for e in range(m - h):
                k("v_pk_add_f32 %s, %s, %s" % (v(Rb + 2 * e, 2), v(Rb + 2 * e, 2), v(Rb + 2 * (e + h), 2)))
            m = h
        both_halves(k, Rb, Rb + 2)
        both_halves(k, Rb + 1, Rb + 3)
        stats_to_affine(k, Rb, n)
        k("v_mov_b32 v%d, v%d" % (G + 2 * b, Rb))
        k("v_mov_b32 v%d, v%d" % (G + 2 * b + 1, Rb + 1))


def dep(d):
    d.dep = True
    return d


def lin_voff(k):
    k("s_mov_b32 s82, 0")
    k("s_lshl_b32 s50, s%d, 12" % S_WAVE)
    k("v_lshl_add_u32 v5, v%d, 4, s50" % V_LANE)


def cfg25(which, PD=3, NS=5):
    T = 16 if which == 2 else 28
    ACC, GA, XR, T2 = 80, 112, 144, 160

    def srds_c(k):
        if which == 2:
            srd_ws(k, SRD_E1, P_WS, "XF")
            srd_ws(k, SRD_E2, P_WS, "H2")
            srd_ws(k, SRD_E3, P_WS, "EX2")
        else:
            srd_in(k, SRD_E2, P_OUT, SZ["out"])

    def srds_p(k):
        srd_ws_sub(k, SRD_X, P_WS, "O" if which == 2 else "U", 81, T * 16384)
        srd_ws_sub(k, SRD_W, P_WS, "WOF" if which == 2 else "WOUTF", 80, T * 8192)
        if which == 2:
            srd_ws(k, SRD_E0, P_WS, "MODP")

    def dma_setup(k):
        k("s_lshl_b32 s50, s%d, 11" % S_WAVE)
        k("v_lshl_add_u32 v8, v%d, 4, s50" % V_LANE)
        k("s_mul_i32 s80, s%d, %d" % (S_BN, T * 8192))
        k("s_mul_i32 s81, s%d, %d" % (S_BM, T * 16384))
        lin_voff(k)
        if which == 2:
            k("s_lshl_b32 s56, s%d, 8" % S_BN)
            k("s_add_u32 s56, s56, s50")
            k("s_add_u32 s56, s56, %d" % (2 * 4096))
            for p in range(1, 4):
                k("s_add_u32 s%d, s56, %d" % (59 + p, p * 6144 * 4))
            k("v_lshlrev_b32 v12, 2, v%d" % V_LANE)
            k("s_cmp_eq_u32 s%d, 2" % S_WAVE)
            k("s_cselect_b32 s58, 1.0, 0")
            k("s_lshl_b32 s59, s%d, 8" % S_WAVE)
            k("s_add_u32 s59, s59, %d" % MV)
            k("v_add_u32 v13, s59, v12")
        x = Dma(SRD_X, [5, 5, 5, 5], 16384, 0, 16384, 82)
        return [dep(x) if which == 5 else x, Dma(SRD_W, [8, 8], 8192, NS * 16384, 8192, 82)]

    def prod_pre_load(k):
        k("buffer_load_dword v14, v12, %s, s56 offen" % s(SRD_E0, 4))
        for p in range(1, 4):
            k("buffer_load_dword v%d, v12, %s, s%d offen" % (14 + p, s(SRD_E0, 4), 59 + p))

    def prod_pre_fin(k):
        k("v_add_f32 v14, v14, v15")
        k("v_add_f32 v16, v16, v17")
        k("v_add_f32 v14, v14, v16")
        k("v_cvt_pk_bf16_f32 v14, v14, v14")
        k("v_lshlrev_b32 v14, 16, v14")
        k("v_add_f32 v14, s58, v14")
        k("v_cvt_pk_bf16_f32 v14, v14, v14")
        k("v_lshlrev_b32 v14, 16, v14")
        k("ds_write_b32 v13, v14")
        k("s_waitcnt lgkmcnt(0)")

    def cons_pre(k):
        k("v_lshrrev_b32 v3, 5, v%d" % V_LANE)
        k("v_lshlrev_b32 v13, 4, v3")
        k("v_add_u32 v13, %d, v13" % MV)
        if which == 2:
            k("v_lshlrev_b32 v11, 4, v%d" % V_LANE)
            k("s_lshl_b32 s59, s%d, 4" % S_BM)
            k("s_add_u32 s59, s59, s%d" % S_BN)
            k("s_lshl_b32 s59, s59, 14")
            k("s_lshl_b32 s58, s%d, 10" % S_WAVE)
            k("s_add_u32 s59, s59, s58")
            for kt in range(4):
                k("s_add_u32 s%d, s59, %d" % (60 + kt, kt * 4096))
            k("s_add_u32 s57, s59, s58")
            k("s_add_u32 s55, s57, 8192")
            k("v_bfe_u32 v2, v%d, 4, 1" % V_LANE)
            k("v_lshlrev_b32 v12, 10, v2")
            k("v_lshl_add_u32 v12, v3, 8, v12")
            k("v_and_b32 v2, 15, v%d" % V_LANE)
            k("v_lshl_add_u32 v12, v2, 4, v12")
            ex_addr(k, 14)
            k("s_lshl_b32 s56, s%d, 2" % S_BM)
            k("s_add_u32 s56, s56, s%d" % S_WAVE)
            k("s_lshl_b32 s56, s56, 12")
            k("s_lshl_b32 s58, s%d, 8" % S_BN)
            k("s_add_u32 s58, s58, s56")
        else:
            k("v_and_b32 v2, 31, v%d" % V_LANE)
            k("v_lshlrev_b32 v12, 11, v2")
            k("v_lshl_add_u32 v12, v3, 4, v12")
            k("s_lshl_b32 s58, s%d, 18" % S_BM)
            k("s_lshl_b32 s56, s%d, 16" % S_WAVE)
            k("s_add_u32 s58, s58, s56")
            k("s_lshl_b32 s56, s%d, 7" % S_BN)
            k("s_add_u32 s58, s58, s56")

    def cons_loads(k):
        for q in range(4):
            k("buffer_load_dwordx4 %s, v11, %s, s%d offen" % (v(XR + 4 * q, 4), s(SRD_E1, 4), 60 + q))

    def mv_read(k, R, vec):
        for jg in range(8):
            k("ds_read_b128 %s, v13 offset:%d" % (v(R + 4 * jg, 4), vec * 256 + jg * 32))

    def epilogue(k):
        TT = T2
        mv_read(k, GA, 0 if which == 2 else 3)
        src = X1R
        if which == 2:
            src = XR
            k("s_waitcnt vmcnt(0)")
            swap8(k, XR)
            swap8(k, XR + 8)
            for r in (4, 5, 6, 7):
                k("v_mov_b32 v%d, 0" % r)
        for d in range(16):
            unpack_bf16(k, TT + 2 * d, TT + 2 * d + 1, src + d)
        k("s_waitcnt lgkmcnt(0)")
        for d in range(16):
            k("v_pk_fma_f32 %s, %s, %s, %s" % (v(ACC + 2 * d, 2), v(ACC + 2 * d, 2), v(GA + 2 * d, 2), v(TT + 2 * d, 2)))
        if which == 5:
            for j in range(2):
                P = FR + 8 * j
                pack16(k, P, ACC + 16 * j)
                swap8(k, P)
                for p in range(2):
                    k("buffer_store_dwordx4 %s, v12, %s, s58 offen offset:%d" % (v(P + 4 * p, 4), s(SRD_E2, 4), j * 64 + p * 32))
            return
        for d in range(16):
            k("v_pk_add_f32 v[4:5], v[4:5], %s" % v(ACC + 2 * d, 2))
            k("v_pk_fma_f32 v[6:7], %s, %s, v[6:7]" % (v(ACC + 2 * d, 2), v(ACC + 2 * d, 2)))
        ex_publish(k, 4, 14, SRD_E3, 58)
        mv_read(k, GA, 2)
        mv_read(k, TT, 1)
        for j in range(2):
            pack16(k, X1R + 8 * j, ACC + 16 * j)
        k.stamp(24)
        ex_collect(k, [FR + 16], 4, 14, SRD_E3, 56, 1024, 8)
        k.stamp(25)
        k("s_waitcnt lgkmcnt(0)")
        for j in range(2):
            for d in range(8 * j, 8 * j + 8):
                k("v_pk_fma_f32 %s, %s, v[4:5], v[4:5] %s" % (v(ACC + 2 * d, 2), v(ACC + 2 * d, 2), BCAST))
            for d in range(8 * j, 8 * j + 8):
                k("v_pk_fma_f32 %s, %s, %s, %s" % (v(ACC + 2 * d, 2), v(ACC + 2 * d, 2), v(GA + 2 * d, 2), v(TT + 2 * d, 2)))
            P = FR + 8 * j
            pack16(k, P, ACC + 16 * j)
            swap8(k, P)
            for p in range(2):
                k("buffer_store_dwordx4 %s, v12, %s, s%d offen offset:%d sc1" % (v(P + 4 * p, 4), s(SRD_E2, 4), 55 if j else 57, p * 512))
        k.stamp(26)
        signal(k, FL2, S_BM, S_BN, 5)

    c = dict(PD=PD, T=T, MT=1, NT=2, NS=NS, wgrid="4x1", srds_c=srds_c, srds_p=srds_p,
             map=lambda k: map_blocks(k, 2, 8, 2),
             x_ring=(0, 16384, NS), w_ring=(NS * 16384, 8192, NS), x_mode="dma_fm", w_mode="fm",
             w_wave_stride=0, reads_per_mfma=3,
             FRAG=FR, ACC=ACC, dma_setup=dma_setup, cons_pre=cons_pre, epilogue=epilogue)
    if which == 2:
        c.update(cons_loads=cons_loads, prod_pre_load=prod_pre_load, prod_pre_fin=prod_pre_fin)
    else:
        c.update(poll=Poll(FL4, S_BM, 4 * 147, 3 * 147, lds=MV + 1024))
    return c


C0 = -2.0 * math.sqrt(2.0 / math.pi) * LOG2E
C1 = C0 * 0.044715


def gelu(k, A, n, TT):
    for e in range(0, n, 2):
        k("v_pk_mul_f32 %s, %s, %s" % (v(TT + e, 2), v(A + e, 2), v(A + e, 2)))
    for e in range(0, n, 2):
        k("v_pk_fma_f32 %s, %s, s[60:61], v[12:13]" % (v(TT + e, 2), v(TT + e, 2)))
    for e in range(0, n, 2):
        k("v_pk_mul_f32 %s, %s, %s" % (v(TT + e, 2), v(TT + e, 2), v(A + e, 2)))
    for e in range(n):
        k("v_exp_f32 v%d, v%d" % (TT + e, TT + e))
    for e in range(0, n, 2):
        k("v_pk_add_f32 %s, %s, 1.0 op_sel_hi:[1,0]" % (v(TT + e, 2), v(TT + e, 2)))
    for e in range(n):
        k("v_rcp_f32 v%d, v%d" % (TT + e, TT + e))
    for e in range(0, n, 2):
        k("v_pk_mul_f32 %s, %s, %s" % (v(A + e, 2), v(A + e, 2), v(TT + e, 2)))


def pack8(k, P, A):
    for d in range(4):
        k("v_cvt_pk_bf16_f32 v%d, v%d, v%d" % (P + d, A + 2 * d, A + 2 * d + 1))


def swap16(k, P):
    k("v_permlane16_swap_b32 v%d, v%d" % (P, P + 2))
    k("v_permlane16_swap_b32 v%d, v%d" % (P + 1, P + 3))


def cfg3():
    ACC = 80

    def srds_c(k):
        srd_ws(k, SRD_E2, P_WS, "Z2")
        srd_ws(k, SRD_E3, P_WS, "EX3")

    def srds_p(k):
        srd_ws_sub(k, SRD_X, P_WS, "H2", 81, 16 * 16384)
        srd_ws_sub(k, SRD_W, P_WS, "WINF", 80, 16 * 28672)

    def dma_setup(k):
        k("s_mul_i32 s50, s%d, 7168" % S_WAVE)
        k("v_lshl_add_u32 v8, v%d, 4, s50" % V_LANE)
        k("v_add_u32 v9, 4096, v8")
        k("s_mul_i32 s80, s%d, %d" % (S_BN, 16 * 28672))
        k("s_lshl_b32 s81, s%d, 18" % S_BM)
        lin_voff(k)
        return [dep(Dma(SRD_X, [5, 5, 5, 5], 16384, 0, 16384, 82)),
                Dma(SRD_W, [8, 8, 8, 8, 9, 9, 9], 28672, 3 * 16384, 28672, 82)]

    def epilogue(k):
        Z2A = ACC + 56
        k("s_mov_b32 s60, %s" % fhex(C1))
        k("s_mov_b32 s61, %s" % fhex(C1))
        k("v_mov_b32 v12, %s" % fhex(C0))
        k("v_mov_b32 v13, %s" % fhex(C0))
        k("s_lshl_b32 s57, s%d, 2" % S_BM)
        k("s_add_u32 s57, s57, s%d" % S_WAVE)
        k("s_lshl_b32 s62, s57, 12")
        k("s_lshl_b32 s63, s%d, 8" % S_BN)
        k("s_add_u32 s63, s63, s62")
        ex_addr(k, 14)
        for r in range(4, 12):
            k("v_mov_b32 v%d, 0" % r)
        for (a, n) in ((0, 24), (24, 32)):
            gelu(k, Z2A + a, n, FR)
            for e in range(a, a + n, 2):
                S = 4 + 4 * ((e >> 2) & 1)
                k("v_pk_add_f32 %s, %s, %s" % (v(S, 2), v(S, 2), v(Z2A + e, 2)))
                k("v_pk_fma_f32 %s, %s, %s, %s" % (v(S + 2, 2), v(Z2A + e, 2), v(Z2A + e, 2), v(S + 2, 2)))
        for r in (4, 6, 8, 10):
            k("v_add_f32 v%d, v%d, v%d" % (r, r, r + 1))
        k("v_permlane16_swap_b32 v4, v8")
        k("v_permlane16_swap_b32 v6, v10")
        k("v_mov_b32 v5, v8")
        k("v_mov_b32 v7, v10")
        ex_publish(k, 4, 14, SRD_E3, 63)
        k.stamp(27)

        def z1(a, n):
            gelu(k, ACC + a, n, FR)
            for e in range(a, a + n, 8):
                pack8(k, Z1R + e // 2, ACC + e)
        z1(0, 32)
        k.stamp(28)
        k("v_and_b32 v2, 19, v%d" % V_LANE)
        k("v_lshlrev_b32 v15, 5, v2")
        k("v_bfe_u32 v2, v%d, 2, 1" % V_LANE)
        k("v_lshl_add_u32 v15, v2, 8, v15")
        k("v_bfe_u32 v2, v%d, 3, 1" % V_LANE)
        k("v_lshl_add_u32 v15, v2, 7, v15")
        k("v_lshrrev_b32 v2, 5, v%d" % V_LANE)
        k("v_lshl_add_u32 v15, v2, 4, v15")
        k("s_mul_i32 s56, s%d, 7168" % S_WAVE)
        k("s_add_u32 s56, s56, 65536")
        k("v_add_u32 v15, s56, v15")
        k("v_lshlrev_b32 v8, 9, v2")
        k("v_and_b32 v2, 31, v%d" % V_LANE)
        k("v_lshl_add_u32 v8, v2, 3, v8")
        k("v_add_u32 v8, s56, v8")
        k("v_lshlrev_b32 v9, 4, v%d" % V_LANE)
        k("s_lshl_b32 s56, s%d, 6" % S_BN)
        k("s_add_u32 s56, s56, s57")
        k("s_mul_i32 s56, s56, 7168")
        k("s_add_u32 s58, s56, 4096")
        ex_collect(k, [FR], 4, 14, SRD_E3, 62, 1792, 8)
        k("v_mov_b32 v6, v4")
        k("v_mov_b32 v7, v5")
        k("v_permlane16_swap_b32 v4, v6")
        k("v_permlane16_swap_b32 v5, v7")

        def back(ct):
            k("s_waitcnt lgkmcnt(%d)" % (3 if ct < 6 else 0))
            k("buffer_store_dwordx4 %s, v9, %s, s%d offen offset:%d sc1" %
              (v(Z2A + 8 * ct + 4, 4), s(SRD_E2, 4), 56 if ct < 4 else 58, (ct & 3) * 1024))
        for ct in range(7):
            A = Z2A + 8 * ct
            for e in range(0, 8, 2):
                G = v(4 + 2 * (e >> 2), 2)
                k("v_pk_fma_f32 %s, %s, %s, %s %s" % (v(A + e, 2), v(A + e, 2), G, G, BCAST))
            pack8(k, A, A)
            swap16(k, A)
            k("ds_write_b128 v15, %s offset:%d" % (v(A, 4), ct * 1024))
            for rd in range(2):
                k("ds_read_b64_tr_b16 %s, v8 offset:%d" % (v(A + 4 + 2 * rd, 2), ct * 1024 + rd * 256))
            if ct:
                back(ct - 1)
        back(6)
        k.stamp(29)
        signal(k, FL3, S_BN, S_BM, 11)
        k.stamp(12)
        z1(32, 24)

    return dict(T=16, NT=14, NS=3, srds_c=srds_c, srds_p=srds_p, m16=True,
                x_ring=(0, 16384, 3), w_ring=(3 * 16384, 28672, 3), w_mode="fm16", D=6, pause=2, wgroup=2,
                FRAG=FR, ACC=ACC, dma_setup=dma_setup, epilogue=epilogue, poll=Poll(FL2, S_BM, 1024, 0, lds=MV + 1024))


def cfg4(NS=4):
    WR = NS * 16384
    ACC, BR = 80, 136

    def srds_c(k):
        srd_ws(k, SRD_E2, P_WS, "U")
        srd_in(k, SRD_E3, P_BSP, SZ["b_sp"])

    def srds_p(k):
        srd_ws_sub(k, SRD_X, P_WS, "WSPF", 80, 32 * 16384)
        srd_ws_sub(k, SRD_W, P_WS, "Z2", 81, 32 * 14336)

    def dma_setup(k):
        k("s_mul_i32 s50, s%d, 3584" % S_WAVE)
        k("v_lshl_add_u32 v8, v%d, 4, s50" % V_LANE)
        k("s_lshl_b32 s80, s%d, 19" % S_BM)
        k("s_mul_i32 s81, s%d, %d" % (S_BN, 32 * 14336))
        lin_voff(k)
        w = dep(Dma(SRD_W, [8, 8, 8, 8], 14336, WR, 14336, 82))
        w.half_last = True
        return [Dma(SRD_X, [5, 5, 5, 5], 16384, 0, 16384, 82), w]

    def cons_pre(k):
        k("v_lshlrev_b32 v12, 4, v%d" % V_LANE)
        k("v_and_b32 v13, 15, v%d" % V_LANE)
        k("v_lshlrev_b32 v13, 1, v13")
        k("s_lshl_b32 s60, s%d, 2" % S_BM)
        k("s_add_u32 s60, s60, s%d" % S_WAVE)
        k("s_lshl_b32 s60, s60, 6")
        k("s_mul_i32 s61, s%d, %d" % (S_BM, 28 * 16384))
        k("s_mul_i32 s62, s%d, %d" % (S_BN, 7 * 4096))
        k("s_add_u32 s61, s61, s62")
        k("s_lshl_b32 s62, s%d, 10" % S_WAVE)
        k("s_add_u32 s61, s61, s62")

    def cons_loads(k):
        for i in range(2):
            k("buffer_load_ushort v%d, v13, %s, s60 offen offset:%d" % (BR + 2 * i, s(SRD_E3, 4), i * 32))

    def epilogue(k):
        k("s_waitcnt vmcnt(0)")
        for i in range(2):
            k("v_lshlrev_b32 v%d, 16, v%d" % (BR + 2 * i, BR + 2 * i))
            k("v_mov_b32 v%d, v%d" % (BR + 2 * i + 1, BR + 2 * i))
        for ct in range(7):
            A = ACC + 8 * ct
            TT = FR + 8 * (ct & 1)
            P = FR + 16 + 4 * (ct % 4)
            for d in range(4):
                unpack_bf16(k, TT + 2 * d, TT + 2 * d + 1, Z1R + 4 * ct + d)
            for e in range(0, 8, 2):
                k("v_pk_add_f32 %s, %s, %s" % (v(A + e, 2), v(A + e, 2), v(BR + 2 * (e >> 2), 2)))
            for e in range(0, 8, 2):
                k("v_pk_mul_f32 %s, %s, %s" % (v(A + e, 2), v(A + e, 2), v(TT + e, 2)))
            pack8(k, P, A)
            swap16(k, P)
            k("s_add_u32 s62, s61, %d" % (ct * 4096))
            k("buffer_store_dwordx4 %s, v12, %s, s62 offen sc1" % (v(P, 4), s(SRD_E2, 4)))
        k.stamp(30)
        signal(k, FL4, S_BM, S_BN, 17)

    return dict(T=32, NT=7, NS=NS, srds_c=srds_c, srds_p=srds_p, m16=True,
                x_ring=(0, 16384, NS), w_ring=(WR, 14336, NS), w_mode="fm16", D=6, pause=2,
                FRAG=FR, ACC=ACC, dma_setup=dma_setup, cons_pre=cons_pre, cons_loads=cons_loads,
                epilogue=epilogue, poll=Poll(FL3, S_BN, 512, 0, lds=MV + 1024))


def gen_m2(name="m2_kernel", late=(2, 0, 0), ns=(5, 4, 5), o3={}, o4={}):
    k = Kern(name)
    END, PROD = k.uid("end"), k.uid("prod")
    phases = [cfg25(2, NS=ns[0]), cfg3(), cfg4(ns[1]), cfg25(5, NS=ns[2])]
    phases[1].update(o3)
    phases[2].update(o4)
    for c, l in zip(phases[1:], late):
        c["late_free"] = l
    k("s_cmp_ge_u32 s2, 256")
    k("s_cbranch_scc1 " + END)
    k.kidx = 2
    k.stamp_init()
    k("s_load_dwordx2 s[6:7], s[0:1], %d" % KA["ws"])
    k("s_load_dwordx2 s[12:13], s[0:1], %d" % KA["b_sp"])
    k("s_load_dwordx2 s[16:17], s[0:1], %d" % KA["out"])
    k("v_lshrrev_b32 v2, 6, v0")
    k("v_and_b32 v%d, 63, v0" % V_LANE)
    k("v_readfirstlane_b32 s%d, v2" % S_WAVE)
    map_blocks(k, 2, 8, 2)
    k("s_cmp_ge_u32 s%d, 4" % S_WAVE)
    k("s_cbranch_scc1 " + PROD)
    for role in ("c", "p"):
        if role == "p":
            k.label(PROD)
            k("s_sub_u32 s%d, s%d, 4" % (S_WAVE, S_WAVE))
        for n, c in enumerate(phases):
            if role == "c":
                if n == 0:
                    k("s_waitcnt lgkmcnt(0)")
                c["srds_c"](k)
                (cons_phase16 if c.get("m16") else cons_phase)(k, c, 6 * n)
            else:
                prod_phase(k, c, 6 * n, first=(n == 0))
        k.stamp_dump(31)
        if role == "c":
            k("s_endpgm")
    k.label(END)
    k("s_endpgm")
    txt, n = k.finish(vgprs=220, sgprs=96)
    return txt, "; @launch kernel=%s grid=(256,1,1) block=(512,1,1) lds=%d" % (name, MV + 1024 + 64)
```

```python
from gemm import *

FL2, FL3, FL4, FL0, FL1 = 0, 32768, 65536, 98304, 131072
P_WS = 6


def signal(k, base, s_group, s_member, st=None, s_wave=S_WAVE, lg=4):
    SK = k.uid("nosig")
    srd_ws(k, SRD_E0, P_WS, "FL")
    k("s_lshl_b32 s56, s%d, %d" % (s_group, 7 + lg))
    k("s_lshl_b32 s57, s%d, 7" % s_member)
    k("s_add_u32 s56, s56, s57")
    k("s_add_u32 s56, s56, %d" % base)
    k("v_mov_b32 v2, 0")
    k("v_mov_b32 v3, 1.0")
    k("s_waitcnt vmcnt(0)")
    if st:
        k.stamp(st)
    k("s_barrier")
    k("s_cmp_lg_u32 s%d, 0" % s_wave)
    k("s_cbranch_scc1 " + SK)
    k("s_mov_b64 exec, 1")
    k("buffer_store_dword v3, v2, %s, s56 offen sc1" % s(SRD_E0, 4))
    k("s_mov_b64 exec, -1")
    k.label(SK)


class Poll:
    def __init__(self, base, s_group, a, b, regs=None, s_rot=None, before=None, lg=4, barrier=True, lds=None):
        self.base, self.s_group, self.a, self.b, self.s_rot, self.before = base, s_group, a, b, s_rot, before
        self.lg, self.barrier, self.lds = lg, barrier, lds
        self.r = regs or dict(srd=SRD_E0, off=56, seen=58, tmp=59, acc=60, cnt=64, va=16, vv=17, vl=18)

    def setup(self, k):
        r = self.r
        if self.before:
            self.before(k)
        srd_ws(k, r["srd"], P_WS, "FL")
        n1 = (1 << self.lg) - 1
        k("s_lshl_b32 s%d, s%d, %d" % (r["off"], self.s_group, 7 + self.lg))
        k("s_add_u32 s%d, s%d, %d" % (r["off"], r["off"], self.base))
        k("v_min_u32 v%d, %d, v%d" % (r["va"], n1, V_LANE))
        if self.s_rot is not None:
            k("v_add_u32 v%d, s%d, v%d" % (r["va"], self.s_rot, r["va"]))
            k("v_and_b32 v%d, %d, v%d" % (r["va"], n1, r["va"]))
        k("v_lshlrev_b32 v%d, 7, v%d" % (r["va"], r["va"]))
        k("s_mov_b32 s%d, 0" % r["seen"])
        k("s_mov_b32 s%d, %d" % (r["acc"], self.b))
        k("v_mov_b32 v%d, %d" % (r["vl"], self.lds))
        k("v_mov_b32 v%d, 0" % r["vv"])
        k("ds_write_b32 v%d, v%d" % (r["vl"], r["vv"]))
        k("s_waitcnt lgkmcnt(0)")
        if self.barrier:
            k("s_barrier")

    def need(self, k):
        r = self.r
        L, D = k.uid("wait"), k.uid("go")
        k("s_lshr_b32 s%d, s%d, 10" % (r["tmp"], r["acc"]))
        k("s_add_u32 s%d, s%d, %d" % (r["acc"], r["acc"], self.a))
        k("s_cmp_gt_u32 s%d, s%d" % (r["seen"], r["tmp"]))
        k("s_cbranch_scc1 " + D)
        k("s_mov_b32 s%d, 0" % r["cnt"])
        F = k.uid("follow")
        k("s_cmp_lg_u32 s%d, 0" % S_WAVE)
        k("s_cbranch_scc1 " + F)
        k.label(L)
        k("buffer_load_dword v%d, v%d, %s, s%d offen sc1" % (r["vv"], r["va"], s(r["srd"], 4), r["off"]))
        k("s_waitcnt vmcnt(0)")
        k("v_cmp_gt_f32 vcc, 0, v%d" % r["vv"])
        k("s_add_u32 s%d, s%d, 1" % (r["cnt"], r["cnt"]))
        k("s_nop 3")
        k("s_ff1_i32_b64 s%d, vcc" % r["seen"])
        k("v_mov_b32 v%d, s%d" % (r["vv"], r["seen"]))
        k("ds_write_b32 v%d, v%d" % (r["vl"], r["vv"]))
        k("s_cmp_gt_u32 s%d, s%d" % (r["seen"], r["tmp"]))
        k("s_cbranch_scc1 " + D)
        k("s_sleep 3")
        k("s_cmp_lt_u32 s%d, 0x100000" % r["cnt"])
        k("s_cbranch_scc1 " + L)
        k("s_branch " + D)
        k.label(F)
        k("ds_read_b32 v%d, v%d" % (r["vv"], r["vl"]))
        k("s_add_u32 s%d, s%d, 1" % (r["cnt"], r["cnt"]))
        k("s_waitcnt lgkmcnt(0)")
        k("v_readfirstlane_b32 s%d, v%d" % (r["seen"], r["vv"]))
        k("s_nop 3")
        k("s_cmp_gt_u32 s%d, s%d" % (r["seen"], r["tmp"]))
        k("s_cbranch_scc1 " + D)
        k("s_sleep 1")
        k("s_cmp_lt_u32 s%d, 0x1000000" % r["cnt"])
        k("s_cbranch_scc1 " + F)
        k.label(D)
```

```python
import sys
from k1 import gen_k1
from gemms import *
from m1 import gen_m1
from m2 import gen_m2

def build(path, **opt):
    Kern.STAMPS = opt.get("stamps", False)
    for key in DBG:
        DBG[key] = opt.get(key, False)
    import gemm, gemms
    ov = opt.get("ov", {})
    gemms.gemm = lambda name, cfg: gemm.gemm(name, dict(cfg, **ov))
    g = opt.get("g", {})
    parts = [gen_k1(), gen_m1(force_slow=opt.get("force_slow", False), **g.get(1, {})), gen_m2(**g.get("m", {}))]
    ref = open("adaLN_cond__softmax_full_mha__mixer_gmlp__prompt.s.ref").read().split("\n")
    head = [l for l in ref if l.startswith(";") and "@launch" not in l and "Override" not in l and "grid=ceil" not in l]
    txt = "\n".join(head) + "\n" + "\n".join(p[1] for p in parts) + "\n"
    txt += ".amdgcn_target \"amdgcn-amd-amdhsa--gfx950\"\n" + "\n".join(p[0] for p in parts)
    open(path, "w").write(txt)

if __name__ == "__main__":
    build("adaLN_cond__softmax_full_mha__mixer_gmlp__prompt.s")
    build("slow.s", force_slow=True)
    build("stamp.s", stamps=True)
    if len(sys.argv) > 1 and sys.argv[1] == "m":
        build("stamp_a.s", stamps=True, g={"m": dict(ns=(4, 4, 4))})
        build("stamp_b.s", stamps=True, g={"m": dict(ns=(6, 3, 6))})
    if len(sys.argv) > 1 and sys.argv[1] == "x":
        build("stamp_a.s", stamps=True, fine=True)
    if len(sys.argv) > 1 and sys.argv[1] == "y":
        build("stamp_a.s", stamps=True, no_prod=True)
        build("stamp_b.s", stamps=True, l2hit=True)
        build("stamp_c.s", stamps=True, g={"m": dict(o4=dict(wgroup=2))})
```

```python
from common import *
from gemms import pack16, swap8
from sync import FL1

OOB = 0x7f000000


NSL = 8
STG = NSL * 16384 + 12288
ATT_LDS = STG + 16384


def emit_attn(k, COMP, HELP, poll, force_slow=False, sched=1, sb=8):
    SLOW, EPI = k.uid("slow"), k.uid("epi")
    KS, TPS = 1, 4
    LANE, VOFF, VCUR, VNXT, VBASE = 1, 4, 5, 6, 4
    QF, NM, S0, S1, P, KA_, KB_, VA_, VB_, O, L, SEL = 8, 16, 32, 48, 64, 72, 76, 80, 84, 88, 104, 108
    S = (S0, S1)
    SRD, SRDO = 24, 28
    S_WAVE, S_HEAD, S_RT, S_KB, S_ST, S_CUR = 3, 21, 23, 43, 44, 45

    def ids():
        k("v_lshlrev_b32 v%d, 4, v%d" % (VOFF, LANE))
        k("s_lshl_b32 s%d, s%d, 17" % (S_KB, S_HEAD))
        srd_ws(k, SRD, 6, "QKV")
    k.label(COMP)
    ids()
    k("s_lshl_b32 s%d, s20, 3" % S_RT)
    k("s_add_u32 s%d, s%d, s19" % (S_RT, S_RT))
    k("s_lshl_b32 s13, s19, 11")
    k("s_add_u32 s13, s13, %d" % STG)
    k("v_add_u32 v7, s13, v%d" % VOFF)
    srd_ws(k, SRDO, 6, "O")
    srd_ws(k, 32, 6, "FL")
    k("s_lshl_b32 s46, s%d, 5" % S_HEAD)
    k("s_lshl_b32 s47, s20, 2")
    k("s_add_u32 s46, s46, s47")
    k("s_add_u32 s46, s46, s19")
    k("s_lshl_b32 s46, s46, 7")
    k("s_add_u32 s46, s46, %d" % FL1)
    k("s_cmp_lt_u32 s19, 4")
    k("s_cselect_b32 s47, 0, -1")
    k("v_mov_b32 v112, 0")
    k("v_mov_b32 v113, 1.0")
    k("v_bfe_u32 v2, v%d, 2, 1" % LANE)
    k("v_bfe_u32 v3, v%d, 4, 1" % LANE)
    k("v_cmp_eq_u32 vcc, v2, v3")
    k("v_mov_b32 v2, 0x3f803f80")
    k("v_cndmask_b32 v%d, 0, v2, vcc" % SEL)
    for e in range(1, 4):
        k("v_mov_b32 v%d, v%d" % (SEL + e, SEL))

    def zero_state():
        for e in range(16):
            k("v_mov_b32 v%d, 0" % (O + e))
        for e in range(4):
            k("v_mov_b32 v%d, 0" % (L + e))
    zero_state()
    for e in range(4):
        k("v_mov_b32 v%d, 0" % (VB_ + e))
        k("v_mov_b32 v%d, 0" % (P + 4 + e))
    k("v_mov_b32 v%d, v%d" % (VCUR, VBASE))
    k("v_add_u32 v%d, 16384, v%d" % (VNXT, VBASE))
    k("s_mov_b32 s%d, 16384" % S_CUR)
    k.stamp(sb + 1)
    k("s_waitcnt lgkmcnt(0)")
    k("s_barrier")
    k.stamp(sb + 2)
    k("ds_read_b128 %s, v7" % v(QF, 4))
    k("ds_read_b128 %s, v7 offset:1024" % v(QF + 4, 4))
    k("ds_read_b128 %s, v%d" % (v(KA_, 4), VOFF))
    k("ds_read_b128 %s, v%d offset:1024" % (v(KB_, 4), VOFF))
    k("ds_read_b128 %s, v%d offset:8192" % (v(VA_, 4), VCUR))
    k("s_waitcnt lgkmcnt(0)")

    def qk(dst, c):
        return ("v_mfma_f32_32x32x16_bf16 %s, %s, %s, %s" % (v(dst, 16), v(KA_, 4), v(QF, 4), c),
                "v_mfma_f32_32x32x16_bf16 %s, %s, %s, %s" % (v(dst, 16), v(KB_, 4), v(QF + 4, 4), v(dst, 16)))

    def max16(dst, src, first):
        if first:
            k("v_max3_f32 v%d, v%d, v%d, v%d" % (dst, src, src + 1, src + 2))
            k("v_max_f32 v%d, v%d, v%d" % (dst, dst, src + 3))
            r = range(4, 16, 2)
        else:
            r = range(0, 16, 2)
        for e in r:
            k("v_max3_f32 v%d, v%d, v%d, v%d" % (dst, dst, src + e, src + e + 1))

    def set_nm(mreg):
        k("v_mov_b32 v3, v%d" % mreg)
        k("v_permlane32_swap_b32 v%d, v3" % mreg)
        k("v_max_f32 v%d, v%d, v3" % (mreg, mreg))
        for e in range(16):
            k("v_sub_f32 v%d, 0, v%d" % (NM + e, mreg))

    for m in qk(S1, "0"):
        k(m)
    max16(2, S1, True)
    set_nm(2)
    k("s_waitcnt lgkmcnt(0)")
    for m in qk(S0, v(NM, 16)):
        k(m)
    k("ds_read_b128 %s, v%d offset:2048" % (v(KA_, 4), VCUR))
    k("ds_read_b128 %s, v%d offset:3072" % (v(KB_, 4), VCUR))
    k("s_mov_b32 s%d, 0" % S_ST)
    k("s_waitcnt lgkmcnt(0)")

    def ex(Sx, q, lo=0, hi=4):
        for e in range(lo, hi):
            k("v_exp_f32 v%d, v%d" % (Sx + 4 * q + e, Sx + 4 * q + e))

    def cv(Sx, q):
        for e in range(2):
            k("v_cvt_pk_bf16_f32 v%d, v%d, v%d" % (P + 2 * q + e, Sx + 4 * q + 2 * e, Sx + 4 * q + 2 * e + 1))

    def exps(Sx, q):
        ex(Sx, q)
        cv(Sx, q)

    def pvm(vf, pf):
        k("v_mfma_f32_32x32x16_bf16 %s, %s, %s, %s" % (v(O, 16), v(vf, 4), v(pf, 4), v(O, 16)))

    def lsum(pf):
        k("v_mfma_f32_16x16x32_bf16 %s, %s, %s, %s" % (v(L, 4), v(SEL, 4), v(pf, 4), v(L, 4)))

    def pv(vf, pf):
        pvm(vf, pf)
        lsum(pf)

    def addr(tt):
        return (VCUR, tt * 2048) if tt < TPS else (VNXT, (tt - TPS) * 2048)

    LOOP = k.uid("loop")
    k.label(LOOP)
    for tt in range(TPS):
        if tt == 2:
            NS_ = k.uid("nosig")
            k("s_cmp_lg_u32 s%d, s47" % S_ST)
            k("s_cbranch_scc1 " + NS_)
            k("s_waitcnt vmcnt(0)")
            k("s_mov_b64 exec, 1")
            k("buffer_store_dword v113, v112, s[32:35], s46 offen sc1")
            k("s_mov_b64 exec, -1")
            k.label(NS_)
            k("s_barrier")
        Sc, Sn = S[tt & 1], S[(tt + 1) & 1]
        m1, m3 = qk(Sn, v(NM, 16))
        ra, oa = addr(tt + 2)
        rv, ov = addr(tt + 1)
        rKa = "ds_read_b128 %s, v%d offset:%d" % (v(KA_, 4), ra, oa)
        rVb = "ds_read_b128 %s, v%d offset:%d" % (v(VB_, 4), VCUR, 8192 + tt * 2048 + 1024)
        rKb = "ds_read_b128 %s, v%d offset:%d" % (v(KB_, 4), ra, oa + 1024)
        rVa = "ds_read_b128 %s, v%d offset:%d" % (v(VA_, 4), rv, 8192 + ov)
        if sched == 0:
            k("s_waitcnt lgkmcnt(3)"); k(m1); k(rKa); exps(Sc, 0)
            k("s_waitcnt lgkmcnt(3)"); pv(VB_, P + 4); k(rVb); exps(Sc, 1)
            k("s_waitcnt lgkmcnt(3)"); k(m3); k(rKb); exps(Sc, 2)
            k("s_waitcnt lgkmcnt(3)"); pv(VA_, P); k(rVa); exps(Sc, 3)
        else:
            k("s_waitcnt lgkmcnt(2)"); k(m1); k(rKa); ex(Sc, 0)
            pvm(VB_, P + 4); k(rVb); cv(Sc, 0); ex(Sc, 1, 0, 3); lsum(P + 4); ex(Sc, 1, 3, 4); ex(Sc, 2, 0, 1)
            k("s_waitcnt lgkmcnt(2)"); k(m3); k(rKb); cv(Sc, 1); ex(Sc, 2, 1, 4)
            pvm(VA_, P); k(rVa); ex(Sc, 3, 0, 1); cv(Sc, 2); ex(Sc, 3, 1, 3); lsum(P); ex(Sc, 3, 3, 4); cv(Sc, 3)
    k("v_mov_b32 v%d, v%d" % (VCUR, VNXT))
    k("s_add_u32 s%d, s%d, 16384" % (S_CUR, S_CUR))
    k("s_and_b32 s%d, s%d, %d" % (S_CUR, S_CUR, NSL * 16384 - 1))
    k("v_add_u32 v%d, s%d, v%d" % (VNXT, S_CUR, VBASE))
    k("s_add_u32 s%d, s%d, 1" % (S_ST, S_ST))
    k("s_cmp_lt_u32 s%d, 16" % S_ST)
    k("s_cbranch_scc1 " + LOOP)
    k("s_waitcnt lgkmcnt(0)")
    k.stamp(sb + 3)
    pv(VB_, P + 4)
    k("v_mov_b32 v2, v%d" % L)
    for e in range(16):
        k("v_fma_f32 v2, v%d, 0, v2" % (O + e))
    k("v_mov_b32 v3, %s" % fhex(2.0 ** 100 if not force_slow else -1.0))
    k("v_cmp_nlt_f32 vcc, v2, v3")
    k("s_cbranch_vccnz " + SLOW)
    k.label(EPI)
    k("v_rcp_f32 v2, v%d" % L)
    k("v_mov_b32 v3, v2")
    for e in range(0, 16, 2):
        k("v_pk_mul_f32 %s, %s, v[2:3]" % (v(O + e, 2), v(O + e, 2)))
    pack16(k, P, O)
    swap8(k, P)
    k("s_lshr_b32 s10, s%d, 2" % S_RT)
    k("s_lshl_b32 s10, s10, 18")
    k("s_lshl_b32 s11, s%d, 13" % S_HEAD)
    k("s_add_u32 s10, s10, s11")
    k("s_and_b32 s11, s%d, 3" % S_RT)
    k("s_lshl_b32 s11, s11, 10")
    k("s_add_u32 s10, s10, s11")
    k("s_add_u32 s11, s10, 4096")
    k("buffer_store_dwordx4 %s, v%d, %s, s10 offen" % (v(P, 4), VOFF, s(SRDO, 4)))
    k("buffer_store_dwordx4 %s, v%d, %s, s11 offen" % (v(P + 4, 4), VOFF, s(SRDO, 4)))
    k.stamp(sb + 4)
    k.stamp_dump(31)
    k("s_endpgm")

    k.label(HELP)
    k("s_load_dwordx2 s[8:9], s[0:1], %d" % KA["wo"])
    k("s_load_dwordx4 s[32:35], s[0:1], %d" % KA["w_in"])
    k("s_load_dwordx2 s[36:37], s[0:1], %d" % KA["w_out"])
    k("s_load_dwordx4 s[80:83], s[0:1], %d" % KA["c"])
    ids()
    k("s_sub_u32 s%d, s19, 8" % S_WAVE)
    k("s_lshl_b32 s12, s%d, 12" % S_WAVE)
    k("s_and_b32 s13, s12, 4096")
    k("s_lshr_b32 s14, s%d, 1" % S_WAVE)
    k("s_add_u32 s14, s14, 1")
    k("s_lshl_b32 s14, s14, 22")
    k("s_add_u32 s13, s13, s14")
    k("s_add_u32 s13, s13, s%d" % S_KB)
    k("s_add_u32 s11, s20, 1")
    k("s_and_b32 s11, s11, 7")
    k("s_lshl_b32 s18, s11, 2")
    k("s_lshl_b32 s11, s11, 14")
    k("v_subrev_u32 v8, 512, v0")
    k("s_bfe_u32 s14, s2, 0x60002")
    k("s_add_u32 s14, s14, 32")
    k("s_and_b32 s15, s2, 3")
    g = Gemv(k, 8, 14, 15, 48, 52, 56, NSL * 16384, 16, 60)
    g.addr()
    k("s_lshl_b32 s46, s2, 2")
    k("s_add_u32 s46, s46, s%d" % S_WAVE)
    k("s_add_u32 s47, s12, %d" % STG)
    k("v_lshrrev_b32 v9, 3, v%d" % LANE)
    k("v_and_b32 v10, 7, v%d" % LANE)
    k("v_lshlrev_b32 v10, 4, v10")
    k("v_bfe_u32 v2, v%d, 2, 2" % LANE)
    k("v_and_b32 v3, 3, v%d" % LANE)
    k("v_lshlrev_b32 v3, 3, v3")
    k("v_lshl_add_u32 v3, v2, 7, v3")
    k("v_add_u32 v3, s47, v3")
    k("v_lshrrev_b32 v2, 5, v%d" % LANE)
    k("v_lshl_add_u32 v11, v2, 10, v3")
    k("v_bfe_u32 v2, v%d, 4, 1" % LANE)
    k("v_lshl_add_u32 v11, v2, 5, v11")
    k("v_lshrrev_b32 v2, 4, v%d" % LANE)
    k("v_lshl_add_u32 v12, v2, 10, v3")
    k("v_lshlrev_b32 v13, 4, v2")
    k("v_and_b32 v2, 15, v%d" % LANE)
    k("v_lshl_add_u32 v13, v2, 7, v13")
    k("v_add_u32 v13, s47, v13")
    k("s_waitcnt lgkmcnt(0)")
    ops = []

    def dma(st, check):
        if check:
            poll.need(k)
        k("s_add_u32 m0, s12, %d" % ((st % NSL) * 16384))
        k("s_add_u32 s10, s13, s11")
        for q in range(4):
            k("buffer_load_dwordx4 v%d, %s, s10 offen offset:%d sc1 lds" % (VOFF, s(SRD, 4), q * 1024))
            ops.append(("kv", st))
        k("s_add_u32 s11, s11, 8192")
        k("s_and_b32 s11, s11, 0x1ffff")

    def wait_for(tag):
        last = max(i for i, o in enumerate(ops) if o == tag)
        k("s_waitcnt vmcnt(%d)" % min(63, len(ops) - 1 - last))

    ROUNDS = [(8, "wo", 2048, 16, 512, "WOF", 0), (32, "w_in", 7168, 56, 1792, "WINF", 0),
              (32, "w_in", 7168, 56, 1792, "WINF", 1024), (34, "w_sp", 4096, 32, 2048, "WSPF", 0),
              (34, "w_sp", 4096, 32, 2048, "WSPF", 1024), (36, "w_out", 2048, 16, 896, "WOUTF", 0)]
    RB = 80

    def unit_ids(r):
        ptr, nm, ld, ncg, nu, dst, u0 = ROUNDS[r]
        k("s_add_u32 s41, s46, %d" % u0)
        if ncg == 56:
            k("s_mul_i32 s38, s41, 9363")
            k("s_lshr_b32 s38, s38, 19")
            k("s_mul_i32 s39, s38, 56")
            k("s_sub_u32 s39, s41, s39")
        else:
            k("s_lshr_b32 s38, s41, %d" % (ncg.bit_length() - 1))
            k("s_and_b32 s39, s41, %d" % (ncg - 1))
        k("s_cmp_ge_u32 s41, %d" % nu)
        k("s_cselect_b32 s40, %d, 0" % OOB)

    def rp_load(r, touch=False):
        ptr, nm, ld, ncg, nu, dst, u0 = ROUNDS[r]
        unit_ids(r)
        srd_in(k, 72, ptr, SZ[nm])
        k("s_mov_b32 s42, %d" % ld)
        if touch:
            k("v_and_b32 v14, 31, v%d" % LANE)
            k("v_mul_lo_u32 v14, v14, s42")
        else:
            k("v_mul_lo_u32 v14, v9, s42")
            k("v_add_u32 v14, v14, v10")
        k("s_mul_i32 s42, s38, %d" % (32 * ld))
        k("s_lshl_b32 s41, s39, 7")
        k("s_add_u32 s42, s42, s41")
        k("s_or_b32 s42, s42, s40")
        if touch:
            k("buffer_load_dword v15, v14, s[72:75], s42 offen")
            ops.append(("tc", r))
            return
        for q in range(4):
            k("s_add_u32 m0, s47, %d" % (q * 1024))
            k("s_add_u32 s41, s42, %d" % (q * 8 * ld))
            k("buffer_load_dwordx4 v14, s[72:75], s41 offen lds")
            ops.append(("rp", r))

    def rp_store(r):
        ptr, nm, ld, ncg, nu, dst, u0 = ROUNDS[r]
        wait_for(("rp", r))
        for b in range(4):
            if dst in ("WOF", "WOUTF"):
                for rd in range(2):
                    k("ds_read_b64_tr_b16 %s, v11 offset:%d" % (v(RB + 4 * b + 2 * rd, 2), (b >> 1) * 2048 + rd * 512 + (b & 1) * 64))
            elif dst == "WINF":
                for rd in range(2):
                    k("ds_read_b64_tr_b16 %s, v12 offset:%d" % (v(RB + 4 * b + 2 * rd, 2), rd * 512 + b * 32))
            else:
                k("ds_read_b128 %s, v13 offset:%d" % (v(RB + 4 * b, 4), (b & 1) * 2048 + (b >> 1) * 64))
        unit_ids(r)
        srd_ws(k, 76, 6, dst)
        if dst in ("WOF", "WOUTF"):
            k("s_mul_i32 s42, s39, %d" % ((16 if dst == "WOF" else 28) * 8192))
            k("s_lshl_b32 s41, s38, 12")
            k("s_add_u32 s42, s42, s41")
            k("s_or_b32 s42, s42, s40")
            offs = [("s42", b * 1024) for b in range(4)]
        elif dst == "WSPF":
            k("s_lshr_b32 s42, s38, 2")
            k("s_lshl_b32 s42, s42, 5")
            k("s_add_u32 s42, s42, s39")
            k("s_lshl_b32 s42, s42, 14")
            k("s_and_b32 s41, s38, 3")
            k("s_lshl_b32 s41, s41, 11")
            k("s_add_u32 s42, s42, s41")
            k("s_or_b32 s42, s42, s40")
            k("s_add_u32 s41, s42, 8192")
            offs = [("s42", 0), ("s42", 1024), ("s41", 0), ("s41", 1024)]
        else:
            offs = []
            k("s_cmp_ge_u32 s39, 28")
            k("s_cselect_b32 s16, 28, 0")
            k("s_cselect_b32 s17, 7168, 0")
            k("s_sub_u32 s16, s39, s16")
            k("s_lshl_b32 s16, s16, 2")
            k("s_mul_i32 s41, s38, 14336")
            k("s_add_u32 s17, s17, s41")
            k("s_or_b32 s17, s17, s40")
            for b in range(4):
                k("s_add_u32 s41, s16, %d" % b)
                k("s_mul_i32 s42, s41, 147")
                k("s_lshr_b32 s42, s42, 10")
                k("s_mul_i32 s42, s42, %d" % (458752 - 7 * 1024))
                k("s_lshl_b32 s41, s41, 10")
                k("s_add_u32 s41, s41, s42")
                k("s_add_u32 s%d, s41, s17" % (28 + b))
                offs.append(("s%d" % (28 + b), 0))
        k("s_waitcnt lgkmcnt(0)")
        for b in range(4):
            k("buffer_store_dwordx4 %s, v%d, s[76:79], %s offen offset:%d sc1" % (v(RB + 4 * b, 4), VOFF, offs[b][0], offs[b][1]))
            ops.append(("st", r))

    srd_in(k, 48, 80, SZ["c"])
    srd_in(k, 52, 82, SZ["w_mod"])
    srd_ws(k, 56, 6, "MODP")
    poll.setup(k)
    k("s_barrier")
    k("s_barrier")
    nxt = 2
    GV = (4, 6, 8, 9)
    for it in range(1, 16):
        if it == 3:
            poll.need_count(k, 28)
        while nxt < 16 and nxt <= min(2 * it + 1, it + 5):
            dma(nxt, it < 3)
            nxt += 1
            if it == 1 and nxt == 3:
                k.stamp(sb + 1)
        if it == 3:
            rp_load(0)
            rp_load(1, True)
        if it == 4:
            rp_load(2, True)
        if it >= 5 and it % 2 == 1:
            r = (it - 3) // 2
            rp_store(r - 1)
            if r < len(ROUNDS):
                rp_load(r)
            if r + 2 < len(ROUNDS):
                rp_load(r + 2, True)
        if it in GV:
            n = GV.index(it)
            g.loads(2 * n, 2 * n + 2)
            ops.extend([("gv", n)] * (3 if n == 0 else 2))
        if it == 10:
            code_prefetch(k, "m2_kernel", 8, 100, 16)
            ops.append(("cp", 0))
            wait_for(("gv", 0))
            g.silu()
        if it == 12:
            wait_for(("gv", 3))
            g.mac()
        if it == 13:
            g.red1()
        if it == 14:
            g.fin()
            ops.append(("st", 99))
        if it + 1 < 16:
            wait_for(("kv", it + 1))
        k.stamp(sb + 7 + it)
        if it == 15:
            break
        k("s_barrier")
    k.stamp_dump(31)
    k("s_endpgm")

    k.label(SLOW)
    k("s_waitcnt vmcnt(0)")
    LA, LB = k.uid("slowa"), k.uid("slowb")
    k("s_add_u32 s16, s%d, 0x400000" % S_KB)
    k("s_mov_b32 s%d, 0" % S_ST)
    k("v_mov_b32 v2, 0xff800000")
    k.label(LA)
    k("buffer_load_dwordx4 %s, v%d, %s, s16 offen sc1" % (v(KA_, 4), VOFF, s(SRD, 4)))
    k("buffer_load_dwordx4 %s, v%d, %s, s16 offen offset:1024 sc1" % (v(KB_, 4), VOFF, s(SRD, 4)))
    k("s_waitcnt vmcnt(0)")
    for m in qk(S0, "0"):
        k(m)
    max16(2, S0, False)
    k("s_add_u32 s16, s16, 2048")
    k("s_add_u32 s%d, s%d, 1" % (S_ST, S_ST))
    k("s_cmp_lt_u32 s%d, 64" % S_ST)
    k("s_cbranch_scc1 " + LA)
    set_nm(2)
    zero_state()
    k("s_add_u32 s16, s%d, 0x400000" % S_KB)
    k("s_add_u32 s17, s%d, 0x800000" % S_KB)
    k("s_mov_b32 s%d, 0" % S_ST)
    k.label(LB)
    k("buffer_load_dwordx4 %s, v%d, %s, s16 offen sc1" % (v(KA_, 4), VOFF, s(SRD, 4)))
    k("buffer_load_dwordx4 %s, v%d, %s, s16 offen offset:1024 sc1" % (v(KB_, 4), VOFF, s(SRD, 4)))
    k("buffer_load_dwordx4 %s, v%d, %s, s17 offen sc1" % (v(VA_, 4), VOFF, s(SRD, 4)))
    k("buffer_load_dwordx4 %s, v%d, %s, s17 offen offset:1024 sc1" % (v(VB_, 4), VOFF, s(SRD, 4)))
    k("s_waitcnt vmcnt(0)")
    for m in qk(S0, v(NM, 16)):
        k(m)
    for q in range(4):
        exps(S0, q)
    pv(VA_, P)
    pv(VB_, P + 4)
    k("s_add_u32 s16, s16, 2048")
    k("s_add_u32 s17, s17, 2048")
    k("s_add_u32 s%d, s%d, 1" % (S_ST, S_ST))
    k("s_cmp_lt_u32 s%d, 64" % S_ST)
    k("s_cbranch_scc1 " + LB)
    k("s_branch " + EPI)
```

```python
from common import *
from gemms import stats_to_affine, BCAST


def gen_k1(name="k1_kernel"):
    k = Kern(name)
    END, LN, RP = k.uid("end"), k.uid("ln"), k.uid("rp")
    k("s_cmp_ge_u32 s2, 384")
    k("s_cbranch_scc1 " + END)
    k.kidx = 0
    k.stamp_init()
    k("s_load_dwordx4 s[56:59], s[0:1], %d" % KA["x"])
    k("s_load_dwordx4 s[8:11], s[0:1], %d" % KA["c"])
    k("s_load_dwordx4 s[4:7], s[0:1], %d" % KA["dbg"])
    k("s_cmp_ge_u32 s2, 128")
    k("s_cbranch_scc1 " + LN)
    k("s_lshr_b32 s12, s2, 2")
    k("s_and_b32 s13, s2, 3")
    g = Gemv(k, 0, 12, 13, 20, 24, 28, 0, 8, 32)
    g.addr()
    k("s_waitcnt lgkmcnt(0)")
    srd_in(k, 20, 8, SZ["c"])
    srd_in(k, 24, 10, SZ["w_mod"])
    g.loads()
    srd_ws(k, 28, 6, "MODP")
    srd_in(k, 48, 4, 256)
    srd_ws(k, 52, 6, "PAD")
    k("v_mov_b32 v2, 0")
    k("buffer_load_dword v6, v2, s[52:55], 0 offen")
    k("buffer_load_dword v7, v2, s[48:51], 0 offen offset:128 sc1")
    k.stamp(1)
    k("s_waitcnt vmcnt(10)")
    k.stamp(2)
    g.silu()
    k("s_barrier")
    g.mac(lambda i: k("s_waitcnt vmcnt(%d)" % (9 - i)))
    k.stamp(3)
    k("s_barrier")
    g.red1()
    k("s_barrier")
    k("v_cmp_gt_u32 vcc, 64, v0")
    k("s_and_saveexec_b64 s[60:61], vcc")
    k("s_cbranch_execz " + END)
    g.fin(" sc1")
    NL = k.uid("notlast")
    k("v_mov_b32 v2, 0")
    k("v_mov_b32 v3, 1")
    k("s_waitcnt vmcnt(0)")
    k("s_mov_b64 exec, 1")
    k("buffer_atomic_add v3, v2, s[48:51], 0 offen sc0")
    k("s_waitcnt vmcnt(0)")
    k("v_cmp_eq_u32 vcc, 127, v3")
    k("s_cbranch_vccz " + NL)
    k("buffer_store_dword v3, v2, s[48:51], 0 offen offset:128 sc1")
    k.label(NL)
    k.stamp(4)
    k.stamp_dump(5)
    k("s_endpgm")

    k.label(LN)
    k("s_sub_u32 s12, s2, 128")
    k("v_bfe_u32 v1, v0, 3, 3")
    k("v_and_b32 v2, 7, v0")
    k("v_lshrrev_b32 v5, 6, v0")
    k("v_lshlrev_b32 v3, 11, v1")
    k("v_lshl_add_u32 v3, v2, 4, v3")
    k("v_lshl_add_u32 v3, v5, 9, v3")
    k("s_lshl_b32 s13, s12, 14")
    k("v_lshrrev_b32 v6, 1, v2")
    k("v_lshlrev_b32 v6, 12, v6")
    k("v_lshl_add_u32 v6, v5, 16, v6")
    k("v_and_b32 v7, 1, v2")
    k("v_lshlrev_b32 v7, 9, v7")
    k("v_lshl_add_u32 v7, v1, 4, v7")
    k("v_lshl_add_u32 v64, v6, 1, v7")
    k("v_add_u32 v6, v6, v7")
    k("v_lshlrev_b32 v65, 6, v2")
    k("v_lshl_add_u32 v65, v5, 11, v65")
    k("s_and_b32 s16, s12, 3")
    k("s_lshl_b32 s16, s16, 7")
    k("s_lshr_b32 s15, s12, 4")
    k("s_lshl_b32 s15, s15, 18")
    k("s_bfe_u32 s17, s12, 0x20002")
    k("s_lshl_b32 s17, s17, 10")
    k("s_add_u32 s15, s15, s17")
    k("s_add_u32 s15, s15, s16")
    k("s_lshr_b32 s18, s12, 5")
    k("s_lshl_b32 s18, s18, 19")
    k("s_bfe_u32 s17, s12, 0x30002")
    k("s_lshl_b32 s17, s17, 10")
    k("s_add_u32 s18, s18, s17")
    k("s_add_u32 s18, s18, s16")
    for n in range(4):
        k("s_add_u32 s%d, s15, %d" % (32 + n, n * 16384))
        k("s_add_u32 s%d, s18, %d" % (36 + n, n * 32768))
    k("s_waitcnt lgkmcnt(0)")
    srd_in(k, 20, 56, SZ["x"])
    for n in range(4):
        k("buffer_load_dwordx4 v[%d:%d], v3, s[20:23], s13 offen offset:%d" % (16 + 4 * n, 19 + 4 * n, n * 128))
    srd_ws(k, 24, 6, "H")
    srd_ws(k, 28, 6, "EX")
    srd_ws(k, 52, 6, "XF")
    srd_in(k, 48, 4, 256)
    srd_ws(k, 44, 6, "MODP")
    for r in (8, 9, 10, 11):
        k("v_mov_b32 v%d, -1.0" % r)
    k("v_lshlrev_b32 v4, 4, v0")
    k("s_lshl_b32 s14, s12, 12")
    k("buffer_store_dwordx4 v[8:11], v4, s[28:31], s14 offen")
    for r in (10, 11, 12, 13):
        k("v_mov_b32 v%d, 0" % r)
    k.stamp(1)
    for n in range(4):
        k("s_waitcnt vmcnt(4)")
        k("buffer_store_dwordx4 v[%d:%d], v6, s[52:55], s%d offen" % (16 + 4 * n, 19 + 4 * n, 32 + n))
        for d in range(4):
            o = 32 + 8 * n + 2 * d
            unpack_bf16(k, o, o + 1, 16 + 4 * n + d)
            k("v_pk_add_f32 v[10:11], v[10:11], v[%d:%d]" % (o, o + 1))
            k("v_pk_fma_f32 v[12:13], v[%d:%d], v[%d:%d], v[12:13]" % (o, o + 1, o, o + 1))
    k("v_readfirstlane_b32 s3, v5")
    k("v_and_b32 v100, 63, v0")
    srd_in(k, 40, 58, SZ["wqkv"])
    k("v_lshrrev_b32 v2, 3, v100")
    k("s_mov_b32 s16, 6144")
    k("v_mul_lo_u32 v101, v2, s16")
    k("v_and_b32 v2, 7, v100")
    k("v_lshl_add_u32 v101, v2, 4, v101")
    k("s_lshl_b32 s19, s3, 13")
    k("s_add_u32 s19, s19, 12288")
    for u in range(2):
        k("s_mul_i32 s14, s12, 6")
        k("s_add_u32 s14, s14, s3")
        k("s_add_u32 s14, s14, %d" % (4 * u))
        k("s_mul_i32 s%d, s14, 10923" % (68 + 2 * u))
        k("s_lshr_b32 s%d, s%d, 19" % (68 + 2 * u, 68 + 2 * u))
        k("s_mul_i32 s15, s%d, 48" % (68 + 2 * u))
        k("s_sub_u32 s%d, s14, s15" % (69 + 2 * u))
        k("s_mul_i32 s15, s%d, %d" % (68 + 2 * u, 32 * 6144))
        k("s_lshl_b32 s16, s%d, 7" % (69 + 2 * u))
        k("s_add_u32 s15, s15, s16")
        if u:
            k("s_cmp_ge_u32 s3, 2")
            k("s_cselect_b32 s72, 0x7f000000, 0")
            k("s_or_b32 s15, s15, s72")
        for q in range(4):
            k("s_add_u32 m0, s19, %d" % (u * 4096 + q * 1024))
            k("s_add_u32 s16, s15, %d" % (q * 8 * 6144))
            k("buffer_load_dwordx4 v101, s[40:43], s16 offen lds")
    k("v_add_f32 v10, v10, v11")
    k("v_add_f32 v11, v12, v13")
    for m in ("quad_perm:[1,0,3,2]", "quad_perm:[2,3,0,1]", "row_half_mirror"):
        for r in (10, 11):
            k("v_add_f32_dpp v%d, v%d, v%d %s row_mask:0xf bank_mask:0xf" % (r, r, r, m))
    k("v_lshlrev_b32 v7, 5, v1")
    k("v_lshl_add_u32 v8, v5, 3, v7")
    k("ds_write_b64 v8, v[10:11] offset:8192")
    k("s_waitcnt lgkmcnt(0)")
    srd_ws(k, 40, 6, "WQF")
    k("v_bfe_u32 v2, v100, 2, 2")
    k("v_and_b32 v3, 3, v100")
    k("v_lshlrev_b32 v101, 3, v3")
    k("v_lshl_add_u32 v101, v2, 7, v101")
    k("v_lshrrev_b32 v2, 5, v100")
    k("v_lshl_add_u32 v101, v2, 10, v101")
    k("v_bfe_u32 v2, v100, 4, 1")
    k("v_lshl_add_u32 v101, v2, 5, v101")
    k("v_add_u32 v101, s19, v101")
    k("v_lshlrev_b32 v100, 4, v100")
    for u in range(2):
        k("s_and_b32 s15, s%d, 15" % (69 + 2 * u))
        k("s_mul_i32 s15, s15, %d" % (2 * 196608))
        k("s_mul_i32 s16, s%d, 6144" % (68 + 2 * u))
        k("s_add_u32 s15, s15, s16")
        k("s_lshr_b32 s16, s%d, 4" % (69 + 2 * u))
        k("s_lshl_b32 s16, s16, 10")
        k("s_add_u32 s15, s15, s16")
        if u:
            k("s_or_b32 s15, s15, s72")
        k("s_add_u32 s16, s15, 196608")
        k("s_waitcnt vmcnt(4)")
        for b in range(4):
            for rd in range(2):
                k("ds_read_b64_tr_b16 %s, v101 offset:%d" %
                  (v(68 + 16 * u + 4 * b + 2 * rd, 2), u * 4096 + (b >> 1) * 2048 + rd * 512 + (b & 1) * 64))
        for b in range(4):
            k("s_waitcnt lgkmcnt(%d)" % (6 - 2 * b))
            k("buffer_store_dwordx4 %s, v100, s[40:43], s%d offen offset:%d sc1" % (v(68 + 16 * u + 4 * b, 4), 15 + (b & 1), (b >> 1) * 3072))
    code_prefetch(k, "m1_kernel", 0, 104, 74)
    k.stamp(2)
    W, GO = k.uid("wait"), k.uid("go")
    k("s_cmp_lg_u32 s3, 3")
    k("s_cbranch_scc1 " + GO)
    k("v_mov_b32 v9, 0")
    k("s_mov_b32 s16, 0")
    k.label(W)
    k("buffer_load_dword v14, v9, s[48:51], 0 offen offset:128 sc1")
    k("s_waitcnt vmcnt(0)")
    k("v_cmp_eq_u32 vcc, 0, v14")
    k("s_cbranch_vccz " + GO)
    k("s_sleep 4")
    k("s_add_u32 s16, s16, 1")
    k("s_cmp_lt_u32 s16, 0x100000")
    k("s_cbranch_scc1 " + W)
    k.label(GO)
    k("s_waitcnt lgkmcnt(0)")
    k("s_barrier")
    k.stamp(3)
    T0 = 68
    for n, (idx, p) in enumerate([(1, p) for p in range(4)] + [(0, p) for p in range(4)]):
        k("s_mov_b32 s%d, %d" % (60 + n, (p * 6144 + idx * 1024) * 4))
        k("buffer_load_dwordx4 %s, v4, s[44:47], s%d offen sc1" % (v(T0 + 4 * n, 4), 60 + n))
    k("ds_read_b128 v[8:11], v7 offset:8192")
    k("ds_read_b128 v[12:15], v7 offset:8208")
    k("s_waitcnt lgkmcnt(0)")
    k("v_pk_add_f32 v[8:9], v[8:9], v[10:11]")
    k("v_pk_add_f32 v[12:13], v[12:13], v[14:15]")
    k("v_pk_add_f32 v[8:9], v[8:9], v[12:13]")
    stats_to_affine(k, 8, 1024)
    for o in range(32, 64, 2):
        k("v_pk_fma_f32 v[%d:%d], v[%d:%d], v[8:9], v[8:9] %s" % (o, o + 1, o, o + 1, BCAST))
    k("v_lshrrev_b32 v2, 1, v0")
    k("v_lshlrev_b32 v2, 6, v2")
    k("v_and_b32 v3, 1, v0")
    k("v_lshl_add_u32 v2, v3, 4, v2")
    k("s_waitcnt vmcnt(0)")
    for b in (T0, T0 + 16):
        for (x, y) in ((0, 4), (8, 12), (0, 8)):
            for e in (0, 2):
                k("v_pk_add_f32 %s, %s, %s" % (v(b + x + e, 2), v(b + x + e, 2), v(b + y + e, 2)))
        for e in (0, 2):
            k("v_cvt_pk_bf16_f32 v3, v%d, v%d" % (b + e, b + e + 1))
            unpack_bf16(k, b + e, b + e + 1, 3)
    for e in range(4):
        k("v_add_f32 v%d, 1.0, v%d" % (T0 + e, T0 + e))
    for e in (0, 2):
        k("v_cvt_pk_bf16_f32 v3, v%d, v%d" % (T0 + e, T0 + e + 1))
        unpack_bf16(k, T0 + e, T0 + e + 1, 3)
    k("ds_write_b128 v2, %s" % v(T0, 4))
    k("ds_write_b128 v2, %s offset:32" % v(T0 + 16, 4))
    k("s_waitcnt lgkmcnt(0)")
    k("s_barrier")
    for n in range(2):
        for q in range(4):
            k("ds_read_b128 %s, v65 offset:%d" % (v(T0 + 16 * n + 4 * q, 4), n * 512 + q * 16))
    for n in range(4):
        G = T0 + 16 * (n & 1)
        k("s_waitcnt lgkmcnt(%d)" % (4 if n < 3 else 0))
        for d in range(4):
            o = 32 + 8 * n + 2 * d
            k("v_pk_fma_f32 v[%d:%d], v[%d:%d], %s, %s" % (o, o + 1, o, o + 1, v(G + 2 * d, 2), v(G + 8 + 2 * d, 2)))
        if n < 2:
            for q in range(4):
                k("ds_read_b128 %s, v65 offset:%d" % (v(G + 4 * q, 4), (n + 2) * 512 + q * 16))
        for d in range(4):
            o = 32 + 8 * n + 2 * d
            k("v_cvt_pk_bf16_f32 v%d, v%d, v%d" % (16 + 4 * n + d, o, o + 1))
        k("buffer_store_dwordx4 v[%d:%d], v64, s[24:27], s%d offen" % (16 + 4 * n, 19 + 4 * n, 36 + n))
    k.stamp(4)
    k.stamp_dump(5)
    k.label(END)
    k("s_endpgm")
    txt, n = k.finish(vgprs=108, sgprs=80)
    return txt, "; @launch kernel=%s grid=(384,1,1) block=(256,1,1) lds=%d" % (name, 12288 + 32768)
```

```python
from gemm import *

FL2, FL3, FL4, FL0, FL1 = 0, 32768, 65536, 98304, 131072
P_WS = 6


def signal(k, base, s_group, s_member, st=None, s_wave=S_WAVE, lg=4):
    SK = k.uid("nosig")
    srd_ws(k, SRD_E0, P_WS, "FL")
    k("s_lshl_b32 s56, s%d, %d" % (s_group, 7 + lg))
    k("s_lshl_b32 s57, s%d, 7" % s_member)
    k("s_add_u32 s56, s56, s57")
    k("s_add_u32 s56, s56, %d" % base)
    k("v_mov_b32 v2, 0")
    k("v_mov_b32 v3, 1.0")
    k("s_waitcnt vmcnt(0)")
    if st:
        k.stamp(st)
    k("s_barrier")
    k("s_cmp_lg_u32 s%d, 0" % s_wave)
    k("s_cbranch_scc1 " + SK)
    k("s_mov_b64 exec, 1")
    k("buffer_store_dword v3, v2, %s, s56 offen sc1" % s(SRD_E0, 4))
    k("s_mov_b64 exec, -1")
    k.label(SK)


class Poll:
    def __init__(self, base, s_group, a, b, regs=None, s_rot=None, before=None, lg=4, barrier=True, lds=None):
        self.base, self.s_group, self.a, self.b, self.s_rot, self.before = base, s_group, a, b, s_rot, before
        self.lg, self.barrier, self.lds = lg, barrier, lds
        self.r = regs or dict(srd=SRD_E0, off=56, seen=58, tmp=59, acc=60, cnt=64, va=16, vv=17, vl=18)

    def setup(self, k):
        r = self.r
        if self.before:
            self.before(k)
        srd_ws(k, r["srd"], P_WS, "FL")
        n1 = (1 << self.lg) - 1
        k("s_lshl_b32 s%d, s%d, %d" % (r["off"], self.s_group, 7 + self.lg))
        k("s_add_u32 s%d, s%d, %d" % (r["off"], r["off"], self.base))
        k("v_min_u32 v%d, %d, v%d" % (r["va"], n1, V_LANE))
        if self.s_rot is not None:
            k("v_add_u32 v%d, s%d, v%d" % (r["va"], self.s_rot, r["va"]))
            k("v_and_b32 v%d, %d, v%d" % (r["va"], n1, r["va"]))
        k("v_lshlrev_b32 v%d, 7, v%d" % (r["va"], r["va"]))
        k("s_mov_b32 s%d, 0" % r["seen"])
        k("s_mov_b32 s%d, %d" % (r["acc"], self.b))
        k("v_mov_b32 v%d, %d" % (r["vl"], self.lds))
        k("v_mov_b32 v%d, 0" % r["vv"])
        k("ds_write_b32 v%d, v%d" % (r["vl"], r["vv"]))
        k("s_waitcnt lgkmcnt(0)")
        if self.barrier:
            k("s_barrier")

    def need_count(self, k, n):
        k("s_mov_b32 s%d, %d" % (self.r["acc"], (n - 1) << 10))
        self.need(k)

    def need(self, k, on_slow=None):
        r = self.r
        L, D = k.uid("wait"), k.uid("go")
        k("s_lshr_b32 s%d, s%d, 10" % (r["tmp"], r["acc"]))
        k("s_add_u32 s%d, s%d, %d" % (r["acc"], r["acc"], self.a))
        k("s_cmp_gt_u32 s%d, s%d" % (r["seen"], r["tmp"]))
        k("s_cbranch_scc1 " + D)
        if on_slow:
            on_slow(k)
        k("s_mov_b32 s%d, 0" % r["cnt"])
        F = k.uid("follow")
        k("s_cmp_lg_u32 s%d, 0" % S_WAVE)
        k("s_cbranch_scc1 " + F)
        k.label(L)
        k("buffer_load_dword v%d, v%d, %s, s%d offen sc1" % (r["vv"], r["va"], s(r["srd"], 4), r["off"]))
        k("s_waitcnt vmcnt(0)")
        k("v_cmp_gt_f32 vcc, 0, v%d" % r["vv"])
        k("s_add_u32 s%d, s%d, 1" % (r["cnt"], r["cnt"]))
        k("s_nop 3")
        k("s_ff1_i32_b64 s%d, vcc" % r["seen"])
        k("v_mov_b32 v%d, s%d" % (r["vv"], r["seen"]))
        k("ds_write_b32 v%d, v%d" % (r["vl"], r["vv"]))
        k("s_cmp_gt_u32 s%d, s%d" % (r["seen"], r["tmp"]))
        k("s_cbranch_scc1 " + D)
        k("s_sleep 3")
        k("s_cmp_lt_u32 s%d, 0x100000" % r["cnt"])
        k("s_cbranch_scc1 " + L)
        k("s_branch " + D)
        k.label(F)
        k("ds_read_b32 v%d, v%d" % (r["vv"], r["vl"]))
        k("s_add_u32 s%d, s%d, 1" % (r["cnt"], r["cnt"]))
        k("s_waitcnt lgkmcnt(0)")
        k("v_readfirstlane_b32 s%d, v%d" % (r["seen"], r["vv"]))
        k("s_nop 3")
        k("s_cmp_gt_u32 s%d, s%d" % (r["seen"], r["tmp"]))
        k("s_cbranch_scc1 " + D)
        k("s_sleep 1")
        k("s_cmp_lt_u32 s%d, 0x1000000" % r["cnt"])
        k("s_cbranch_scc1 " + F)
        k.label(D)
```

```python
from common import *
from gemms import stats_to_affine, BCAST


def gen_k1(name="k1_kernel", tlb=0):
    k = Kern(name)
    END, LN, RP = k.uid("end"), k.uid("ln"), k.uid("rp")
    k("s_cmp_ge_u32 s2, 385")
    k("s_cbranch_scc1 " + END)
    k.kidx = 0
    k.stamp_init()
    k("s_load_dwordx4 s[56:59], s[0:1], %d" % KA["x"])
    k("s_load_dwordx4 s[8:11], s[0:1], %d" % KA["c"])
    k("s_load_dwordx4 s[4:7], s[0:1], %d" % KA["dbg"])
    k("s_cmp_ge_u32 s2, 129")
    k("s_cbranch_scc1 " + LN)
    k("s_cmp_lt_u32 s2, 1")
    k("s_cbranch_scc1 " + RP)
    k("s_sub_u32 s13, s2, 1")

    def wait_flag(issued):
        W, GO, CH = k.uid("wait"), k.uid("go"), k.uid("chk")
        k("s_mov_b32 s16, 0")
        if issued:
            k("s_branch " + CH)
        k.label(W)
        k("buffer_load_dword v3, v2, s[48:51], 0 offen sc1")
        k.label(CH)
        k("s_waitcnt vmcnt(0)")
        k("v_cmp_eq_u32 vcc, 0, v3")
        k("s_cbranch_vccz " + GO)
        k("s_sleep 4")
        k("s_add_u32 s16, s16, 1")
        k("s_cmp_lt_u32 s16, 0x100000")
        k("s_cbranch_scc1 " + W)
        k.label(GO)
    k("s_lshr_b32 s12, s13, 2")
    k("s_and_b32 s13, s13, 3")
    g = Gemv(k, 0, 12, 13, 20, 24, 28, 0, 8, 32)
    g.addr()
    k("s_waitcnt lgkmcnt(0)")
    srd_in(k, 20, 8, SZ["c"])
    srd_in(k, 24, 10, SZ["w_mod"])
    srd_ws(k, 28, 6, "MODP")
    srd_in(k, 48, 4, 256)
    g.loads()
    k.stamp(1)
    k("s_waitcnt vmcnt(8)")
    k.stamp(2)
    g.silu()
    k("s_barrier")
    g.mac(lambda i: k("s_waitcnt vmcnt(%d)" % (7 - i)))
    k.stamp(3)
    k("v_mov_b32 v2, 0")
    k("buffer_load_dword v3, v2, s[48:51], 0 offen sc1")
    k("s_barrier")
    g.red1()
    k("s_barrier")
    k("v_cmp_gt_u32 vcc, 64, v0")
    k("s_and_saveexec_b64 s[60:61], vcc")
    k("s_cbranch_execz " + END)
    wait_flag(True)
    g.fin(" sc1")
    k.stamp(4)
    k.stamp_dump(5)
    k("s_endpgm")

    k.label(RP)
    k("v_lshlrev_b32 v1, 4, v0")
    for r in (4, 5, 6, 7):
        k("v_mov_b32 v%d, -1" % r)
    k("v_mov_b32 v2, 0")
    k("s_waitcnt lgkmcnt(0)")
    srd_ws(k, 28, 6, "MODP")
    srd_in(k, 48, 4, 256)
    for n in range(8):
        k("s_mov_b32 s12, %d" % ((n >> 1) * 6144 * 4 + (n & 1) * 4096))
        k("buffer_store_dwordx4 v[4:7], v1, s[28:31], s12 offen sc1")
    k("s_waitcnt vmcnt(0)")
    k("s_barrier")
    k("v_cmp_eq_u32 vcc, 0, v0")
    k("s_and_saveexec_b64 s[60:61], vcc")
    k("s_cbranch_execz " + END)
    k("buffer_store_dword v4, v2, s[48:51], 0 offen sc1")
    k("s_endpgm")

    k.label(LN)
    k("s_sub_u32 s12, s2, 129")
    k("v_bfe_u32 v1, v0, 3, 3")
    k("v_and_b32 v2, 7, v0")
    k("v_lshrrev_b32 v5, 6, v0")
    k("v_lshlrev_b32 v3, 11, v1")
    k("v_lshl_add_u32 v3, v2, 4, v3")
    k("v_lshl_add_u32 v3, v5, 9, v3")
    k("s_lshl_b32 s13, s12, 14")
    k("v_lshrrev_b32 v6, 1, v2")
    k("v_lshlrev_b32 v6, 12, v6")
    k("v_lshl_add_u32 v6, v5, 16, v6")
    k("v_and_b32 v7, 1, v2")
    k("v_lshlrev_b32 v7, 9, v7")
    k("v_lshl_add_u32 v7, v1, 4, v7")
    k("v_lshl_add_u32 v64, v6, 1, v7")
    k("v_add_u32 v6, v6, v7")
    k("v_lshlrev_b32 v65, 6, v2")
    k("v_lshl_add_u32 v65, v5, 11, v65")
    k("s_and_b32 s16, s12, 3")
    k("s_lshl_b32 s16, s16, 7")
    k("s_lshr_b32 s15, s12, 4")
    k("s_lshl_b32 s15, s15, 18")
    k("s_bfe_u32 s17, s12, 0x20002")
    k("s_lshl_b32 s17, s17, 10")
    k("s_add_u32 s15, s15, s17")
    k("s_add_u32 s15, s15, s16")
    k("s_lshr_b32 s18, s12, 5")
    k("s_lshl_b32 s18, s18, 19")
    k("s_bfe_u32 s17, s12, 0x30002")
    k("s_lshl_b32 s17, s17, 10")
    k("s_add_u32 s18, s18, s17")
    k("s_add_u32 s18, s18, s16")
    for n in range(4):
        k("s_add_u32 s%d, s15, %d" % (32 + n, n * 16384))
        k("s_add_u32 s%d, s18, %d" % (36 + n, n * 32768))
    k("s_waitcnt lgkmcnt(0)")
    srd_in(k, 20, 56, SZ["x"])
    for n in range(4):
        k("buffer_load_dwordx4 v[%d:%d], v3, s[20:23], s13 offen offset:%d" % (16 + 4 * n, 19 + 4 * n, n * 128))
    srd_ws(k, 24, 6, "H")
    srd_ws(k, 28, 6, "EX")
    srd_ws(k, 52, 6, "XF")
    srd_in(k, 48, 4, 256)
    srd_ws(k, 44, 6, "MODP")
    for r in (8, 9, 10, 11):
        k("v_mov_b32 v%d, -1.0" % r)
    k("v_lshlrev_b32 v4, 4, v0")
    k("s_lshl_b32 s14, s12, 12")
    k("buffer_store_dwordx4 v[8:11], v4, s[28:31], s14 offen")
    for r in (10, 11, 12, 13):
        k("v_mov_b32 v%d, 0" % r)
    k.stamp(1)
    for n in range(4):
        k("s_waitcnt vmcnt(4)")
        k("buffer_store_dwordx4 v[%d:%d], v6, s[52:55], s%d offen" % (16 + 4 * n, 19 + 4 * n, 32 + n))
        for d in range(4):
            o = 32 + 8 * n + 2 * d
            unpack_bf16(k, o, o + 1, 16 + 4 * n + d)
            k("v_pk_add_f32 v[10:11], v[10:11], v[%d:%d]" % (o, o + 1))
            k("v_pk_fma_f32 v[12:13], v[%d:%d], v[%d:%d], v[12:13]" % (o, o + 1, o, o + 1))
    k("v_readfirstlane_b32 s3, v5")
    k("v_and_b32 v100, 63, v0")
    srd_in(k, 40, 58, SZ["wqkv"])
    k("v_lshrrev_b32 v2, 3, v100")
    k("s_mov_b32 s16, 6144")
    k("v_mul_lo_u32 v101, v2, s16")
    k("v_and_b32 v2, 7, v100")
    k("v_lshl_add_u32 v101, v2, 4, v101")
    k("s_lshl_b32 s19, s3, 13")
    k("s_add_u32 s19, s19, 12288")
    for u in range(2):
        k("s_mul_i32 s14, s12, 6")
        k("s_add_u32 s14, s14, s3")
        k("s_add_u32 s14, s14, %d" % (4 * u))
        k("s_mul_i32 s%d, s14, 10923" % (68 + 2 * u))
        k("s_lshr_b32 s%d, s%d, 19" % (68 + 2 * u, 68 + 2 * u))
        k("s_mul_i32 s15, s%d, 48" % (68 + 2 * u))
        k("s_sub_u32 s%d, s14, s15" % (69 + 2 * u))
        k("s_mul_i32 s15, s%d, %d" % (68 + 2 * u, 32 * 6144))
        k("s_lshl_b32 s16, s%d, 7" % (69 + 2 * u))
        k("s_add_u32 s15, s15, s16")
        if u:
            k("s_cmp_ge_u32 s3, 2")
            k("s_cselect_b32 s72, 0x7f000000, 0")
            k("s_or_b32 s15, s15, s72")
        for q in range(4):
            k("s_add_u32 m0, s19, %d" % (u * 4096 + q * 1024))
            k("s_add_u32 s16, s15, %d" % (q * 8 * 6144))
            k("buffer_load_dwordx4 v101, s[40:43], s16 offen lds")
    k("v_add_f32 v10, v10, v11")
    k("v_add_f32 v11, v12, v13")
    for m in ("quad_perm:[1,0,3,2]", "quad_perm:[2,3,0,1]", "row_half_mirror"):
        for r in (10, 11):
            k("v_add_f32_dpp v%d, v%d, v%d %s row_mask:0xf bank_mask:0xf" % (r, r, r, m))
    k("v_lshlrev_b32 v7, 5, v1")
    k("v_lshl_add_u32 v8, v5, 3, v7")
    k("ds_write_b64 v8, v[10:11] offset:8192")
    k("s_waitcnt lgkmcnt(0)")
    srd_ws(k, 40, 6, "WQF")
    k("v_bfe_u32 v2, v100, 2, 2")
    k("v_and_b32 v3, 3, v100")
    k("v_lshlrev_b32 v101, 3, v3")
    k("v_lshl_add_u32 v101, v2, 7, v101")
    k("v_lshrrev_b32 v2, 5, v100")
    k("v_lshl_add_u32 v101, v2, 10, v101")
    k("v_bfe_u32 v2, v100, 4, 1")
    k("v_lshl_add_u32 v101, v2, 5, v101")
    k("v_add_u32 v101, s19, v101")
    k("v_lshlrev_b32 v100, 4, v100")
    for u in range(2):
        k("s_and_b32 s15, s%d, 15" % (69 + 2 * u))
        k("s_mul_i32 s15, s15, %d" % (2 * 196608))
        k("s_mul_i32 s16, s%d, 6144" % (68 + 2 * u))
        k("s_add_u32 s15, s15, s16")
        k("s_lshr_b32 s16, s%d, 4" % (69 + 2 * u))
        k("s_lshl_b32 s16, s16, 10")
        k("s_add_u32 s15, s15, s16")
        if u:
            k("s_or_b32 s15, s15, s72")
        k("s_add_u32 s16, s15, 196608")
        k("s_waitcnt vmcnt(4)")
        for b in range(4):
            for rd in range(2):
                k("ds_read_b64_tr_b16 %s, v101 offset:%d" %
                  (v(68 + 16 * u + 4 * b + 2 * rd, 2), u * 4096 + (b >> 1) * 2048 + rd * 512 + (b & 1) * 64))
        for b in range(4):
            k("s_waitcnt lgkmcnt(%d)" % (6 - 2 * b))
            k("buffer_store_dwordx4 %s, v100, s[40:43], s%d offen offset:%d sc1" % (v(68 + 16 * u + 4 * b, 4), 15 + (b & 1), (b >> 1) * 3072))
    code_prefetch(k, "m1_kernel", 0, 104, 74)
    if tlb:
        NT_ = k.uid("notouch")
        k("s_cmp_lg_u32 s3, 2")
        k("s_cbranch_scc1 " + NT_)
        k("s_load_dwordx2 s[60:61], s[0:1], %d" % KA["wo"])
        k("s_load_dwordx8 s[64:71], s[0:1], %d" % KA["w_in"])
        k("s_load_dwordx2 s[62:63], s[0:1], %d" % KA["out"])
        k("v_and_b32 v104, 63, v0")
        k("v_lshlrev_b32 v104, %d, v104" % tlb)
        srd_in(k, 40, 6, 0x4E00000)
        for n in range(0x4E00000 >> (tlb + 6)):
            k("s_mov_b32 s14, %d" % (n << (tlb + 6)))
            k("buffer_load_dword v107, v104, s[40:43], s14 offen")
        k("s_mov_b32 s14, %d" % ((0x4E00000 >> (tlb + 6)) << (tlb + 6)))
        k("buffer_load_dword v107, v104, s[40:43], s14 offen")
        k("s_waitcnt lgkmcnt(0)")
        for (p, nm) in ((60, "wo"), (64, "w_in"), (66, "w_sp"), (70, "w_out"), (62, "out"), (10, "w_mod")):
            srd_in(k, 40, p, SZ[nm])
            k("buffer_load_dword v107, v104, s[40:43], 0 offen")
        k.label(NT_)
    k.stamp(2)
    GO = k.uid("go")
    k("s_cmp_lg_u32 s3, 3")
    k("s_cbranch_scc1 " + GO)
    k("v_mov_b32 v2, 0")
    wait_flag(False)
    k.label(GO)
    k("s_waitcnt lgkmcnt(0)")
    k("s_barrier")
    k.stamp(3)
    T0 = 68
    for n, (idx, p) in enumerate([(1, p) for p in range(4)] + [(0, p) for p in range(4)]):
        k("s_mov_b32 s%d, %d" % (60 + n, (p * 6144 + idx * 1024) * 4))

    def par_loads():
        for n in range(8):
            k("buffer_load_dwordx4 %s, v4, s[44:47], s%d offen sc1" % (v(T0 + 4 * n, 4), 60 + n))
    par_loads()
    k("ds_read_b128 v[8:11], v7 offset:8192")
    k("ds_read_b128 v[12:15], v7 offset:8208")
    k("s_waitcnt lgkmcnt(0)")
    k("v_pk_add_f32 v[8:9], v[8:9], v[10:11]")
    k("v_pk_add_f32 v[12:13], v[12:13], v[14:15]")
    k("v_pk_add_f32 v[8:9], v[8:9], v[12:13]")
    stats_to_affine(k, 8, 1024)
    for o in range(32, 64, 2):
        k("v_pk_fma_f32 v[%d:%d], v[%d:%d], v[8:9], v[8:9] %s" % (o, o + 1, o, o + 1, BCAST))
    k("v_lshrrev_b32 v2, 1, v0")
    k("v_lshlrev_b32 v2, 6, v2")
    k("v_and_b32 v3, 1, v0")
    k("v_lshl_add_u32 v2, v3, 4, v2")
    RE, OK = k.uid("retry"), k.uid("ok")
    k("s_mov_b32 s16, 0")
    k.label(RE)
    k("s_waitcnt vmcnt(0)")
    k("v_max_u32 v3, v%d, v%d" % (T0, T0 + 1))
    for e in range(2, 32, 2):
        k("v_max3_u32 v3, v3, v%d, v%d" % (T0 + e, T0 + e + 1))
    k("v_cmp_eq_u32 vcc, -1, v3")
    k("s_cbranch_vccz " + OK)
    k("s_sleep 4")
    par_loads()
    k("s_add_u32 s16, s16, 1")
    k("s_cmp_lt_u32 s16, 0x100000")
    k("s_cbranch_scc1 " + RE)
    k("s_waitcnt vmcnt(0)")
    k.label(OK)
    k.stamp(6)
    for b in (T0, T0 + 16):
        for (x, y) in ((0, 4), (8, 12), (0, 8)):
            for e in (0, 2):
                k("v_pk_add_f32 %s, %s, %s" % (v(b + x + e, 2), v(b + x + e, 2), v(b + y + e, 2)))
        for e in (0, 2):
            k("v_cvt_pk_bf16_f32 v3, v%d, v%d" % (b + e, b + e + 1))
            unpack_bf16(k, b + e, b + e + 1, 3)
    for e in range(4):
        k("v_add_f32 v%d, 1.0, v%d" % (T0 + e, T0 + e))
    for e in (0, 2):
        k("v_cvt_pk_bf16_f32 v3, v%d, v%d" % (T0 + e, T0 + e + 1))
        unpack_bf16(k, T0 + e, T0 + e + 1, 3)
    k("ds_write_b128 v2, %s" % v(T0, 4))
    k("ds_write_b128 v2, %s offset:32" % v(T0 + 16, 4))
    k("s_waitcnt lgkmcnt(0)")
    k("s_barrier")
    for n in range(2):
        for q in range(4):
            k("ds_read_b128 %s, v65 offset:%d" % (v(T0 + 16 * n + 4 * q, 4), n * 512 + q * 16))
    for n in range(4):
        G = T0 + 16 * (n & 1)
        k("s_waitcnt lgkmcnt(%d)" % (4 if n < 3 else 0))
        for d in range(4):
            o = 32 + 8 * n + 2 * d
            k("v_pk_fma_f32 v[%d:%d], v[%d:%d], %s, %s" % (o, o + 1, o, o + 1, v(G + 2 * d, 2), v(G + 8 + 2 * d, 2)))
        if n < 2:
            for q in range(4):
                k("ds_read_b128 %s, v65 offset:%d" % (v(G + 4 * q, 4), (n + 2) * 512 + q * 16))
        for d in range(4):
            o = 32 + 8 * n + 2 * d
            k("v_cvt_pk_bf16_f32 v%d, v%d, v%d" % (16 + 4 * n + d, o, o + 1))
        k("buffer_store_dwordx4 v[%d:%d], v64, s[24:27], s%d offen" % (16 + 4 * n, 19 + 4 * n, 36 + n))
    k.stamp(4)
    k.stamp_dump(5)
    k.label(END)
    k("s_endpgm")
    txt, n = k.finish(vgprs=108, sgprs=80)
    return txt, "; @launch kernel=%s grid=(385,1,1) block=(256,1,1) lds=%d" % (name, 12288 + 32768)
```

```python
import sys
from k1 import gen_k1
from gemms import *
from m1 import gen_m1
from m2 import gen_m2

def gen_dbg():
    st = Kern.STAMPS
    Kern.STAMPS = False
    k = Kern("dbg_kernel")
    k("s_cmp_ge_u32 s2, 1")
    k("s_cbranch_scc1 L_dbg_end")
    k("s_load_dwordx4 s[4:7], s[0:1], 88")
    k("s_waitcnt lgkmcnt(0)")
    srd_in(k, 8, 4, 256)
    srd_in(k, 12, 6, 0x10000000)
    items = [(0, 0), (0, 3), (0, 5), (1, 0), (1, 2), (1, 3), (1, 11), (1, 31), (2, 0), (2, 2), (2, 3), (2, 9), (2, 15), (2, 20), (2, 21), (2, 31)]
    k("v_mov_b32 v1, 0")
    for n, (kid, st_) in enumerate(items):
        k("s_mov_b32 s16, %d" % (0x8000000 + kid * 0x400000 + 136 * 4096 + (32 + st_) * 4))
        k("v_writelane_b32 v1, s16, %d" % n)
    k("buffer_load_dword v2, v1, s[12:15], 0 offen")
    k("v_lshlrev_b32 v3, 2, v0")
    k("s_waitcnt vmcnt(0)")
    k("v_readlane_b32 s16, v2, 0")
    k("v_subrev_u32 v2, s16, v2")
    k("buffer_store_dword v2, v3, s[8:11], 0 offen")
    k.label("L_dbg_end")
    k("s_endpgm")
    r = k.finish(vgprs=8, sgprs=32)[0], "; @launch kernel=dbg_kernel grid=(1,1,1) block=(64,1,1) lds=0"
    Kern.STAMPS = st
    return r


def build(path, **opt):
    Kern.STAMPS = opt.get("stamps", False)
    for key in DBG:
        DBG[key] = opt.get(key, False)
    import gemm, gemms
    ov = opt.get("ov", {})
    gemms.gemm = lambda name, cfg: gemm.gemm(name, dict(cfg, **ov))
    g = opt.get("g", {})
    parts = [gen_k1(**g.get(0, {})), gen_m1(force_slow=opt.get("force_slow", False), **g.get(1, {})), gen_m2(**g.get("m", {}))]
    if opt.get("dbgk"):
        parts.append(gen_dbg())
    ref = open("adaLN_cond__softmax_full_mha__mixer_gmlp__prompt.s.ref").read().split("\n")
    head = [l for l in ref if l.startswith(";") and "@launch" not in l and "Override" not in l and "grid=ceil" not in l]
    txt = "\n".join(head) + "\n" + "\n".join(p[1] for p in parts) + "\n"
    txt += ".amdgcn_target \"amdgcn-amd-amdhsa--gfx950\"\n" + "\n".join(p[0] for p in parts)
    open(path, "w").write(txt)

if __name__ == "__main__":
    build("adaLN_cond__softmax_full_mha__mixer_gmlp__prompt.s")
    build("slow.s", force_slow=True)
    build("stamp.s", stamps=True)
    if len(sys.argv) > 1 and sys.argv[1] == "m":
        build("stamp_a.s", stamps=True, g={"m": dict(ns=(4, 4, 4))})
        build("stamp_b.s", stamps=True, g={"m": dict(ns=(6, 3, 6))})
    if len(sys.argv) > 1 and sys.argv[1] == "x":
        build("stamp_a.s", stamps=True, fine=True)
    if len(sys.argv) > 1 and sys.argv[1] == "y":
        build("stamp_a.s", stamps=True, no_prod=True)
        build("stamp_b.s", stamps=True, l2hit=True)
        build("stamp_c.s", stamps=True, g={"m": dict(o4=dict(wgroup=2))})
    if len(sys.argv) > 1 and sys.argv[1] == "t":
        build("a.s", g={0: dict(tlb=21)})
        build("b.s", g={0: dict(tlb=18)})
    if len(sys.argv) > 1 and sys.argv[1] == "d":
        build("a.s", stamps=True, dbgk=True)
```

```python
from common import *
from gemms import stats_to_affine, BCAST
from sync import FL1


def gen_k1(name="k1_kernel", tlb=0):
    k = Kern(name)
    END, LN, RP = k.uid("end"), k.uid("ln"), k.uid("rp")
    k("s_cmp_ge_u32 s2, 385")
    k("s_cbranch_scc1 " + END)
    k.kidx = 0
    k.stamp_init()
    k("s_load_dwordx4 s[56:59], s[0:1], %d" % KA["x"])
    k("s_load_dwordx4 s[8:11], s[0:1], %d" % KA["c"])
    k("s_load_dwordx4 s[4:7], s[0:1], %d" % KA["dbg"])
    k("s_cmp_ge_u32 s2, 129")
    k("s_cbranch_scc1 " + LN)
    k("s_cmp_lt_u32 s2, 1")
    k("s_cbranch_scc1 " + RP)
    k("s_sub_u32 s13, s2, 1")

    def wait_flag(issued):
        W, GO, CH = k.uid("wait"), k.uid("go"), k.uid("chk")
        k("s_mov_b32 s16, 0")
        if issued:
            k("s_branch " + CH)
        k.label(W)
        k("buffer_load_dword v3, v2, s[48:51], 0 offen sc1")
        k.label(CH)
        k("s_waitcnt vmcnt(0)")
        k("v_cmp_eq_u32 vcc, 0, v3")
        k("s_cbranch_vccz " + GO)
        k("s_sleep 4")
        k("s_add_u32 s16, s16, 1")
        k("s_cmp_lt_u32 s16, 0x100000")
        k("s_cbranch_scc1 " + W)
        k.label(GO)
    k("s_lshr_b32 s12, s13, 2")
    k("s_and_b32 s13, s13, 3")
    g = Gemv(k, 0, 12, 13, 20, 24, 28, 0, 8, 32)
    g.addr()
    k("s_waitcnt lgkmcnt(0)")
    srd_in(k, 20, 8, SZ["c"])
    srd_in(k, 24, 10, SZ["w_mod"])
    srd_ws(k, 28, 6, "MODP")
    srd_in(k, 48, 4, 256)
    g.loads()
    k.stamp(1)
    k("s_waitcnt vmcnt(8)")
    k.stamp(2)
    g.silu()
    k("s_barrier")
    g.mac(lambda i: k("s_waitcnt vmcnt(%d)" % (7 - i)))
    k.stamp(3)
    k("s_barrier")
    g.red1()
    k("s_barrier")
    k("v_cmp_gt_u32 vcc, 64, v0")
    k("s_and_saveexec_b64 s[60:61], vcc")
    k("s_cbranch_execz " + END)
    g.fin(" sc1")
    k.stamp(6)
    k("v_mov_b32 v2, 0")
    wait_flag(False)
    k(k.lines[[n for n, l in enumerate(k.lines) if "buffer_store_dword v48" in l][-1]])
    k.stamp(4)
    k.stamp_dump(5)
    k("s_endpgm")

    k.label(RP)
    k("v_lshlrev_b32 v1, 4, v0")
    for r in (4, 5, 6, 7):
        k("v_mov_b32 v%d, -1" % r)
    k("v_mov_b32 v2, 0")
    k("s_waitcnt lgkmcnt(0)")
    srd_ws(k, 28, 6, "MODP")
    srd_in(k, 48, 4, 256)
    for n in range(8):
        k("s_mov_b32 s12, %d" % ((n >> 1) * 6144 * 4 + (n & 1) * 4096))
        k("buffer_store_dwordx4 v[4:7], v1, s[28:31], s12 offen sc1")
    k.stamp(1)
    k("s_waitcnt vmcnt(0)")
    k.stamp(2)
    k("s_barrier")
    k("v_cmp_eq_u32 vcc, 0, v0")
    k("s_and_saveexec_b64 s[60:61], vcc")
    k("s_cbranch_execz " + END)
    k("buffer_store_dword v4, v2, s[48:51], 0 offen sc1")
    k.stamp(3)
    k.stamp_dump(5)
    k("s_endpgm")

    k.label(LN)
    k("s_sub_u32 s12, s2, 129")
    k("v_bfe_u32 v1, v0, 3, 3")
    k("v_and_b32 v2, 7, v0")
    k("v_lshrrev_b32 v5, 6, v0")
    k("v_lshlrev_b32 v3, 11, v1")
    k("v_lshl_add_u32 v3, v2, 4, v3")
    k("v_lshl_add_u32 v3, v5, 9, v3")
    k("s_lshl_b32 s13, s12, 14")
    k("v_lshrrev_b32 v6, 1, v2")
    k("v_lshlrev_b32 v6, 12, v6")
    k("v_lshl_add_u32 v6, v5, 16, v6")
    k("v_and_b32 v7, 1, v2")
    k("v_lshlrev_b32 v7, 9, v7")
    k("v_lshl_add_u32 v7, v1, 4, v7")
    k("v_lshl_add_u32 v64, v6, 1, v7")
    k("v_lshlrev_b32 v65, 6, v2")
    k("v_lshl_add_u32 v65, v5, 11, v65")
    k("s_and_b32 s16, s12, 3")
    k("s_lshl_b32 s16, s16, 7")
    k("s_lshr_b32 s18, s12, 5")
    k("s_lshl_b32 s18, s18, 19")
    k("s_bfe_u32 s17, s12, 0x30002")
    k("s_lshl_b32 s17, s17, 10")
    k("s_add_u32 s18, s18, s17")
    k("s_add_u32 s18, s18, s16")
    for n in range(4):
        k("s_add_u32 s%d, s18, %d" % (36 + n, n * 32768))
    k("s_waitcnt lgkmcnt(0)")
    srd_in(k, 20, 56, SZ["x"])
    for n in range(4):
        k("buffer_load_dwordx4 v[%d:%d], v3, s[20:23], s13 offen offset:%d" % (16 + 4 * n, 19 + 4 * n, n * 128))
    srd_ws(k, 24, 6, "H")
    srd_ws(k, 28, 6, "FL")
    srd_in(k, 48, 4, 256)
    srd_ws(k, 44, 6, "MODP")
    k("v_mov_b32 v8, -1.0")
    k("v_lshlrev_b32 v4, 1, v0")
    k("v_and_b32 v4, 0x1fc, v4")
    k("s_lshl_b32 s14, s12, 9")
    k("s_add_u32 s14, s14, %d" % FL1)
    k("buffer_store_dword v8, v4, s[28:31], s14 offen")
    k("v_lshlrev_b32 v4, 4, v0")
    for r in (10, 11, 12, 13):
        k("v_mov_b32 v%d, 0" % r)
    k.stamp(1)
    for n in range(4):
        k("s_waitcnt vmcnt(%d)" % (4 - n))
        for d in range(4):
            o = 32 + 8 * n + 2 * d
            unpack_bf16(k, o, o + 1, 16 + 4 * n + d)
            k("v_pk_add_f32 v[10:11], v[10:11], v[%d:%d]" % (o, o + 1))
            k("v_pk_fma_f32 v[12:13], v[%d:%d], v[%d:%d], v[12:13]" % (o, o + 1, o, o + 1))
    k("v_readfirstlane_b32 s3, v5")
    k("v_and_b32 v100, 63, v0")
    srd_in(k, 40, 58, SZ["wqkv"])
    k("v_lshrrev_b32 v2, 3, v100")
    k("s_mov_b32 s16, 6144")
    k("v_mul_lo_u32 v101, v2, s16")
    k("v_and_b32 v2, 7, v100")
    k("v_lshl_add_u32 v101, v2, 4, v101")
    k("s_lshl_b32 s19, s3, 13")
    k("s_add_u32 s19, s19, 12288")
    for u in range(2):
        k("s_mul_i32 s14, s12, 6")
        k("s_add_u32 s14, s14, s3")
        k("s_add_u32 s14, s14, %d" % (4 * u))
        k("s_mul_i32 s%d, s14, 10923" % (68 + 2 * u))
        k("s_lshr_b32 s%d, s%d, 19" % (68 + 2 * u, 68 + 2 * u))
        k("s_mul_i32 s15, s%d, 48" % (68 + 2 * u))
        k("s_sub_u32 s%d, s14, s15" % (69 + 2 * u))
        k("s_mul_i32 s15, s%d, %d" % (68 + 2 * u, 32 * 6144))
        k("s_lshl_b32 s16, s%d, 7" % (69 + 2 * u))
        k("s_add_u32 s15, s15, s16")
        if u:
            k("s_cmp_ge_u32 s3, 2")
            k("s_cselect_b32 s72, 0x7f000000, 0")
            k("s_or_b32 s15, s15, s72")
        for q in range(4):
            k("s_add_u32 m0, s19, %d" % (u * 4096 + q * 1024))
            k("s_add_u32 s16, s15, %d" % (q * 8 * 6144))
            k("buffer_load_dwordx4 v101, s[40:43], s16 offen lds")
    k("v_add_f32 v10, v10, v11")
    k("v_add_f32 v11, v12, v13")
    for m in ("quad_perm:[1,0,3,2]", "quad_perm:[2,3,0,1]", "row_half_mirror"):
        for r in (10, 11):
            k("v_add_f32_dpp v%d, v%d, v%d %s row_mask:0xf bank_mask:0xf" % (r, r, r, m))
    k("v_lshlrev_b32 v7, 5, v1")
    k("v_lshl_add_u32 v8, v5, 3, v7")
    k("ds_write_b64 v8, v[10:11] offset:8192")
    k("s_waitcnt lgkmcnt(0)")
    srd_ws(k, 40, 6, "WQF")
    k("v_bfe_u32 v2, v100, 2, 2")
    k("v_and_b32 v3, 3, v100")
    k("v_lshlrev_b32 v101, 3, v3")
    k("v_lshl_add_u32 v101, v2, 7, v101")
    k("v_lshrrev_b32 v2, 5, v100")
    k("v_lshl_add_u32 v101, v2, 10, v101")
    k("v_bfe_u32 v2, v100, 4, 1")
    k("v_lshl_add_u32 v101, v2, 5, v101")
    k("v_add_u32 v101, s19, v101")
    k("v_lshlrev_b32 v100, 4, v100")
    for u in range(2):
        k("s_and_b32 s15, s%d, 15" % (69 + 2 * u))
        k("s_mul_i32 s15, s15, %d" % (2 * 196608))
        k("s_mul_i32 s16, s%d, 6144" % (68 + 2 * u))
        k("s_add_u32 s15, s15, s16")
        k("s_lshr_b32 s16, s%d, 4" % (69 + 2 * u))
        k("s_lshl_b32 s16, s16, 10")
        k("s_add_u32 s15, s15, s16")
        if u:
            k("s_or_b32 s15, s15, s72")
        k("s_add_u32 s16, s15, 196608")
        k("s_waitcnt vmcnt(4)")
        for b in range(4):
            for rd in range(2):
                k("ds_read_b64_tr_b16 %s, v101 offset:%d" %
                  (v(68 + 16 * u + 4 * b + 2 * rd, 2), u * 4096 + (b >> 1) * 2048 + rd * 512 + (b & 1) * 64))
        for b in range(4):
            k("s_waitcnt lgkmcnt(%d)" % (6 - 2 * b))
            k("buffer_store_dwordx4 %s, v100, s[40:43], s%d offen offset:%d sc1" % (v(68 + 16 * u + 4 * b, 4), 15 + (b & 1), (b >> 1) * 3072))
    code_prefetch(k, "m1_kernel", 0, 104, 74)
    if tlb:
        NT_ = k.uid("notouch")
        k("s_cmp_lg_u32 s3, 2")
        k("s_cbranch_scc1 " + NT_)
        k("s_load_dwordx2 s[60:61], s[0:1], %d" % KA["wo"])
        k("s_load_dwordx8 s[64:71], s[0:1], %d" % KA["w_in"])
        k("s_load_dwordx2 s[62:63], s[0:1], %d" % KA["out"])
        k("v_and_b32 v104, 63, v0")
        k("v_lshlrev_b32 v104, %d, v104" % tlb)
        srd_in(k, 40, 6, 0x4E00000)
        for n in range(0x4E00000 >> (tlb + 6)):
            k("s_mov_b32 s14, %d" % (n << (tlb + 6)))
            k("buffer_load_dword v107, v104, s[40:43], s14 offen")
        k("s_mov_b32 s14, %d" % ((0x4E00000 >> (tlb + 6)) << (tlb + 6)))
        k("buffer_load_dword v107, v104, s[40:43], s14 offen")
        k("s_waitcnt lgkmcnt(0)")
        for (p, nm) in ((60, "wo"), (64, "w_in"), (66, "w_sp"), (70, "w_out"), (62, "out"), (10, "w_mod")):
            srd_in(k, 40, p, SZ[nm])
            k("buffer_load_dword v107, v104, s[40:43], 0 offen")
        k.label(NT_)
    k.stamp(2)
    GO = k.uid("go")
    k("s_cmp_lg_u32 s3, 3")
    k("s_cbranch_scc1 " + GO)
    k("v_mov_b32 v2, 0")
    wait_flag(False)
    k.label(GO)
    k("s_waitcnt lgkmcnt(0)")
    k("s_barrier")
    k.stamp(3)
    T0 = 68
    for n, (idx, p) in enumerate([(1, p) for p in range(4)] + [(0, p) for p in range(4)]):
        k("s_mov_b32 s%d, %d" % (60 + n, (p * 6144 + idx * 1024) * 4))

    def par_loads():
        for n in range(8):
            k("buffer_load_dwordx4 %s, v4, s[44:47], s%d offen sc1" % (v(T0 + 4 * n, 4), 60 + n))
    par_loads()
    k("ds_read_b128 v[8:11], v7 offset:8192")
    k("ds_read_b128 v[12:15], v7 offset:8208")
    k("s_waitcnt lgkmcnt(0)")
    k("v_pk_add_f32 v[8:9], v[8:9], v[10:11]")
    k("v_pk_add_f32 v[12:13], v[12:13], v[14:15]")
    k("v_pk_add_f32 v[8:9], v[8:9], v[12:13]")
    stats_to_affine(k, 8, 1024)
    for o in range(32, 64, 2):
        k("v_pk_fma_f32 v[%d:%d], v[%d:%d], v[8:9], v[8:9] %s" % (o, o + 1, o, o + 1, BCAST))
    k("v_lshrrev_b32 v2, 1, v0")
    k("v_lshlrev_b32 v2, 6, v2")
    k("v_and_b32 v3, 1, v0")
    k("v_lshl_add_u32 v2, v3, 4, v2")
    RE, OK = k.uid("retry"), k.uid("ok")
    k("s_mov_b32 s16, 0")
    k.label(RE)
    k("s_waitcnt vmcnt(0)")
    k("v_max_u32 v3, v%d, v%d" % (T0, T0 + 1))
    for e in range(2, 32, 2):
        k("v_max3_u32 v3, v3, v%d, v%d" % (T0 + e, T0 + e + 1))
    k("v_cmp_eq_u32 vcc, -1, v3")
    k("s_cbranch_vccz " + OK)
    k("s_sleep 4")
    par_loads()
    k("s_add_u32 s16, s16, 1")
    k("s_cmp_lt_u32 s16, 0x100000")
    k("s_cbranch_scc1 " + RE)
    k("s_waitcnt vmcnt(0)")
    k.label(OK)
    k.stamp(6)
    for b in (T0, T0 + 16):
        for (x, y) in ((0, 4), (8, 12), (0, 8)):
            for e in (0, 2):
                k("v_pk_add_f32 %s, %s, %s" % (v(b + x + e, 2), v(b + x + e, 2), v(b + y + e, 2)))
        for e in (0, 2):
            k("v_cvt_pk_bf16_f32 v3, v%d, v%d" % (b + e, b + e + 1))
            unpack_bf16(k, b + e, b + e + 1, 3)
    for e in range(4):
        k("v_add_f32 v%d, 1.0, v%d" % (T0 + e, T0 + e))
    for e in (0, 2):
        k("v_cvt_pk_bf16_f32 v3, v%d, v%d" % (T0 + e, T0 + e + 1))
        unpack_bf16(k, T0 + e, T0 + e + 1, 3)
    k("ds_write_b128 v2, %s" % v(T0, 4))
    k("ds_write_b128 v2, %s offset:32" % v(T0 + 16, 4))
    k("s_waitcnt lgkmcnt(0)")
    k("s_barrier")
    for n in range(2):
        for q in range(4):
            k("ds_read_b128 %s, v65 offset:%d" % (v(T0 + 16 * n + 4 * q, 4), n * 512 + q * 16))
    for n in range(4):
        G = T0 + 16 * (n & 1)
        k("s_waitcnt lgkmcnt(%d)" % (4 if n < 3 else 0))
        for d in range(4):
            o = 32 + 8 * n + 2 * d
            k("v_pk_fma_f32 v[%d:%d], v[%d:%d], %s, %s" % (o, o + 1, o, o + 1, v(G + 2 * d, 2), v(G + 8 + 2 * d, 2)))
        if n < 2:
            for q in range(4):
                k("ds_read_b128 %s, v65 offset:%d" % (v(G + 4 * q, 4), (n + 2) * 512 + q * 16))
        for d in range(4):
            o = 32 + 8 * n + 2 * d
            k("v_cvt_pk_bf16_f32 v%d, v%d, v%d" % (16 + 4 * n + d, o, o + 1))
        k("buffer_store_dwordx4 v[%d:%d], v64, s[24:27], s%d offen" % (16 + 4 * n, 19 + 4 * n, 36 + n))
    k.stamp(4)
    k.stamp_dump(5)
    k.label(END)
    k("s_endpgm")
    txt, n = k.finish(vgprs=108, sgprs=80)
    return txt, "; @launch kernel=%s grid=(385,1,1) block=(256,1,1) lds=%d" % (name, 12288 + 32768)
```

```python
from sync import *
from gemms import pack16, swap8, MIXLO, MIXHI
from attn import emit_attn, ATT_LDS, STG
from m2 import dep

NS1 = 3
PAR = NS1 * 45056


def gen_m1(name="m1_kernel", force_slow=False):
    k = Kern(name)
    END, REST, PROD, COMP, HELP = [k.uid(x) for x in ("end", "rest", "prod", "comp", "help")]
    FR, ACC = 16, 56
    k("s_cmp_ge_u32 s2, 256")
    k("s_cbranch_scc1 " + END)
    k.kidx = 1
    k.stamp_init()
    k("s_load_dwordx2 s[6:7], s[0:1], %d" % KA["ws"])
    k("v_lshrrev_b32 v2, 6, v0")
    k("v_and_b32 v%d, 63, v0" % V_LANE)
    k("v_readfirstlane_b32 s19, v2")
    map_blocks(k, 2, 8, 1)
    k("s_mov_b32 s%d, s19" % S_WAVE)
    k("s_cmp_ge_u32 s19, 8")
    k("s_cbranch_scc1 " + PROD)
    k("s_cmp_lt_u32 s19, 4")
    k("s_cbranch_scc1 " + REST)

    k("v_subrev_u32 v2, 256, v0")
    k("v_lshlrev_b32 v2, 4, v2")
    k("v_cmp_gt_u32 vcc, 2560, v2")
    k("v_mov_b32 v3, 0x7f000000")
    k("v_cndmask_b32 v2, v3, v2, vcc")
    for r in (8, 9, 10, 11):
        k("v_mov_b32 v%d, -1.0" % r)
    k("s_mul_i32 s50, s2, 2560")
    k("s_waitcnt lgkmcnt(0)")
    srd_ws(k, SRD_E0, 6, "EX")
    k("s_barrier")
    k("buffer_store_dwordx4 v[8:11], v2, %s, s50 offen" % s(SRD_E0, 4))
    for _ in range(16):
        k("s_barrier")
    k("s_branch " + COMP)

    def epilogue(k):
        qs = 32 ** -0.5 * LOG2E
        k("v_lshlrev_b32 v2, 4, v%d" % V_LANE)
        k("s_lshl_b32 s56, s%d, 17" % S_BN)
        k("s_lshl_b32 s57, s%d, 14" % S_BM)
        k("s_add_u32 s56, s56, s57")
        k("s_lshl_b32 s59, s%d, 12" % S_WAVE)
        k("s_add_u32 s56, s56, s59")
        k("s_add_u32 s57, s56, 0x400000")
        k("s_add_u32 s58, s56, 0x800000")
        k("s_add_u32 s62, s59, %d" % STG)
        k("v_add_u32 v4, s62, v2")
        k("s_lshr_b32 s62, s%d, 1" % S_WAVE)
        k("s_lshl_b32 s62, s62, 13")
        k("s_add_u32 s62, s62, s59")
        k("v_add_u32 v3, s62, v2")
        k("s_mov_b32 s60, %s" % fhex(qs))
        k("s_mov_b32 s61, %s" % fhex(qs))
        n = 0
        for j in (1, 2, 0):
            for i in range(2):
                A = ACC + 16 * (i * 3 + j)
                P = FR + 8 * (n % 4)
                n += 1
                if j == 0:
                    for e in range(0, 16, 2):
                        k("v_pk_mul_f32 %s, %s, s[60:61]" % (v(A + e, 2), v(A + e, 2)))
                    if i == 0:
                        k("s_waitcnt lgkmcnt(4)")
                pack16(k, P, A)
                if j != 2:
                    swap8(k, P)
                for mf in range(2):
                    o = i * 2048 + mf * 1024
                    if j:
                        k("buffer_store_dwordx4 %s, v2, %s, s%d offen offset:%d sc1" % (v(P + 4 * mf, 4), s(SRD_E1, 4), 56 + j, o))
                        k("ds_write_b128 v3, %s offset:%d" % (v(P + 4 * mf, 4), (j - 1) * 8192 + o))
                    else:
                        k("ds_write_b128 v4, %s offset:%d" % (v(P + 4 * mf, 4), o))
        k("s_waitcnt lgkmcnt(0)")

    def srds_p(k):
        srd_ws_sub(k, SRD_X, 6, "H", 81, 16 * 32768)
        srd_ws_sub(k, SRD_W, 6, "WQF", 80, 16 * 12288)

    def dma_setup(k):
        k("s_mul_i32 s50, s%d, 3072" % S_WAVE)
        k("v_lshl_add_u32 v8, v%d, 4, s50" % V_LANE)
        k("s_mul_i32 s80, s%d, %d" % (S_BN, 16 * 12288))
        k("s_lshl_b32 s81, s%d, 19" % S_BM)
        k("s_mov_b32 s82, 0")
        k("s_lshl_b32 s50, s%d, 13" % S_WAVE)
        k("v_lshl_add_u32 v5, v%d, 4, s50" % V_LANE)
        k("v_add_u32 v6, 4096, v5")
        return [Dma(SRD_X, [5, 5, 5, 5, 6, 6, 6, 6], 32768, 0, 32768, 82),
                Dma(SRD_W, [8, 8, 8], 12288, NS1 * 32768, 12288, 82)]

    cfg = dict(PD=1, T=16, MT=2, NT=3, NS=NS1, wgrid="4x1", srds_p=srds_p, x_ks=8192,
               x_ring=(0, 32768, NS1), w_ring=(NS1 * 32768, 12288, NS1), x_mode="dma_fm", w_mode="fm",
               w_wave_stride=0, swap_tile=lambda j: j == 2,
               FRAG=FR, ACC=ACC, dma_setup=dma_setup, epilogue=epilogue)

    k.label(PROD)
    k("s_sub_u32 s%d, s19, 8" % S_WAVE)
    prod_phase(k, cfg, 0, first=True)
    k("s_branch " + HELP)

    k.label(REST)
    k("s_waitcnt lgkmcnt(0)")
    srd_ws(k, SRD_E1, 6, "QKV")
    cons_phase(k, cfg, 0)
    pr = dict(srd=96, off=94, seen=95, tmp=101, acc=100, cnt=4, va=96, vv=97, vl=98)
    emit_attn(k, COMP, HELP, Poll(FL1, 21, 2048, 1024, regs=pr, s_rot=18, lg=5, barrier=False, lds=ATT_LDS), force_slow=force_slow)
    k.label(END)
    k("s_endpgm")
    txt, n = k.finish(vgprs=152, sgprs=102)
    return txt, "; @launch kernel=%s grid=(256,1,1) block=(768,1,1) lds=%d" % (name, ATT_LDS + 64)
```

```python
from gemm import *
from gemms import (w_voff, pack16, swap8, ex_addr, both_halves, ex_publish, stats_to_affine, BCAST)
from sync import *
import math

S_WM, S_WN = 48, 49
P_X, P_WS, P_BSP, P_OUT = 4, 6, 12, 16
MV = 3 * 45056
X1R, FR, Z1R = 16, 32, 192


def ex_collect(k, R, G, vr, srd, soff, n, nq, nb=1, bstride=0):
    L, D = k.uid("poll"), k.uid("got")
    k("s_mov_b32 s64, 0")
    offs = {}
    nxt = 65
    for b in range(nb):
        for hi in range((nq + 7) // 8):
            c = b * bstride + hi * 4096
            if c == 0:
                offs[(b, hi)] = soff
            else:
                k("s_add_u32 s%d, s%d, %d" % (nxt, soff, c))
                offs[(b, hi)] = nxt
                nxt += 1
    k.label(L)
    for b in range(nb):
        for q in range(nq):
            k("buffer_load_dwordx2 %s, v%d, %s, s%d offen offset:%d sc1" %
              (v(R[b] + 2 * q, 2), vr, s(srd, 4), offs[(b, q // 8)], (q & 7) * 512))
    k("s_waitcnt vmcnt(0)")
    k("v_mov_b32 v2, 0")
    for b in range(nb):
        for q in range(0, nq, 2):
            k("v_min3_f32 v2, v2, v%d, v%d" % (R[b] + 2 * q + 1, R[b] + 2 * q + 3))
    k("v_cmp_gt_f32 vcc, 0, v2")
    k("s_cbranch_vccz " + D)
    k("s_sleep 2")
    k("s_add_u32 s64, s64, 1")
    k("s_cmp_lt_u32 s64, 0x100000")
    k("s_cbranch_scc1 " + L)
    k.label(D)
    for b in range(nb):
        Rb = R[b]
        m = nq
        while m > 1:
            h = (m + 1) // 2
            for e in range(m - h):
                k("v_pk_add_f32 %s, %s, %s" % (v(Rb + 2 * e, 2), v(Rb + 2 * e, 2), v(Rb + 2 * (e + h), 2)))
            m = h
        both_halves(k, Rb, Rb + 2)
        both_halves(k, Rb + 1, Rb + 3)
        stats_to_affine(k, Rb, n)
        k("v_mov_b32 v%d, v%d" % (G + 2 * b, Rb))
        k("v_mov_b32 v%d, v%d" % (G + 2 * b + 1, Rb + 1))


def dep(d):
    d.dep = True
    return d


def lin_voff(k):
    k("s_mov_b32 s82, 0")
    k("s_lshl_b32 s50, s%d, 12" % S_WAVE)
    k("v_lshl_add_u32 v5, v%d, 4, s50" % V_LANE)


def cfg25(which, PD=3, NS=5):
    T = 16 if which == 2 else 28
    ACC, GA, XR, T2 = 80, 112, 144, 160

    def srds_c(k):
        if which == 2:
            srd_in(k, SRD_E1, P_X, SZ["x"])
            srd_ws(k, SRD_E2, P_WS, "H2")
            srd_ws(k, SRD_E3, P_WS, "EX2")
        else:
            srd_in(k, SRD_E2, P_OUT, SZ["out"])

    def srds_p(k):
        srd_ws_sub(k, SRD_X, P_WS, "O" if which == 2 else "U", 81, T * 16384)
        srd_ws_sub(k, SRD_W, P_WS, "WOF" if which == 2 else "WOUTF", 80, T * 8192)
        if which == 2:
            srd_ws(k, SRD_E0, P_WS, "MODP")

    def dma_setup(k):
        k("s_lshl_b32 s50, s%d, 11" % S_WAVE)
        k("v_lshl_add_u32 v8, v%d, 4, s50" % V_LANE)
        k("s_mul_i32 s80, s%d, %d" % (S_BN, T * 8192))
        k("s_mul_i32 s81, s%d, %d" % (S_BM, T * 16384))
        lin_voff(k)
        if which == 2:
            k("s_lshl_b32 s56, s%d, 8" % S_BN)
            k("s_add_u32 s56, s56, s50")
            k("s_add_u32 s56, s56, %d" % (2 * 4096))
            for p in range(1, 4):
                k("s_add_u32 s%d, s56, %d" % (59 + p, p * 6144 * 4))
            k("v_lshlrev_b32 v12, 2, v%d" % V_LANE)
            k("s_cmp_eq_u32 s%d, 2" % S_WAVE)
            k("s_cselect_b32 s58, 1.0, 0")
            k("s_lshl_b32 s59, s%d, 8" % S_WAVE)
            k("s_add_u32 s59, s59, %d" % MV)
            k("v_add_u32 v13, s59, v12")
        x = Dma(SRD_X, [5, 5, 5, 5], 16384, 0, 16384, 82)
        return [dep(x) if which == 5 else x, Dma(SRD_W, [8, 8], 8192, NS * 16384, 8192, 82)]

    def prod_pre_load(k):
        k("buffer_load_dword v14, v12, %s, s56 offen" % s(SRD_E0, 4))
        for p in range(1, 4):
            k("buffer_load_dword v%d, v12, %s, s%d offen" % (14 + p, s(SRD_E0, 4), 59 + p))

    def prod_pre_fin(k):
        k("v_add_f32 v14, v14, v15")
        k("v_add_f32 v16, v16, v17")
        k("v_add_f32 v14, v14, v16")
        k("v_cvt_pk_bf16_f32 v14, v14, v14")
        k("v_lshlrev_b32 v14, 16, v14")
        k("v_add_f32 v14, s58, v14")
        k("v_cvt_pk_bf16_f32 v14, v14, v14")
        k("v_lshlrev_b32 v14, 16, v14")
        k("ds_write_b32 v13, v14")
        k("s_waitcnt lgkmcnt(0)")

    def cons_pre(k):
        k("v_lshrrev_b32 v3, 5, v%d" % V_LANE)
        k("v_lshlrev_b32 v13, 4, v3")
        k("v_add_u32 v13, %d, v13" % MV)
        if which == 2:
            k("v_and_b32 v2, 31, v%d" % V_LANE)
            k("v_lshlrev_b32 v11, 11, v2")
            k("v_lshl_add_u32 v11, v3, 4, v11")
            k("s_lshl_b32 s60, s%d, 18" % S_BM)
            k("s_lshl_b32 s58, s%d, 16" % S_WAVE)
            k("s_add_u32 s60, s60, s58")
            k("s_lshl_b32 s58, s%d, 7" % S_BN)
            k("s_add_u32 s60, s60, s58")
            k("s_lshl_b32 s59, s%d, 4" % S_BM)
            k("s_add_u32 s59, s59, s%d" % S_BN)
            k("s_lshl_b32 s59, s59, 14")
            k("s_lshl_b32 s58, s%d, 11" % S_WAVE)
            k("s_add_u32 s57, s59, s58")
            k("s_add_u32 s55, s57, 8192")
            k("v_bfe_u32 v2, v%d, 4, 1" % V_LANE)
            k("v_lshlrev_b32 v12, 10, v2")
            k("v_lshl_add_u32 v12, v3, 8, v12")
            k("v_and_b32 v2, 15, v%d" % V_LANE)
            k("v_lshl_add_u32 v12, v2, 4, v12")
            ex_addr(k, 14)
            k("s_lshl_b32 s56, s%d, 2" % S_BM)
            k("s_add_u32 s56, s56, s%d" % S_WAVE)
            k("s_lshl_b32 s56, s56, 12")
            k("s_lshl_b32 s58, s%d, 8" % S_BN)
            k("s_add_u32 s58, s58, s56")
        else:
            k("v_and_b32 v2, 31, v%d" % V_LANE)
            k("v_lshlrev_b32 v12, 11, v2")
            k("v_lshl_add_u32 v12, v3, 4, v12")
            k("s_lshl_b32 s58, s%d, 18" % S_BM)
            k("s_lshl_b32 s56, s%d, 16" % S_WAVE)
            k("s_add_u32 s58, s58, s56")
            k("s_lshl_b32 s56, s%d, 7" % S_BN)
            k("s_add_u32 s58, s58, s56")

    def cons_loads(k):
        for q in range(4):
            k("buffer_load_dwordx4 %s, v11, %s, s60 offen offset:%d" % (v(XR + 4 * q, 4), s(SRD_E1, 4), q * 32))

    def mv_read(k, R, vec):
        for jg in range(8):
            k("ds_read_b128 %s, v13 offset:%d" % (v(R + 4 * jg, 4), vec * 256 + jg * 32))

    def epilogue(k):
        TT = T2
        mv_read(k, GA, 0 if which == 2 else 3)
        src = X1R
        if which == 2:
            src = XR
            k("s_waitcnt vmcnt(0)")
            swap8(k, XR)
            swap8(k, XR + 8)
            for r in (4, 5, 6, 7):
                k("v_mov_b32 v%d, 0" % r)
        for d in range(16):
            unpack_bf16(k, TT + 2 * d, TT + 2 * d + 1, src + d)
        k("s_waitcnt lgkmcnt(0)")
        for d in range(16):
            k("v_pk_fma_f32 %s, %s, %s, %s" % (v(ACC + 2 * d, 2), v(ACC + 2 * d, 2), v(GA + 2 * d, 2), v(TT + 2 * d, 2)))
        if which == 5:
            for j in range(2):
                P = FR + 8 * j
                pack16(k, P, ACC + 16 * j)
                swap8(k, P)
                for p in range(2):
                    k("buffer_store_dwordx4 %s, v12, %s, s58 offen offset:%d" % (v(P + 4 * p, 4), s(SRD_E2, 4), j * 64 + p * 32))
            return
        for d in range(16):
            k("v_pk_add_f32 v[4:5], v[4:5], %s" % v(ACC + 2 * d, 2))
            k("v_pk_fma_f32 v[6:7], %s, %s, v[6:7]" % (v(ACC + 2 * d, 2), v(ACC + 2 * d, 2)))
        ex_publish(k, 4, 14, SRD_E3, 58)
        mv_read(k, GA, 2)
        mv_read(k, TT, 1)
        for j in range(2):
            pack16(k, X1R + 8 * j, ACC + 16 * j)
        k.stamp(24)
        ex_collect(k, [FR + 16], 4, 14, SRD_E3, 56, 1024, 8)
        k.stamp(25)
        k("s_waitcnt lgkmcnt(0)")
        for j in range(2):
            for d in range(8 * j, 8 * j + 8):
                k("v_pk_fma_f32 %s, %s, v[4:5], v[4:5] %s" % (v(ACC + 2 * d, 2), v(ACC + 2 * d, 2), BCAST))
            for d in range(8 * j, 8 * j + 8):
                k("v_pk_fma_f32 %s, %s, %s, %s" % (v(ACC + 2 * d, 2), v(ACC + 2 * d, 2), v(GA + 2 * d, 2), v(TT + 2 * d, 2)))
            P = FR + 8 * j
            pack16(k, P, ACC + 16 * j)
            swap8(k, P)
            for p in range(2):
                k("buffer_store_dwordx4 %s, v12, %s, s%d offen offset:%d sc1" % (v(P + 4 * p, 4), s(SRD_E2, 4), 55 if j else 57, p * 512))
        k.stamp(26)
        signal(k, FL2, S_BM, S_BN, 5)

    c = dict(PD=PD, T=T, MT=1, NT=2, NS=NS, wgrid="4x1", srds_c=srds_c, srds_p=srds_p,
             map=lambda k: map_blocks(k, 2, 8, 2),
             x_ring=(0, 16384, NS), w_ring=(NS * 16384, 8192, NS), x_mode="dma_fm", w_mode="fm",
             w_wave_stride=0, reads_per_mfma=3,
             FRAG=FR, ACC=ACC, dma_setup=dma_setup, cons_pre=cons_pre, epilogue=epilogue)
    if which == 2:
        c.update(cons_loads=cons_loads, prod_pre_load=prod_pre_load, prod_pre_fin=prod_pre_fin)
    else:
        c.update(poll=Poll(FL4, S_BM, 4 * 147, 3 * 147, lds=MV + 1024))
    return c


C0 = -2.0 * math.sqrt(2.0 / math.pi) * LOG2E
C1 = C0 * 0.044715


def gelu(k, A, n, TT):
    for e in range(0, n, 2):
        k("v_pk_mul_f32 %s, %s, %s" % (v(TT + e, 2), v(A + e, 2), v(A + e, 2)))
    for e in range(0, n, 2):
        k("v_pk_fma_f32 %s, %s, s[60:61], v[12:13]" % (v(TT + e, 2), v(TT + e, 2)))
    for e in range(0, n, 2):
        k("v_pk_mul_f32 %s, %s, %s" % (v(TT + e, 2), v(TT + e, 2), v(A + e, 2)))
    for e in range(n):
        k("v_exp_f32 v%d, v%d" % (TT + e, TT + e))
    for e in range(0, n, 2):
        k("v_pk_add_f32 %s, %s, 1.0 op_sel_hi:[1,0]" % (v(TT + e, 2), v(TT + e, 2)))
    for e in range(n):
        k("v_rcp_f32 v%d, v%d" % (TT + e, TT + e))
    for e in range(0, n, 2):
        k("v_pk_mul_f32 %s, %s, %s" % (v(A + e, 2), v(A + e, 2), v(TT + e, 2)))


def pack8(k, P, A):
    for d in range(4):
        k("v_cvt_pk_bf16_f32 v%d, v%d, v%d" % (P + d, A + 2 * d, A + 2 * d + 1))


def swap16(k, P):
    k("v_permlane16_swap_b32 v%d, v%d" % (P, P + 2))
    k("v_permlane16_swap_b32 v%d, v%d" % (P + 1, P + 3))


def cfg3():
    ACC = 80

    def srds_c(k):
        srd_ws(k, SRD_E2, P_WS, "Z2")
        srd_ws(k, SRD_E3, P_WS, "EX3")

    def srds_p(k):
        srd_ws_sub(k, SRD_X, P_WS, "H2", 81, 16 * 16384)
        srd_ws_sub(k, SRD_W, P_WS, "WINF", 80, 16 * 28672)

    def dma_setup(k):
        k("s_mul_i32 s50, s%d, 7168" % S_WAVE)
        k("v_lshl_add_u32 v8, v%d, 4, s50" % V_LANE)
        k("v_add_u32 v9, 4096, v8")
        k("s_mul_i32 s80, s%d, %d" % (S_BN, 16 * 28672))
        k("s_lshl_b32 s81, s%d, 18" % S_BM)
        lin_voff(k)
        return [dep(Dma(SRD_X, [5, 5, 5, 5], 16384, 0, 16384, 82)),
                Dma(SRD_W, [8, 8, 8, 8, 9, 9, 9], 28672, 3 * 16384, 28672, 82)]

    def epilogue(k):
        Z2A = ACC + 56
        k("s_mov_b32 s60, %s" % fhex(C1))
        k("s_mov_b32 s61, %s" % fhex(C1))
        k("v_mov_b32 v12, %s" % fhex(C0))
        k("v_mov_b32 v13, %s" % fhex(C0))
        k("s_lshl_b32 s57, s%d, 2" % S_BM)
        k("s_add_u32 s57, s57, s%d" % S_WAVE)
        k("s_lshl_b32 s62, s57, 12")
        k("s_lshl_b32 s63, s%d, 8" % S_BN)
        k("s_add_u32 s63, s63, s62")
        ex_addr(k, 14)
        for r in range(4, 12):
            k("v_mov_b32 v%d, 0" % r)
        for (a, n) in ((0, 24), (24, 32)):
            gelu(k, Z2A + a, n, FR)
            for e in range(a, a + n, 2):
                S = 4 + 4 * ((e >> 2) & 1)
                k("v_pk_add_f32 %s, %s, %s" % (v(S, 2), v(S, 2), v(Z2A + e, 2)))
                k("v_pk_fma_f32 %s, %s, %s, %s" % (v(S + 2, 2), v(Z2A + e, 2), v(Z2A + e, 2), v(S + 2, 2)))
        for r in (4, 6, 8, 10):
            k("v_add_f32 v%d, v%d, v%d" % (r, r, r + 1))
        k("v_permlane16_swap_b32 v4, v8")
        k("v_permlane16_swap_b32 v6, v10")
        k("v_mov_b32 v5, v8")
        k("v_mov_b32 v7, v10")
        ex_publish(k, 4, 14, SRD_E3, 63)
        k.stamp(27)

        def z1(a, n):
            gelu(k, ACC + a, n, FR)
            for e in range(a, a + n, 8):
                pack8(k, Z1R + e // 2, ACC + e)
        z1(0, 32)
        k.stamp(28)
        k("v_and_b32 v2, 19, v%d" % V_LANE)
        k("v_lshlrev_b32 v15, 5, v2")
        k("v_bfe_u32 v2, v%d, 2, 1" % V_LANE)
        k("v_lshl_add_u32 v15, v2, 8, v15")
        k("v_bfe_u32 v2, v%d, 3, 1" % V_LANE)
        k("v_lshl_add_u32 v15, v2, 7, v15")
        k("v_lshrrev_b32 v2, 5, v%d" % V_LANE)
        k("v_lshl_add_u32 v15, v2, 4, v15")
        k("s_mul_i32 s56, s%d, 7168" % S_WAVE)
        k("s_add_u32 s56, s56, 65536")
        k("v_add_u32 v15, s56, v15")
        k("v_lshlrev_b32 v8, 9, v2")
        k("v_and_b32 v2, 31, v%d" % V_LANE)
        k("v_lshl_add_u32 v8, v2, 3, v8")
        k("v_add_u32 v8, s56, v8")
        k("v_lshlrev_b32 v9, 4, v%d" % V_LANE)
        k("s_lshl_b32 s56, s%d, 6" % S_BN)
        k("s_add_u32 s56, s56, s57")
        k("s_mul_i32 s56, s56, 7168")
        k("s_add_u32 s58, s56, 4096")
        ex_collect(k, [FR], 4, 14, SRD_E3, 62, 1792, 8)
        k("v_mov_b32 v6, v4")
        k("v_mov_b32 v7, v5")
        k("v_permlane16_swap_b32 v4, v6")
        k("v_permlane16_swap_b32 v5, v7")

        def back(ct):
            k("s_waitcnt lgkmcnt(%d)" % (3 if ct < 6 else 0))
            k("buffer_store_dwordx4 %s, v9, %s, s%d offen offset:%d sc1" %
              (v(Z2A + 8 * ct + 4, 4), s(SRD_E2, 4), 56 if ct < 4 else 58, (ct & 3) * 1024))
        for ct in range(7):
            A = Z2A + 8 * ct
            for e in range(0, 8, 2):
                G = v(4 + 2 * (e >> 2), 2)
                k("v_pk_fma_f32 %s, %s, %s, %s %s" % (v(A + e, 2), v(A + e, 2), G, G, BCAST))
            pack8(k, A, A)
            swap16(k, A)
            k("ds_write_b128 v15, %s offset:%d" % (v(A, 4), ct * 1024))
            for rd in range(2):
                k("ds_read_b64_tr_b16 %s, v8 offset:%d" % (v(A + 4 + 2 * rd, 2), ct * 1024 + rd * 256))
            if ct:
                back(ct - 1)
        back(6)
        k.stamp(29)
        signal(k, FL3, S_BN, S_BM, 11)
        k.stamp(12)
        z1(32, 24)

    return dict(T=16, NT=14, NS=3, srds_c=srds_c, srds_p=srds_p, m16=True,
                x_ring=(0, 16384, 3), w_ring=(3 * 16384, 28672, 3), w_mode="fm16", D=6, pause=2, wgroup=2,
                FRAG=FR, ACC=ACC, dma_setup=dma_setup, epilogue=epilogue, poll=Poll(FL2, S_BM, 1024, 0, lds=MV + 1024))


def cfg4(NS=4):
    WR = NS * 16384
    ACC, BR = 80, 136

    def srds_c(k):
        srd_ws(k, SRD_E2, P_WS, "U")
        srd_in(k, SRD_E3, P_BSP, SZ["b_sp"])

    def srds_p(k):
        srd_ws_sub(k, SRD_X, P_WS, "WSPF", 80, 32 * 16384)
        srd_ws_sub(k, SRD_W, P_WS, "Z2", 81, 32 * 14336)

    def dma_setup(k):
        k("s_mul_i32 s50, s%d, 3584" % S_WAVE)
        k("v_lshl_add_u32 v8, v%d, 4, s50" % V_LANE)
        k("s_lshl_b32 s80, s%d, 19" % S_BM)
        k("s_mul_i32 s81, s%d, %d" % (S_BN, 32 * 14336))
        lin_voff(k)
        w = dep(Dma(SRD_W, [8, 8, 8, 8], 14336, WR, 14336, 82))
        w.half_last = True
        return [Dma(SRD_X, [5, 5, 5, 5], 16384, 0, 16384, 82), w]

    def cons_pre(k):
        k("v_lshlrev_b32 v12, 4, v%d" % V_LANE)
        k("v_and_b32 v13, 15, v%d" % V_LANE)
        k("v_lshlrev_b32 v13, 1, v13")
        k("s_lshl_b32 s60, s%d, 2" % S_BM)
        k("s_add_u32 s60, s60, s%d" % S_WAVE)
        k("s_lshl_b32 s60, s60, 6")
        k("s_mul_i32 s61, s%d, %d" % (S_BM, 28 * 16384))
        k("s_mul_i32 s62, s%d, %d" % (S_BN, 7 * 4096))
        k("s_add_u32 s61, s61, s62")
        k("s_lshl_b32 s62, s%d, 10" % S_WAVE)
        k("s_add_u32 s61, s61, s62")

    def cons_loads(k):
        for i in range(2):
            k("buffer_load_ushort v%d, v13, %s, s60 offen offset:%d" % (BR + 2 * i, s(SRD_E3, 4), i * 32))

    def epilogue(k):
        k("s_waitcnt vmcnt(0)")
        for i in range(2):
            k("v_lshlrev_b32 v%d, 16, v%d" % (BR + 2 * i, BR + 2 * i))
            k("v_mov_b32 v%d, v%d" % (BR + 2 * i + 1, BR + 2 * i))
        for ct in range(7):
            A = ACC + 8 * ct
            TT = FR + 8 * (ct & 1)
            P = FR + 16 + 4 * (ct % 4)
            for d in range(4):
                unpack_bf16(k, TT + 2 * d, TT + 2 * d + 1, Z1R + 4 * ct + d)
            for e in range(0, 8, 2):
                k("v_pk_add_f32 %s, %s, %s" % (v(A + e, 2), v(A + e, 2), v(BR + 2 * (e >> 2), 2)))
            for e in range(0, 8, 2):
                k("v_pk_mul_f32 %s, %s, %s" % (v(A + e, 2), v(A + e, 2), v(TT + e, 2)))
            pack8(k, P, A)
            swap16(k, P)
            k("s_add_u32 s62, s61, %d" % (ct * 4096))
            k("buffer_store_dwordx4 %s, v12, %s, s62 offen sc1" % (v(P, 4), s(SRD_E2, 4)))
        k.stamp(30)
        signal(k, FL4, S_BM, S_BN, 17)

    return dict(T=32, NT=7, NS=NS, srds_c=srds_c, srds_p=srds_p, m16=True,
                x_ring=(0, 16384, NS), w_ring=(WR, 14336, NS), w_mode="fm16", D=6, pause=2,
                FRAG=FR, ACC=ACC, dma_setup=dma_setup, cons_pre=cons_pre, cons_loads=cons_loads,
                epilogue=epilogue, poll=Poll(FL3, S_BN, 512, 0, lds=MV + 1024))


def gen_m2(name="m2_kernel", late=(2, 0, 0), ns=(5, 4, 5), o3={}, o4={}):
    k = Kern(name)
    END, PROD = k.uid("end"), k.uid("prod")
    phases = [cfg25(2, NS=ns[0]), cfg3(), cfg4(ns[1]), cfg25(5, NS=ns[2])]
    phases[1].update(o3)
    phases[2].update(o4)
    for c, l in zip(phases[1:], late):
        c["late_free"] = l
    k("s_cmp_ge_u32 s2, 256")
    k("s_cbranch_scc1 " + END)
    k.kidx = 2
    k.stamp_init()
    k("s_load_dwordx2 s[6:7], s[0:1], %d" % KA["ws"])
    k("s_load_dwordx2 s[4:5], s[0:1], %d" % KA["x"])
    k("s_load_dwordx2 s[12:13], s[0:1], %d" % KA["b_sp"])
    k("s_load_dwordx2 s[16:17], s[0:1], %d" % KA["out"])
    k("v_lshrrev_b32 v2, 6, v0")
    k("v_and_b32 v%d, 63, v0" % V_LANE)
    k("v_readfirstlane_b32 s%d, v2" % S_WAVE)
    map_blocks(k, 2, 8, 2)
    k("s_cmp_ge_u32 s%d, 4" % S_WAVE)
    k("s_cbranch_scc1 " + PROD)
    for role in ("c", "p"):
        if role == "p":
            k.label(PROD)
            k("s_sub_u32 s%d, s%d, 4" % (S_WAVE, S_WAVE))
        for n, c in enumerate(phases):
            if role == "c":
                if n == 0:
                    k("s_waitcnt lgkmcnt(0)")
                c["srds_c"](k)
                (cons_phase16 if c.get("m16") else cons_phase)(k, c, 6 * n)
            else:
                prod_phase(k, c, 6 * n, first=(n == 0))
        k.stamp_dump(31)
        if role == "c":
            k("s_endpgm")
    k.label(END)
    k("s_endpgm")
    txt, n = k.finish(vgprs=220, sgprs=96)
    return txt, "; @launch kernel=%s grid=(256,1,1) block=(512,1,1) lds=%d" % (name, MV + 1024 + 64)
```

```python
from common import *

OOB = 0x7f000000

S_WAVE, S_BM, S_BN, S_ROT = 3, 20, 21, 22
SRD_X, SRD_W = 24, 28
SRD_E0, SRD_E1, SRD_E2, SRD_E3 = 32, 36, 40, 44
V_LANE = 1


def map_blocks(k, lg_am, an, xm_bits):
    k("s_and_b32 s48, s2, 7")
    k("s_lshr_b32 s49, s2, 3")
    k("s_and_b32 s50, s49, %d" % ((1 << lg_am) - 1))
    k("s_lshr_b32 s51, s49, %d" % lg_am)
    if DBG["fine"] and an == 8:
        k("s_xor_b32 s51, s51, 5")
    k("s_and_b32 s52, s48, %d" % ((1 << xm_bits) - 1))
    k("s_lshl_b32 s52, s52, %d" % lg_am)
    k("s_add_u32 s%d, s52, s50" % S_BM)
    k("s_lshr_b32 s52, s48, %d" % xm_bits)
    k("s_mul_i32 s52, s52, %d" % an)
    k("s_add_u32 s%d, s52, s51" % S_BN)


class Dma:
    def __init__(self, srd, pieces, stride, ring, slot, sbase):
        self.srd, self.pieces, self.stride, self.ring, self.slot, self.sbase = srd, pieces, stride, ring, slot, sbase
        self.half_last = False

    def wave_bytes(self):
        return len(self.pieces) * 1024 - (512 if self.half_last else 0)


DBG = dict(fine=False, no_dsw=False, no_valu=False, l2hit=False, no_cons=False, no_prod=False, no_xf=False, no_mfma=False, no_reads=False)


def cons_phase(k, cfg, sb=0):
    T, MT, NT = cfg["T"], cfg["MT"], cfg["NT"]
    xr, wr = cfg["x_ring"], cfg["w_ring"]
    ACC = cfg["ACC"]
    FR = cfg["FRAG"]
    fsz = 4 * (MT + NT)
    VX0, VW0, VX, VW = 4, 5, 6, 10
    if cfg["wgrid"] == "2x2":
        k("s_lshr_b32 s48, s%d, 1" % S_WAVE)
        k("s_and_b32 s49, s%d, 1" % S_WAVE)
    else:
        k("s_mov_b32 s48, s%d" % S_WAVE)
        k("s_mov_b32 s49, 0")
    S_WM, S_WN = 48, 49
    if cfg.get("table"):
        cfg["table"](k)
        k("s_waitcnt lgkmcnt(0)")
        k("s_barrier")
    if cfg.get("cons_pre"):
        cfg["cons_pre"](k)
    swz = cfg["x_mode"] == "dma_swz"
    if swz:
        k("v_and_b32 v2, 31, v%d" % V_LANE)
        k("v_lshrrev_b32 v3, 5, v%d" % V_LANE)
        k("v_bfe_u32 v%d, v%d, 1, 3" % (VX0, V_LANE))
        k("v_xor_b32 v%d, v%d, v3" % (VX0, VX0))
        k("v_lshlrev_b32 v%d, 4, v%d" % (VX0, VX0))
        k("v_lshl_add_u32 v%d, v2, 7, v%d" % (VX0, VX0))
        k("s_mul_i32 s50, s%d, %d" % (S_WM, MT * 4096))
        k("s_add_u32 s50, s50, %d" % xr[0])
        k("v_add_u32 v%d, s50, v%d" % (VX0, VX0))
    else:
        k("s_mul_i32 s50, s%d, %d" % (S_WM, MT * 1024))
        k("s_add_u32 s50, s50, %d" % xr[0])
        k("v_lshl_add_u32 v%d, v%d, 4, s50" % (VX0, V_LANE))
    blk32 = cfg.get("w_mode") == "blk32"
    wfm = cfg.get("w_mode") == "fm"
    if wfm:
        k("v_lshlrev_b32 v%d, 4, v%d" % (VW0, V_LANE))
    elif blk32:
        k("v_bfe_u32 v2, v%d, 4, 1" % V_LANE)
        k("v_mul_u32_u24 v%d, 1152, v2" % VW0)
        k("v_lshrrev_b32 v2, 5, v%d" % V_LANE)
        k("v_lshl_add_u32 v%d, v2, 8, v%d" % (VW0, VW0))
        k("v_and_b32 v2, 15, v%d" % V_LANE)
        k("v_lshl_add_u32 v%d, v2, 3, v%d" % (VW0, VW0))
    else:
        W_HH, W_RD, W_KS = cfg["w_strides"]
        k("v_lshrrev_b32 v2, 5, v%d" % V_LANE)
        k("v_mul_u32_u24 v%d, %d, v2" % (VW0, W_HH))
        k("v_bfe_u32 v2, v%d, 2, 2" % V_LANE)
        k("v_lshl_add_u32 v%d, v2, 6, v%d" % (VW0, VW0))
        k("v_bfe_u32 v2, v%d, 4, 1" % V_LANE)
        k("v_lshl_add_u32 v%d, v2, 5, v%d" % (VW0, VW0))
        k("v_and_b32 v2, 3, v%d" % V_LANE)
        k("v_lshl_add_u32 v%d, v2, 3, v%d" % (VW0, VW0))
    k("s_mul_i32 s50, s%d, %d" % (S_WN, cfg["w_wave_stride"]))
    k("s_add_u32 s50, s50, %d" % wr[0])
    k("v_add_u32 v%d, s50, v%d" % (VW0, VW0))
    for i in range(16 * MT * NT):
        k("v_mov_b32 v%d, 0" % (ACC + i))
    S_XS, S_WS, S_T = 52, 53, 54

    def set_addr():
        k("v_add_u32 v%d, s%d, v%d" % (VX, S_XS, VX0))
        k("v_add_u32 v%d, s%d, v%d" % (VW, S_WS, VW0))
        if swz:
            for ks in range(1, 4):
                k("v_xor_b32 v%d, %d, v%d" % (VX + ks, ks * 32, VX))
        if blk32:
            k("v_xor_b32 v%d, 128, v%d" % (VW + 1, VW))

    def adv_slots():
        for (sr, ring) in ((S_XS, xr), (S_WS, wr)):
            k("s_add_u32 s%d, s%d, %d" % (sr, sr, ring[1]))
            k("s_cmp_ge_u32 s%d, %d" % (sr, ring[1] * ring[2]))
            k("s_cselect_b32 s%d, 0, s%d" % (sr, sr))

    def reads(ks, f):
        o = []
        base = FR + f * fsz
        xs, ws = [], []
        for i in range(MT):
            if swz:
                xs.append("ds_read_b128 %s, v%d offset:%d" % (v(base + 4 * i, 4), VX + ks, i * 4096))
            else:
                xs.append("ds_read_b128 %s, v%d offset:%d" % (v(base + 4 * i, 4), VX, ks * cfg.get("x_ks", 4096) + i * 1024))
        if wfm:
            ws = ["ds_read_b128 %s, v%d offset:%d" % (v(base + 4 * MT + 4 * j, 4), VW, (ks * NT + j) * 1024) for j in range(NT)]
            return xs[:1] + ws[:1] + xs[1:] + ws[1:]
        for j in range(NT):
            for rd in range(2):
                if blk32:
                    reg, off = VW + rd, cfg["w_tile_off"](j) + (ks >> 1) * 8192 + (ks & 1) * 512
                else:
                    reg, off = VW, cfg["w_tile_off"](j) + ks * W_KS + rd * W_RD
                ws.append("ds_read_b64_tr_b16 %s, v%d offset:%d" % (v(base + 4 * MT + 4 * j + 2 * rd, 2), reg, off))
        o.append(xs[0])
        o += ws[0:2]
        o += xs[1:]
        o += ws[2:]
        return o

    def mfmas(f):
        o = []
        base = FR + f * fsz
        for j in range(NT):
            for i in range(MT):
                acc = v(ACC + 16 * (i * NT + j), 16)
                xf, wf = v(base + 4 * i, 4), v(base + 4 * MT + 4 * j, 4)
                if cfg.get("swap_tile", lambda j: False)(j):
                    o.append("v_mfma_f32_32x32x16_bf16 %s, %s, %s, %s" % (acc, xf, wf, acc))
                else:
                    o.append("v_mfma_f32_32x32x16_bf16 %s, %s, %s, %s" % (acc, wf, xf, acc))
        return o

    def interleave(ms, rs, per):
        rs = list(rs)
        if DBG["no_cons"]:
            return
        if DBG["no_mfma"]:
            ms = []
        if DBG["no_reads"]:
            rs = []
        for m in ms:
            k(m)
            for _ in range(per):
                if rs:
                    k(rs.pop(0))
        for r in rs:
            k(r)

    k("s_mov_b32 s%d, 0" % S_XS)
    k("s_mov_b32 s%d, 0" % S_WS)
    k("s_mov_b32 s%d, 0" % S_T)
    set_addr()
    k.stamp(sb + 1)
    k("s_barrier")
    k.stamp(sb + 2)
    PD = cfg.get("PD", 1)
    NF = 2 if PD == 1 else 4
    for ks in range(PD):
        for r in reads(ks, ks % NF):
            k(r)
    if cfg.get("cons_loads"):
        cfg["cons_loads"](k)
    LOOP = k.uid("cloop")
    nrd = MT + (NT if wfm else 2 * NT)
    per = cfg.get("reads_per_mfma", max(2, -(-nrd // max(1, MT * NT - 1))))
    nbar = cfg.get("mfma_before_barrier", 1)
    k.label(LOOP)
    for ks in range(4):
        ms = mfmas(ks % NF)
        nxt = (ks + PD) % 4
        k("s_waitcnt lgkmcnt(%d)" % min(15, nrd * (PD - 1)))
        if ks + PD == 4:
            for m in ms[:nbar]:
                k(m)
            set_addr()
            if PD > 1:
                k("s_waitcnt lgkmcnt(0)")
            k("s_barrier")
            interleave(ms[nbar:], reads(nxt, nxt % NF), per + 1)
        else:
            interleave(ms, reads(nxt, nxt % NF), per)
        if ks == 0:
            adv_slots()
            k("s_add_u32 s%d, s%d, 1" % (S_T, S_T))
    if cfg.get("mid"):
        SK = k.uid("nomid")
        k("s_cmp_lg_u32 s%d, %d" % (S_T, cfg["mid"][0]))
        k("s_cbranch_scc1 " + SK)
        cfg["mid"][1](k)
        k("s_waitcnt lgkmcnt(0)")
        k.label(SK)
    k("s_cmp_lt_u32 s%d, %d" % (S_T, T))
    k("s_cbranch_scc1 " + LOOP)
    k("s_waitcnt lgkmcnt(0)")
    k.stamp(sb + 3)
    cfg["epilogue"](k)
    k.stamp(sb + 4)


def cons_phase16(k, cfg, sb=0):
    T, NT = cfg["T"], cfg["NT"]
    xr, wr = cfg["x_ring"], cfg["w_ring"]
    ACC, FR = cfg["ACC"], cfg["FRAG"]
    tr = cfg["w_mode"] == "tr16"
    VX0, VW0, VX, VW = 4, 5, 6, 10
    XF, WF, RW = FR, FR + 16, 7
    D = cfg.get("D", 6 if tr else 7)
    PAUSE = cfg.get("pause", 3)
    NI = 2 * NT
    if cfg.get("cons_pre"):
        cfg["cons_pre"](k)
    k("s_lshl_b32 s50, s%d, 11" % S_WAVE)
    k("s_add_u32 s50, s50, %d" % xr[0])
    k("v_lshl_add_u32 v%d, v%d, 4, s50" % (VX0, V_LANE))
    if tr:
        k("v_lshrrev_b32 v2, 5, v%d" % V_LANE)
        k("v_lshlrev_b32 v%d, 9, v2" % VW0)
        k("v_and_b32 v2, 31, v%d" % V_LANE)
        k("v_lshl_add_u32 v%d, v2, 3, v%d" % (VW0, VW0))
    else:
        k("v_lshlrev_b32 v%d, 4, v%d" % (VW0, V_LANE))
    k("v_add_u32 v%d, %d, v%d" % (VW0, wr[0], VW0))
    for i in range(8 * NT):
        k("v_mov_b32 v%d, %s" % (ACC + i, cfg.get("acc_init", lambda i: "0")(i)))
    S_XS, S_WS, S_T = 52, 53, 54

    def set_addr():
        k("v_add_u32 v%d, s%d, v%d" % (VX, S_XS, VX0))
        k("v_add_u32 v%d, s%d, v%d" % (VW, S_WS, VW0))

    def reads(n):
        ks, ct = n // NT, n % NT
        o = []
        if ct == 0:
            for rt in range(2):
                o.append("ds_read_b128 %s, v%d offset:%d" % (v(XF + 8 * ks + 4 * rt, 4), VX, ks * 8192 + rt * 1024))
        w = WF + 4 * (n % RW)
        if tr:
            for rd in range(2):
                o.append("ds_read_b64_tr_b16 %s, v%d offset:%d" % (v(w + 2 * rd, 2), VW, n * 1024 + rd * 256))
        else:
            o.append("ds_read_b128 %s, v%d offset:%d" % (v(w, 4), VW, n * 1024))
        return o

    after = [[] for _ in range(NI)]
    nb = NI - D + PAUSE
    for n in range(NI - D):
        after[n].append(n + D)
    pend = list(range(NI, NI + D))
    left = NI - nb
    for n in range(nb, NI):
        take = -(-len(pend) // (NI - n))
        after[n] += pend[:take]
        pend = pend[take:]
    for n in range(NI):
        for m in after[n]:
            assert m - RW <= n
    q = []
    for m in range(D):
        q += [m] * len(reads(m))
    waits = {}
    for rep in range(2):
        for n in range(NI):
            g = rep * NI + n
            idx = [i for i, o in enumerate(q) if o <= g]
            waits[(rep, n)] = len(q) - 1 - max(idx) if idx else None
            if idx:
                q = q[max(idx) + 1:]
            if n == nb:
                q = []
            for m in after[n]:
                q += [rep * NI + m] * len(reads(m % NI))
    k("s_mov_b32 s%d, 0" % S_XS)
    k("s_mov_b32 s%d, %d" % (S_WS, wr[1] * cfg.get("w_start", 0)))
    k("s_mov_b32 s%d, 0" % S_T)
    set_addr()
    k.stamp(sb + 1)
    k("s_barrier")
    k.stamp(sb + 2)
    for m in range(D):
        for r in reads(m):
            k(r)
    if cfg.get("cons_loads"):
        cfg["cons_loads"](k)
    book = []
    for (sr, ring) in ((S_XS, xr), (S_WS, wr)):
        book += ["s_add_u32 s%d, s%d, %d" % (sr, sr, ring[1]), "s_cmp_ge_u32 s%d, %d" % (sr, ring[1] * ring[2]),
                 "s_cselect_b32 s%d, 0, s%d" % (sr, sr)]
    book += ["s_add_u32 s%d, s%d, 1" % (S_T, S_T), "s_cmp_lt_u32 s%d, %d" % (S_T, T)]
    assert len(book) <= nb
    LOOP = k.uid("cloop")
    k.label(LOOP)
    for n in range(NI):
        ks, ct = n // NT, n % NT
        assert waits[(0, n)] == waits[(1, n)]
        if waits[(1, n)] is not None:
            assert waits[(1, n)] <= 15
            WG_ = cfg.get("wgroup", 1)
            if n % WG_ == 0:
                nr = sum(len(reads(m)) for m in range(n + 1, min(NI, n + WG_)) if waits[(1, m)] is not None)
                k("s_waitcnt lgkmcnt(%d)" % max(0, waits[(1, n)] - nr))
        rs = [r for m in after[n] for r in reads(m % NI)]
        for rt in range(2):
            acc = v(ACC + 4 * (ct * 2 + rt), 4)
            k("v_mfma_f32_16x16x32_bf16 %s, %s, %s, %s" % (acc, v(WF + 4 * (n % RW), 4), v(XF + 8 * ks + 4 * rt, 4), acc))
            if rt == 0 and n == nb:
                set_addr()
                k("s_waitcnt lgkmcnt(0)")
                k("s_barrier")
            if rt == 0 and n != nb:
                own = v(WF + 4 * (n % RW), 4)[2:].split(":")[0]
                early = [r for r in rs if all(m - RW < n for m in after[n])][:(len(rs) + 1) // 2]
                for r in early:
                    k(r)
                rs = rs[len(early):]
        for r in rs:
            k(r)
        if n < len(book):
            k(book[n])
    k("s_cbranch_scc1 " + LOOP)
    k("s_waitcnt lgkmcnt(0)")
    k.stamp(sb + 3)
    cfg["epilogue"](k)
    k.stamp(sb + 4)


def prod_phase(k, cfg, sb=0, first=False, tail_hook=None):
    g = prod_phase_gen(k, cfg, sb, first, tail_hook)
    next(g)
    next(g, None)


def prod_phase_gen(k, cfg, sb=0, first=False, tail_hook=None):
    T, NS = cfg["T"], cfg["NS"]
    dmas = cfg["dma_setup"](k)
    S_TMP, S_OFF, S_M, S_IT = 66, 68, 72, 77
    for n, d in enumerate(dmas):
        k("s_mov_b32 s%d, s%d" % (S_OFF + n, d.sbase))
        k("s_mul_i32 s%d, s%d, %d" % (S_M + n, S_WAVE, d.wave_bytes()))
        k("s_add_u32 s%d, s%d, %d" % (S_M + n, S_M + n, d.ring))
        k("s_add_u32 s%d, s%d, %d" % (S_M + 2 + n, S_M + n, d.slot * NS))
        if getattr(d, "start", 0):
            k("s_add_u32 s%d, s%d, %d" % (S_M + n, S_M + n, d.slot * d.start))
    if first:
        k("s_waitcnt lgkmcnt(0)")
    cfg["srds_p"](k)
    k.stamp(sb + 1)

    def step(which):
        cnt = 0
        for n, d in enumerate(dmas):
            if n not in which:
                continue
            for i, vreg in enumerate(d.pieces):
                if i % 4 == 0:
                    c = (i // 4) * 4096
                    k("s_add_u32 m0, s%d, %d" % (S_M + n, c) if c else "s_mov_b32 m0, s%d" % (S_M + n))
                half = d.half_last and i == len(d.pieces) - 1
                if half:
                    k("s_mov_b32 exec_hi, 0")
                k("buffer_load_dwordx4 v%d, %s, s%d offen offset:%d%s lds" %
                  (vreg, s(d.srd, 4), S_OFF + n, (i % 4) * 1024, " sc1" if getattr(d, "dep", False) else ""))
                if half:
                    k("s_mov_b32 exec_hi, -1")
                cnt += 1
            k("s_add_u32 s%d, s%d, %d" % (S_OFF + n, S_OFF + n, d.stride))
            k("s_add_u32 s%d, s%d, %d" % (S_M + n, S_M + n, d.slot))
            k("s_cmp_ge_u32 s%d, s%d" % (S_M + n, S_M + 2 + n))
            k("s_cselect_b32 s%d, %d, 0" % (S_TMP, d.slot * NS))
            k("s_sub_u32 s%d, s%d, s%d" % (S_M + n, S_M + n, S_TMP))
        return cnt

    allops = list(range(len(dmas)))
    nD = sum(len(d.pieces) for d in dmas)
    pl = cfg.get("poll")
    ops = []

    def issue(which, st):
        ops.extend([st] * step(which))

    def wait_step(st):
        last = max(i for i, o in enumerate(ops) if o == st)
        k("s_waitcnt vmcnt(%d)" % min(63, len(ops) - 1 - last))

    if pl:
        dep = [n for n in allops if getattr(dmas[n], "dep", False)]
        free = [n for n in allops if n not in dep]
        early = NS - 1 - min(NS - 1, cfg.get("late_free", 0))
        for st in range(early):
            issue(free, st)
        yield len(ops)
        pl.setup(k)
        for st in range(early, NS - 1):
            issue(free, st)
        for st in range(NS - 1):
            pl.need(k)
            if st == 0:
                k.stamp(sb + 2)
            issue(dep, st)
    else:
        yield 0
        if cfg.get("prod_pre_load"):
            cfg["prod_pre_load"](k)
        for st in range(NS - 1):
            issue(allops, st)
        k.stamp(sb + 2)
    wait_step(0)
    if cfg.get("prod_pre_fin"):
        cfg["prod_pre_fin"](k)
    k.stamp(sb + 3)
    k("s_barrier")
    npeel = NS - 3 if pl else 0
    for t in range(npeel):
        pl.need(k)
        issue(allops, t + NS - 1)
        wait_step(t + 1)
        k("s_barrier")
    k("s_mov_b32 s%d, %d" % (S_IT, npeel))
    LOOP = k.uid("ploop")
    k.label(LOOP)
    if pl:
        pl.need(k)
    if not DBG["no_prod"]:
        step(allops)
    if DBG["l2hit"]:
        for n, d in enumerate(dmas):
            k("s_cmp_ge_u32 s%d, %d" % (S_OFF + n, 6 * d.stride))
            k("s_cselect_b32 s%d, 0, s%d" % (S_OFF + n, S_OFF + n))
    k("s_add_u32 s%d, s%d, 1" % (S_IT, S_IT))
    k("s_cmp_lt_u32 s%d, %d" % (S_IT, T - (NS - 1)))
    k("s_waitcnt vmcnt(%d)" % ((NS - 2) * nD))
    k("s_barrier")
    k("s_cbranch_scc1 " + LOOP)
    extra = tail_hook() if tail_hook else 0
    for r in range(NS - 3, -1, -1):
        k("s_waitcnt vmcnt(%d)" % (r * nD + extra))
        k("s_barrier")
    k("s_barrier")
    k.stamp(sb + 4)


def gemm(name, cfg):
    k = Kern(name)
    T, NWG = cfg["T"], cfg["NWG"]
    MT, NT = cfg["MT"], cfg["NT"]
    NS = cfg["NS"]
    NP = cfg.get("NP", 4)
    NB_ = 16 // NP
    END, PROD = k.uid("end"), k.uid("prod")
    k("s_cmp_ge_u32 s2, %d" % NWG)
    k("s_cbranch_scc1 " + END)
    k.kidx = cfg.get("kidx", 0)
    k.stamp_init()
    cfg["load_ptrs"](k)
    k("v_lshrrev_b32 v2, 6, v0")
    k("v_and_b32 v%d, 63, v0" % V_LANE)
    k("v_readfirstlane_b32 s%d, v2" % S_WAVE)
    cfg["map"](k)
    k("s_cmp_ge_u32 s%d, 4" % S_WAVE)
    k("s_cbranch_scc1 " + PROD)
    k("s_waitcnt lgkmcnt(0)")
    cfg["srds_c"](k)

    cons_phase(k, cfg)
    k.stamp_dump(5)
    k("s_endpgm")

    k.label(PROD)
    if cfg.get("pprio", 0):
        k("s_setprio %d" % cfg["pprio"])
    k("s_sub_u32 s%d, s%d, 4" % (S_WAVE, S_WAVE))
    dmas = cfg["dma_setup"](k)
    vg = cfg.get("vg")
    S_TMP, S_OFF, S_M = 66, 68, 72
    S_VOFF, S_IT = 76, 77
    nD = sum(len(d.pieces) for d in dmas)
    static_ring = NS in (2, 4)
    for n, d in enumerate(dmas):
        k("s_mov_b32 s%d, s%d" % (S_OFF + n, d.sbase))
        k("s_mul_i32 s%d, s%d, %d" % (S_M + n, S_WAVE, len(d.pieces) * 1024))
        k("s_add_u32 s%d, s%d, %d" % (S_M + n, S_M + n, d.ring))
        if not static_ring:
            k("s_add_u32 s%d, s%d, %d" % (S_M + 2 + n, S_M + n, d.slot * NS))
    if vg:
        VR, VOFF, VLDS = vg["regs"], vg["voff"], vg["vlds"]
        k("s_mul_i32 s%d, s%d, %d" % (S_TMP, S_WAVE, NB_ * 1024))
        k("v_lshl_add_u32 v%d, v%d, 4, s%d" % (VOFF, V_LANE, S_TMP))
        k("v_add_u32 v%d, %d, v%d" % (VLDS, vg["ring"], VOFF))
        k("s_mov_b32 s%d, 0" % S_VOFF)
    k("s_waitcnt lgkmcnt(0)")
    cfg["srds_p"](k)
    k.stamp(1)

    def dma_items(step):
        o = []
        for n, d in enumerate(dmas):
            for i, vreg in enumerate(d.pieces):
                g = []
                if i % 4 == 0:
                    c = (i // 4) * 4096 + ((step % NS) * d.slot if static_ring else 0)
                    g.append("s_add_u32 m0, s%d, %d" % (S_M + n, c) if c else "s_mov_b32 m0, s%d" % (S_M + n))
                g.append("buffer_load_dwordx4 v%d, %s, s%d offen offset:%d lds" % (vreg, s(d.srd, 4), S_OFF + n, (i % 4) * 1024))
                if i == len(d.pieces) - 1:
                    g.append("s_add_u32 s%d, s%d, %d" % (S_OFF + n, S_OFF + n, d.stride))
                    if not static_ring:
                        g.append("s_add_u32 s%d, s%d, %d" % (S_M + n, S_M + n, d.slot))
                        g.append("s_cmp_ge_u32 s%d, s%d" % (S_M + n, S_M + 2 + n))
                        g.append("s_cselect_b32 s%d, %d, 0" % (S_TMP, d.slot * NS))
                        g.append("s_sub_u32 s%d, s%d, s%d" % (S_M + n, S_M + n, S_TMP))
                o.append(g)
        return o

    def emit(groups):
        for g in groups:
            for l in g:
                k(l)

    if vg:
        def vg_items(set_):
            o = []
            for i in range(NB_):
                g = ["buffer_load_dwordx4 %s, v%d, %s, s%d offen offset:%d" %
                     (v(VR + 16 * set_ + 4 * i, 4), VOFF, s(vg["srd"], 4), S_VOFF, i * 1024)]
                if i == NB_ - 1:
                    g.append("s_add_u32 s%d, s%d, 16384" % (S_VOFF, S_VOFF))
                o.append(g)
            return o

        def xform_list(step):
            set_ = step % 4
            o = []
            for i in range(NB_):
                o += vg["xform"](VR + 16 * set_ + 4 * i, i, step % 2)
                o.append("ds_write_b128 v%d, %s offset:%d" % (VLDS, v(VR + 16 * set_ + 4 * i, 4), (step % 2) * 16384 + i * 1024))
            return o

        emit(vg_items(0))
        emit(dma_items(0))
        k("s_barrier")
        emit([vg["params"](0)])
        emit([vg["params"](1)])
        emit(vg_items(1))
        k("s_waitcnt vmcnt(%d) lgkmcnt(0)" % (NB_ + nD))
        k.stamp(2)
        for l in xform_list(0):
            k(l)
        for st in range(1, NS - 1):
            emit(dma_items(st))
        emit(vg_items(2))
        k("s_waitcnt vmcnt(%d) lgkmcnt(0)" % (NB_ + (NS - 2) * nD))
        k.stamp(3)
        k("s_barrier")
        k("s_mov_b32 s%d, 0" % S_IT)
        LOOP = k.uid("ploop")
        k.label(LOOP)
        for u in range(4):
            mem = vg_items((u + 3) % 4) + dma_items(u + NS - 1)
            xf = xform_list(u + 1)
            mem.append(vg["params"](u % 2))
            if DBG["no_prod"]:
                mem, xf = [["s_nop 0"]], []
            if DBG["no_xf"]:
                xf = []
            if DBG["no_dsw"]:
                xf = [l for l in xf if not l.startswith("ds_write")]
            if DBG["no_valu"]:
                xf = [l for l in xf if l.startswith("ds_write")]
            tail = cfg.get("tail", 2)
            par = mem.pop()
            xf = par + xf
            ng = max(1, len(mem) - tail)
            gap = len(xf) / float(ng)
            pos, j = 0.0, 0
            for g in mem:
                emit([g])
                pos += gap
                while j < len(xf) and j < int(pos + 0.5):
                    k(xf[j])
                    j += 1
            if u == 3 and DBG["l2hit"]:
                k("s_mov_b32 s%d, 0" % S_VOFF)
                for n, d in enumerate(dmas):
                    k("s_mov_b32 s%d, s%d" % (S_OFF + n, d.sbase))
            if u == 3:
                k("s_add_u32 s%d, s%d, 4" % (S_IT, S_IT))
                k("s_cmp_lt_u32 s%d, %d" % (S_IT, T))
            k("s_waitcnt vmcnt(%d) lgkmcnt(0)" % (NB_ + nD))
            k("s_barrier")
        k("s_cbranch_scc1 " + LOOP)
    else:
        if cfg.get("prod_pre_load"):
            cfg["prod_pre_load"](k)
        for st in range(NS - 1):
            emit(dma_items(st))
        k.stamp(2)
        k("s_waitcnt vmcnt(%d)" % ((NS - 2) * nD))
        if cfg.get("prod_pre_fin"):
            cfg["prod_pre_fin"](k)
        k.stamp(3)
        k("s_barrier")
        k("s_mov_b32 s%d, 0" % S_IT)
        LOOP = k.uid("ploop")
        k.label(LOOP)
        U = 4 if static_ring else 1
        for u in range(U):
            if not DBG["no_prod"]:
                emit(dma_items(u + NS - 1))
            if u == U - 1 and DBG["l2hit"]:
                for n, d in enumerate(dmas):
                    k("s_mov_b32 s%d, s%d" % (S_OFF + n, d.sbase))
            if u == U - 1:
                k("s_add_u32 s%d, s%d, %d" % (S_IT, S_IT, U))
                k("s_cmp_lt_u32 s%d, %d" % (S_IT, T))
            k("s_waitcnt vmcnt(%d)" % ((NS - 2) * nD))
            k("s_barrier")
        k("s_cbranch_scc1 " + LOOP)
    k("s_waitcnt vmcnt(0)")
    k.stamp_dump(5)
    k.label(END)
    k("s_endpgm")
    txt, n = k.finish(vgprs=cfg["vgprs"], sgprs=96)
    return txt, "; @launch kernel=%s grid=(%d,1,1) block=(%d,1,1) lds=%d" % (name, NWG, 256 + 64 * NP, cfg["lds"])
```

```python
from common import *
from gemms import stats_to_affine, BCAST
from sync import FL1


def gen_k1(name="k1_kernel", tlb=0):
    k = Kern(name)
    END, LN, RP = k.uid("end"), k.uid("ln"), k.uid("rp")
    k("s_cmp_ge_u32 s2, 385")
    k("s_cbranch_scc1 " + END)
    k.kidx = 0
    k.stamp_init()
    k("s_load_dwordx4 s[56:59], s[0:1], %d" % KA["x"])
    k("s_load_dwordx4 s[8:11], s[0:1], %d" % KA["c"])
    k("s_load_dwordx4 s[4:7], s[0:1], %d" % KA["dbg"])
    k("s_cmp_ge_u32 s2, 129")
    k("s_cbranch_scc1 " + LN)
    k("s_cmp_lt_u32 s2, 1")
    k("s_cbranch_scc1 " + RP)
    k("s_sub_u32 s13, s2, 1")

    def wait_flag(issued):
        W, GO, CH = k.uid("wait"), k.uid("go"), k.uid("chk")
        k("s_mov_b32 s16, 0")
        if issued:
            k("s_branch " + CH)
        k.label(W)
        k("buffer_load_dword v3, v2, s[48:51], 0 offen sc1")
        k.label(CH)
        k("s_waitcnt vmcnt(0)")
        k("v_cmp_eq_u32 vcc, 0, v3")
        k("s_cbranch_vccz " + GO)
        k("s_sleep 4")
        k("s_add_u32 s16, s16, 1")
        k("s_cmp_lt_u32 s16, 0x100000")
        k("s_cbranch_scc1 " + W)
        k.label(GO)
    k("s_lshr_b32 s12, s13, 2")
    k("s_and_b32 s13, s13, 3")
    g = Gemv(k, 0, 12, 13, 20, 24, 28, 0, 8, 32)
    g.addr()
    k("s_waitcnt lgkmcnt(0)")
    srd_in(k, 20, 8, SZ["c"])
    srd_in(k, 24, 10, SZ["w_mod"])
    srd_ws(k, 28, 6, "MODP")
    srd_in(k, 48, 4, 256)
    g.loads()
    k.stamp(1)
    k("s_waitcnt vmcnt(8)")
    k.stamp(2)
    g.silu()
    k("s_barrier")
    g.mac(lambda i: k("s_waitcnt vmcnt(%d)" % (7 - i)))
    k.stamp(3)
    k("s_barrier")
    g.red1()
    k("s_barrier")
    k("v_cmp_gt_u32 vcc, 64, v0")
    k("s_and_saveexec_b64 s[60:61], vcc")
    k("s_cbranch_execz " + END)
    g.fin(" sc1")
    k.stamp(6)
    k("v_mov_b32 v2, 0")
    wait_flag(False)
    k(k.lines[[n for n, l in enumerate(k.lines) if "buffer_store_dword v48" in l][-1]])
    k.stamp(4)
    k.stamp_dump(5)
    k("s_endpgm")

    k.label(RP)
    k("v_lshlrev_b32 v1, 4, v0")
    for r in (4, 5, 6, 7):
        k("v_mov_b32 v%d, -1" % r)
    k("v_mov_b32 v2, 0")
    k("s_waitcnt lgkmcnt(0)")
    srd_ws(k, 28, 6, "MODP")
    srd_in(k, 48, 4, 256)
    for n in range(8):
        k("s_mov_b32 s12, %d" % ((n >> 1) * 6144 * 4 + (n & 1) * 4096))
        k("buffer_store_dwordx4 v[4:7], v1, s[28:31], s12 offen sc1")
    k.stamp(1)
    k("s_waitcnt vmcnt(0)")
    k.stamp(2)
    k("s_barrier")
    k("v_cmp_eq_u32 vcc, 0, v0")
    k("s_and_saveexec_b64 s[60:61], vcc")
    k("s_cbranch_execz " + END)
    k("buffer_store_dword v4, v2, s[48:51], 0 offen sc1")
    k.stamp(3)
    k.stamp_dump(5)
    k("s_endpgm")

    k.label(LN)
    k("s_sub_u32 s12, s2, 129")
    k("v_bfe_u32 v1, v0, 3, 3")
    k("v_and_b32 v2, 7, v0")
    k("v_lshrrev_b32 v5, 6, v0")
    k("v_lshlrev_b32 v3, 11, v1")
    k("v_lshl_add_u32 v3, v2, 4, v3")
    k("v_lshl_add_u32 v3, v5, 9, v3")
    k("s_lshl_b32 s13, s12, 14")
    k("v_lshrrev_b32 v6, 1, v2")
    k("v_lshlrev_b32 v6, 12, v6")
    k("v_lshl_add_u32 v6, v5, 16, v6")
    k("v_and_b32 v7, 1, v2")
    k("v_lshlrev_b32 v7, 9, v7")
    k("v_lshl_add_u32 v7, v1, 4, v7")
    k("v_lshl_add_u32 v64, v6, 1, v7")
    k("v_lshlrev_b32 v65, 6, v2")
    k("v_lshl_add_u32 v65, v5, 11, v65")
    k("s_and_b32 s16, s12, 3")
    k("s_lshl_b32 s16, s16, 7")
    k("s_lshr_b32 s18, s12, 5")
    k("s_lshl_b32 s18, s18, 19")
    k("s_bfe_u32 s17, s12, 0x30002")
    k("s_lshl_b32 s17, s17, 10")
    k("s_add_u32 s18, s18, s17")
    k("s_add_u32 s18, s18, s16")
    for n in range(4):
        k("s_add_u32 s%d, s18, %d" % (36 + n, n * 32768))
    k("s_waitcnt lgkmcnt(0)")
    srd_in(k, 20, 56, SZ["x"])
    for n in range(4):
        k("buffer_load_dwordx4 v[%d:%d], v3, s[20:23], s13 offen offset:%d" % (16 + 4 * n, 19 + 4 * n, n * 128))
    srd_ws(k, 24, 6, "H")
    srd_ws(k, 28, 6, "FL")
    srd_in(k, 48, 4, 256)
    srd_ws(k, 44, 6, "MODP")
    k("v_mov_b32 v8, -1.0")
    k("v_lshlrev_b32 v4, 1, v0")
    k("v_and_b32 v4, 0x1fc, v4")
    k("s_lshl_b32 s14, s12, 9")
    k("s_add_u32 s14, s14, %d" % FL1)
    k("buffer_store_dword v8, v4, s[28:31], s14 offen")
    k("v_lshlrev_b32 v4, 4, v0")
    k("v_readfirstlane_b32 s3, v5")
    k("v_and_b32 v100, 63, v0")
    srd_in(k, 40, 58, SZ["wqkv"])
    k("v_lshrrev_b32 v2, 3, v100")
    k("s_mov_b32 s16, 6144")
    k("v_mul_lo_u32 v101, v2, s16")
    k("v_and_b32 v2, 7, v100")
    k("v_lshl_add_u32 v101, v2, 4, v101")
    k("s_lshl_b32 s19, s3, 13")
    k("s_add_u32 s19, s19, 12288")
    for u in range(2):
        k("s_mul_i32 s14, s12, 6")
        k("s_add_u32 s14, s14, s3")
        k("s_add_u32 s14, s14, %d" % (4 * u))
        k("s_mul_i32 s%d, s14, 10923" % (68 + 2 * u))
        k("s_lshr_b32 s%d, s%d, 19" % (68 + 2 * u, 68 + 2 * u))
        k("s_mul_i32 s15, s%d, 48" % (68 + 2 * u))
        k("s_sub_u32 s%d, s14, s15" % (69 + 2 * u))
        k("s_mul_i32 s15, s%d, %d" % (68 + 2 * u, 32 * 6144))
        k("s_lshl_b32 s16, s%d, 7" % (69 + 2 * u))
        k("s_add_u32 s15, s15, s16")
        if u:
            k("s_cmp_ge_u32 s3, 2")
            k("s_cselect_b32 s72, 0x7f000000, 0")
            k("s_or_b32 s15, s15, s72")
        for q in range(4):
            k("s_add_u32 m0, s19, %d" % (u * 4096 + q * 1024))
            k("s_add_u32 s16, s15, %d" % (q * 8 * 6144))
            k("buffer_load_dwordx4 v101, s[40:43], s16 offen lds")
    for r in (10, 11, 12, 13):
        k("v_mov_b32 v%d, 0" % r)
    k.stamp(1)
    for n in range(4):
        k("s_waitcnt vmcnt(%d)" % (12 - n))
        for d in range(4):
            o = 32 + 8 * n + 2 * d
            unpack_bf16(k, o, o + 1, 16 + 4 * n + d)
            k("v_pk_add_f32 v[10:11], v[10:11], v[%d:%d]" % (o, o + 1))
            k("v_pk_fma_f32 v[12:13], v[%d:%d], v[%d:%d], v[12:13]" % (o, o + 1, o, o + 1))
    k("v_add_f32 v10, v10, v11")
    k("v_add_f32 v11, v12, v13")
    for m in ("quad_perm:[1,0,3,2]", "quad_perm:[2,3,0,1]", "row_half_mirror"):
        for r in (10, 11):
            k("v_add_f32_dpp v%d, v%d, v%d %s row_mask:0xf bank_mask:0xf" % (r, r, r, m))
    k("v_lshlrev_b32 v7, 5, v1")
    k("v_lshl_add_u32 v8, v5, 3, v7")
    k("ds_write_b64 v8, v[10:11] offset:8192")
    k("s_waitcnt lgkmcnt(0)")
    code_prefetch(k, "m1_kernel", 0, 104, 74)
    if tlb:
        NT_ = k.uid("notouch")
        k("s_cmp_lg_u32 s3, 2")
        k("s_cbranch_scc1 " + NT_)
        k("s_load_dwordx2 s[60:61], s[0:1], %d" % KA["wo"])
        k("s_load_dwordx8 s[64:71], s[0:1], %d" % KA["w_in"])
        k("s_load_dwordx2 s[62:63], s[0:1], %d" % KA["out"])
        k("v_and_b32 v104, 63, v0")
        k("v_lshlrev_b32 v104, %d, v104" % tlb)
        srd_in(k, 40, 6, 0x4E00000)
        for n in range(0x4E00000 >> (tlb + 6)):
            k("s_mov_b32 s14, %d" % (n << (tlb + 6)))
            k("buffer_load_dword v107, v104, s[40:43], s14 offen")
        k("s_mov_b32 s14, %d" % ((0x4E00000 >> (tlb + 6)) << (tlb + 6)))
        k("buffer_load_dword v107, v104, s[40:43], s14 offen")
        k("s_waitcnt lgkmcnt(0)")
        for (p, nm) in ((60, "wo"), (64, "w_in"), (66, "w_sp"), (70, "w_out"), (62, "out"), (10, "w_mod")):
            srd_in(k, 40, p, SZ[nm])
            k("buffer_load_dword v107, v104, s[40:43], 0 offen")
        k.label(NT_)
    k.stamp(2)
    GO = k.uid("go")
    k("s_cmp_lg_u32 s3, 3")
    k("s_cbranch_scc1 " + GO)
    k("v_mov_b32 v2, 0")
    wait_flag(False)
    k.label(GO)
    k("s_waitcnt lgkmcnt(0)")
    k("s_barrier")
    k.stamp(3)
    T0 = 68
    for n, (idx, p) in enumerate([(1, p) for p in range(4)] + [(0, p) for p in range(4)]):
        k("s_mov_b32 s%d, %d" % (60 + n, (p * 6144 + idx * 1024) * 4))

    def par_loads():
        for n in range(8):
            k("buffer_load_dwordx4 %s, v4, s[44:47], s%d offen sc1" % (v(T0 + 4 * n, 4), 60 + n))
    par_loads()
    k("ds_read_b128 v[8:11], v7 offset:8192")
    k("ds_read_b128 v[12:15], v7 offset:8208")
    k("s_waitcnt lgkmcnt(0)")
    k("v_pk_add_f32 v[8:9], v[8:9], v[10:11]")
    k("v_pk_add_f32 v[12:13], v[12:13], v[14:15]")
    k("v_pk_add_f32 v[8:9], v[8:9], v[12:13]")
    stats_to_affine(k, 8, 1024)
    for o in range(32, 64, 2):
        k("v_pk_fma_f32 v[%d:%d], v[%d:%d], v[8:9], v[8:9] %s" % (o, o + 1, o, o + 1, BCAST))
    srd_ws(k, 40, 6, "WQF")
    k("v_bfe_u32 v2, v100, 2, 2")
    k("v_and_b32 v3, 3, v100")
    k("v_lshlrev_b32 v101, 3, v3")
    k("v_lshl_add_u32 v101, v2, 7, v101")
    k("v_lshrrev_b32 v2, 5, v100")
    k("v_lshl_add_u32 v101, v2, 10, v101")
    k("v_bfe_u32 v2, v100, 4, 1")
    k("v_lshl_add_u32 v101, v2, 5, v101")
    k("v_add_u32 v101, s19, v101")
    k("v_lshlrev_b32 v100, 4, v100")
    for u in range(2):
        k("s_and_b32 s15, s%d, 15" % (69 + 2 * u))
        k("s_mul_i32 s15, s15, %d" % (2 * 196608))
        k("s_mul_i32 s16, s%d, 6144" % (68 + 2 * u))
        k("s_add_u32 s15, s15, s16")
        k("s_lshr_b32 s16, s%d, 4" % (69 + 2 * u))
        k("s_lshl_b32 s16, s16, 10")
        k("s_add_u32 s15, s15, s16")
        if u:
            k("s_or_b32 s15, s15, s72")
        k("s_add_u32 s16, s15, 196608")
        if u == 0:
            k("s_waitcnt vmcnt(8)")
        for b in range(4):
            for rd in range(2):
                k("ds_read_b64_tr_b16 %s, v101 offset:%d" %
                  (v(108 + 16 * u + 4 * b + 2 * rd, 2), u * 4096 + (b >> 1) * 2048 + rd * 512 + (b & 1) * 64))
        for b in range(4):
            k("s_waitcnt lgkmcnt(%d)" % (6 - 2 * b))
            k("buffer_store_dwordx4 %s, v100, s[40:43], s%d offen offset:%d sc1" % (v(108 + 16 * u + 4 * b, 4), 15 + (b & 1), (b >> 1) * 3072))
    k("v_lshrrev_b32 v2, 1, v0")
    k("v_lshlrev_b32 v2, 6, v2")
    k("v_and_b32 v3, 1, v0")
    k("v_lshl_add_u32 v2, v3, 4, v2")
    RE, OK = k.uid("retry"), k.uid("ok")
    k("s_mov_b32 s16, 0")
    k("s_waitcnt vmcnt(8)")
    k.label(RE)
    k("v_max_u32 v3, v%d, v%d" % (T0, T0 + 1))
    for e in range(2, 32, 2):
        k("v_max3_u32 v3, v3, v%d, v%d" % (T0 + e, T0 + e + 1))
    k("v_cmp_eq_u32 vcc, -1, v3")
    k("s_cbranch_vccz " + OK)
    k("s_sleep 4")
    par_loads()
    k("s_add_u32 s16, s16, 1")
    k("s_cmp_lt_u32 s16, 0x100000")
    k("s_waitcnt vmcnt(0)")
    k("s_cbranch_scc1 " + RE)
    k.label(OK)
    k.stamp(6)
    for b in (T0, T0 + 16):
        for (x, y) in ((0, 4), (8, 12), (0, 8)):
            for e in (0, 2):
                k("v_pk_add_f32 %s, %s, %s" % (v(b + x + e, 2), v(b + x + e, 2), v(b + y + e, 2)))
        for e in (0, 2):
            k("v_cvt_pk_bf16_f32 v3, v%d, v%d" % (b + e, b + e + 1))
            unpack_bf16(k, b + e, b + e + 1, 3)
    for e in range(4):
        k("v_add_f32 v%d, 1.0, v%d" % (T0 + e, T0 + e))
    for e in (0, 2):
        k("v_cvt_pk_bf16_f32 v3, v%d, v%d" % (T0 + e, T0 + e + 1))
        unpack_bf16(k, T0 + e, T0 + e + 1, 3)
    k("ds_write_b128 v2, %s" % v(T0, 4))
    k("ds_write_b128 v2, %s offset:32" % v(T0 + 16, 4))
    k("s_waitcnt lgkmcnt(0)")
    k("s_barrier")
    for n in range(2):
        for q in range(4):
            k("ds_read_b128 %s, v65 offset:%d" % (v(T0 + 16 * n + 4 * q, 4), n * 512 + q * 16))
    for n in range(4):
        G = T0 + 16 * (n & 1)
        k("s_waitcnt lgkmcnt(%d)" % (4 if n < 3 else 0))
        for d in range(4):
            o = 32 + 8 * n + 2 * d
            k("v_pk_fma_f32 v[%d:%d], v[%d:%d], %s, %s" % (o, o + 1, o, o + 1, v(G + 2 * d, 2), v(G + 8 + 2 * d, 2)))
        if n < 2:
            for q in range(4):
                k("ds_read_b128 %s, v65 offset:%d" % (v(G + 4 * q, 4), (n + 2) * 512 + q * 16))
        for d in range(4):
            o = 32 + 8 * n + 2 * d
            k("v_cvt_pk_bf16_f32 v%d, v%d, v%d" % (16 + 4 * n + d, o, o + 1))
        k("buffer_store_dwordx4 v[%d:%d], v64, s[24:27], s%d offen" % (16 + 4 * n, 19 + 4 * n, 36 + n))
    k.stamp(4)
    k.stamp_dump(5)
    k.label(END)
    k("s_endpgm")
    txt, n = k.finish(vgprs=140, sgprs=80)
    return txt, "; @launch kernel=%s grid=(385,1,1) block=(256,1,1) lds=%d" % (name, 12288 + 32768)
```

```python
from gemm import *
from gemms import (w_voff, pack16, swap8, ex_addr, both_halves, ex_publish, stats_to_affine, BCAST)
from sync import *
import math

S_WM, S_WN = 48, 49
P_X, P_WS, P_BSP, P_OUT = 4, 6, 12, 16
MV = 162688
X1R, FR, Z1R, BR = 16, 32, 80, 192


def ex_collect(k, R, G, vr, srd, soff, n, nq, nb=1, bstride=0):
    L, D = k.uid("poll"), k.uid("got")
    k("s_mov_b32 s64, 0")
    offs = {}
    nxt = 65
    for b in range(nb):
        for hi in range((nq + 7) // 8):
            c = b * bstride + hi * 4096
            if c == 0:
                offs[(b, hi)] = soff
            else:
                k("s_add_u32 s%d, s%d, %d" % (nxt, soff, c))
                offs[(b, hi)] = nxt
                nxt += 1
    k.label(L)
    for b in range(nb):
        for q in range(nq):
            k("buffer_load_dwordx2 %s, v%d, %s, s%d offen offset:%d sc1" %
              (v(R[b] + 2 * q, 2), vr, s(srd, 4), offs[(b, q // 8)], (q & 7) * 512))
    k("s_waitcnt vmcnt(0)")
    k("v_mov_b32 v2, 0")
    for b in range(nb):
        for q in range(0, nq, 2):
            k("v_min3_f32 v2, v2, v%d, v%d" % (R[b] + 2 * q + 1, R[b] + 2 * q + 3))
    k("v_cmp_gt_f32 vcc, 0, v2")
    k("s_cbranch_vccz " + D)
    k("s_sleep 2")
    k("s_add_u32 s64, s64, 1")
    k("s_cmp_lt_u32 s64, 0x100000")
    k("s_cbranch_scc1 " + L)
    k.label(D)
    for b in range(nb):
        Rb = R[b]
        m = nq
        while m > 1:
            h = (m + 1) // 2
            for e in range(m - h):
                k("v_pk_add_f32 %s, %s, %s" % (v(Rb + 2 * e, 2), v(Rb + 2 * e, 2), v(Rb + 2 * (e + h), 2)))
            m = h
        both_halves(k, Rb, Rb + 2)
        both_halves(k, Rb + 1, Rb + 3)
        stats_to_affine(k, Rb, n)
        k("v_mov_b32 v%d, v%d" % (G + 2 * b, Rb))
        k("v_mov_b32 v%d, v%d" % (G + 2 * b + 1, Rb + 1))


def dep(d):
    d.dep = True
    return d


def lin_voff(k):
    k("s_mov_b32 s82, 0")
    k("s_lshl_b32 s50, s%d, 12" % S_WAVE)
    k("v_lshl_add_u32 v5, v%d, 4, s50" % V_LANE)


def cfg25(which, PD=3, NS=5):
    T = 16 if which == 2 else 28
    ACC, GA, XR, T2 = 80, 112, 144, 160

    def srds_c(k):
        if which == 2:
            srd_in(k, SRD_E1, P_X, SZ["x"])
            srd_ws(k, SRD_E2, P_WS, "H2")
            srd_ws(k, SRD_E3, P_WS, "EX2")
        else:
            srd_in(k, SRD_E2, P_OUT, SZ["out"])

    def srds_p(k):
        srd_ws_sub(k, SRD_X, P_WS, "O" if which == 2 else "U", 81, T * 16384)
        srd_ws_sub(k, SRD_W, P_WS, "WOF" if which == 2 else "WOUTF", 80, T * 8192)
        if which == 2:
            srd_ws(k, SRD_E0, P_WS, "MODP")

    def dma_setup(k):
        k("s_lshl_b32 s50, s%d, 11" % S_WAVE)
        k("v_lshl_add_u32 v8, v%d, 4, s50" % V_LANE)
        k("s_mul_i32 s80, s%d, %d" % (S_BN, T * 8192))
        k("s_mul_i32 s81, s%d, %d" % (S_BM, T * 16384))
        lin_voff(k)
        if which == 2:
            k("s_lshl_b32 s56, s%d, 8" % S_BN)
            k("s_add_u32 s56, s56, s50")
            k("s_add_u32 s56, s56, %d" % (2 * 4096))
            for p in range(1, 4):
                k("s_add_u32 s%d, s56, %d" % (59 + p, p * 6144 * 4))
            k("v_lshlrev_b32 v12, 2, v%d" % V_LANE)
            k("s_cmp_eq_u32 s%d, 2" % S_WAVE)
            k("s_cselect_b32 s58, 1.0, 0")
            k("s_lshl_b32 s59, s%d, 8" % S_WAVE)
            k("s_add_u32 s59, s59, %d" % MV)
            k("v_add_u32 v13, s59, v12")
        x = Dma(SRD_X, [5, 5, 5, 5], 16384, 0, 16384, 82)
        return [dep(x) if which == 5 else x, Dma(SRD_W, [8, 8], 8192, NS * 16384, 8192, 82)]

    def prod_pre_load(k):
        k("buffer_load_dword v14, v12, %s, s56 offen" % s(SRD_E0, 4))
        for p in range(1, 4):
            k("buffer_load_dword v%d, v12, %s, s%d offen" % (14 + p, s(SRD_E0, 4), 59 + p))

    def prod_pre_fin(k):
        k("v_add_f32 v14, v14, v15")
        k("v_add_f32 v16, v16, v17")
        k("v_add_f32 v14, v14, v16")
        k("v_cvt_pk_bf16_f32 v14, v14, v14")
        k("v_lshlrev_b32 v14, 16, v14")
        k("v_add_f32 v14, s58, v14")
        k("v_cvt_pk_bf16_f32 v14, v14, v14")
        k("v_lshlrev_b32 v14, 16, v14")
        k("ds_write_b32 v13, v14")
        k("s_waitcnt lgkmcnt(0)")

    def cons_pre(k):
        k("v_lshrrev_b32 v3, 5, v%d" % V_LANE)
        k("v_lshlrev_b32 v13, 4, v3")
        k("v_add_u32 v13, %d, v13" % MV)
        if which == 2:
            k("v_and_b32 v2, 31, v%d" % V_LANE)
            k("v_lshlrev_b32 v11, 11, v2")
            k("v_lshl_add_u32 v11, v3, 4, v11")
            k("s_lshl_b32 s60, s%d, 18" % S_BM)
            k("s_lshl_b32 s58, s%d, 16" % S_WAVE)
            k("s_add_u32 s60, s60, s58")
            k("s_lshl_b32 s58, s%d, 7" % S_BN)
            k("s_add_u32 s60, s60, s58")
            k("s_lshl_b32 s59, s%d, 4" % S_BM)
            k("s_add_u32 s59, s59, s%d" % S_BN)
            k("s_lshl_b32 s59, s59, 14")
            k("s_lshl_b32 s58, s%d, 11" % S_WAVE)
            k("s_add_u32 s57, s59, s58")
            k("s_add_u32 s55, s57, 8192")
            k("v_bfe_u32 v2, v%d, 4, 1" % V_LANE)
            k("v_lshlrev_b32 v12, 10, v2")
            k("v_lshl_add_u32 v12, v3, 8, v12")
            k("v_and_b32 v2, 15, v%d" % V_LANE)
            k("v_lshl_add_u32 v12, v2, 4, v12")
            ex_addr(k, 14)
            k("s_lshl_b32 s56, s%d, 2" % S_BM)
            k("s_add_u32 s56, s56, s%d" % S_WAVE)
            k("s_lshl_b32 s56, s56, 12")
            k("s_lshl_b32 s58, s%d, 8" % S_BN)
            k("s_add_u32 s58, s58, s56")
        else:
            k("v_and_b32 v2, 31, v%d" % V_LANE)
            k("v_lshlrev_b32 v12, 11, v2")
            k("v_lshl_add_u32 v12, v3, 4, v12")
            k("s_lshl_b32 s58, s%d, 18" % S_BM)
            k("s_lshl_b32 s56, s%d, 16" % S_WAVE)
            k("s_add_u32 s58, s58, s56")
            k("s_lshl_b32 s56, s%d, 7" % S_BN)
            k("s_add_u32 s58, s58, s56")

    def cons_loads(k):
        for q in range(4):
            k("buffer_load_dwordx4 %s, v11, %s, s60 offen offset:%d" % (v(XR + 4 * q, 4), s(SRD_E1, 4), q * 32))
        srd_in(k, SRD_E0, P_BSP, SZ["b_sp"])
        k("v_and_b32 v2, 15, v%d" % V_LANE)
        k("v_lshlrev_b32 v2, 1, v2")
        k("s_lshr_b32 s61, s56, 6")
        for i in range(2):
            k("buffer_load_ushort v%d, v2, %s, s61 offen offset:%d" % (BR + i, s(SRD_E0, 4), i * 32))

    def mv_read(k, R, vec):
        for jg in range(8):
            k("ds_read_b128 %s, v13 offset:%d" % (v(R + 4 * jg, 4), vec * 256 + jg * 32))

    def prework(k):
        mv_read(k, GA, 0 if which == 2 else 3)
        src = X1R
        if which == 2:
            src = XR
            k("s_waitcnt vmcnt(0)")
            swap8(k, XR)
            swap8(k, XR + 8)
            for i in range(2):
                k("v_lshlrev_b32 v%d, 16, v%d" % (BR + i, BR + i))
        for d in range(16):
            unpack_bf16(k, T2 + 2 * d, T2 + 2 * d + 1, src + d)

    def epilogue(k):
        TT = T2
        if which == 2:
            for r in (4, 5, 6, 7):
                k("v_mov_b32 v%d, 0" % r)
        for d in range(16):
            k("v_pk_fma_f32 %s, %s, %s, %s" % (v(ACC + 2 * d, 2), v(ACC + 2 * d, 2), v(GA + 2 * d, 2), v(TT + 2 * d, 2)))
        if which == 5:
            for j in range(2):
                P = FR + 8 * j
                pack16(k, P, ACC + 16 * j)
                swap8(k, P)
                for p in range(2):
                    k("buffer_store_dwordx4 %s, v12, %s, s58 offen offset:%d" % (v(P + 4 * p, 4), s(SRD_E2, 4), j * 64 + p * 32))
            return
        for d in range(16):
            k("v_pk_add_f32 v[4:5], v[4:5], %s" % v(ACC + 2 * d, 2))
            k("v_pk_fma_f32 v[6:7], %s, %s, v[6:7]" % (v(ACC + 2 * d, 2), v(ACC + 2 * d, 2)))
        ex_publish(k, 4, 14, SRD_E3, 58)
        mv_read(k, GA, 2)
        mv_read(k, TT, 1)
        for j in range(2):
            pack16(k, X1R + 8 * j, ACC + 16 * j)
        k.stamp(24)
        ex_collect(k, [FR + 16], 4, 14, SRD_E3, 56, 1024, 8)
        k.stamp(25)
        k("s_waitcnt lgkmcnt(0)")
        for j in range(2):
            for d in range(8 * j, 8 * j + 8):
                k("v_pk_fma_f32 %s, %s, v[4:5], v[4:5] %s" % (v(ACC + 2 * d, 2), v(ACC + 2 * d, 2), BCAST))
            for d in range(8 * j, 8 * j + 8):
                k("v_pk_fma_f32 %s, %s, %s, %s" % (v(ACC + 2 * d, 2), v(ACC + 2 * d, 2), v(GA + 2 * d, 2), v(TT + 2 * d, 2)))
            P = FR + 8 * j
            pack16(k, P, ACC + 16 * j)
            swap8(k, P)
            for p in range(2):
                k("buffer_store_dwordx4 %s, v12, %s, s%d offen offset:%d sc1" % (v(P + 4 * p, 4), s(SRD_E2, 4), 55 if j else 57, p * 512))
        k.stamp(26)
        signal(k, FL2, S_BM, S_BN, 5)

    c = dict(PD=PD, T=T, MT=1, NT=2, NS=NS, wgrid="4x1", srds_c=srds_c, srds_p=srds_p,
             map=lambda k: map_blocks(k, 2, 8, 2),
             x_ring=(0, 16384, NS), w_ring=(NS * 16384, 8192, NS), x_mode="dma_fm", w_mode="fm",
             w_wave_stride=0, reads_per_mfma=3,
             FRAG=FR, ACC=ACC, dma_setup=dma_setup, cons_pre=cons_pre, epilogue=epilogue)
    if which == 2:
        c.update(cons_loads=cons_loads, prod_pre_load=prod_pre_load, prod_pre_fin=prod_pre_fin, mid=(8, prework))
    else:
        c.update(cons_pre=lambda k: (cons_pre(k), prework(k), k("s_waitcnt lgkmcnt(0)")), poll=Poll(FL4, S_BM, 4 * 147, 3 * 147, lds=MV + 1024))
    return c


C0 = -2.0 * math.sqrt(2.0 / math.pi) * LOG2E
C1 = C0 * 0.044715


def gelu(k, A, n, TT):
    for e in range(0, n, 2):
        k("v_pk_mul_f32 %s, %s, %s" % (v(TT + e, 2), v(A + e, 2), v(A + e, 2)))
    for e in range(0, n, 2):
        k("v_pk_fma_f32 %s, %s, s[60:61], v[12:13]" % (v(TT + e, 2), v(TT + e, 2)))
    for e in range(0, n, 2):
        k("v_pk_mul_f32 %s, %s, %s" % (v(TT + e, 2), v(TT + e, 2), v(A + e, 2)))
    for e in range(n):
        k("v_exp_f32 v%d, v%d" % (TT + e, TT + e))
    for e in range(0, n, 2):
        k("v_pk_add_f32 %s, %s, 1.0 op_sel_hi:[1,0]" % (v(TT + e, 2), v(TT + e, 2)))
    for e in range(n):
        k("v_rcp_f32 v%d, v%d" % (TT + e, TT + e))
    for e in range(0, n, 2):
        k("v_pk_mul_f32 %s, %s, %s" % (v(A + e, 2), v(A + e, 2), v(TT + e, 2)))


def pack8(k, P, A):
    for d in range(4):
        k("v_cvt_pk_bf16_f32 v%d, v%d, v%d" % (P + d, A + 2 * d, A + 2 * d + 1))


def swap16(k, P):
    k("v_permlane16_swap_b32 v%d, v%d" % (P, P + 2))
    k("v_permlane16_swap_b32 v%d, v%d" % (P + 1, P + 3))


def cfg3():
    ACC = 80

    def srds_c(k):
        srd_ws(k, SRD_E2, P_WS, "Z2")
        srd_ws(k, SRD_E3, P_WS, "EX3")

    def srds_p(k):
        srd_ws_sub(k, SRD_X, P_WS, "H2", 81, 16 * 16384)
        srd_ws_sub(k, SRD_W, P_WS, "WINF", 80, 16 * 28672)

    def dma_setup(k):
        k("s_mul_i32 s50, s%d, 7168" % S_WAVE)
        k("v_lshl_add_u32 v8, v%d, 4, s50" % V_LANE)
        k("v_add_u32 v9, 4096, v8")
        k("s_mul_i32 s80, s%d, %d" % (S_BN, 16 * 28672))
        k("s_lshl_b32 s81, s%d, 18" % S_BM)
        lin_voff(k)
        w = Dma(SRD_W, [8, 8, 8, 8, 9, 9, 9], 28672, 69632, 28672, 82)
        w.start = 1
        return [dep(Dma(SRD_X, [5, 5, 5, 5], 16384, 0, 16384, 82)), w]

    def epilogue(k):
        Z2A = ACC + 56
        k("s_mov_b32 s60, %s" % fhex(C1))
        k("s_mov_b32 s61, %s" % fhex(C1))
        k("v_mov_b32 v12, %s" % fhex(C0))
        k("v_mov_b32 v13, %s" % fhex(C0))
        k("s_lshl_b32 s57, s%d, 2" % S_BM)
        k("s_add_u32 s57, s57, s%d" % S_WAVE)
        k("s_lshl_b32 s62, s57, 12")
        k("s_lshl_b32 s63, s%d, 8" % S_BN)
        k("s_add_u32 s63, s63, s62")
        ex_addr(k, 14)
        for r in range(4, 12):
            k("v_mov_b32 v%d, 0" % r)
        for (a, n) in ((0, 24), (24, 32)):
            gelu(k, Z2A + a, n, FR)
            for e in range(a, a + n, 2):
                S = 4 + 4 * ((e >> 2) & 1)
                k("v_pk_add_f32 %s, %s, %s" % (v(S, 2), v(S, 2), v(Z2A + e, 2)))
                k("v_pk_fma_f32 %s, %s, %s, %s" % (v(S + 2, 2), v(Z2A + e, 2), v(Z2A + e, 2), v(S + 2, 2)))
        for r in (4, 6, 8, 10):
            k("v_add_f32 v%d, v%d, v%d" % (r, r, r + 1))
        k("v_permlane16_swap_b32 v4, v8")
        k("v_permlane16_swap_b32 v6, v10")
        k("v_mov_b32 v5, v8")
        k("v_mov_b32 v7, v10")
        ex_publish(k, 4, 14, SRD_E3, 63)
        k.stamp(27)

        def z1(a, n):
            gelu(k, ACC + a, n, FR)
        z1(0, 32)
        k.stamp(28)
        k("v_and_b32 v2, 19, v%d" % V_LANE)
        k("v_lshlrev_b32 v15, 5, v2")
        k("v_bfe_u32 v2, v%d, 2, 1" % V_LANE)
        k("v_lshl_add_u32 v15, v2, 8, v15")
        k("v_bfe_u32 v2, v%d, 3, 1" % V_LANE)
        k("v_lshl_add_u32 v15, v2, 7, v15")
        k("v_lshrrev_b32 v2, 5, v%d" % V_LANE)
        k("v_lshl_add_u32 v15, v2, 4, v15")
        k("s_mul_i32 s56, s%d, 7168" % S_WAVE)
        k("s_add_u32 s56, s56, 65536")
        k("v_add_u32 v15, s56, v15")
        k("v_lshlrev_b32 v8, 9, v2")
        k("v_and_b32 v2, 31, v%d" % V_LANE)
        k("v_lshl_add_u32 v8, v2, 3, v8")
        k("v_add_u32 v8, s56, v8")
        k("v_lshlrev_b32 v9, 4, v%d" % V_LANE)
        k("s_lshl_b32 s56, s%d, 6" % S_BN)
        k("s_add_u32 s56, s56, s57")
        k("s_mul_i32 s56, s56, 7168")
        k("s_add_u32 s58, s56, 4096")
        ex_collect(k, [FR], 4, 14, SRD_E3, 62, 1792, 8)
        k("v_mov_b32 v6, v4")
        k("v_mov_b32 v7, v5")
        k("v_permlane16_swap_b32 v4, v6")
        k("v_permlane16_swap_b32 v5, v7")

        def back(ct):
            k("s_waitcnt lgkmcnt(%d)" % (3 if ct < 6 else 0))
            k("buffer_store_dwordx4 %s, v9, %s, s%d offen offset:%d sc1" %
              (v(Z2A + 8 * ct + 4, 4), s(SRD_E2, 4), 56 if ct < 4 else 58, (ct & 3) * 1024))
        for ct in range(7):
            A = Z2A + 8 * ct
            for e in range(0, 8, 2):
                G = v(4 + 2 * (e >> 2), 2)
                k("v_pk_fma_f32 %s, %s, %s, %s %s" % (v(A + e, 2), v(A + e, 2), G, G, BCAST))
            pack8(k, A, A)
            swap16(k, A)
            k("ds_write_b128 v15, %s offset:%d" % (v(A, 4), ct * 1024))
            for rd in range(2):
                k("ds_read_b64_tr_b16 %s, v8 offset:%d" % (v(A + 4 + 2 * rd, 2), ct * 1024 + rd * 256))
            if ct:
                back(ct - 1)
        back(6)
        k.stamp(29)
        signal(k, FL3, S_BN, S_BM, 11)
        k.stamp(12)
        z1(32, 24)

    return dict(T=16, NT=14, NS=3, srds_c=srds_c, srds_p=srds_p, m16=True,
                x_ring=(0, 16384, 3), w_ring=(69632, 28672, 3), w_start=1, w_mode="fm16", D=6, pause=2, wgroup=2,
                FRAG=FR, ACC=ACC, dma_setup=dma_setup, epilogue=epilogue, poll=Poll(FL2, S_BM, 1024, 0, lds=MV + 1024))


def cfg4(NS=4):
    WR = NS * 16384
    ACC = 136

    def srds_c(k):
        srd_ws(k, SRD_E2, P_WS, "U")

    def srds_p(k):
        srd_ws_sub(k, SRD_X, P_WS, "WSPF", 80, 32 * 16384)
        srd_ws_sub(k, SRD_W, P_WS, "Z2", 81, 32 * 14336)

    def dma_setup(k):
        k("s_mul_i32 s50, s%d, 3584" % S_WAVE)
        k("v_lshl_add_u32 v8, v%d, 4, s50" % V_LANE)
        k("s_lshl_b32 s80, s%d, 19" % S_BM)
        k("s_mul_i32 s81, s%d, %d" % (S_BN, 32 * 14336))
        lin_voff(k)
        w = dep(Dma(SRD_W, [8, 8, 8, 8], 14336, WR, 14336, 82))
        w.half_last = True
        return [Dma(SRD_X, [5, 5, 5, 5], 16384, 0, 16384, 82), w]

    def cons_pre(k):
        k("v_lshlrev_b32 v12, 4, v%d" % V_LANE)
        k("s_mul_i32 s61, s%d, %d" % (S_BM, 28 * 16384))
        k("s_mul_i32 s62, s%d, %d" % (S_BN, 7 * 4096))
        k("s_add_u32 s61, s61, s62")
        k("s_lshl_b32 s62, s%d, 10" % S_WAVE)
        k("s_add_u32 s61, s61, s62")

    def epilogue(k):
        for ct in range(7):
            A = ACC + 8 * ct
            P = FR + 4 * ct
            for e in range(0, 8, 2):
                k("v_pk_mul_f32 %s, %s, %s" % (v(A + e, 2), v(A + e, 2), v(Z1R + 8 * ct + e, 2)))
            pack8(k, P, A)
            swap16(k, P)
            k("s_add_u32 s62, s61, %d" % (ct * 4096))
            k("buffer_store_dwordx4 %s, v12, %s, s62 offen sc1" % (v(P, 4), s(SRD_E2, 4)))
        k.stamp(30)
        signal(k, FL4, S_BM, S_BN, 17)

    return dict(T=32, NT=7, NS=NS, srds_c=srds_c, srds_p=srds_p, m16=True,
                x_ring=(0, 16384, NS), w_ring=(WR, 14336, NS), w_mode="fm16", D=6, pause=2,
                FRAG=FR, ACC=ACC, dma_setup=dma_setup, cons_pre=cons_pre, acc_init=lambda i: "v%d" % (BR + ((i >> 2) & 1)),
                epilogue=epilogue, poll=Poll(FL3, S_BN, 512, 0, lds=MV + 1024))


def gen_m2(name="m2_kernel", late=(0, 0, 0), ns=(4, 4, 5), o3={}, o4={}):
    k = Kern(name)
    END, PROD = k.uid("end"), k.uid("prod")
    phases = [cfg25(2, NS=ns[0]), cfg3(), cfg4(ns[1]), cfg25(5, NS=ns[2])]
    phases[1].update(o3)
    phases[2].update(o4)
    for c, l in zip(phases[1:], late):
        c["late_free"] = l
    k("s_cmp_ge_u32 s2, 256")
    k("s_cbranch_scc1 " + END)
    k.kidx = 2
    k.stamp_init()
    k("s_load_dwordx2 s[6:7], s[0:1], %d" % KA["ws"])
    k("s_load_dwordx2 s[4:5], s[0:1], %d" % KA["x"])
    k("s_load_dwordx2 s[12:13], s[0:1], %d" % KA["b_sp"])
    k("s_load_dwordx2 s[16:17], s[0:1], %d" % KA["out"])
    k("v_lshrrev_b32 v2, 6, v0")
    k("v_and_b32 v%d, 63, v0" % V_LANE)
    k("v_readfirstlane_b32 s%d, v2" % S_WAVE)
    map_blocks(k, 2, 8, 2)
    k("s_cmp_ge_u32 s%d, 4" % S_WAVE)
    k("s_cbranch_scc1 " + PROD)
    for role in ("c", "p"):
        if role == "p":
            k.label(PROD)
            k("s_sub_u32 s%d, s%d, 4" % (S_WAVE, S_WAVE))
        for n, c in enumerate(phases):
            if role == "c":
                if n == 0:
                    k("s_waitcnt lgkmcnt(0)")
                c["srds_c"](k)
                (cons_phase16 if c.get("m16") else cons_phase)(k, c, 6 * n)
            elif n == 0:
                g3 = prod_phase_gen(k, phases[1], 6)
                prod_phase(k, c, 0, first=True, tail_hook=lambda: next(g3))
            elif n == 1:
                next(g3, None)
            else:
                prod_phase(k, c, 6 * n)
        k.stamp_dump(31)
        if role == "c":
            k("s_endpgm")
    k.label(END)
    k("s_endpgm")
    txt, n = k.finish(vgprs=194, sgprs=96)
    return txt, "; @launch kernel=%s grid=(256,1,1) block=(512,1,1) lds=%d" % (name, MV + 1024 + 64)
```

```python
import re

TRANS = ("v_exp_f32", "v_log_f32", "v_rcp_f32", "v_rsq_f32", "v_sqrt_f32", "v_sin_f32", "v_cos_f32",
         "v_rcp_iflag_f32", "v_exp_f16", "v_rcp_f16")

_reg_re = re.compile(r"^(-|abs\()?([vsa])(?:(\d+)|\[(\d+):(\d+)\])\)?$")


def regs_of(op):
    op = op.strip()
    if op.startswith("|") and op.endswith("|"):
        op = op[1:-1]
    if op.startswith("-|") and op.endswith("|"):
        op = op[2:-1]
    if op in ("vcc",):
        return {("s", 106), ("s", 107)}
    if op == "vcc_lo":
        return {("s", 106)}
    if op == "vcc_hi":
        return {("s", 107)}
    if op == "exec":
        return {("s", 126), ("s", 127)}
    if op == "exec_lo":
        return {("s", 126)}
    if op == "exec_hi":
        return {("s", 127)}
    if op == "m0":
        return {("s", 124)}
    m = _reg_re.match(op)
    if not m:
        return set()
    k = m.group(2)
    if m.group(3) is not None:
        return {(k, int(m.group(3)))}
    return {(k, i) for i in range(int(m.group(4)), int(m.group(5)) + 1)}


def split_ops(s):
    out, depth, cur = [], 0, ""
    for ch in s:
        if ch in "[(":
            depth += 1
        if ch in "])":
            depth -= 1
        if ch == "," and depth == 0:
            out.append(cur.strip())
            cur = ""
        else:
            cur += ch
    if cur.strip():
        out.append(cur.strip())
    return out


VCC = {("s", 106), ("s", 107)}
EXEC = {("s", 126), ("s", 127)}
M0 = {("s", 124)}


class Ins:
    def __init__(self, text):
        self.text = text
        body = text.split(";")[0].strip()
        self.is_label = body.endswith(":")
        self.is_dir = body.startswith(".") and not self.is_label
        self.empty = body == ""
        self.mn = ""
        self.defs, self.uses = set(), set()
        self.cls = "none"
        self.target = None
        self.passes = 0
        self.srcc = set()
        self.srcab = set()
        self.states = 1
        self.wide_store_data = set()
        self.lane_sel = set()
        self.dpp = False
        self.lds_dma = False
        if self.is_label:
            self.label = body[:-1]
            return
        if self.is_dir or self.empty:
            return
        parts = body.split(None, 1)
        mn = parts[0]
        self.mn = mn
        rest = parts[1] if len(parts) > 1 else ""
        ops = split_ops(rest)
        mods = ""
        if ops:
            last = ops[-1].split(None, 1)
            ops[-1] = last[0]
            mods = last[1] if len(last) > 1 else ""
        self.ops, self.mods = ops, mods
        R = [regs_of(o) for o in ops]
        allr = lambda lst: set().union(*lst) if lst else set()
        base = re.sub(r"_(e32|e64|dpp|sdwa)$", "", mn)
        if mn.startswith("v_mfma"):
            self.cls = "mfma"
            self.passes = 8 if "32x32x16" in mn else (4 if "16x16x32" in mn else None)
            assert self.passes, mn
            self.defs = R[0]
            self.srcab = R[1] | R[2]
            self.srcc = R[3]
            self.uses = self.srcab | self.srcc | EXEC
        elif mn.startswith("v_"):
            self.cls = "trans" if base in TRANS else "valu"
            self.dpp = "_dpp" in mn or "quad_perm" in mods or "row_" in mods
            self.sdwa = "_sdwa" in mn
            if base.startswith("v_cmpx"):
                self.defs = R[0] | EXEC
                self.uses = allr(R[1:])
            elif base.startswith("v_cmp"):
                self.defs = R[0]
                self.uses = allr(R[1:])
            elif base in ("v_readfirstlane_b32",):
                self.defs = R[0]
                self.uses = R[1]
            elif base == "v_readlane_b32":
                self.defs = R[0]
                self.uses = R[1] | R[2]
                self.lane_sel = R[2]
            elif base == "v_writelane_b32":
                self.defs = R[0]
                self.uses = R[0] | R[1] | R[2]
                self.lane_sel = R[2]
            elif base.startswith("v_permlane") and "swap" in base:
                self.defs = R[0] | R[1]
                self.uses = R[0] | R[1]
            elif base in ("v_add_co_u32", "v_sub_co_u32", "v_subrev_co_u32", "v_addc_co_u32", "v_subb_co_u32",
                          "v_mad_u64_u32", "v_div_scale_f32"):
                self.defs = R[0] | R[1]
                self.uses = allr(R[2:])
            elif base in ("v_fmac_f32", "v_dot2c_f32_bf16", "v_pk_fmac_f16", "v_fmac_f16"):
                self.defs = R[0]
                self.uses = allr(R)
            elif base == "v_nop":
                pass
            else:
                self.defs = R[0]
                self.uses = allr(R[1:])
                if self.dpp or self.sdwa:
                    self.uses |= R[0]
            self.uses |= EXEC
        elif mn.startswith("buffer_") or mn.startswith("global_"):
            self.cls = "vmem"
            is_lds = re.search(r"\blds\b", mods) is not None or "load_lds" in mn
            self.lds_dma = is_lds
            if mn.startswith("buffer_wbl2") or mn.startswith("buffer_inv"):
                pass
            elif "load" in mn and not is_lds:
                self.defs = R[0]
                self.uses = allr(R[1:])
            else:
                self.uses = allr(R)
                if "atomic" in mn and re.search(r"\bsc0\b", mods):
                    self.defs = R[0]
                if "store" in mn and ("x3" in mn or "x4" in mn):
                    self.wide_store_data = R[0] if mn.startswith("buffer_") else R[1]
            if is_lds:
                self.uses |= M0
            self.uses |= EXEC
        elif mn.startswith("ds_"):
            self.cls = "ds"
            if "read" in mn or "permute" in mn or "swizzle" in mn or "_rtn" in mn:
                self.defs = R[0]
                self.uses = allr(R[1:])
            else:
                self.uses = allr(R)
            self.uses |= EXEC
        elif mn.startswith("s_"):
            self.cls = "salu"
            if mn == "s_nop":
                self.states = int(ops[0], 0) + 1
                self.cls = "nop"
            elif mn in ("s_branch",) or mn.startswith("s_cbranch"):
                self.cls = "branch"
                self.target = ops[0]
            elif mn in ("s_waitcnt", "s_barrier", "s_endpgm", "s_setprio", "s_sleep"):
                self.cls = "misc"
            elif mn.startswith("s_cmp") or mn.startswith("s_bitcmp"):
                self.uses = allr(R)
            elif mn.startswith("s_load") or mn.startswith("s_buffer_load") or mn.startswith("s_mem"):
                self.cls = "smem"
                self.defs = R[0]
                self.uses = allr(R[1:])
            elif "saveexec" in mn:
                self.defs = R[0] | EXEC
                self.uses = allr(R[1:]) | EXEC
            else:
                self.defs = R[0] if R else set()
                self.uses = allr(R[1:])
                if mn in ("s_addk_i32", "s_mulk_i32"):
                    self.uses |= R[0]
        else:
            raise ValueError("unknown instruction: " + text)


def _vregs(s):
    return {r for r in s if r[0] in "va"}


def _sregs(s):
    return {r for r in s if r[0] == "s"}


def need(p, c):
    n = 0
    pv = p.cls in ("valu", "trans")
    cv = c.cls in ("valu", "trans")
    if pv:
        pd_v, pd_s = _vregs(p.defs), _sregs(p.defs)
        if c.cls == "mfma" and pd_v & (c.srcab | c.srcc):
            n = max(n, 2)
        if c.cls == "mfma" and pd_s & EXEC:
            n = max(n, 4)
        if c.cls == "vmem" and (pd_s - EXEC) & c.uses:
            n = max(n, 5)
        if cv and (pd_s - EXEC) & c.uses:
            n = max(n, 2)
        if cv and pd_s & c.lane_sel:
            n = max(n, 4)
        if cv and c.mn.startswith(("v_readlane", "v_readfirstlane")) and pd_v & c.uses:
            n = max(n, 1)
        if cv and c.mn.startswith(("v_readlane", "v_readfirstlane", "v_writelane", "v_permlane")) and pd_s & EXEC:
            n = max(n, 4)
        if p.cls == "trans" and c.cls == "valu" and pd_v & c.uses:
            n = max(n, 1)
        if p.cls == "trans" and c.cls in ("vmem", "ds") and pd_v & c.uses:
            n = max(n, 1)
        if cv and c.mn.startswith("v_permlane") and pd_v & c.uses:
            n = max(n, 2)
        if cv and c.dpp and pd_v & c.uses:
            n = max(n, 2)
        if cv and c.dpp and pd_s & EXEC:
            n = max(n, 5)
        if cv and getattr(p, "sdwa", False) and pd_v & (c.uses | c.defs):
            n = max(n, 1)
        if c.cls in ("salu", "smem") and (pd_s - EXEC) & c.uses:
            n = max(n, 1)
    if p.cls == "mfma":
        big = 12 if p.passes == 8 else 8
        if c.cls == "mfma":
            if p.defs & c.srcab:
                n = max(n, big)
            if p.defs & c.srcc:
                if not (p.defs == c.srcc and p.passes == c.passes):
                    n = max(n, p.passes + 2)
            if p.defs & c.defs and not (p.defs == c.defs and p.passes == c.passes):
                n = max(n, p.passes + 2)
            if p.defs & c.defs and not (p.defs & c.srcc):
                n = max(n, p.passes + 2)
        elif cv or c.cls in ("vmem", "ds"):
            if p.defs & (c.uses | c.defs):
                n = max(n, big)
        if (cv or c.cls in ("vmem", "ds")) and p.srcc & c.defs:
            n = max(n, 7 if p.passes == 8 else 3)
    if p.cls == "salu" and p.defs & M0 and (c.lds_dma or "addtid" in c.mn):
        n = max(n, 1)
    if p.wide_store_data and p.wide_store_data & c.defs:
        n = max(n, 2 if cv else 1)
    return n


MAXD = 13


def pad_hazards(lines):
    ins = [Ins(l) for l in lines]
    changed = True
    total = 0
    while changed:
        changed = False
        labels = {x.label: i for i, x in enumerate(ins) if x.is_label}
        br = {}
        for i, x in enumerate(ins):
            if x.cls == "branch":
                br.setdefault(labels[x.target], []).append(i)
        out = []
        for i, c in enumerate(ins):
            if c.cls in ("none", "nop", "branch", "misc"):
                out.append(c)
                continue
            short = 0
            stack = [(i - 1, 0)]
            seen = set()
            while stack:
                j, d = stack.pop()
                while j >= 0 and d < MAXD:
                    if (j, d) in seen:
                        break
                    seen.add((j, d))
                    p = ins[j]
                    if p.is_label:
                        for b in br.get(j, []):
                            stack.append((b, d))
                        j -= 1
                        continue
                    if p.is_dir or p.empty:
                        j -= 1
                        continue
                    if p.mn in ("s_branch", "s_endpgm") and not _is_edge(ins, j, br, seen, i):
                        pass
                    k = need(p, c)
                    if k > d:
                        short = max(short, k - d)
                    d += p.states
                    j -= 1
            if short:
                out.append(Ins("    s_nop %d" % (short - 1)))
                total += 1
                changed = True
            out.append(c)
        ins = out
    return [x.text for x in ins], total


def _is_edge(ins, j, br, seen, i):
    return True


class Kern:
    def __init__(self, name):
        self.name = name
        self.lines = []
        self._uid = 0

    def __call__(self, text):
        for l in text.split("\n"):
            l = l.strip()
            if l:
                self.lines.append("    " + l if not l.endswith(":") else l)

    def label(self, name):
        self.lines.append(name + ":")

    def uid(self, base):
        self._uid += 1
        return "L_%s_%s_%d" % (self.name, base, self._uid)

    def comment(self, t):
        self.lines.append("    ; " + t)

    STAMPS = False
    STAMP_V = 250
    kidx = 0

    def stamp(self, i):
        if not Kern.STAMPS:
            return
        self("s_memtime s[88:89]")
        self("s_memrealtime s[90:91]")
        self("s_waitcnt lgkmcnt(0)")
        self("v_writelane_b32 v%d, s88, %d" % (self.STAMP_V, i))
        self("v_writelane_b32 v%d, s90, %d" % (self.STAMP_V, 32 + i))

    def stamp_dyn(self, sreg, base):
        if not Kern.STAMPS:
            return
        self("s_memtime s[88:89]")
        self("s_memrealtime s[90:91]")
        self("s_add_u32 s84, s%d, %d" % (sreg, base))
        self("s_add_u32 s85, s%d, %d" % (sreg, base + 32))
        self("s_mov_b32 s86, m0")
        self("s_waitcnt lgkmcnt(0)")
        self("s_mov_b32 m0, s84")
        self("v_writelane_b32 v%d, s88, m0" % self.STAMP_V)
        self("s_mov_b32 m0, s85")
        self("v_writelane_b32 v%d, s90, m0" % self.STAMP_V)
        self("s_mov_b32 m0, s86")

    def stamp_init(self):
        if not Kern.STAMPS:
            return
        self("v_mov_b32 v%d, 0" % self.STAMP_V)
        self("v_mov_b32 v%d, v0" % (self.STAMP_V + 1))
        self("s_load_dwordx2 s[92:93], s[0:1], 96")
        self.stamp(0)

    def stamp_dump(self, i):
        if not Kern.STAMPS:
            return
        self("s_waitcnt vmcnt(0)")
        self.stamp(i)
        self("s_mov_b64 exec, -1")
        self("s_add_u32 s84, s92, %d" % (0x8000000 + self.kidx * 0x400000))
        self("s_addc_u32 s85, s93, 0")
        self("s_mov_b32 s86, 0x400000")
        self("s_mov_b32 s87, 0x20000")
        self("s_lshl_b32 s88, s2, 12")
        self("v_lshlrev_b32 v%d, 2, v%d" % (self.STAMP_V + 1, self.STAMP_V + 1))
        self("buffer_store_dword v%d, v%d, s[84:87], s88 offen" % (self.STAMP_V, self.STAMP_V + 1))

    def finish(self, vgprs, sgprs=96, agprs=0, wg_y=False):
        if Kern.STAMPS:
            sv = vgprs
            self.lines = [l.replace("v250", "v%d" % sv).replace("v251", "v%d" % (sv + 1)) for l in self.lines]
            vgprs, sgprs = vgprs + 2, max(96, sgprs)
        lines, n = pad_hazards(self.lines)
        acc = (vgprs + 3) // 4 * 4
        nfv = acc + agprs if agprs else vgprs
        hdr = [".text", ".globl %s" % self.name, ".p2align 8", ".type %s,@function" % self.name, self.name + ":"]
        desc = [".section .rodata,\"a\"", ".p2align 6", ".amdhsa_kernel %s" % self.name,
                "  .amdhsa_next_free_vgpr %d" % nfv,
                "  .amdhsa_next_free_sgpr %d" % sgprs,
                "  .amdhsa_accum_offset %d" % acc,
                "  .amdhsa_group_segment_fixed_size 0",
                "  .amdhsa_kernarg_size 104",
                "  .amdhsa_user_sgpr_count 2",
                "  .amdhsa_user_sgpr_kernarg_segment_ptr 1",
                "  .amdhsa_system_sgpr_workgroup_id_x 1"]
        if wg_y:
            desc.append("  .amdhsa_system_sgpr_workgroup_id_y 1")
        desc += ["  .amdhsa_float_denorm_mode_32 3", "  .amdhsa_float_denorm_mode_16_64 3",
                 ".end_amdhsa_kernel"]
        for l in lines:
            x = Ins(l)
            for (k, idx) in x.defs | x.uses:
                if k == "v":
                    assert idx < vgprs, (self.name, l, vgprs)
                if k == "a":
                    assert idx < agprs, (self.name, l, agprs)
                if k == "s" and idx < 102:
                    assert idx < sgprs, (self.name, l, sgprs)
        return "\n".join(hdr + lines + ["L_%s_codeend:" % self.name] + desc) + "\n", n


def v(i, n=1):
    return "v%d" % i if n == 1 else "v[%d:%d]" % (i, i + n - 1)


def a(i, n=1):
    return "a%d" % i if n == 1 else "a[%d:%d]" % (i, i + n - 1)


def s(i, n=1):
    return "s%d" % i if n == 1 else "s[%d:%d]" % (i, i + n - 1)
```

```python
from common import *
from gemms import pack16, swap8
from sync import FL1

OOB = 0x7f000000


NSL = 8
STG = NSL * 16384
SY = STG + 24576
ATT_LDS = SY + 64
SIG_TILE = 2
O_MODS = ""
P_ = {}
CODE_NEXT = "m2_kernel"


QF = 8


def emit_attn(k, COMP, HELP, poll, force_slow=False, sb=8, after_comp=None, after_help=None):
    LANE, VOFF, VCUR, VNXT, VBASE = 1, 4, 5, 6, 4
    NM, S, P, KA_, KB_, VA_, VB_, O, L, SEL = (24, 40), (56, 72), 88, 96, 100, 104, 108, (112, 128), (144, 148), 152
    SRD, SRDO = 24, 28
    S_WAVE, S_HEAD, S_RT, S_KB, S_ST, S_CUR = 3, 21, 23, 43, 44, 45
    F2 = 164 - KA_

    def ids():
        k("v_lshlrev_b32 v%d, 4, v%d" % (VOFF, LANE))
        k("s_lshl_b32 s%d, s%d, 17" % (S_KB, S_HEAD))
        srd_ws(k, SRD, 6, "QKV")
    k.label(COMP)
    if P_.get("prio", 0):
        k("s_setprio 3")
    ids()
    srd_ws(k, SRDO, 6, "O")
    srd_ws(k, 32, 6, "FL")
    k("s_lshl_b32 s46, s%d, 5" % S_HEAD)
    k("s_lshl_b32 s47, s20, 2")
    k("s_add_u32 s%d, s47, s19" % S_RT)
    k("s_add_u32 s46, s46, s%d" % S_RT)
    k("s_lshl_b32 s46, s46, 7")
    k("s_add_u32 s46, s46, %d" % FL1)
    k("v_mov_b32 v156, 0")
    k("v_mov_b32 v157, 1.0")
    k("v_mov_b32 v158, %d" % SY)
    k("s_lshl_b32 s47, s19, 2")
    k("s_add_u32 s47, s47, %d" % (SY + 16))
    k("v_mov_b32 v159, s47")
    k("v_mov_b32 v160, 0")
    k("s_mov_b32 s47, 1")
    k("v_bfe_u32 v2, v%d, 2, 1" % LANE)
    k("v_bfe_u32 v3, v%d, 4, 1" % LANE)
    k("v_cmp_eq_u32 vcc, v2, v3")
    k("v_mov_b32 v2, 0x3f803f80")
    k("v_cndmask_b32 v%d, 0, v2, vcc" % SEL)
    for e in range(1, 4):
        k("v_mov_b32 v%d, v%d" % (SEL + e, SEL))
    k("v_mov_b32 v%d, v%d" % (VCUR, VBASE))
    k("v_add_u32 v%d, 16384, v%d" % (VNXT, VBASE))
    k("s_mov_b32 s%d, 16384" % S_CUR)
    k.stamp(sb + 1)
    k("s_waitcnt lgkmcnt(0)")
    k("s_barrier")
    k.stamp(sb + 2)
    k("ds_read_b128 %s, v%d" % (v(KA_, 4), VOFF))
    k("ds_read_b128 %s, v%d offset:1024" % (v(KB_, 4), VOFF))
    k("ds_read_b128 %s, v%d offset:8192" % (v(VA_, 4), VOFF))
    k("ds_read_b128 %s, v%d offset:2048" % (v(KA_ + F2, 4), VOFF))
    k("ds_read_b128 %s, v%d offset:9216" % (v(VB_, 4), VOFF))
    k("ds_read_b128 %s, v%d offset:3072" % (v(KB_ + F2, 4), VOFF))
    k("ds_read_b128 %s, v%d offset:10240" % (v(VA_ + F2, 4), VOFF))

    def zero_state(q):
        for e in range(16):
            k("v_mov_b32 v%d, 0" % (O[q] + e))
        for e in range(4):
            k("v_mov_b32 v%d, 0" % (L[q] + e))
    zero_state(0)
    zero_state(1)
    for e in range(4):
        k("v_mov_b32 v%d, 0" % (VB_ + F2 + e))
        k("v_mov_b32 v%d, 0" % (P + 4 + e))
    k("s_waitcnt lgkmcnt(0)")

    def qk(q, c, dst=None, f=0):
        d = S[q] if dst is None else dst
        return ("v_mfma_f32_32x32x16_bf16 %s, %s, %s, %s" % (v(d, 16), v(KA_ + f, 4), v(QF + 8 * q, 4), c),
                "v_mfma_f32_32x32x16_bf16 %s, %s, %s, %s" % (v(d, 16), v(KB_ + f, 4), v(QF + 8 * q + 4, 4), v(d, 16)))

    def max16(dst, src, first):
        if first:
            k("v_max3_f32 v%d, v%d, v%d, v%d" % (dst, src, src + 1, src + 2))
            k("v_max_f32 v%d, v%d, v%d" % (dst, dst, src + 3))
            r = range(4, 16, 2)
        else:
            r = range(0, 16, 2)
        for e in r:
            k("v_max3_f32 v%d, v%d, v%d, v%d" % (dst, dst, src + e, src + e + 1))

    def set_nm(q, mreg):
        k("v_mov_b32 v3, v%d" % mreg)
        k("v_permlane32_swap_b32 v%d, v3" % mreg)
        k("v_max_f32 v%d, v%d, v3" % (mreg, mreg))
        for e in range(16):
            k("v_sub_f32 v%d, 0, v%d" % (NM[q] + e, mreg))

    for q in range(2):
        for m in qk(q, "0"):
            k(m)
    for q in range(2):
        max16(2, S[q], True)
        set_nm(q, 2)
        if q == 0:
            for m in qk(0, v(NM[0], 16)):
                k(m)
    k("s_mov_b32 s%d, 0" % S_ST)

    def ex(Sx, g, lo=0, hi=4):
        for e in range(lo, hi):
            k("v_exp_f32 v%d, v%d" % (Sx + 4 * g + e, Sx + 4 * g + e))

    def cv(Sx, g):
        for e in range(2):
            k("v_cvt_pk_bf16_f32 v%d, v%d, v%d" % (P + 2 * g + e, Sx + 4 * g + 2 * e, Sx + 4 * g + 2 * e + 1))

    def pvm(q, vf, pf):
        k("v_mfma_f32_32x32x16_bf16 %s, %s, %s, %s" % (v(O[q], 16), v(vf, 4), v(pf, 4), v(O[q], 16)))

    def lsum(q, pf):
        k("v_mfma_f32_16x16x32_bf16 %s, %s, %s, %s" % (v(L[q], 4), v(SEL, 4), v(pf, 4), v(L[q], 4)))

    def addr(tt):
        return (VCUR, tt * 2048) if tt < 4 else (VNXT, (tt - 4) * 2048)

    def opt(x):
        if x:
            k(x)

    LOOP, SPIN, BACK = k.uid("loop"), k.uid("spin"), k.uid("back")
    k.label(LOOP)
    for tt in range(4):
        if tt == SIG_TILE:
            NS_ = k.uid("nosig")
            k("s_cmp_lg_u32 s%d, 0" % S_ST)
            k("s_cbranch_scc1 " + NS_)
            k("s_waitcnt vmcnt(0)")
            k("s_mov_b64 exec, 1")
            k("buffer_store_dword v157, v156, s[32:35], s46 offen sc1")
            k("s_mov_b64 exec, -1")
            k("ds_write_b32 v158, v157 offset:8")
            k.label(NS_)
        if tt == 2:
            k("s_cmp_le_u32 s42, s47")
            k("s_cbranch_scc1 " + SPIN)
            k.label(BACK)
        r1, o1 = addr(tt + 1)
        r2, o2 = addr(tt + 2)
        fc, fo = F2 * (tt & 1), F2 * (1 - (tt & 1))
        for q in range(2):
            Sc = S[q]
            m1, m3 = qk(1 - q, v(NM[1 - q], 16), None, fc if q == 0 else fo)
            rKa = rVb = rKb = rVa = w1 = w4 = None
            if q == 0:
                rKa = "ds_read_b128 %s, v%d offset:%d" % (v(KA_ + fc, 4), r2, o2)
                rVb = "ds_read_b128 %s, v%d offset:%d" % (v(VB_ + fo, 4), r1, 8192 + o1 + 1024)
                rKb = "ds_read_b128 %s, v%d offset:%d" % (v(KB_ + fc, 4), r2, o2 + 1024)
            else:
                rVa = "ds_read_b128 %s, v%d offset:%d" % (v(VA_ + fc, 4), r2, 8192 + o2)
                w1 = "s_waitcnt lgkmcnt(3)"
                if tt == 0:
                    rKa = "ds_read_b32 v161, v158"
                if tt == 1:
                    rKb = "v_readfirstlane_b32 s42, v161"
            vb = VB_ + (fo if q == 0 else fc)
            opt(w1); k(m1); opt(rKa); ex(Sc, 0)
            pvm(1 - q, vb, P + 4); opt(rVb); cv(Sc, 0); ex(Sc, 1, 0, 3); lsum(1 - q, P + 4); ex(Sc, 1, 3, 4); ex(Sc, 2, 0, 1)
            k(m3); opt(rKb); cv(Sc, 1); ex(Sc, 2, 1, 4)
            pvm(q, VA_ + fc, P); opt(rVa); ex(Sc, 3, 0, 1); cv(Sc, 2); ex(Sc, 3, 1, 3); lsum(q, P); ex(Sc, 3, 3, 4); cv(Sc, 3)
            if tt == 0 and q == 0:
                k("s_add_u32 s%d, s%d, 16384" % (S_CUR, S_CUR))
            if tt == 0 and q == 1:
                k("s_and_b32 s%d, s%d, %d" % (S_CUR, S_CUR, NSL * 16384 - 1))
    k("v_add_u32 v160, 1, v160")
    k("v_mov_b32 v%d, v%d" % (VCUR, VNXT))
    k("v_add_u32 v%d, s%d, v%d" % (VNXT, S_CUR, VBASE))
    k("ds_write_b32 v159, v160")
    k.stamp_dyn(S_ST, 14)
    k("s_add_u32 s47, s47, 1")
    k("s_add_u32 s%d, s%d, 1" % (S_ST, S_ST))
    k("s_cmp_lt_u32 s%d, 16" % S_ST)
    k("s_cbranch_scc1 " + LOOP)
    k("s_waitcnt lgkmcnt(0)")
    k.stamp(sb + 3)
    pvm(1, VB_ + F2, P + 4)
    lsum(1, P + 4)
    k("s_lshr_b32 s10, s%d, 1" % S_RT)
    k("s_lshl_b32 s10, s10, 18")
    k("s_lshl_b32 s11, s%d, 13" % S_HEAD)
    k("s_add_u32 s10, s10, s11")
    k("s_and_b32 s11, s%d, 1" % S_RT)
    k("s_lshl_b32 s11, s11, 11")
    k("s_add_u32 s10, s10, s11")
    k("s_add_u32 s11, s10, 4096")
    SLOW = [k.uid("slow"), k.uid("slow")]
    EPI = [k.uid("epi"), k.uid("epi")]
    for q in range(2):
        k("v_mov_b32 v2, v%d" % L[q])
        k("v_mov_b32 v7, 0")
        for e in range(0, 16, 2):
            k("v_fma_f32 v2, v%d, 0, v2" % (O[q] + e))
            k("v_fma_f32 v7, v%d, 0, v7" % (O[q] + e + 1))
        k("v_add_f32 v2, v2, v7")
        k("v_mov_b32 v3, %s" % fhex(2.0 ** 100 if not force_slow else -1.0))
        k("v_cmp_nlt_f32 vcc, v2, v3")
        k("s_cbranch_vccnz " + SLOW[q])
        k.label(EPI[q])
        k("v_rcp_f32 v2, v%d" % L[q])
        k("v_mov_b32 v3, v2")
        for e in range(0, 16, 2):
            k("v_pk_mul_f32 %s, %s, v[2:3]" % (v(O[q] + e, 2), v(O[q] + e, 2)))
        PP = S[0] + 8 * q
        pack16(k, PP, O[q])
        swap8(k, PP)
        for p in range(2):
            k("buffer_store_dwordx4 %s, v%d, %s, s%d offen offset:%d%s" % (v(PP + 4 * p, 4), VOFF, s(SRDO, 4), 10 + p, q * 1024, O_MODS))
    k.stamp(sb + 4)
    if after_comp:
        after_comp(k)
    else:
        k.stamp_dump(31)
        k("s_endpgm")

    k.label(SPIN)
    k("s_mov_b32 s41, 0")
    SP2 = k.uid("spin")
    k.label(SP2)
    k("ds_read_b32 v161, v158")
    k("s_add_u32 s41, s41, 1")
    k("s_waitcnt lgkmcnt(0)")
    k("v_readfirstlane_b32 s42, v161")
    k("s_cmp_gt_u32 s42, s47")
    k("s_cbranch_scc1 " + BACK)
    k("s_sleep 1")
    k("s_cmp_lt_u32 s41, 0x1000000")
    k("s_cbranch_scc1 " + SP2)
    k("s_branch " + BACK)

    for q in range(2):
        k.label(SLOW[q])
        k("s_waitcnt vmcnt(0)")
        LA, LB = k.uid("slowa"), k.uid("slowb")
        SS = S[1]
        k("s_add_u32 s16, s%d, 0x400000" % S_KB)
        k("s_mov_b32 s%d, 0" % S_ST)
        k("v_mov_b32 v2, 0xff800000")
        k.label(LA)
        k("buffer_load_dwordx4 %s, v%d, %s, s16 offen sc1" % (v(KA_, 4), VOFF, s(SRD, 4)))
        k("buffer_load_dwordx4 %s, v%d, %s, s16 offen offset:1024 sc1" % (v(KB_, 4), VOFF, s(SRD, 4)))
        k("s_waitcnt vmcnt(0)")
        for m in qk(q, "0", SS):
            k(m)
        max16(2, SS, False)
        k("s_add_u32 s16, s16, 2048")
        k("s_add_u32 s%d, s%d, 1" % (S_ST, S_ST))
        k("s_cmp_lt_u32 s%d, 64" % S_ST)
        k("s_cbranch_scc1 " + LA)
        set_nm(q, 2)
        zero_state(q)
        k("s_add_u32 s16, s%d, 0x400000" % S_KB)
        k("s_add_u32 s17, s%d, 0x800000" % S_KB)
        k("s_mov_b32 s%d, 0" % S_ST)
        k.label(LB)
        k("buffer_load_dwordx4 %s, v%d, %s, s16 offen sc1" % (v(KA_, 4), VOFF, s(SRD, 4)))
        k("buffer_load_dwordx4 %s, v%d, %s, s16 offen offset:1024 sc1" % (v(KB_, 4), VOFF, s(SRD, 4)))
        k("buffer_load_dwordx4 %s, v%d, %s, s17 offen sc1" % (v(VA_, 4), VOFF, s(SRD, 4)))
        k("buffer_load_dwordx4 %s, v%d, %s, s17 offen offset:1024 sc1" % (v(VB_, 4), VOFF, s(SRD, 4)))
        k("s_waitcnt vmcnt(0)")
        for m in qk(q, v(NM[q], 16), SS):
            k(m)
        for g in range(4):
            ex(SS, g)
            cv(SS, g)
        pvm(q, VA_, P)
        lsum(q, P)
        pvm(q, VB_, P + 4)
        lsum(q, P + 4)
        k("s_add_u32 s16, s16, 2048")
        k("s_add_u32 s17, s17, 2048")
        k("s_add_u32 s%d, s%d, 1" % (S_ST, S_ST))
        k("s_cmp_lt_u32 s%d, 64" % S_ST)
        k("s_cbranch_scc1 " + LB)
        k("s_branch " + EPI[q])

    k.label(HELP)
    SIDE, GEMV, DONE = k.uid("side"), k.uid("gemv"), k.uid("done")
    ids()
    k("s_sub_u32 s%d, s19, 4" % S_WAVE)
    k("v_mov_b32 v7, %d" % SY)

    def lds_wait(off, s_lim, b128=False, nap=6):
        W, G = k.uid("w"), k.uid("g")
        k("s_mov_b32 s4, 0")
        k.label(W)
        k("ds_read_%s, v7 offset:%d" % ("b128 v[100:103]" if b128 else "b32 v100", off))
        k("s_add_u32 s4, s4, 1")
        k("s_waitcnt lgkmcnt(0)")
        if b128:
            k("v_min_u32 v100, v100, v101")
            k("v_min3_u32 v100, v100, v102, v103")
        k("v_readfirstlane_b32 s5, v100")
        k("s_cmp_gt_u32 s5, s%d" % s_lim)
        k("s_cbranch_scc1 " + G)
        k("s_sleep %d" % nap)
        k("s_cmp_lt_u32 s4, 0x1000000")
        k("s_cbranch_scc1 " + W)
        k.label(G)

    k("s_cmp_lg_u32 s%d, 0" % S_WAVE)
    k("s_cbranch_scc1 " + SIDE)
    k("s_add_u32 s11, s20, 1")
    k("s_and_b32 s11, s11, 7")
    k("s_lshl_b32 s18, s11, 2")
    k("s_lshl_b32 s11, s11, 14")
    k("s_add_u32 s13, s%d, 0x400000" % S_KB)
    for e, val in enumerate((2, 0, 0, 0)):
        k("v_mov_b32 v%d, %d" % (100 + e, val))
    k("ds_write_b128 v7, v[100:103]")
    k("v_mov_b32 v100, 0")
    k("ds_write_b128 v7, v[100:103] offset:16")
    poll.setup(k)
    k("s_barrier")
    k("s_mov_b32 s14, 0")
    lds_wait(8, 14, nap=2)
    k("s_mov_b32 s12, 2")
    k("s_mov_b32 s15, 32768")
    k("s_mov_b32 s16, 0")

    def publish(k, cnt=0):
        k("s_waitcnt vmcnt(%d)" % cnt)
        k("v_mov_b32 v104, s12")
        if cnt > 16:
            k("v_subrev_u32 v104, %d, v104" % (cnt // 16 - 1))
        k("ds_max_u32 v7, v104")
    KV, FREE = k.uid("kv"), k.uid("free")
    k.label(KV)
    k("s_add_u32 s14, s16, 8")
    k("s_cmp_lt_u32 s12, s14")
    k("s_cbranch_scc1 " + FREE)
    k("s_sub_u32 s14, s12, 8")
    lds_wait(16, 14, True)
    k("s_mov_b32 s16, s5")
    k.label(FREE)
    poll.need(k, on_slow=publish)
    k("s_add_u32 s10, s13, s11")
    for h in range(4):
        k("s_add_u32 m0, s15, %d" % (h * 4096))
        if h:
            k("s_add_u32 s10, s10, %d" % (4096 if h != 2 else 0x400000 - 4096))
        for q in range(4):
            k("buffer_load_dwordx4 v%d, %s, s10 offen offset:%d sc1 lds" % (VOFF, s(SRD, 4), q * 1024))
    publish(k, 16 * (P_.get("infl", 3) - 1))
    k.stamp_dyn(12, 14)
    k("s_add_u32 s11, s11, 8192")
    k("s_and_b32 s11, s11, 0x1ffff")
    k("s_add_u32 s15, s15, 16384")
    k("s_and_b32 s15, s15, 0x1ffff")
    k("s_add_u32 s12, s12, 1")
    k("s_cmp_lt_u32 s12, 16")
    k("s_cbranch_scc1 " + KV)
    k("s_mov_b32 s12, 15")
    publish(k, 16)
    k("s_mov_b32 s12, 99")
    publish(k)
    k("s_branch " + DONE)

    k.label(SIDE)
    k("s_load_dwordx2 s[8:9], s[0:1], %d" % KA["wo"])
    k("s_load_dwordx4 s[32:35], s[0:1], %d" % KA["w_in"])
    k("s_load_dwordx2 s[36:37], s[0:1], %d" % KA["w_out"])
    k("s_load_dwordx2 s[82:83], s[0:1], %d" % KA["w_mod"])
    k("s_lshl_b32 s46, s2, 1")
    k("s_add_u32 s46, s46, s%d" % S_WAVE)
    k("s_sub_u32 s46, s46, 2")
    k("s_lshl_b32 s47, s%d, 13" % S_WAVE)
    k("s_add_u32 s47, s47, %d" % (STG - 8192))
    k("v_lshrrev_b32 v9, 3, v%d" % LANE)
    k("v_and_b32 v10, 7, v%d" % LANE)
    k("v_lshlrev_b32 v10, 4, v10")
    k("v_bfe_u32 v2, v%d, 2, 2" % LANE)
    k("v_and_b32 v3, 3, v%d" % LANE)
    k("v_lshlrev_b32 v3, 3, v3")
    k("v_lshl_add_u32 v3, v2, 7, v3")
    k("v_add_u32 v3, s47, v3")
    k("v_lshrrev_b32 v2, 5, v%d" % LANE)
    k("v_lshl_add_u32 v11, v2, 10, v3")
    k("v_bfe_u32 v2, v%d, 4, 1" % LANE)
    k("v_lshl_add_u32 v11, v2, 5, v11")
    k("v_lshrrev_b32 v2, 4, v%d" % LANE)
    k("v_lshl_add_u32 v12, v2, 10, v3")
    k("v_lshlrev_b32 v13, 4, v2")
    k("v_and_b32 v2, 15, v%d" % LANE)
    k("v_lshl_add_u32 v13, v2, 7, v13")
    k("v_add_u32 v13, s47, v13")
    k("s_waitcnt lgkmcnt(0)")
    ops = []

    def wait_for(tag):
        last = max(i for i, o in enumerate(ops) if o == tag)
        k("s_waitcnt vmcnt(%d)" % min(63, len(ops) - 1 - last))

    ROUNDS = [(8, "wo", 2048, 16, 512, "WOF", 0)] + [(32, "w_in", 7168, 56, 1792, "WINF", 512 * n) for n in range(4)] + \
             [(36, "w_out", 2048, 16, 896, "WOUTF", 512 * n) for n in range(2)]
    RB = 80

    def unit_ids(r):
        ptr, nm, ld, ncg, nu, dst, u0 = ROUNDS[r]
        k("s_add_u32 s41, s46, %d" % u0)
        if ncg == 56:
            k("s_mul_i32 s38, s41, 9363")
            k("s_lshr_b32 s38, s38, 19")
            k("s_mul_i32 s39, s38, 56")
            k("s_sub_u32 s39, s41, s39")
        else:
            k("s_lshr_b32 s38, s41, %d" % (ncg.bit_length() - 1))
            k("s_and_b32 s39, s41, %d" % (ncg - 1))
        k("s_cmp_ge_u32 s41, %d" % nu)
        k("s_cselect_b32 s40, %d, 0" % OOB)

    def rp_load(r, touch=False):
        ptr, nm, ld, ncg, nu, dst, u0 = ROUNDS[r]
        unit_ids(r)
        srd_in(k, 72, ptr, SZ[nm])
        k("s_mov_b32 s42, %d" % ld)
        if touch:
            k("v_and_b32 v14, 31, v%d" % LANE)
            k("v_mul_lo_u32 v14, v14, s42")
        else:
            k("v_mul_lo_u32 v14, v9, s42")
            k("v_add_u32 v14, v14, v10")
        k("s_mul_i32 s42, s38, %d" % (32 * ld))
        k("s_lshl_b32 s41, s39, 7")
        k("s_add_u32 s42, s42, s41")
        k("s_or_b32 s42, s42, s40")
        if touch:
            k("buffer_load_dword v15, v14, s[72:75], s42 offen")
            ops.append(("tc", r))
            return
        for q in range(4):
            k("s_add_u32 m0, s47, %d" % ((r & 1) * 4096 + q * 1024))
            k("s_add_u32 s41, s42, %d" % (q * 8 * ld))
            k("buffer_load_dwordx4 v14, s[72:75], s41 offen lds")
            ops.append(("rp", r))

    def rp_store(r):
        ptr, nm, ld, ncg, nu, dst, u0 = ROUNDS[r]
        wait_for(("rp", r))
        for b in range(4):
            if dst in ("WOF", "WOUTF"):
                for rd in range(2):
                    k("ds_read_b64_tr_b16 %s, v11 offset:%d" % (v(RB + 4 * b + 2 * rd, 2), (r & 1) * 4096 + (b >> 1) * 2048 + rd * 512 + (b & 1) * 64))
            elif dst == "WINF":
                for rd in range(2):
                    k("ds_read_b64_tr_b16 %s, v12 offset:%d" % (v(RB + 4 * b + 2 * rd, 2), (r & 1) * 4096 + rd * 512 + b * 32))
            else:
                k("ds_read_b128 %s, v13 offset:%d" % (v(RB + 4 * b, 4), (r & 1) * 4096 + (b & 1) * 2048 + (b >> 1) * 64))
        unit_ids(r)
        srd_ws(k, 76, 6, dst)
        if dst in ("WOF", "WOUTF"):
            k("s_mul_i32 s42, s39, %d" % ((16 if dst == "WOF" else 28) * 8192))
            k("s_lshl_b32 s41, s38, 12")
            k("s_add_u32 s42, s42, s41")
            k("s_or_b32 s42, s42, s40")
            offs = [("s42", b * 1024) for b in range(4)]
        elif dst == "WSPF":
            k("s_lshr_b32 s42, s38, 2")
            k("s_lshl_b32 s42, s42, 5")
            k("s_add_u32 s42, s42, s39")
            k("s_lshl_b32 s42, s42, 14")
            k("s_and_b32 s41, s38, 3")
            k("s_lshl_b32 s41, s41, 11")
            k("s_add_u32 s42, s42, s41")
            k("s_or_b32 s42, s42, s40")
            k("s_add_u32 s41, s42, 8192")
            offs = [("s42", 0), ("s42", 1024), ("s41", 0), ("s41", 1024)]
        else:
            offs = []
            k("s_cmp_ge_u32 s39, 28")
            k("s_cselect_b32 s16, 28, 0")
            k("s_cselect_b32 s17, 7168, 0")
            k("s_sub_u32 s16, s39, s16")
            k("s_lshl_b32 s16, s16, 2")
            k("s_mul_i32 s41, s38, 14336")
            k("s_add_u32 s17, s17, s41")
            k("s_or_b32 s17, s17, s40")
            for b in range(4):
                k("s_add_u32 s41, s16, %d" % b)
                k("s_mul_i32 s42, s41, 147")
                k("s_lshr_b32 s42, s42, 10")
                k("s_mul_i32 s42, s42, %d" % (458752 - 7 * 1024))
                k("s_lshl_b32 s41, s41, 10")
                k("s_add_u32 s41, s41, s42")
                k("s_add_u32 s%d, s41, s17" % (28 + b))
                offs.append(("s%d" % (28 + b), 0))
        k("s_waitcnt lgkmcnt(0)")
        for b in range(4):
            k("buffer_store_dwordx4 %s, v%d, s[76:79], %s offen offset:%d sc1" % (v(RB + 4 * b, 4), VOFF, offs[b][0], offs[b][1]))
            ops.append(("st", r))

    k("s_barrier")
    k("s_mov_b32 s14, %d" % P_.get("gate", 5))
    lds_wait(0, 14, nap=24)
    k("s_cmp_eq_u32 s%d, 1" % S_WAVE)
    k("s_cbranch_scc1 " + GEMV)
    NR = len(ROUNDS)
    rp_load(0)
    rp_load(1)
    TCH = P_.get("touch", 0)
    if TCH:
        rp_load(2, True)
        rp_load(3, True)
    for r in range(NR):
        k.stamp(14 + r)
        rp_store(r)
        if r + 2 < NR:
            rp_load(r + 2)
        if TCH and r + 4 < NR:
            rp_load(r + 4, True)
    k("s_branch " + DONE)

    k.label(GEMV)
    del ops[:]
    k("s_lshr_b32 s14, s2, 2")
    k("s_add_u32 s14, s14, 32")
    k("s_and_b32 s15, s2, 3")
    srd_in(k, 72, 82, SZ["w_mod"])
    srd_ws(k, 76, 6, "SC")
    k("s_mul_i32 s42, s15, %d" % (256 * 12288))
    k("s_lshl_b32 s41, s14, 7")
    k("s_add_u32 s42, s42, s41")
    k("s_mov_b32 s41, 12288")
    k("v_mul_lo_u32 v14, v9, s41")
    k("v_add_u32 v14, v14, v10")
    k("v_mul_lo_u32 v16, v%d, s41" % LANE)

    def gv_load(u):
        for q in range(4):
            k("s_add_u32 m0, s47, %d" % ((u & 1) * 4096 + q * 1024))
            k("s_add_u32 s41, s42, %d" % ((u * 32 + q * 8) * 12288))
            k("buffer_load_dwordx4 v14, s[72:75], s41 offen lds")
            ops.append(("gv", u))
    k("v_lshrrev_b32 v17, 4, v%d" % LANE)
    k("v_lshlrev_b32 v17, 4, v17")
    k("s_lshl_b32 s40, s15, 9")
    for u in range(8):
        k("buffer_load_dwordx4 %s, v17, s[76:79], s40 offen offset:%d" % (v(24 + 4 * u, 4), u * 64))
        ops.append(("c", u))
    gv_load(0)
    gv_load(1)
    for n in range(1, 4 if TCH else 1):
        k("s_add_u32 s41, s42, %d" % (n * 64 * 12288))
        k("buffer_load_dword v15, v16, s[72:75], s41 offen")
        ops.append(("tc", n))
    for e in range(16):
        k("v_mov_b32 v%d, 0" % (56 + e))
    for u in range(8):
        wait_for(("gv", u))
        for b in range(4):
            for rd in range(2):
                k("ds_read_b64_tr_b16 %s, v12 offset:%d" % (v(RB + 4 * b + 2 * rd, 2), (u & 1) * 4096 + rd * 512 + b * 32))
        k("s_waitcnt lgkmcnt(0)")
        if u + 2 < 8:
            gv_load(u + 2)
        for b in range(4):
            k("v_mfma_f32_16x16x32_bf16 %s, %s, %s, %s" % (v(56 + 4 * b, 4), v(RB + 4 * b, 4), v(24 + 4 * u, 4), v(56 + 4 * b, 4)))
    srd_ws(k, 76, 6, "MODP")
    k("v_and_b32 v2, 15, v%d" % LANE)
    k("v_cmp_eq_u32 vcc, 0, v2")
    k("v_mov_b32 v2, 0x7f000000")
    k("v_cndmask_b32 v17, v2, v17, vcc")
    k("s_mul_i32 s41, s15, %d" % (6144 * 4))
    k("s_lshl_b32 s42, s14, 8")
    k("s_add_u32 s41, s41, s42")
    for b in range(4):
        k("buffer_store_dwordx4 %s, v17, s[76:79], s41 offen offset:%d sc1" % (v(56 + 4 * b, 4), b * 64))
    srd_in(k, 72, 34, SZ["w_sp"])
    k("v_lshlrev_b32 v16, 7, v%d" % LANE)
    k("s_lshl_b32 s41, s2, 15")
    for n in range(4):
        k("buffer_load_dword v15, v16, s[72:75], s41 offen")
        k("s_add_u32 s41, s41, 8192")
        k("s_waitcnt vmcnt(%d)" % (1 if TCH else 0))
    if CODE_NEXT:
        for n in range(3):
            k("v_add_u32 v18, %d, v%d" % (64 * n, LANE))
            code_prefetch(k, CODE_NEXT, 18, 100, 16)
    k.label(DONE)
    k.stamp(sb + 5)
    if after_help:
        after_help(k)
    else:
        k.stamp_dump(31)
        k("s_endpgm")
```

```python
import struct
from asmlib import *

KA = dict(x=0, wqkv=8, wo=16, bx=24, w_in=32, w_sp=40, b_sp=48, w_out=56, c=64, w_mod=72, out=80, dbg=88, ws=96)
SZ = dict(x=4194304, wqkv=6291456, wo=2097152, w_in=7340032, w_sp=8388608, b_sp=4096, w_out=3670016, c=2048,
          w_mod=12582912, out=4194304)

WS = dict(
    MODP=(0x0, 98304),
        XN=(0x100000, 0x400000),
    QKV=(0x500000, 0xC00000),
    O=(0x1100000, 0x400000),
    X1=(0x1500000, 0x400000),
    Z1=(0x1900000, 0x700000),
    Z2=(0x2000000, 0x700000),
    U=(0x2700000, 0x700000),
)


def f2u(x):
    return struct.unpack("<I", struct.pack("<f", x))[0]


def fhex(x):
    return "0x%08x" % f2u(x)


def srd_in(k, dst, ptr, size):
    k("s_mov_b32 s%d, s%d" % (dst, ptr))
    k("s_mov_b32 s%d, s%d" % (dst + 1, ptr + 1))
    k("s_mov_b32 s%d, %d" % (dst + 2, size))
    k("s_mov_b32 s%d, 0x20000" % (dst + 3))


def srd_ws(k, dst, wsptr, region):
    off, size = WS[region]
    k("s_add_u32 s%d, s%d, %d" % (dst, wsptr, off))
    k("s_addc_u32 s%d, s%d, 0" % (dst + 1, wsptr + 1))
    k("s_mov_b32 s%d, %d" % (dst + 2, size))
    k("s_mov_b32 s%d, 0x20000" % (dst + 3))


def unpack_bf16(k, lo, hi, src):
    k("v_lshlrev_b32 v%d, 16, v%d" % (lo, src))
    k("v_and_b32 v%d, 0xffff0000, v%d" % (hi, src))


def srd_ws_sub(k, dst, wsptr, region, s_off, size):
    off, _ = WS[region]
    k("s_add_u32 s%d, s%d, %d" % (dst + 2, s_off, off))
    k("s_add_u32 s%d, s%d, s%d" % (dst, wsptr, dst + 2))
    k("s_addc_u32 s%d, s%d, 0" % (dst + 1, wsptr + 1))
    k("s_mov_b32 s%d, %d" % (dst + 2, size))
    k("s_mov_b32 s%d, 0x20000" % (dst + 3))


WS["EX"] = (0x3600000, 0x100000)
WS["EX2"] = (0x3600000, 0x40000)
WS["EX3"] = (0x3640000, 0x40000)
WS["FL"] = (0x3680000, 0x40000)
WS["XF"] = (0x2E00000, 0x400000)
WS["H2"] = (0x3200000, 0x400000)


LOG2E = 1.4426950408889634


class Gemv:
    def __init__(self, k, tid, s_cg, s_kc, srd_c, srd_w, srd_o, lds, V, S):
        self.__dict__.update(locals())

    def addr(self):
        k, V, S = self.k, self.V, self.S
        k("v_lshrrev_b32 v%d, 3, v%d" % (V, self.tid))
        k("v_and_b32 v%d, 7, v%d" % (V + 1, self.tid))
        k("s_mov_b32 s%d, 12288" % S)
        k("v_mul_lo_u32 v%d, v%d, s%d" % (V + 2, V, S))
        k("v_lshl_add_u32 v%d, v%d, 4, v%d" % (V + 2, V + 1, V + 2))
        k("s_mul_i32 s%d, s%d, %d" % (S + 1, self.s_kc, 256 * 12288))
        k("s_lshl_b32 s%d, s%d, 7" % (S, self.s_cg))
        k("s_add_u32 s%d, s%d, s%d" % (S + 1, S + 1, S))
        k("s_lshl_b32 s%d, s%d, 9" % (S + 2, self.s_kc))
        k("v_lshlrev_b32 v%d, 1, v%d" % (V + 3, self.tid))
        for i in range(8):
            k("s_add_u32 s%d, s%d, %d" % (S + 4 + i, S + 1, i * 32 * 12288))

    def loads(self, lo=0, hi=8):
        k, V, S = self.k, self.V, self.S
        if lo == 0:
            k("buffer_load_ushort v%d, v%d, %s, s%d offen" % (V + 4, V + 3, s(self.srd_c, 4), S + 2))
        for i in range(lo, hi):
            k("buffer_load_dwordx4 %s, v%d, %s, s%d offen" % (v(V + 8 + 4 * i, 4), V + 2, s(self.srd_w, 4), S + 4 + i))

    def silu(self):
        k, V = self.k, self.V
        k("v_lshlrev_b32 v%d, 16, v%d" % (V + 4, V + 4))
        k("v_mul_f32 v%d, %s, v%d" % (V + 5, fhex(-LOG2E), V + 4))
        k("v_exp_f32 v%d, v%d" % (V + 5, V + 5))
        k("v_add_f32 v%d, 1.0, v%d" % (V + 5, V + 5))
        k("v_rcp_f32 v%d, v%d" % (V + 5, V + 5))
        k("v_mul_f32 v%d, v%d, v%d" % (V + 4, V + 4, V + 5))
        k("v_cvt_pk_bf16_f32 v%d, v%d, v%d" % (V + 4, V + 4, V + 4))
        k("v_lshlrev_b32 v%d, 16, v%d" % (V + 4, V + 4))
        k("v_lshlrev_b32 v%d, 2, v%d" % (V + 3, self.tid))
        k("v_add_u32 v%d, %d, v%d" % (V + 3, self.lds, V + 3))
        k("ds_write_b32 v%d, v%d" % (V + 3, V + 4))
        k("s_waitcnt lgkmcnt(0)")

    def mac(self, wait=None):
        k, V = self.k, self.V
        k("v_lshlrev_b32 v%d, 2, v%d" % (V + 5, V))
        k("v_add_u32 v%d, %d, v%d" % (V + 5, self.lds, V + 5))
        for i in range(8):
            k("ds_read_b32 v%d, v%d offset:%d" % (V + 40 + i, V + 5, i * 128))
        for j in range(8):
            k("v_mov_b32 v%d, 0" % (V + 48 + j))
        k("s_waitcnt lgkmcnt(0)")
        for i in range(8):
            if wait:
                wait(i)
            for d in range(4):
                unpack_bf16(k, V + 56 + 2 * (d & 1), V + 57 + 2 * (d & 1), V + 8 + 4 * i + d)
                k("v_fmac_f32 v%d, v%d, v%d" % (V + 48 + 2 * d, V + 56 + 2 * (d & 1), V + 40 + i))
                k("v_fmac_f32 v%d, v%d, v%d" % (V + 49 + 2 * d, V + 57 + 2 * (d & 1), V + 40 + i))
        k("v_lshlrev_b32 v%d, 5, v%d" % (V + 5, self.tid))
        k("v_add_u32 v%d, %d, v%d" % (V + 5, self.lds + 1024, V + 5))
        k("ds_write_b128 v%d, %s" % (V + 5, v(V + 48, 4)))
        k("ds_write_b128 v%d, %s offset:16" % (V + 5, v(V + 52, 4)))
        k("s_waitcnt lgkmcnt(0)")

    def red1(self):
        k, V = self.k, self.V
        k("v_and_b32 v%d, 63, v%d" % (V + 5, self.tid))
        k("v_lshrrev_b32 v%d, 6, v%d" % (V + 6, self.tid))
        k("v_lshlrev_b32 v%d, 11, v%d" % (V + 6, V + 6))
        k("v_lshl_add_u32 v%d, v%d, 2, v%d" % (V + 6, V + 5, V + 6))
        k("v_add_u32 v%d, %d, v%d" % (V + 6, self.lds + 1024, V + 6))
        for i in range(8):
            k("ds_read_b32 v%d, v%d offset:%d" % (V + 40 + i, V + 6, i * 256))
        k("s_waitcnt lgkmcnt(0)")
        for st in (4, 2, 1):
            for i in range(st):
                k("v_add_f32 v%d, v%d, v%d" % (V + 40 + i, V + 40 + i, V + 40 + i + st))
        k("ds_write_b32 v%d, v%d offset:9216" % (V + 3, V + 40))
        k("s_waitcnt lgkmcnt(0)")

    def fin(self, mods=""):
        k, V, S = self.k, self.V, self.S
        k("v_lshlrev_b32 v%d, 2, v%d" % (V + 5, V + 5))
        k("v_add_u32 v%d, %d, v%d" % (V + 6, self.lds + 9216, V + 5))
        for i in range(4):
            k("ds_read_b32 v%d, v%d offset:%d" % (V + 40 + i, V + 6, i * 256))
        k("s_mul_i32 s%d, s%d, %d" % (S + 1, self.s_kc, 6144 * 4))
        k("s_lshl_b32 s%d, s%d, 8" % (S, self.s_cg))
        k("s_add_u32 s%d, s%d, s%d" % (S + 1, S + 1, S))
        k("s_waitcnt lgkmcnt(0)")
        k("v_add_f32 v%d, v%d, v%d" % (V + 40, V + 40, V + 41))
        k("v_add_f32 v%d, v%d, v%d" % (V + 42, V + 42, V + 43))
        k("v_add_f32 v%d, v%d, v%d" % (V + 40, V + 40, V + 42))
        k("buffer_store_dword v%d, v%d, %s, s%d offen%s" % (V + 40, V + 5, s(self.srd_o, 4), S + 1, mods))


WS["WOF"] = (0x3800000, 0x200000)
WS["WOUTF"] = (0x3A00000, 0x380000)
WS["WINF"] = (0x3E00000, 0x700000)
WS["WSPF"] = (0x4600000, 0x800000)
WS["H"] = (0x1500000, 0x400000)
WS["WQF"] = (0x1900000, 0x600000)


def code_prefetch(k, target, vidx, vt, st):
    PC = k.uid("pc")
    k("s_getpc_b64 s[%d:%d]" % (st, st + 1))
    k.label(PC)
    k("s_add_u32 s%d, s%d, %s-%s" % (st, st, target, PC))
    k("s_addc_u32 s%d, s%d, 0" % (st + 1, st + 1))
    k("v_lshlrev_b32 v%d, 7, v%d" % (vt, vidx))
    k("v_min_u32 v%d, L_%s_codeend-%s-4, v%d" % (vt, target, target, vt))
    k("v_mov_b32 v%d, s%d" % (vt + 1, st + 1))
    k("v_add_co_u32 v%d, vcc, s%d, v%d" % (vt, st, vt))
    k("v_addc_co_u32 v%d, vcc, 0, v%d, vcc" % (vt + 1, vt + 1))
    k("global_load_dword v%d, v[%d:%d], off" % (vt + 2, vt, vt + 1))
WS["PAD"] = (0x20000, 256)
WS["SC"] = (0x21000, 2048)

import os
if not os.environ.get("NOREUSE"):
    WS["H2"] = WS["H"]
    WS["U"] = (WS["QKV"][0] + 0x400000, 0x700000)
    WS["Z2"] = (WS["WQF"][0], 0x700000)
```

```python
from common import *

OOB = 0x7f000000

S_WAVE, S_BM, S_BN, S_ROT = 3, 20, 21, 22
SRD_X, SRD_W = 24, 28
SRD_E0, SRD_E1, SRD_E2, SRD_E3 = 32, 36, 40, 44
V_LANE = 1


def map_blocks(k, lg_am, an, xm_bits):
    k("s_and_b32 s48, s2, 7")
    k("s_lshr_b32 s49, s2, 3")
    k("s_and_b32 s50, s49, %d" % ((1 << lg_am) - 1))
    k("s_lshr_b32 s51, s49, %d" % lg_am)
    if DBG["fine"] and an == 8:
        k("s_xor_b32 s51, s51, 5")
    k("s_and_b32 s52, s48, %d" % ((1 << xm_bits) - 1))
    k("s_lshl_b32 s52, s52, %d" % lg_am)
    k("s_add_u32 s%d, s52, s50" % S_BM)
    k("s_lshr_b32 s52, s48, %d" % xm_bits)
    k("s_mul_i32 s52, s52, %d" % an)
    k("s_add_u32 s%d, s52, s51" % S_BN)


class Dma:
    def __init__(self, srd, pieces, stride, ring, slot, sbase):
        self.srd, self.pieces, self.stride, self.ring, self.slot, self.sbase = srd, pieces, stride, ring, slot, sbase
        self.half_last = False

    def wave_bytes(self):
        return len(self.pieces) * 1024 - (512 if self.half_last else 0)


DBG = dict(fine=False, no_dsw=False, no_valu=False, l2hit=False, no_cons=False, no_prod=False, no_xf=False, no_mfma=False, no_reads=False)


def cons_phase(k, cfg, sb=0):
    T, MT, NT = cfg["T"], cfg["MT"], cfg["NT"]
    xr, wr = cfg["x_ring"], cfg["w_ring"]
    ACC = cfg["ACC"]
    FR = cfg["FRAG"]
    fsz = 4 * (MT + NT)
    VX0, VW0, VX, VW = 4, 5, 6, 10
    if cfg["wgrid"] == "2x2":
        k("s_lshr_b32 s48, s%d, 1" % S_WAVE)
        k("s_and_b32 s49, s%d, 1" % S_WAVE)
    else:
        k("s_mov_b32 s48, s%d" % S_WAVE)
        k("s_mov_b32 s49, 0")
    S_WM, S_WN = 48, 49
    if cfg.get("table"):
        cfg["table"](k)
        k("s_waitcnt lgkmcnt(0)")
        k("s_barrier")
    if cfg.get("cons_pre"):
        cfg["cons_pre"](k)
    swz = cfg["x_mode"] == "dma_swz"
    if swz:
        k("v_and_b32 v2, 31, v%d" % V_LANE)
        k("v_lshrrev_b32 v3, 5, v%d" % V_LANE)
        k("v_bfe_u32 v%d, v%d, 1, 3" % (VX0, V_LANE))
        k("v_xor_b32 v%d, v%d, v3" % (VX0, VX0))
        k("v_lshlrev_b32 v%d, 4, v%d" % (VX0, VX0))
        k("v_lshl_add_u32 v%d, v2, 7, v%d" % (VX0, VX0))
        k("s_mul_i32 s50, s%d, %d" % (S_WM, MT * 4096))
        k("s_add_u32 s50, s50, %d" % xr[0])
        k("v_add_u32 v%d, s50, v%d" % (VX0, VX0))
    else:
        k("s_mul_i32 s50, s%d, %d" % (S_WM, MT * 1024))
        k("s_add_u32 s50, s50, %d" % xr[0])
        k("v_lshl_add_u32 v%d, v%d, 4, s50" % (VX0, V_LANE))
    blk32 = cfg.get("w_mode") == "blk32"
    wfm = cfg.get("w_mode") == "fm"
    if wfm:
        k("v_lshlrev_b32 v%d, 4, v%d" % (VW0, V_LANE))
    elif blk32:
        k("v_bfe_u32 v2, v%d, 4, 1" % V_LANE)
        k("v_mul_u32_u24 v%d, 1152, v2" % VW0)
        k("v_lshrrev_b32 v2, 5, v%d" % V_LANE)
        k("v_lshl_add_u32 v%d, v2, 8, v%d" % (VW0, VW0))
        k("v_and_b32 v2, 15, v%d" % V_LANE)
        k("v_lshl_add_u32 v%d, v2, 3, v%d" % (VW0, VW0))
    else:
        W_HH, W_RD, W_KS = cfg["w_strides"]
        k("v_lshrrev_b32 v2, 5, v%d" % V_LANE)
        k("v_mul_u32_u24 v%d, %d, v2" % (VW0, W_HH))
        k("v_bfe_u32 v2, v%d, 2, 2" % V_LANE)
        k("v_lshl_add_u32 v%d, v2, 6, v%d" % (VW0, VW0))
        k("v_bfe_u32 v2, v%d, 4, 1" % V_LANE)
        k("v_lshl_add_u32 v%d, v2, 5, v%d" % (VW0, VW0))
        k("v_and_b32 v2, 3, v%d" % V_LANE)
        k("v_lshl_add_u32 v%d, v2, 3, v%d" % (VW0, VW0))
    k("s_mul_i32 s50, s%d, %d" % (S_WN, cfg["w_wave_stride"]))
    k("s_add_u32 s50, s50, %d" % wr[0])
    k("v_add_u32 v%d, s50, v%d" % (VW0, VW0))
    for i in range(16 * MT * NT):
        k("v_mov_b32 v%d, 0" % (ACC + i))
    S_XS, S_WS, S_T = 52, 53, 54

    def set_addr():
        k("v_add_u32 v%d, s%d, v%d" % (VX, S_XS, VX0))
        k("v_add_u32 v%d, s%d, v%d" % (VW, S_WS, VW0))
        if swz:
            for ks in range(1, 4):
                k("v_xor_b32 v%d, %d, v%d" % (VX + ks, ks * 32, VX))
        if blk32:
            k("v_xor_b32 v%d, 128, v%d" % (VW + 1, VW))

    def adv_slots():
        for (sr, ring) in ((S_XS, xr), (S_WS, wr)):
            k("s_add_u32 s%d, s%d, %d" % (sr, sr, ring[1]))
            k("s_cmp_ge_u32 s%d, %d" % (sr, ring[1] * ring[2]))
            k("s_cselect_b32 s%d, 0, s%d" % (sr, sr))

    def reads(ks, f):
        o = []
        base = FR + f * fsz
        xs, ws = [], []
        for i in range(MT):
            if swz:
                xs.append("ds_read_b128 %s, v%d offset:%d" % (v(base + 4 * i, 4), VX + ks, i * 4096))
            else:
                xs.append("ds_read_b128 %s, v%d offset:%d" % (v(base + 4 * i, 4), VX, ks * cfg.get("x_ks", 4096) + i * 1024))
        if wfm:
            ws = ["ds_read_b128 %s, v%d offset:%d" % (v(base + 4 * MT + 4 * j, 4), VW, (ks * NT + j) * 1024) for j in range(NT)]
            return xs[:1] + ws[:1] + xs[1:] + ws[1:]
        for j in range(NT):
            for rd in range(2):
                if blk32:
                    reg, off = VW + rd, cfg["w_tile_off"](j) + (ks >> 1) * 8192 + (ks & 1) * 512
                else:
                    reg, off = VW, cfg["w_tile_off"](j) + ks * W_KS + rd * W_RD
                ws.append("ds_read_b64_tr_b16 %s, v%d offset:%d" % (v(base + 4 * MT + 4 * j + 2 * rd, 2), reg, off))
        o.append(xs[0])
        o += ws[0:2]
        o += xs[1:]
        o += ws[2:]
        return o

    def mfmas(f):
        o = []
        base = FR + f * fsz
        for j in range(NT):
            for i in range(MT):
                acc = v(ACC + 16 * (i * NT + j), 16)
                xf, wf = v(base + 4 * i, 4), v(base + 4 * MT + 4 * j, 4)
                if cfg.get("swap_tile", lambda j: False)(j):
                    o.append("v_mfma_f32_32x32x16_bf16 %s, %s, %s, %s" % (acc, xf, wf, acc))
                else:
                    o.append("v_mfma_f32_32x32x16_bf16 %s, %s, %s, %s" % (acc, wf, xf, acc))
        return o

    def interleave(ms, rs, per):
        rs = list(rs)
        if DBG["no_cons"]:
            return
        if DBG["no_mfma"]:
            ms = []
        if DBG["no_reads"]:
            rs = []
        for m in ms:
            k(m)
            for _ in range(per):
                if rs:
                    k(rs.pop(0))
        for r in rs:
            k(r)

    k("s_mov_b32 s%d, 0" % S_XS)
    k("s_mov_b32 s%d, 0" % S_WS)
    k("s_mov_b32 s%d, 0" % S_T)
    set_addr()
    k.stamp(sb + 1)
    k("s_barrier")
    k.stamp(sb + 2)
    PD = cfg.get("PD", 1)
    NF = 2 if PD == 1 else 4
    for ks in range(PD):
        for r in reads(ks, ks % NF):
            k(r)
    if cfg.get("cons_loads"):
        cfg["cons_loads"](k)
    LOOP = k.uid("cloop")
    nrd = MT + (NT if wfm else 2 * NT)
    per = cfg.get("reads_per_mfma", max(2, -(-nrd // max(1, MT * NT - 1))))
    nbar = cfg.get("mfma_before_barrier", 1)
    k.label(LOOP)
    for ks in range(4):
        ms = mfmas(ks % NF)
        nxt = (ks + PD) % 4
        k("s_waitcnt lgkmcnt(%d)" % min(15, nrd * (PD - 1)))
        if ks + PD == 4:
            for m in ms[:nbar]:
                k(m)
            set_addr()
            if PD > 1:
                k("s_waitcnt lgkmcnt(0)")
            k("s_barrier")
            interleave(ms[nbar:], reads(nxt, nxt % NF), per + 1)
        else:
            interleave(ms, reads(nxt, nxt % NF), per)
        if ks == 0:
            adv_slots()
            k("s_add_u32 s%d, s%d, 1" % (S_T, S_T))
    if cfg.get("mid"):
        SK = k.uid("nomid")
        k("s_cmp_lg_u32 s%d, %d" % (S_T, cfg["mid"][0]))
        k("s_cbranch_scc1 " + SK)
        cfg["mid"][1](k)
        k("s_waitcnt lgkmcnt(0)")
        k.label(SK)
    k("s_cmp_lt_u32 s%d, %d" % (S_T, T))
    k("s_cbranch_scc1 " + LOOP)
    k("s_waitcnt lgkmcnt(0)")
    k.stamp(sb + 3)
    cfg["epilogue"](k)
    k.stamp(sb + 4)


def cons_phase16(k, cfg, sb=0):
    T, NT = cfg["T"], cfg["NT"]
    xr, wr = cfg["x_ring"], cfg["w_ring"]
    ACC, FR = cfg["ACC"], cfg["FRAG"]
    tr = cfg["w_mode"] == "tr16"
    VX0, VW0, VX, VW = 4, 5, 6, 10
    XF, WF, RW = FR, FR + 16, 7
    D = cfg.get("D", 6 if tr else 7)
    PAUSE = cfg.get("pause", 3)
    NI = 2 * NT
    if cfg.get("cons_pre"):
        cfg["cons_pre"](k)
    xswz = cfg.get("x_mode") == "dma_swz"
    if xswz:
        k("v_bfe_u32 v2, v%d, 1, 3" % V_LANE)
        k("v_lshrrev_b32 v3, 4, v%d" % V_LANE)
        k("v_xor_b32 v2, v2, v3")
        k("v_lshlrev_b32 v2, 4, v2")
        k("v_and_b32 v3, 15, v%d" % V_LANE)
        k("v_lshl_add_u32 v2, v3, 7, v2")
        k("s_lshl_b32 s50, s%d, 12" % S_WAVE)
        k("s_add_u32 s50, s50, %d" % xr[0])
        k("v_add_u32 v%d, s50, v2" % VX0)
    else:
        k("s_lshl_b32 s50, s%d, 11" % S_WAVE)
        k("s_add_u32 s50, s50, %d" % xr[0])
        k("v_lshl_add_u32 v%d, v%d, 4, s50" % (VX0, V_LANE))
    if tr:
        k("v_lshrrev_b32 v2, 5, v%d" % V_LANE)
        k("v_lshlrev_b32 v%d, 9, v2" % VW0)
        k("v_and_b32 v2, 31, v%d" % V_LANE)
        k("v_lshl_add_u32 v%d, v2, 3, v%d" % (VW0, VW0))
    else:
        k("v_lshlrev_b32 v%d, 4, v%d" % (VW0, V_LANE))
    k("v_add_u32 v%d, %d, v%d" % (VW0, wr[0], VW0))
    for i in range(8 * NT):
        k("v_mov_b32 v%d, %s" % (ACC + i, cfg.get("acc_init", lambda i: "0")(i)))
    S_XS, S_WS, S_T = 52, 53, 54

    def set_addr():
        k("v_add_u32 v%d, s%d, v%d" % (VX, S_XS, VX0))
        k("v_add_u32 v%d, s%d, v%d" % (VW, S_WS, VW0))
        if xswz:
            k("v_xor_b32 v%d, 64, v%d" % (VX + 1, VX))

    def reads(n):
        ks, ct = n // NT, n % NT
        o = []
        if ct == 0:
            for rt in range(2):
                if xswz:
                    o.append("ds_read_b128 %s, v%d offset:%d" % (v(XF + 8 * ks + 4 * rt, 4), VX + ks, rt * 2048))
                else:
                    o.append("ds_read_b128 %s, v%d offset:%d" % (v(XF + 8 * ks + 4 * rt, 4), VX, ks * 8192 + rt * 1024))
        w = WF + 4 * (n % RW)
        if tr:
            for rd in range(2):
                o.append("ds_read_b64_tr_b16 %s, v%d offset:%d" % (v(w + 2 * rd, 2), VW, n * 1024 + rd * 256))
        else:
            o.append("ds_read_b128 %s, v%d offset:%d" % (v(w, 4), VW, n * 1024))
        return o

    after = [[] for _ in range(NI)]
    nb = NI - D + PAUSE
    for n in range(NI - D):
        after[n].append(n + D)
    pend = list(range(NI, NI + D))
    left = NI - nb
    for n in range(nb, NI):
        take = -(-len(pend) // (NI - n))
        after[n] += pend[:take]
        pend = pend[take:]
    for n in range(NI):
        for m in after[n]:
            assert m - RW <= n
    q = []
    for m in range(D):
        q += [m] * len(reads(m))
    waits = {}
    for rep in range(2):
        for n in range(NI):
            g = rep * NI + n
            idx = [i for i, o in enumerate(q) if o <= g]
            waits[(rep, n)] = len(q) - 1 - max(idx) if idx else None
            if idx:
                q = q[max(idx) + 1:]
            if n == nb:
                q = []
            for m in after[n]:
                q += [rep * NI + m] * len(reads(m % NI))
    k("s_mov_b32 s%d, 0" % S_XS)
    k("s_mov_b32 s%d, %d" % (S_WS, wr[1] * cfg.get("w_start", 0)))
    k("s_mov_b32 s%d, 0" % S_T)
    set_addr()
    k.stamp(sb + 1)
    k("s_barrier")
    k.stamp(sb + 2)
    for m in range(D):
        for r in reads(m):
            k(r)
    if cfg.get("cons_loads"):
        cfg["cons_loads"](k)
    book = []
    for (sr, ring) in ((S_XS, xr), (S_WS, wr)):
        book += ["s_add_u32 s%d, s%d, %d" % (sr, sr, ring[1]), "s_cmp_ge_u32 s%d, %d" % (sr, ring[1] * ring[2]),
                 "s_cselect_b32 s%d, 0, s%d" % (sr, sr)]
    book += ["s_add_u32 s%d, s%d, 1" % (S_T, S_T), "s_cmp_lt_u32 s%d, %d" % (S_T, T)]
    assert len(book) <= nb
    LOOP = k.uid("cloop")
    k.label(LOOP)
    for n in range(NI):
        ks, ct = n // NT, n % NT
        assert waits[(0, n)] == waits[(1, n)]
        if waits[(1, n)] is not None:
            assert waits[(1, n)] <= 15
            WG_ = cfg.get("wgroup", 1)
            if n % WG_ == 0:
                nr = sum(len(reads(m)) for m in range(n + 1, min(NI, n + WG_)) if waits[(1, m)] is not None)
                k("s_waitcnt lgkmcnt(%d)" % max(0, waits[(1, n)] - nr))
        rs = [r for m in after[n] for r in reads(m % NI)]
        for rt in range(2):
            acc = v(ACC + 4 * (ct * 2 + rt), 4)
            k("v_mfma_f32_16x16x32_bf16 %s, %s, %s, %s" % (acc, v(WF + 4 * (n % RW), 4), v(XF + 8 * ks + 4 * rt, 4), acc))
            if rt == 0 and n == nb:
                set_addr()
                k("s_waitcnt lgkmcnt(0)")
                k("s_barrier")
            if rt == 0 and n != nb:
                own = v(WF + 4 * (n % RW), 4)[2:].split(":")[0]
                early = [r for r in rs if all(m - RW < n for m in after[n])][:(len(rs) + 1) // 2]
                for r in early:
                    k(r)
                rs = rs[len(early):]
        for r in rs:
            k(r)
        if n < len(book):
            k(book[n])
    k("s_cbranch_scc1 " + LOOP)
    k("s_waitcnt lgkmcnt(0)")
    k.stamp(sb + 3)
    cfg["epilogue"](k)
    k.stamp(sb + 4)


def prod_phase(k, cfg, sb=0, first=False, tail_hook=None):
    g = prod_phase_gen(k, cfg, sb, first, tail_hook)
    next(g)
    next(g, None)


def prod_phase_gen(k, cfg, sb=0, first=False, tail_hook=None):
    T, NS = cfg["T"], cfg["NS"]
    dmas = cfg["dma_setup"](k)
    S_TMP, S_OFF, S_M, S_IT = 66, 68, 72, 77
    for n, d in enumerate(dmas):
        k("s_mov_b32 s%d, s%d" % (S_OFF + n, d.sbase))
        k("s_mul_i32 s%d, s%d, %d" % (S_M + n, S_WAVE, d.wave_bytes()))
        k("s_add_u32 s%d, s%d, %d" % (S_M + n, S_M + n, d.ring))
        k("s_add_u32 s%d, s%d, %d" % (S_M + 2 + n, S_M + n, d.slot * NS))
        if getattr(d, "start", 0):
            k("s_add_u32 s%d, s%d, %d" % (S_M + n, S_M + n, d.slot * d.start))
    if first:
        k("s_waitcnt lgkmcnt(0)")
    cfg["srds_p"](k)
    k.stamp(sb + 1)

    def step(which):
        cnt = 0
        for n, d in enumerate(dmas):
            if n not in which:
                continue
            for i, vreg in enumerate(d.pieces):
                if i % 4 == 0:
                    c = (i // 4) * 4096
                    k("s_add_u32 m0, s%d, %d" % (S_M + n, c) if c else "s_mov_b32 m0, s%d" % (S_M + n))
                half = d.half_last and i == len(d.pieces) - 1
                if half:
                    k("s_mov_b32 exec_hi, 0")
                k("buffer_load_dwordx4 v%d, %s, s%d offen offset:%d%s lds" %
                  (vreg, s(d.srd, 4), S_OFF + n, (i % 4) * 1024, " sc1" if getattr(d, "dep", False) or getattr(d, "sc1", False) else ""))
                if half:
                    k("s_mov_b32 exec_hi, -1")
                cnt += 1
            k("s_add_u32 s%d, s%d, %d" % (S_OFF + n, S_OFF + n, d.stride))
            k("s_add_u32 s%d, s%d, %d" % (S_M + n, S_M + n, d.slot))
            k("s_cmp_ge_u32 s%d, s%d" % (S_M + n, S_M + 2 + n))
            k("s_cselect_b32 s%d, %d, 0" % (S_TMP, d.slot * NS))
            k("s_sub_u32 s%d, s%d, s%d" % (S_M + n, S_M + n, S_TMP))
        return cnt

    allops = list(range(len(dmas)))
    nD = sum(len(d.pieces) for d in dmas)
    pl = cfg.get("poll")
    ops = []

    def issue(which, st):
        ops.extend([st] * step(which))

    def wait_step(st):
        last = max(i for i, o in enumerate(ops) if o == st)
        k("s_waitcnt vmcnt(%d)" % min(63, len(ops) - 1 - last))

    if pl:
        dep = [n for n in allops if getattr(dmas[n], "dep", False)]
        free = [n for n in allops if n not in dep]
        early = NS - 1 - min(NS - 1, cfg.get("late_free", 0))
        if cfg.get("prod_pre_load"):
            cfg["prod_pre_load"](k)
        for st in range(early):
            issue(free, st)
        yield len(ops)
        pl.setup(k)
        for st in range(early, NS - 1):
            issue(free, st)
        for st in range(NS - 1):
            pl.need(k)
            if st == 0:
                k.stamp(sb + 2)
            issue(dep, st)
    else:
        yield 0
        if cfg.get("prod_pre_load"):
            cfg["prod_pre_load"](k)
        for st in range(NS - 1):
            issue(allops, st)
        k.stamp(sb + 2)
    wait_step(0)
    if cfg.get("prod_pre_fin"):
        cfg["prod_pre_fin"](k)
    k.stamp(sb + 3)
    k("s_barrier")
    npeel = NS - 3 if pl else 0
    for t in range(npeel):
        pl.need(k)
        issue(allops, t + NS - 1)
        wait_step(t + 1)
        k("s_barrier")
    k("s_mov_b32 s%d, %d" % (S_IT, npeel))
    LOOP = k.uid("ploop")
    k.label(LOOP)
    if pl:
        pl.need(k)
    if not DBG["no_prod"]:
        step(allops)
    if DBG["l2hit"]:
        for n, d in enumerate(dmas):
            k("s_cmp_ge_u32 s%d, %d" % (S_OFF + n, 6 * d.stride))
            k("s_cselect_b32 s%d, 0, s%d" % (S_OFF + n, S_OFF + n))
    k("s_add_u32 s%d, s%d, 1" % (S_IT, S_IT))
    k("s_cmp_lt_u32 s%d, %d" % (S_IT, T - (NS - 1)))
    k("s_waitcnt vmcnt(%d)" % ((NS - 2) * nD))
    k("s_barrier")
    k("s_cbranch_scc1 " + LOOP)
    extra = tail_hook() if tail_hook else 0
    for r in range(NS - 3, -1, -1):
        k("s_waitcnt vmcnt(%d)" % (r * nD + extra))
        k("s_barrier")
    k("s_barrier")
    k.stamp(sb + 4)


def gemm(name, cfg):
    k = Kern(name)
    T, NWG = cfg["T"], cfg["NWG"]
    MT, NT = cfg["MT"], cfg["NT"]
    NS = cfg["NS"]
    NP = cfg.get("NP", 4)
    NB_ = 16 // NP
    END, PROD = k.uid("end"), k.uid("prod")
    k("s_cmp_ge_u32 s2, %d" % NWG)
    k("s_cbranch_scc1 " + END)
    k.kidx = cfg.get("kidx", 0)
    k.stamp_init()
    cfg["load_ptrs"](k)
    k("v_lshrrev_b32 v2, 6, v0")
    k("v_and_b32 v%d, 63, v0" % V_LANE)
    k("v_readfirstlane_b32 s%d, v2" % S_WAVE)
    cfg["map"](k)
    k("s_cmp_ge_u32 s%d, 4" % S_WAVE)
    k("s_cbranch_scc1 " + PROD)
    k("s_waitcnt lgkmcnt(0)")
    cfg["srds_c"](k)

    cons_phase(k, cfg)
    k.stamp_dump(5)
    k("s_endpgm")

    k.label(PROD)
    if cfg.get("pprio", 0):
        k("s_setprio %d" % cfg["pprio"])
    k("s_sub_u32 s%d, s%d, 4" % (S_WAVE, S_WAVE))
    dmas = cfg["dma_setup"](k)
    vg = cfg.get("vg")
    S_TMP, S_OFF, S_M = 66, 68, 72
    S_VOFF, S_IT = 76, 77
    nD = sum(len(d.pieces) for d in dmas)
    static_ring = NS in (2, 4)
    for n, d in enumerate(dmas):
        k("s_mov_b32 s%d, s%d" % (S_OFF + n, d.sbase))
        k("s_mul_i32 s%d, s%d, %d" % (S_M + n, S_WAVE, len(d.pieces) * 1024))
        k("s_add_u32 s%d, s%d, %d" % (S_M + n, S_M + n, d.ring))
        if not static_ring:
            k("s_add_u32 s%d, s%d, %d" % (S_M + 2 + n, S_M + n, d.slot * NS))
    if vg:
        VR, VOFF, VLDS = vg["regs"], vg["voff"], vg["vlds"]
        k("s_mul_i32 s%d, s%d, %d" % (S_TMP, S_WAVE, NB_ * 1024))
        k("v_lshl_add_u32 v%d, v%d, 4, s%d" % (VOFF, V_LANE, S_TMP))
        k("v_add_u32 v%d, %d, v%d" % (VLDS, vg["ring"], VOFF))
        k("s_mov_b32 s%d, 0" % S_VOFF)
    k("s_waitcnt lgkmcnt(0)")
    cfg["srds_p"](k)
    k.stamp(1)

    def dma_items(step):
        o = []
        for n, d in enumerate(dmas):
            for i, vreg in enumerate(d.pieces):
                g = []
                if i % 4 == 0:
                    c = (i // 4) * 4096 + ((step % NS) * d.slot if static_ring else 0)
                    g.append("s_add_u32 m0, s%d, %d" % (S_M + n, c) if c else "s_mov_b32 m0, s%d" % (S_M + n))
                g.append("buffer_load_dwordx4 v%d, %s, s%d offen offset:%d lds" % (vreg, s(d.srd, 4), S_OFF + n, (i % 4) * 1024))
                if i == len(d.pieces) - 1:
                    g.append("s_add_u32 s%d, s%d, %d" % (S_OFF + n, S_OFF + n, d.stride))
                    if not static_ring:
                        g.append("s_add_u32 s%d, s%d, %d" % (S_M + n, S_M + n, d.slot))
                        g.append("s_cmp_ge_u32 s%d, s%d" % (S_M + n, S_M + 2 + n))
                        g.append("s_cselect_b32 s%d, %d, 0" % (S_TMP, d.slot * NS))
                        g.append("s_sub_u32 s%d, s%d, s%d" % (S_M + n, S_M + n, S_TMP))
                o.append(g)
        return o

    def emit(groups):
        for g in groups:
            for l in g:
                k(l)

    if vg:
        def vg_items(set_):
            o = []
            for i in range(NB_):
                g = ["buffer_load_dwordx4 %s, v%d, %s, s%d offen offset:%d" %
                     (v(VR + 16 * set_ + 4 * i, 4), VOFF, s(vg["srd"], 4), S_VOFF, i * 1024)]
                if i == NB_ - 1:
                    g.append("s_add_u32 s%d, s%d, 16384" % (S_VOFF, S_VOFF))
                o.append(g)
            return o

        def xform_list(step):
            set_ = step % 4
            o = []
            for i in range(NB_):
                o += vg["xform"](VR + 16 * set_ + 4 * i, i, step % 2)
                o.append("ds_write_b128 v%d, %s offset:%d" % (VLDS, v(VR + 16 * set_ + 4 * i, 4), (step % 2) * 16384 + i * 1024))
            return o

        emit(vg_items(0))
        emit(dma_items(0))
        k("s_barrier")
        emit([vg["params"](0)])
        emit([vg["params"](1)])
        emit(vg_items(1))
        k("s_waitcnt vmcnt(%d) lgkmcnt(0)" % (NB_ + nD))
        k.stamp(2)
        for l in xform_list(0):
            k(l)
        for st in range(1, NS - 1):
            emit(dma_items(st))
        emit(vg_items(2))
        k("s_waitcnt vmcnt(%d) lgkmcnt(0)" % (NB_ + (NS - 2) * nD))
        k.stamp(3)
        k("s_barrier")
        k("s_mov_b32 s%d, 0" % S_IT)
        LOOP = k.uid("ploop")
        k.label(LOOP)
        for u in range(4):
            mem = vg_items((u + 3) % 4) + dma_items(u + NS - 1)
            xf = xform_list(u + 1)
            mem.append(vg["params"](u % 2))
            if DBG["no_prod"]:
                mem, xf = [["s_nop 0"]], []
            if DBG["no_xf"]:
                xf = []
            if DBG["no_dsw"]:
                xf = [l for l in xf if not l.startswith("ds_write")]
            if DBG["no_valu"]:
                xf = [l for l in xf if l.startswith("ds_write")]
            tail = cfg.get("tail", 2)
            par = mem.pop()
            xf = par + xf
            ng = max(1, len(mem) - tail)
            gap = len(xf) / float(ng)
            pos, j = 0.0, 0
            for g in mem:
                emit([g])
                pos += gap
                while j < len(xf) and j < int(pos + 0.5):
                    k(xf[j])
                    j += 1
            if u == 3 and DBG["l2hit"]:
                k("s_mov_b32 s%d, 0" % S_VOFF)
                for n, d in enumerate(dmas):
                    k("s_mov_b32 s%d, s%d" % (S_OFF + n, d.sbase))
            if u == 3:
                k("s_add_u32 s%d, s%d, 4" % (S_IT, S_IT))
                k("s_cmp_lt_u32 s%d, %d" % (S_IT, T))
            k("s_waitcnt vmcnt(%d) lgkmcnt(0)" % (NB_ + nD))
            k("s_barrier")
        k("s_cbranch_scc1 " + LOOP)
    else:
        if cfg.get("prod_pre_load"):
            cfg["prod_pre_load"](k)
        for st in range(NS - 1):
            emit(dma_items(st))
        k.stamp(2)
        k("s_waitcnt vmcnt(%d)" % ((NS - 2) * nD))
        if cfg.get("prod_pre_fin"):
            cfg["prod_pre_fin"](k)
        k.stamp(3)
        k("s_barrier")
        k("s_mov_b32 s%d, 0" % S_IT)
        LOOP = k.uid("ploop")
        k.label(LOOP)
        U = 4 if static_ring else 1
        for u in range(U):
            if not DBG["no_prod"]:
                emit(dma_items(u + NS - 1))
            if u == U - 1 and DBG["l2hit"]:
                for n, d in enumerate(dmas):
                    k("s_mov_b32 s%d, s%d" % (S_OFF + n, d.sbase))
            if u == U - 1:
                k("s_add_u32 s%d, s%d, %d" % (S_IT, S_IT, U))
                k("s_cmp_lt_u32 s%d, %d" % (S_IT, T))
            k("s_waitcnt vmcnt(%d)" % ((NS - 2) * nD))
            k("s_barrier")
        k("s_cbranch_scc1 " + LOOP)
    k("s_waitcnt vmcnt(0)")
    k.stamp_dump(5)
    k.label(END)
    k("s_endpgm")
    txt, n = k.finish(vgprs=cfg["vgprs"], sgprs=96)
    return txt, "; @launch kernel=%s grid=(%d,1,1) block=(%d,1,1) lds=%d" % (name, NWG, 256 + 64 * NP, cfg["lds"])
```

```python
from common import *
from gemms import stats_to_affine, BCAST
from sync import FL1


def gen_k1(name="k1_kernel", tlb=0):
    k = Kern(name)
    END, LN, RP = k.uid("end"), k.uid("ln"), k.uid("rp")
    k("s_cmp_ge_u32 s2, 385")
    k("s_cbranch_scc1 " + END)
    k.kidx = 0
    k.stamp_init()
    k("s_load_dwordx4 s[56:59], s[0:1], %d" % KA["x"])
    k("s_load_dwordx4 s[8:11], s[0:1], %d" % KA["c"])
    k("s_load_dwordx4 s[4:7], s[0:1], %d" % KA["dbg"])
    k("s_cmp_ge_u32 s2, 129")
    k("s_cbranch_scc1 " + LN)
    k("s_cmp_lt_u32 s2, 1")
    k("s_cbranch_scc1 " + RP)
    k("s_sub_u32 s13, s2, 1")

    def wait_flag(issued):
        W, GO, CH = k.uid("wait"), k.uid("go"), k.uid("chk")
        k("s_mov_b32 s16, 0")
        if issued:
            k("s_branch " + CH)
        k.label(W)
        k("buffer_load_dword v3, v2, s[48:51], 0 offen sc1")
        k.label(CH)
        k("s_waitcnt vmcnt(0)")
        k("v_cmp_eq_u32 vcc, 0, v3")
        k("s_cbranch_vccz " + GO)
        k("s_sleep 4")
        k("s_add_u32 s16, s16, 1")
        k("s_cmp_lt_u32 s16, 0x100000")
        k("s_cbranch_scc1 " + W)
        k.label(GO)
    k("s_lshr_b32 s12, s13, 2")
    k("s_and_b32 s13, s13, 3")
    g = Gemv(k, 0, 12, 13, 20, 24, 28, 0, 8, 32)
    g.addr()
    k("s_waitcnt lgkmcnt(0)")
    srd_in(k, 20, 8, SZ["c"])
    srd_in(k, 24, 10, SZ["w_mod"])
    srd_ws(k, 28, 6, "MODP")
    srd_in(k, 48, 4, 256)
    g.loads()
    k.stamp(1)
    k("s_waitcnt vmcnt(8)")
    k.stamp(2)
    g.silu()
    srd_ws(k, 52, 6, "SC")
    k("v_lshlrev_b32 v2, 1, v0")
    k("buffer_store_short_d16_hi v12, v2, s[52:55], s34 offen")
    k("s_barrier")
    g.mac(lambda i: k("s_waitcnt vmcnt(%d)" % (8 - i)))
    k.stamp(3)
    k("s_barrier")
    g.red1()
    k("s_barrier")
    k("v_cmp_gt_u32 vcc, 64, v0")
    k("s_and_saveexec_b64 s[60:61], vcc")
    k("s_cbranch_execz " + END)
    g.fin(" sc1")
    k.stamp(6)
    k("v_mov_b32 v2, 0")
    wait_flag(False)
    k(k.lines[[n for n, l in enumerate(k.lines) if "buffer_store_dword v48" in l][-1]])
    k.stamp(4)
    k.stamp_dump(5)
    k("s_endpgm")

    k.label(RP)
    k("v_lshlrev_b32 v1, 4, v0")
    for r in (4, 5, 6, 7):
        k("v_mov_b32 v%d, -1" % r)
    k("v_mov_b32 v2, 0")
    k("s_waitcnt lgkmcnt(0)")
    srd_ws(k, 28, 6, "MODP")
    srd_in(k, 48, 4, 256)
    for n in range(8):
        k("s_mov_b32 s12, %d" % ((n >> 1) * 6144 * 4 + (n & 1) * 4096))
        k("buffer_store_dwordx4 v[4:7], v1, s[28:31], s12 offen sc1")
    k.stamp(1)
    k("s_waitcnt vmcnt(0)")
    k.stamp(2)
    k("s_barrier")
    k("v_cmp_eq_u32 vcc, 0, v0")
    k("s_and_saveexec_b64 s[60:61], vcc")
    k("s_cbranch_execz " + END)
    k("buffer_store_dword v4, v2, s[48:51], 0 offen sc1")
    k.stamp(3)
    k.stamp_dump(5)
    k("s_endpgm")

    k.label(LN)
    k("s_sub_u32 s12, s2, 129")
    k("v_bfe_u32 v1, v0, 3, 3")
    k("v_and_b32 v2, 7, v0")
    k("v_lshrrev_b32 v5, 6, v0")
    k("v_lshlrev_b32 v3, 11, v1")
    k("v_lshl_add_u32 v3, v2, 4, v3")
    k("v_lshl_add_u32 v3, v5, 9, v3")
    k("s_lshl_b32 s13, s12, 14")
    k("v_lshrrev_b32 v6, 1, v2")
    k("v_lshlrev_b32 v6, 12, v6")
    k("v_lshl_add_u32 v6, v5, 16, v6")
    k("v_and_b32 v7, 1, v2")
    k("v_lshlrev_b32 v7, 9, v7")
    k("v_lshl_add_u32 v7, v1, 4, v7")
    k("v_lshl_add_u32 v64, v6, 1, v7")
    k("v_lshlrev_b32 v65, 6, v2")
    k("v_lshl_add_u32 v65, v5, 11, v65")
    k("s_and_b32 s16, s12, 3")
    k("s_lshl_b32 s16, s16, 7")
    k("s_lshr_b32 s18, s12, 5")
    k("s_lshl_b32 s18, s18, 19")
    k("s_bfe_u32 s17, s12, 0x30002")
    k("s_lshl_b32 s17, s17, 10")
    k("s_add_u32 s18, s18, s17")
    k("s_add_u32 s18, s18, s16")
    for n in range(4):
        k("s_add_u32 s%d, s18, %d" % (36 + n, n * 32768))
    k("s_waitcnt lgkmcnt(0)")
    srd_in(k, 20, 56, SZ["x"])
    for n in range(4):
        k("buffer_load_dwordx4 v[%d:%d], v3, s[20:23], s13 offen offset:%d" % (16 + 4 * n, 19 + 4 * n, n * 128))
    srd_ws(k, 24, 6, "H")
    srd_ws(k, 28, 6, "FL")
    srd_in(k, 48, 4, 256)
    srd_ws(k, 44, 6, "MODP")
    k("v_mov_b32 v8, -1.0")
    k("v_lshlrev_b32 v4, 1, v0")
    k("v_and_b32 v4, 0x1fc, v4")
    k("s_lshl_b32 s14, s12, 9")
    k("s_add_u32 s14, s14, %d" % FL1)
    k("buffer_store_dword v8, v4, s[28:31], s14 offen")
    k("v_lshlrev_b32 v4, 4, v0")
    k("v_readfirstlane_b32 s3, v5")
    k("v_and_b32 v100, 63, v0")
    srd_in(k, 40, 58, SZ["wqkv"])
    k("v_lshrrev_b32 v2, 3, v100")
    k("s_mov_b32 s16, 6144")
    k("v_mul_lo_u32 v101, v2, s16")
    k("v_and_b32 v2, 7, v100")
    k("v_lshl_add_u32 v101, v2, 4, v101")
    k("s_lshl_b32 s19, s3, 13")
    k("s_add_u32 s19, s19, 12288")
    for u in range(2):
        k("s_mul_i32 s14, s12, 6")
        k("s_add_u32 s14, s14, s3")
        k("s_add_u32 s14, s14, %d" % (4 * u))
        k("s_mul_i32 s%d, s14, 10923" % (68 + 2 * u))
        k("s_lshr_b32 s%d, s%d, 19" % (68 + 2 * u, 68 + 2 * u))
        k("s_mul_i32 s15, s%d, 48" % (68 + 2 * u))
        k("s_sub_u32 s%d, s14, s15" % (69 + 2 * u))
        k("s_mul_i32 s15, s%d, %d" % (68 + 2 * u, 32 * 6144))
        k("s_lshl_b32 s16, s%d, 7" % (69 + 2 * u))
        k("s_add_u32 s15, s15, s16")
        if u:
            k("s_cmp_ge_u32 s3, 2")
            k("s_cselect_b32 s72, 0x7f000000, 0")
            k("s_or_b32 s15, s15, s72")
        for q in range(4):
            k("s_add_u32 m0, s19, %d" % (u * 4096 + q * 1024))
            k("s_add_u32 s16, s15, %d" % (q * 8 * 6144))
            k("buffer_load_dwordx4 v101, s[40:43], s16 offen lds")
    for r in (10, 11, 12, 13):
        k("v_mov_b32 v%d, 0" % r)
    k.stamp(1)
    for n in range(4):
        k("s_waitcnt vmcnt(%d)" % (12 - n))
        for d in range(4):
            o = 32 + 8 * n + 2 * d
            unpack_bf16(k, o, o + 1, 16 + 4 * n + d)
            k("v_pk_add_f32 v[10:11], v[10:11], v[%d:%d]" % (o, o + 1))
            k("v_pk_fma_f32 v[12:13], v[%d:%d], v[%d:%d], v[12:13]" % (o, o + 1, o, o + 1))
    k("v_add_f32 v10, v10, v11")
    k("v_add_f32 v11, v12, v13")
    for m in ("quad_perm:[1,0,3,2]", "quad_perm:[2,3,0,1]", "row_half_mirror"):
        for r in (10, 11):
            k("v_add_f32_dpp v%d, v%d, v%d %s row_mask:0xf bank_mask:0xf" % (r, r, r, m))
    k("v_lshlrev_b32 v7, 5, v1")
    k("v_lshl_add_u32 v8, v5, 3, v7")
    k("ds_write_b64 v8, v[10:11] offset:8192")
    k("s_waitcnt lgkmcnt(0)")
    code_prefetch(k, "m1_kernel", 0, 104, 74)
    if tlb:
        NT_ = k.uid("notouch")
        k("s_cmp_lg_u32 s3, 2")
        k("s_cbranch_scc1 " + NT_)
        k("s_load_dwordx2 s[60:61], s[0:1], %d" % KA["wo"])
        k("s_load_dwordx8 s[64:71], s[0:1], %d" % KA["w_in"])
        k("s_load_dwordx2 s[62:63], s[0:1], %d" % KA["out"])
        k("v_and_b32 v104, 63, v0")
        k("v_lshlrev_b32 v104, %d, v104" % tlb)
        srd_in(k, 40, 6, 0x4E00000)
        for n in range(0x4E00000 >> (tlb + 6)):
            k("s_mov_b32 s14, %d" % (n << (tlb + 6)))
            k("buffer_load_dword v107, v104, s[40:43], s14 offen")
        k("s_mov_b32 s14, %d" % ((0x4E00000 >> (tlb + 6)) << (tlb + 6)))
        k("buffer_load_dword v107, v104, s[40:43], s14 offen")
        k("s_waitcnt lgkmcnt(0)")
        for (p, nm) in ((60, "wo"), (64, "w_in"), (66, "w_sp"), (70, "w_out"), (62, "out"), (10, "w_mod")):
            srd_in(k, 40, p, SZ[nm])
            k("buffer_load_dword v107, v104, s[40:43], 0 offen")
        k.label(NT_)
    k.stamp(2)
    GO = k.uid("go")
    k("s_cmp_lg_u32 s3, 3")
    k("s_cbranch_scc1 " + GO)
    k("v_mov_b32 v2, 0")
    wait_flag(False)
    k.label(GO)
    k("s_waitcnt lgkmcnt(0)")
    k("s_barrier")
    k.stamp(3)
    T0 = 68
    for n, (idx, p) in enumerate([(1, p) for p in range(4)] + [(0, p) for p in range(4)]):
        k("s_mov_b32 s%d, %d" % (60 + n, (p * 6144 + idx * 1024) * 4))

    def par_loads():
        for n in range(8):
            k("buffer_load_dwordx4 %s, v4, s[44:47], s%d offen sc1" % (v(T0 + 4 * n, 4), 60 + n))
    par_loads()
    k("ds_read_b128 v[8:11], v7 offset:8192")
    k("ds_read_b128 v[12:15], v7 offset:8208")
    k("s_waitcnt lgkmcnt(0)")
    k("v_pk_add_f32 v[8:9], v[8:9], v[10:11]")
    k("v_pk_add_f32 v[12:13], v[12:13], v[14:15]")
    k("v_pk_add_f32 v[8:9], v[8:9], v[12:13]")
    stats_to_affine(k, 8, 1024)
    for o in range(32, 64, 2):
        k("v_pk_fma_f32 v[%d:%d], v[%d:%d], v[8:9], v[8:9] %s" % (o, o + 1, o, o + 1, BCAST))
    srd_ws(k, 40, 6, "WQF")
    k("v_bfe_u32 v2, v100, 2, 2")
    k("v_and_b32 v3, 3, v100")
    k("v_lshlrev_b32 v101, 3, v3")
    k("v_lshl_add_u32 v101, v2, 7, v101")
    k("v_lshrrev_b32 v2, 5, v100")
    k("v_lshl_add_u32 v101, v2, 10, v101")
    k("v_bfe_u32 v2, v100, 4, 1")
    k("v_lshl_add_u32 v101, v2, 5, v101")
    k("v_add_u32 v101, s19, v101")
    k("v_lshlrev_b32 v100, 4, v100")
    for u in range(2):
        k("s_and_b32 s15, s%d, 15" % (69 + 2 * u))
        k("s_mul_i32 s15, s15, %d" % (2 * 196608))
        k("s_mul_i32 s16, s%d, 6144" % (68 + 2 * u))
        k("s_add_u32 s15, s15, s16")
        k("s_lshr_b32 s16, s%d, 4" % (69 + 2 * u))
        k("s_lshl_b32 s16, s16, 10")
        k("s_add_u32 s15, s15, s16")
        if u:
            k("s_or_b32 s15, s15, s72")
        k("s_add_u32 s16, s15, 196608")
        if u == 0:
            k("s_waitcnt vmcnt(8)")
        for b in range(4):
            for rd in range(2):
                k("ds_read_b64_tr_b16 %s, v101 offset:%d" %
                  (v(108 + 16 * u + 4 * b + 2 * rd, 2), u * 4096 + (b >> 1) * 2048 + rd * 512 + (b & 1) * 64))
        for b in range(4):
            k("s_waitcnt lgkmcnt(%d)" % (6 - 2 * b))
            k("buffer_store_dwordx4 %s, v100, s[40:43], s%d offen offset:%d sc1" % (v(108 + 16 * u + 4 * b, 4), 15 + (b & 1), (b >> 1) * 3072))
    k("v_lshrrev_b32 v2, 1, v0")
    k("v_lshlrev_b32 v2, 6, v2")
    k("v_and_b32 v3, 1, v0")
    k("v_lshl_add_u32 v2, v3, 4, v2")
    RE, OK = k.uid("retry"), k.uid("ok")
    k("s_mov_b32 s16, 0")
    k("s_waitcnt vmcnt(8)")
    k.label(RE)
    k("v_max_u32 v3, v%d, v%d" % (T0, T0 + 1))
    for e in range(2, 32, 2):
        k("v_max3_u32 v3, v3, v%d, v%d" % (T0 + e, T0 + e + 1))
    k("v_cmp_eq_u32 vcc, -1, v3")
    k("s_cbranch_vccz " + OK)
    k("s_sleep 4")
    par_loads()
    k("s_add_u32 s16, s16, 1")
    k("s_cmp_lt_u32 s16, 0x100000")
    k("s_waitcnt vmcnt(0)")
    k("s_cbranch_scc1 " + RE)
    k.label(OK)
    k.stamp(6)
    for b in (T0, T0 + 16):
        for (x, y) in ((0, 4), (8, 12), (0, 8)):
            for e in (0, 2):
                k("v_pk_add_f32 %s, %s, %s" % (v(b + x + e, 2), v(b + x + e, 2), v(b + y + e, 2)))
        for e in (0, 2):
            k("v_cvt_pk_bf16_f32 v3, v%d, v%d" % (b + e, b + e + 1))
            unpack_bf16(k, b + e, b + e + 1, 3)
    for e in range(4):
        k("v_add_f32 v%d, 1.0, v%d" % (T0 + e, T0 + e))
    for e in (0, 2):
        k("v_cvt_pk_bf16_f32 v3, v%d, v%d" % (T0 + e, T0 + e + 1))
        unpack_bf16(k, T0 + e, T0 + e + 1, 3)
    k("ds_write_b128 v2, %s" % v(T0, 4))
    k("ds_write_b128 v2, %s offset:32" % v(T0 + 16, 4))
    k("s_waitcnt lgkmcnt(0)")
    k("s_barrier")
    for n in range(2):
        for q in range(4):
            k("ds_read_b128 %s, v65 offset:%d" % (v(T0 + 16 * n + 4 * q, 4), n * 512 + q * 16))
    for n in range(4):
        G = T0 + 16 * (n & 1)
        k("s_waitcnt lgkmcnt(%d)" % (4 if n < 3 else 0))
        for d in range(4):
            o = 32 + 8 * n + 2 * d
            k("v_pk_fma_f32 v[%d:%d], v[%d:%d], %s, %s" % (o, o + 1, o, o + 1, v(G + 2 * d, 2), v(G + 8 + 2 * d, 2)))
        if n < 2:
            for q in range(4):
                k("ds_read_b128 %s, v65 offset:%d" % (v(G + 4 * q, 4), (n + 2) * 512 + q * 16))
        for d in range(4):
            o = 32 + 8 * n + 2 * d
            k("v_cvt_pk_bf16_f32 v%d, v%d, v%d" % (16 + 4 * n + d, o, o + 1))
        k("buffer_store_dwordx4 v[%d:%d], v64, s[24:27], s%d offen" % (16 + 4 * n, 19 + 4 * n, 36 + n))
    k.stamp(4)
    k.stamp_dump(5)
    k.label(END)
    k("s_endpgm")
    txt, n = k.finish(vgprs=140, sgprs=80)
    return txt, "; @launch kernel=%s grid=(385,1,1) block=(256,1,1) lds=%d" % (name, 12288 + 32768)
```

```python
from sync import *
from gemms import pack16, swap8, MIXLO, MIXHI
from attn import emit_attn, ATT_LDS, SY, QF
from m2 import dep

NS1 = 3
PAR = NS1 * 45056


def gen_m1(name="m1_kernel", force_slow=False):
    k = Kern(name)
    END, REST, PROD, COMP, HELP = [k.uid(x) for x in ("end", "rest", "prod", "comp", "help")]
    FR, ACC = 24, 64
    k("s_cmp_ge_u32 s2, 256")
    k("s_cbranch_scc1 " + END)
    k.kidx = 1
    k.stamp_init()
    k("s_load_dwordx2 s[6:7], s[0:1], %d" % KA["ws"])
    k("v_lshrrev_b32 v2, 6, v0")
    k("v_and_b32 v%d, 63, v0" % V_LANE)
    k("v_readfirstlane_b32 s19, v2")
    map_blocks(k, 2, 8, 1)
    k("s_mov_b32 s%d, s19" % S_WAVE)
    k("s_cmp_lt_u32 s19, 4")
    k("s_cbranch_scc1 " + REST)

    def ex_init(k):
        k("v_lshlrev_b32 v2, 4, v0")
        k("v_cmp_gt_u32 vcc, 2560, v2")
        k("v_mov_b32 v3, 0x7f000000")
        k("v_cndmask_b32 v2, v3, v2, vcc")
        for r in (12, 13, 14, 15):
            k("v_mov_b32 v%d, -1.0" % r)
        k("s_mul_i32 s50, s2, 2560")
        srd_ws(k, SRD_E0, 6, "EX")
        k("buffer_store_dwordx4 v[12:15], v2, %s, s50 offen" % s(SRD_E0, 4))

    def epilogue(k):
        qs = 32 ** -0.5 * LOG2E
        k("v_lshlrev_b32 v2, 4, v%d" % V_LANE)
        k("s_lshl_b32 s56, s%d, 17" % S_BN)
        k("s_lshl_b32 s57, s%d, 14" % S_BM)
        k("s_add_u32 s56, s56, s57")
        k("s_lshl_b32 s59, s%d, 12" % S_WAVE)
        k("s_add_u32 s56, s56, s59")
        k("s_add_u32 s57, s56, 0x400000")
        k("s_add_u32 s58, s56, 0x800000")
        k("s_lshr_b32 s62, s%d, 1" % S_WAVE)
        k("s_lshl_b32 s62, s62, 13")
        k("s_add_u32 s62, s62, s59")
        k("v_add_u32 v3, s62, v2")
        k("s_mov_b32 s60, %s" % fhex(qs))
        k("s_mov_b32 s61, %s" % fhex(qs))
        n = 0
        for j in (1, 2, 0):
            for i in range(2):
                A = ACC + 16 * (i * 3 + j)
                P = FR + 8 * n if j else QF + 8 * i
                n += 1
                if j == 0:
                    for e in range(0, 16, 2):
                        k("v_pk_mul_f32 %s, %s, s[60:61]" % (v(A + e, 2), v(A + e, 2)))
                pack16(k, P, A)
                if j != 2:
                    swap8(k, P)
                for mf in range(2):
                    o = i * 2048 + mf * 1024
                    if j:
                        k("buffer_store_dwordx4 %s, v2, %s, s%d offen offset:%d sc1" % (v(P + 4 * mf, 4), s(SRD_E1, 4), 56 + j, o))
                        k("ds_write_b128 v3, %s offset:%d" % (v(P + 4 * mf, 4), (j - 1) * 8192 + o))

    def srds_p(k):
        srd_ws_sub(k, SRD_X, 6, "H", 81, 16 * 32768)
        srd_ws_sub(k, SRD_W, 6, "WQF", 80, 16 * 12288)

    def dma_setup(k):
        k("s_mul_i32 s50, s%d, 3072" % S_WAVE)
        k("v_lshl_add_u32 v8, v%d, 4, s50" % V_LANE)
        k("s_mul_i32 s80, s%d, %d" % (S_BN, 16 * 12288))
        k("s_lshl_b32 s81, s%d, 19" % S_BM)
        k("s_mov_b32 s82, 0")
        k("s_lshl_b32 s50, s%d, 13" % S_WAVE)
        k("v_lshl_add_u32 v5, v%d, 4, s50" % V_LANE)
        k("v_add_u32 v6, 4096, v5")
        return [Dma(SRD_X, [5, 5, 5, 5, 6, 6, 6, 6], 32768, 0, 32768, 82),
                Dma(SRD_W, [8, 8, 8], 12288, NS1 * 32768, 12288, 82)]

    cfg = dict(PD=1, T=16, MT=2, NT=3, NS=NS1, wgrid="4x1", srds_p=srds_p, x_ks=8192,
               x_ring=(0, 32768, NS1), w_ring=(NS1 * 32768, 12288, NS1), x_mode="dma_fm", w_mode="fm",
               w_wave_stride=0, swap_tile=lambda j: j == 2,
               FRAG=FR, ACC=ACC, dma_setup=dma_setup, epilogue=epilogue, cons_loads=ex_init)

    k("s_sub_u32 s%d, s19, 4" % S_WAVE)
    prod_phase(k, cfg, 0, first=True)
    k("s_branch " + HELP)

    k.label(REST)
    k("s_waitcnt lgkmcnt(0)")
    srd_ws(k, SRD_E1, 6, "QKV")
    cons_phase(k, cfg, 0)
    pr = dict(srd=96, off=94, seen=95, tmp=101, acc=100, cnt=4, va=96, vv=97, vl=98)
    emit_attn(k, COMP, HELP, Poll(FL1, 21, 2048, 1024, regs=pr, s_rot=18, lg=5, barrier=False, lds=SY + 4), force_slow=force_slow)
    k.label(END)
    k("s_endpgm")
    txt, n = k.finish(vgprs=180, sgprs=102)
    return txt, "; @launch kernel=%s grid=(256,1,1) block=(512,1,1) lds=%d" % (name, ATT_LDS)
```

```python
from gemm import *
from gemms import (w_voff, pack16, swap8, ex_addr, both_halves, ex_publish, stats_to_affine, BCAST)
from sync import *
import math

S_WM, S_WN = 48, 49
P_X, P_WS, P_WSP, P_BSP, P_OUT = 4, 6, 8, 10, 16
MV = 162688
X1R, FR, Z1R, BR = 16, 32, 80, 192


def ex_collect(k, R, G, vr, srd, soff, n, nq, nb=1, bstride=0):
    L, D = k.uid("poll"), k.uid("got")
    k("s_mov_b32 s64, 0")
    offs = {}
    nxt = 65
    for b in range(nb):
        for hi in range((nq + 7) // 8):
            c = b * bstride + hi * 4096
            if c == 0:
                offs[(b, hi)] = soff
            else:
                k("s_add_u32 s%d, s%d, %d" % (nxt, soff, c))
                offs[(b, hi)] = nxt
                nxt += 1
    k.label(L)
    for b in range(nb):
        for q in range(nq):
            k("buffer_load_dwordx2 %s, v%d, %s, s%d offen offset:%d sc1" %
              (v(R[b] + 2 * q, 2), vr, s(srd, 4), offs[(b, q // 8)], (q & 7) * 512))
    k("s_waitcnt vmcnt(0)")
    k("v_mov_b32 v2, 0")
    for b in range(nb):
        for q in range(0, nq, 2):
            k("v_min3_f32 v2, v2, v%d, v%d" % (R[b] + 2 * q + 1, R[b] + 2 * q + 3))
    k("v_cmp_gt_f32 vcc, 0, v2")
    k("s_cbranch_vccz " + D)
    k("s_sleep 2")
    k("s_add_u32 s64, s64, 1")
    k("s_cmp_lt_u32 s64, 0x100000")
    k("s_cbranch_scc1 " + L)
    k.label(D)
    for b in range(nb):
        Rb = R[b]
        m = nq
        while m > 1:
            h = (m + 1) // 2
            for e in range(m - h):
                k("v_pk_add_f32 %s, %s, %s" % (v(Rb + 2 * e, 2), v(Rb + 2 * e, 2), v(Rb + 2 * (e + h), 2)))
            m = h
        both_halves(k, Rb, Rb + 2)
        both_halves(k, Rb + 1, Rb + 3)
        stats_to_affine(k, Rb, n)
        k("v_mov_b32 v%d, v%d" % (G + 2 * b, Rb))
        k("v_mov_b32 v%d, v%d" % (G + 2 * b + 1, Rb + 1))


def dep(d):
    d.dep = True
    return d


def lin_voff(k):
    k("s_mov_b32 s82, 0")
    k("s_lshl_b32 s50, s%d, 12" % S_WAVE)
    k("v_lshl_add_u32 v5, v%d, 4, s50" % V_LANE)


def cfg25(which, PD=3, NS=5):
    T = 16 if which == 2 else 28
    ACC, GA, XR, T2 = 80, 112, 144, 160

    def srds_c(k):
        if which == 2:
            srd_in(k, SRD_E1, P_X, SZ["x"])
            srd_ws(k, SRD_E2, P_WS, "H2")
            srd_ws(k, SRD_E3, P_WS, "EX2")
        else:
            srd_in(k, SRD_E2, P_OUT, SZ["out"])

    def srds_p(k):
        srd_ws_sub(k, SRD_X, P_WS, "O" if which == 2 else "U", 81, T * 16384)
        srd_ws_sub(k, SRD_W, P_WS, "WOF" if which == 2 else "WOUTF", 80, T * 8192)
        if which == 2:
            srd_ws(k, SRD_E0, P_WS, "MODP")

    def dma_setup(k):
        k("s_lshl_b32 s50, s%d, 11" % S_WAVE)
        k("v_lshl_add_u32 v8, v%d, 4, s50" % V_LANE)
        k("s_mul_i32 s80, s%d, %d" % (S_BN, T * 8192))
        k("s_mul_i32 s81, s%d, %d" % (S_BM, T * 16384))
        lin_voff(k)
        if which == 2:
            k("s_lshl_b32 s56, s%d, 8" % S_BN)
            k("s_add_u32 s56, s56, s50")
            k("s_add_u32 s56, s56, %d" % (2 * 4096))
            for p in range(1, 4):
                k("s_add_u32 s%d, s56, %d" % (59 + p, p * 6144 * 4))
            k("v_lshlrev_b32 v12, 2, v%d" % V_LANE)
            k("s_cmp_eq_u32 s%d, 2" % S_WAVE)
            k("s_cselect_b32 s58, 1.0, 0")
            k("s_lshl_b32 s59, s%d, 8" % S_WAVE)
            k("s_add_u32 s59, s59, %d" % MV)
            k("v_add_u32 v13, s59, v12")
        x = Dma(SRD_X, [5, 5, 5, 5], 16384, 0, 16384, 82)
        return [dep(x) if which == 5 else x, Dma(SRD_W, [8, 8], 8192, NS * 16384, 8192, 82)]

    def prod_pre_load(k):
        k("buffer_load_dword v14, v12, %s, s56 offen" % s(SRD_E0, 4))
        for p in range(1, 4):
            k("buffer_load_dword v%d, v12, %s, s%d offen" % (14 + p, s(SRD_E0, 4), 59 + p))

    def prod_pre_fin(k):
        k("v_add_f32 v14, v14, v15")
        k("v_add_f32 v16, v16, v17")
        k("v_add_f32 v14, v14, v16")
        k("v_cvt_pk_bf16_f32 v14, v14, v14")
        k("v_lshlrev_b32 v14, 16, v14")
        k("v_add_f32 v14, s58, v14")
        k("v_cvt_pk_bf16_f32 v14, v14, v14")
        k("v_lshlrev_b32 v14, 16, v14")
        k("ds_write_b32 v13, v14")
        k("s_waitcnt lgkmcnt(0)")

    def cons_pre(k):
        k("v_lshrrev_b32 v3, 5, v%d" % V_LANE)
        k("v_lshlrev_b32 v13, 4, v3")
        k("v_add_u32 v13, %d, v13" % MV)
        if which == 2:
            k("v_and_b32 v2, 31, v%d" % V_LANE)
            k("v_lshlrev_b32 v11, 11, v2")
            k("v_lshl_add_u32 v11, v3, 4, v11")
            k("s_lshl_b32 s60, s%d, 18" % S_BM)
            k("s_lshl_b32 s58, s%d, 16" % S_WAVE)
            k("s_add_u32 s60, s60, s58")
            k("s_lshl_b32 s58, s%d, 7" % S_BN)
            k("s_add_u32 s60, s60, s58")
            k("s_lshl_b32 s59, s%d, 4" % S_BM)
            k("s_add_u32 s59, s59, s%d" % S_BN)
            k("s_lshl_b32 s59, s59, 14")
            k("s_lshl_b32 s58, s%d, 11" % S_WAVE)
            k("s_add_u32 s57, s59, s58")
            k("s_add_u32 s55, s57, 8192")
            k("v_bfe_u32 v2, v%d, 4, 1" % V_LANE)
            k("v_lshlrev_b32 v12, 10, v2")
            k("v_lshl_add_u32 v12, v3, 8, v12")
            k("v_and_b32 v2, 15, v%d" % V_LANE)
            k("v_lshl_add_u32 v12, v2, 4, v12")
            ex_addr(k, 14)
            k("s_lshl_b32 s56, s%d, 2" % S_BM)
            k("s_add_u32 s56, s56, s%d" % S_WAVE)
            k("s_lshl_b32 s56, s56, 12")
            k("s_lshl_b32 s58, s%d, 8" % S_BN)
            k("s_add_u32 s58, s58, s56")
        else:
            k("v_and_b32 v2, 31, v%d" % V_LANE)
            k("v_lshlrev_b32 v12, 11, v2")
            k("v_lshl_add_u32 v12, v3, 4, v12")
            k("s_lshl_b32 s58, s%d, 18" % S_BM)
            k("s_lshl_b32 s56, s%d, 16" % S_WAVE)
            k("s_add_u32 s58, s58, s56")
            k("s_lshl_b32 s56, s%d, 7" % S_BN)
            k("s_add_u32 s58, s58, s56")

    def cons_loads(k):
        for q in range(4):
            k("buffer_load_dwordx4 %s, v11, %s, s60 offen offset:%d" % (v(XR + 4 * q, 4), s(SRD_E1, 4), q * 32))
        srd_in(k, SRD_E0, P_BSP, SZ["b_sp"])
        k("v_and_b32 v2, 15, v%d" % V_LANE)
        k("v_lshlrev_b32 v2, 1, v2")
        k("s_lshr_b32 s61, s56, 6")
        for i in range(2):
            k("buffer_load_ushort v%d, v2, %s, s61 offen offset:%d" % (BR + i, s(SRD_E0, 4), i * 32))

    def mv_read(k, R, vec):
        for jg in range(8):
            k("ds_read_b128 %s, v13 offset:%d" % (v(R + 4 * jg, 4), vec * 256 + jg * 32))

    def prework(k):
        mv_read(k, GA, 0 if which == 2 else 3)
        src = X1R
        if which == 2:
            src = XR
            k("s_waitcnt vmcnt(0)")
            swap8(k, XR)
            swap8(k, XR + 8)
            for i in range(2):
                k("v_lshlrev_b32 v%d, 16, v%d" % (BR + i, BR + i))
        for d in range(16):
            unpack_bf16(k, T2 + 2 * d, T2 + 2 * d + 1, src + d)

    def epilogue(k):
        TT = T2
        if which == 2:
            for r in (4, 5, 6, 7):
                k("v_mov_b32 v%d, 0" % r)
        for d in range(16):
            k("v_pk_fma_f32 %s, %s, %s, %s" % (v(ACC + 2 * d, 2), v(ACC + 2 * d, 2), v(GA + 2 * d, 2), v(TT + 2 * d, 2)))
        if which == 5:
            for j in range(2):
                P = FR + 8 * j
                pack16(k, P, ACC + 16 * j)
                swap8(k, P)
                for p in range(2):
                    k("buffer_store_dwordx4 %s, v12, %s, s58 offen offset:%d" % (v(P + 4 * p, 4), s(SRD_E2, 4), j * 64 + p * 32))
            return
        for d in range(16):
            k("v_pk_add_f32 v[4:5], v[4:5], %s" % v(ACC + 2 * d, 2))
            k("v_pk_fma_f32 v[6:7], %s, %s, v[6:7]" % (v(ACC + 2 * d, 2), v(ACC + 2 * d, 2)))
        ex_publish(k, 4, 14, SRD_E3, 58)
        mv_read(k, GA, 2)
        mv_read(k, TT, 1)
        for j in range(2):
            pack16(k, X1R + 8 * j, ACC + 16 * j)
        k.stamp(24)
        ex_collect(k, [FR + 16], 4, 14, SRD_E3, 56, 1024, 8)
        k.stamp(25)
        k("s_waitcnt lgkmcnt(0)")
        for j in range(2):
            for d in range(8 * j, 8 * j + 8):
                k("v_pk_fma_f32 %s, %s, v[4:5], v[4:5] %s" % (v(ACC + 2 * d, 2), v(ACC + 2 * d, 2), BCAST))
            for d in range(8 * j, 8 * j + 8):
                k("v_pk_fma_f32 %s, %s, %s, %s" % (v(ACC + 2 * d, 2), v(ACC + 2 * d, 2), v(GA + 2 * d, 2), v(TT + 2 * d, 2)))
            P = FR + 8 * j
            pack16(k, P, ACC + 16 * j)
            swap8(k, P)
            for p in range(2):
                k("buffer_store_dwordx4 %s, v12, %s, s%d offen offset:%d sc1" % (v(P + 4 * p, 4), s(SRD_E2, 4), 55 if j else 57, p * 512))
        k.stamp(26)
        signal(k, FL2, S_BM, S_BN, 5)

    c = dict(PD=PD, T=T, MT=1, NT=2, NS=NS, wgrid="4x1", srds_c=srds_c, srds_p=srds_p,
             map=lambda k: map_blocks(k, 2, 8, 2),
             x_ring=(0, 16384, NS), w_ring=(NS * 16384, 8192, NS), x_mode="dma_fm", w_mode="fm",
             w_wave_stride=0, reads_per_mfma=3,
             FRAG=FR, ACC=ACC, dma_setup=dma_setup, cons_pre=cons_pre, epilogue=epilogue)
    if which == 2:
        c.update(cons_loads=cons_loads, prod_pre_load=prod_pre_load, prod_pre_fin=prod_pre_fin, mid=(8, prework))
    else:
        c.update(cons_pre=lambda k: (cons_pre(k), prework(k), k("s_waitcnt lgkmcnt(0)")), poll=Poll(FL4, S_BM, 4 * 147, 3 * 147, lds=MV + 1024))
    return c


C0 = -2.0 * math.sqrt(2.0 / math.pi) * LOG2E
C1 = C0 * 0.044715


def gelu(k, A, n, TT):
    for e in range(0, n, 2):
        k("v_pk_mul_f32 %s, %s, %s" % (v(TT + e, 2), v(A + e, 2), v(A + e, 2)))
    for e in range(0, n, 2):
        k("v_pk_fma_f32 %s, %s, s[60:61], v[12:13]" % (v(TT + e, 2), v(TT + e, 2)))
    for e in range(0, n, 2):
        k("v_pk_mul_f32 %s, %s, %s" % (v(TT + e, 2), v(TT + e, 2), v(A + e, 2)))
    for e in range(n):
        k("v_exp_f32 v%d, v%d" % (TT + e, TT + e))
    for e in range(0, n, 2):
        k("v_pk_add_f32 %s, %s, 1.0 op_sel_hi:[1,0]" % (v(TT + e, 2), v(TT + e, 2)))
    for e in range(n):
        k("v_rcp_f32 v%d, v%d" % (TT + e, TT + e))
    for e in range(0, n, 2):
        k("v_pk_mul_f32 %s, %s, %s" % (v(A + e, 2), v(A + e, 2), v(TT + e, 2)))


def pack8(k, P, A):
    for d in range(4):
        k("v_cvt_pk_bf16_f32 v%d, v%d, v%d" % (P + d, A + 2 * d, A + 2 * d + 1))


def swap16(k, P):
    k("v_permlane16_swap_b32 v%d, v%d" % (P, P + 2))
    k("v_permlane16_swap_b32 v%d, v%d" % (P + 1, P + 3))


def cfg3():
    ACC = 80

    def srds_c(k):
        srd_ws(k, SRD_E2, P_WS, "Z2")
        srd_ws(k, SRD_E3, P_WS, "EX3")

    def srds_p(k):
        srd_ws_sub(k, SRD_X, P_WS, "H2", 81, 16 * 16384)
        srd_ws_sub(k, SRD_W, P_WS, "WINF", 80, 16 * 28672)

    def dma_setup(k):
        k("s_mul_i32 s50, s%d, 7168" % S_WAVE)
        k("v_lshl_add_u32 v8, v%d, 4, s50" % V_LANE)
        k("v_add_u32 v9, 4096, v8")
        k("s_mul_i32 s80, s%d, %d" % (S_BN, 16 * 28672))
        k("s_lshl_b32 s81, s%d, 18" % S_BM)
        lin_voff(k)
        w = Dma(SRD_W, [8, 8, 8, 8, 9, 9, 9], 28672, 69632, 28672, 82)
        w.start = 1
        return [dep(Dma(SRD_X, [5, 5, 5, 5], 16384, 0, 16384, 82)), w]

    def epilogue(k):
        Z2A = ACC + 56
        k("s_mov_b32 s60, %s" % fhex(C1))
        k("s_mov_b32 s61, %s" % fhex(C1))
        k("v_mov_b32 v12, %s" % fhex(C0))
        k("v_mov_b32 v13, %s" % fhex(C0))
        k("s_lshl_b32 s57, s%d, 2" % S_BM)
        k("s_add_u32 s57, s57, s%d" % S_WAVE)
        k("s_lshl_b32 s62, s57, 12")
        k("s_lshl_b32 s63, s%d, 8" % S_BN)
        k("s_add_u32 s63, s63, s62")
        ex_addr(k, 14)
        for r in range(4, 12):
            k("v_mov_b32 v%d, 0" % r)
        for (a, n) in ((0, 24), (24, 32)):
            gelu(k, Z2A + a, n, FR)
            for e in range(a, a + n, 2):
                S = 4 + 4 * ((e >> 2) & 1)
                k("v_pk_add_f32 %s, %s, %s" % (v(S, 2), v(S, 2), v(Z2A + e, 2)))
                k("v_pk_fma_f32 %s, %s, %s, %s" % (v(S + 2, 2), v(Z2A + e, 2), v(Z2A + e, 2), v(S + 2, 2)))
        for r in (4, 6, 8, 10):
            k("v_add_f32 v%d, v%d, v%d" % (r, r, r + 1))
        k("v_permlane16_swap_b32 v4, v8")
        k("v_permlane16_swap_b32 v6, v10")
        k("v_mov_b32 v5, v8")
        k("v_mov_b32 v7, v10")
        ex_publish(k, 4, 14, SRD_E3, 63)
        k.stamp(27)

        def z1(a, n):
            gelu(k, ACC + a, n, FR)
        z1(0, 32)
        k.stamp(28)
        k("v_and_b32 v2, 19, v%d" % V_LANE)
        k("v_lshlrev_b32 v15, 5, v2")
        k("v_bfe_u32 v2, v%d, 2, 1" % V_LANE)
        k("v_lshl_add_u32 v15, v2, 8, v15")
        k("v_bfe_u32 v2, v%d, 3, 1" % V_LANE)
        k("v_lshl_add_u32 v15, v2, 7, v15")
        k("v_lshrrev_b32 v2, 5, v%d" % V_LANE)
        k("v_lshl_add_u32 v15, v2, 4, v15")
        k("s_mul_i32 s56, s%d, 7168" % S_WAVE)
        k("s_add_u32 s56, s56, 65536")
        k("v_add_u32 v15, s56, v15")
        k("v_lshlrev_b32 v8, 9, v2")
        k("v_and_b32 v2, 31, v%d" % V_LANE)
        k("v_lshl_add_u32 v8, v2, 3, v8")
        k("v_add_u32 v8, s56, v8")
        k("v_lshlrev_b32 v9, 4, v%d" % V_LANE)
        k("s_lshl_b32 s56, s%d, 6" % S_BN)
        k("s_add_u32 s56, s56, s57")
        k("s_mul_i32 s56, s56, 7168")
        k("s_add_u32 s58, s56, 4096")
        ex_collect(k, [FR], 4, 14, SRD_E3, 62, 1792, 8)
        k("v_mov_b32 v6, v4")
        k("v_mov_b32 v7, v5")
        k("v_permlane16_swap_b32 v4, v6")
        k("v_permlane16_swap_b32 v5, v7")

        def back(ct):
            k("s_waitcnt lgkmcnt(%d)" % (3 if ct < 6 else 0))
            k("buffer_store_dwordx4 %s, v9, %s, s%d offen offset:%d sc1" %
              (v(Z2A + 8 * ct + 4, 4), s(SRD_E2, 4), 56 if ct < 4 else 58, (ct & 3) * 1024))
        for ct in range(7):
            A = Z2A + 8 * ct
            for e in range(0, 8, 2):
                G = v(4 + 2 * (e >> 2), 2)
                k("v_pk_fma_f32 %s, %s, %s, %s %s" % (v(A + e, 2), v(A + e, 2), G, G, BCAST))
            pack8(k, A, A)
            swap16(k, A)
            k("ds_write_b128 v15, %s offset:%d" % (v(A, 4), ct * 1024))
            for rd in range(2):
                k("ds_read_b64_tr_b16 %s, v8 offset:%d" % (v(A + 4 + 2 * rd, 2), ct * 1024 + rd * 256))
            if ct:
                back(ct - 1)
        back(6)
        k.stamp(29)
        signal(k, FL3, S_BN, S_BM, 11)
        k.stamp(12)
        z1(32, 24)

    return dict(T=16, NT=14, NS=3, srds_c=srds_c, srds_p=srds_p, m16=True,
                x_ring=(0, 16384, 3), w_ring=(69632, 28672, 3), w_start=1, w_mode="fm16", D=6, pause=2, wgroup=2,
                FRAG=FR, ACC=ACC, dma_setup=dma_setup, epilogue=epilogue, poll=Poll(FL2, S_BM, 1024, 0, lds=MV + 1024))


def cfg4(NS=4):
    WR = NS * 16384
    ACC = 136

    def srds_c(k):
        srd_ws(k, SRD_E2, P_WS, "U")

    def srds_p(k):
        srd_in(k, SRD_X, P_WSP, SZ["w_sp"])
        srd_ws_sub(k, SRD_W, P_WS, "Z2", 81, 32 * 14336)

    def dma_setup(k):
        k("s_mul_i32 s50, s%d, 3584" % S_WAVE)
        k("v_lshl_add_u32 v8, v%d, 4, s50" % V_LANE)
        k("s_lshl_b32 s80, s%d, 19" % S_BM)
        k("s_mul_i32 s81, s%d, %d" % (S_BN, 32 * 14336))
        k("s_mov_b32 s82, 0")
        k("v_lshrrev_b32 v2, 3, v%d" % V_LANE)
        k("s_lshl_b32 s50, s%d, 5" % S_WAVE)
        k("v_add_u32 v2, s50, v2")
        k("v_bfe_u32 v3, v2, 1, 3")
        k("v_and_b32 v4, 7, v%d" % V_LANE)
        k("v_xor_b32 v3, v3, v4")
        k("v_lshlrev_b32 v3, 4, v3")
        k("v_lshl_add_u32 v10, v2, 12, v3")
        k("v_xor_b32 v11, 64, v10")
        k("v_add_u32 v11, %d, v11" % (8 * 4096 - 1024))
        k("v_add_u32 v12, %d, v10" % (16 * 4096 - 2048))
        k("v_add_u32 v13, %d, v11" % (16 * 4096 - 2048))
        w = dep(Dma(SRD_W, [8, 8, 8, 8], 14336, WR, 14336, 82))
        w.half_last = True
        return [Dma(SRD_X, [10, 11, 12, 13], 128, 0, 16384, 80), w]

    def cons_pre(k):
        k("v_lshlrev_b32 v12, 4, v%d" % V_LANE)
        k("s_mul_i32 s61, s%d, %d" % (S_BM, 28 * 16384))
        k("s_mul_i32 s62, s%d, %d" % (S_BN, 7 * 4096))
        k("s_add_u32 s61, s61, s62")
        k("s_lshl_b32 s62, s%d, 10" % S_WAVE)
        k("s_add_u32 s61, s61, s62")

    def epilogue(k):
        for ct in range(7):
            A = ACC + 8 * ct
            P = FR + 4 * ct
            for e in range(0, 8, 2):
                k("v_pk_mul_f32 %s, %s, %s" % (v(A + e, 2), v(A + e, 2), v(Z1R + 8 * ct + e, 2)))
            pack8(k, P, A)
            swap16(k, P)
            k("s_add_u32 s62, s61, %d" % (ct * 4096))
            k("buffer_store_dwordx4 %s, v12, %s, s62 offen sc1" % (v(P, 4), s(SRD_E2, 4)))
        k.stamp(30)
        signal(k, FL4, S_BM, S_BN, 17)

    return dict(T=32, NT=7, NS=NS, srds_c=srds_c, srds_p=srds_p, m16=True,
                x_ring=(0, 16384, NS), w_ring=(WR, 14336, NS), w_mode="fm16", x_mode="dma_swz", D=6, pause=2,
                FRAG=FR, ACC=ACC, dma_setup=dma_setup, cons_pre=cons_pre, acc_init=lambda i: "v%d" % (BR + ((i >> 2) & 1)),
                epilogue=epilogue, poll=Poll(FL3, S_BN, 512, 0, lds=MV + 1024))


def gen_m2(name="m2_kernel", late=(0, 0, 0), ns=(4, 4, 5), o3={}, o4={}):
    k = Kern(name)
    END, PROD = k.uid("end"), k.uid("prod")
    phases = [cfg25(2, NS=ns[0]), cfg3(), cfg4(ns[1]), cfg25(5, NS=ns[2])]
    phases[1].update(o3)
    phases[2].update(o4)
    for c, l in zip(phases[1:], late):
        c["late_free"] = l
    k("s_cmp_ge_u32 s2, 256")
    k("s_cbranch_scc1 " + END)
    k.kidx = 2
    k.stamp_init()
    k("s_load_dwordx2 s[6:7], s[0:1], %d" % KA["ws"])
    k("s_load_dwordx2 s[4:5], s[0:1], %d" % KA["x"])
    k("s_load_dwordx4 s[8:11], s[0:1], %d" % KA["w_sp"])
    k("s_load_dwordx2 s[16:17], s[0:1], %d" % KA["out"])
    k("v_lshrrev_b32 v2, 6, v0")
    k("v_and_b32 v%d, 63, v0" % V_LANE)
    k("v_readfirstlane_b32 s%d, v2" % S_WAVE)
    map_blocks(k, 2, 8, 2)
    k("s_cmp_ge_u32 s%d, 4" % S_WAVE)
    k("s_cbranch_scc1 " + PROD)
    for role in ("c", "p"):
        if role == "p":
            k.label(PROD)
            k("s_sub_u32 s%d, s%d, 4" % (S_WAVE, S_WAVE))
        for n, c in enumerate(phases):
            if role == "c":
                if n == 0:
                    k("s_waitcnt lgkmcnt(0)")
                c["srds_c"](k)
                (cons_phase16 if c.get("m16") else cons_phase)(k, c, 6 * n)
            elif n == 0:
                g3 = prod_phase_gen(k, phases[1], 6)
                prod_phase(k, c, 0, first=True, tail_hook=lambda: next(g3))
            elif n == 1:
                next(g3, None)
            else:
                prod_phase(k, c, 6 * n)
        k.stamp_dump(31)
        if role == "c":
            k("s_endpgm")
    k.label(END)
    k("s_endpgm")
    txt, n = k.finish(vgprs=194, sgprs=96)
    return txt, "; @launch kernel=%s grid=(256,1,1) block=(512,1,1) lds=%d" % (name, MV + 1024 + 64)
```

```python
import sys
from k1 import gen_k1
from gemms import *
from m1 import gen_m1
from m2 import gen_m2

def gen_dbg():
    st = Kern.STAMPS
    Kern.STAMPS = False
    k = Kern("dbg_kernel")
    k("s_cmp_ge_u32 s2, 1")
    k("s_cbranch_scc1 L_dbg_end")
    k("s_load_dwordx4 s[4:7], s[0:1], 88")
    k("s_waitcnt lgkmcnt(0)")
    srd_in(k, 8, 4, 256)
    srd_in(k, 12, 6, 0x10000000)
    items = [(0, 0, 0), (0, 5, 0), (1, 0, 0), (1, 3, 0), (1, 14, 0), (1, 15, 0), (1, 21, 0), (1, 11, 0), (1, 13, 4), (1, 13, 5), (1, 31, 5),
             (1, 31, 6), (2, 0, 0), (2, 3, 0), (2, 15, 0), (2, 31, 0)]
    k("v_mov_b32 v1, 0")
    for n, (kid, st_, w) in enumerate(items):
        k("s_mov_b32 s16, %d" % (0x8000000 + kid * 0x400000 + 136 * 4096 + w * 256 + (32 + st_) * 4))
        k("v_writelane_b32 v1, s16, %d" % n)
    k("buffer_load_dword v2, v1, s[12:15], 0 offen")
    k("v_lshlrev_b32 v3, 2, v0")
    k("s_waitcnt vmcnt(0)")
    k("v_readlane_b32 s16, v2, 0")
    k("v_subrev_u32 v2, s16, v2")
    k("buffer_store_dword v2, v3, s[8:11], 0 offen")
    k.label("L_dbg_end")
    k("s_endpgm")
    r = k.finish(vgprs=8, sgprs=32)[0], "; @launch kernel=dbg_kernel grid=(1,1,1) block=(64,1,1) lds=0"
    Kern.STAMPS = st
    return r


def build(path, **opt):
    Kern.STAMPS = opt.get("stamps", False)
    for key in DBG:
        DBG[key] = opt.get(key, False)
    import gemm, gemms
    ov = opt.get("ov", {})
    gemms.gemm = lambda name, cfg: gemm.gemm(name, dict(cfg, **ov))
    g = opt.get("g", {})
    import attn
    attn.P_.clear()
    attn.P_.update(g.get("att", {}))
    parts = [gen_k1(**g.get(0, {})), gen_m1(force_slow=opt.get("force_slow", False), **g.get(1, {})), gen_m2(**g.get("m", {}))]
    if opt.get("dbgk"):
        parts.append(gen_dbg())
    ref = open("adaLN_cond__softmax_full_mha__mixer_gmlp__prompt.s.ref").read().split("\n")
    head = [l for l in ref if l.startswith(";") and "@launch" not in l and "Override" not in l and "grid=ceil" not in l]
    txt = "\n".join(head) + "\n" + "\n".join(p[1] for p in parts) + "\n"
    txt += ".amdgcn_target \"amdgcn-amd-amdhsa--gfx950\"\n" + "\n".join(p[0] for p in parts)
    open(path, "w").write(txt)

if __name__ == "__main__":
    build("adaLN_cond__softmax_full_mha__mixer_gmlp__prompt.s")
    build("slow.s", force_slow=True)
    build("stamp.s", stamps=True)
    if len(sys.argv) > 1 and sys.argv[1] == "m":
        build("stamp_a.s", stamps=True, g={"m": dict(ns=(4, 4, 4))})
        build("stamp_b.s", stamps=True, g={"m": dict(ns=(6, 3, 6))})
    if len(sys.argv) > 1 and sys.argv[1] == "x":
        build("stamp_a.s", stamps=True, fine=True)
    if len(sys.argv) > 1 and sys.argv[1] == "y":
        build("stamp_a.s", stamps=True, no_prod=True)
        build("stamp_b.s", stamps=True, l2hit=True)
        build("stamp_c.s", stamps=True, g={"m": dict(o4=dict(wgroup=2))})
    if len(sys.argv) > 1 and sys.argv[1] == "t":
        build("a.s", g={0: dict(tlb=21)})
        build("b.s", g={0: dict(tlb=18)})
    if len(sys.argv) > 1 and sys.argv[1] == "d":
        build("a.s", stamps=True, dbgk=True)
    if len(sys.argv) > 1 and sys.argv[1] == "a":
        build("a.s", g={"att": dict(touch=1, gate=5)})
        build("b.s", g={"att": dict(gate=2)})
        build("c.s", g={"att": dict(gate=5)})
        build("d.s", g={"att": dict(gate=5, infl=4)})
```

```python
import re

TRANS = ("v_exp_f32", "v_log_f32", "v_rcp_f32", "v_rsq_f32", "v_sqrt_f32", "v_sin_f32", "v_cos_f32",
         "v_rcp_iflag_f32", "v_exp_f16", "v_rcp_f16")

_reg_re = re.compile(r"^(-|abs\()?([vsa])(?:(\d+)|\[(\d+):(\d+)\])\)?$")


def regs_of(op):
    op = op.strip()
    if op.startswith("|") and op.endswith("|"):
        op = op[1:-1]
    if op.startswith("-|") and op.endswith("|"):
        op = op[2:-1]
    if op in ("vcc",):
        return {("s", 106), ("s", 107)}
    if op == "vcc_lo":
        return {("s", 106)}
    if op == "vcc_hi":
        return {("s", 107)}
    if op == "exec":
        return {("s", 126), ("s", 127)}
    if op == "exec_lo":
        return {("s", 126)}
    if op == "exec_hi":
        return {("s", 127)}
    if op == "m0":
        return {("s", 124)}
    m = _reg_re.match(op)
    if not m:
        return set()
    k = m.group(2)
    if m.group(3) is not None:
        return {(k, int(m.group(3)))}
    return {(k, i) for i in range(int(m.group(4)), int(m.group(5)) + 1)}


def split_ops(s):
    out, depth, cur = [], 0, ""
    for ch in s:
        if ch in "[(":
            depth += 1
        if ch in "])":
            depth -= 1
        if ch == "," and depth == 0:
            out.append(cur.strip())
            cur = ""
        else:
            cur += ch
    if cur.strip():
        out.append(cur.strip())
    return out


VCC = {("s", 106), ("s", 107)}
EXEC = {("s", 126), ("s", 127)}
M0 = {("s", 124)}


class Ins:
    def __init__(self, text):
        self.text = text
        body = text.split(";")[0].strip()
        self.is_label = body.endswith(":")
        self.is_dir = body.startswith(".") and not self.is_label
        self.empty = body == ""
        self.mn = ""
        self.defs, self.uses = set(), set()
        self.cls = "none"
        self.target = None
        self.passes = 0
        self.srcc = set()
        self.srcab = set()
        self.states = 1
        self.wide_store_data = set()
        self.lane_sel = set()
        self.dpp = False
        self.lds_dma = False
        if self.is_label:
            self.label = body[:-1]
            return
        if self.is_dir or self.empty:
            return
        parts = body.split(None, 1)
        mn = parts[0]
        self.mn = mn
        rest = parts[1] if len(parts) > 1 else ""
        ops = split_ops(rest)
        mods = ""
        if ops:
            last = ops[-1].split(None, 1)
            ops[-1] = last[0]
            mods = last[1] if len(last) > 1 else ""
        self.ops, self.mods = ops, mods
        R = [regs_of(o) for o in ops]
        allr = lambda lst: set().union(*lst) if lst else set()
        base = re.sub(r"_(e32|e64|dpp|sdwa)$", "", mn)
        if mn.startswith("v_mfma"):
            self.cls = "mfma"
            self.passes = 8 if "32x32x16" in mn else (4 if "16x16x32" in mn else None)
            assert self.passes, mn
            self.defs = R[0]
            self.srcab = R[1] | R[2]
            self.srcc = R[3]
            self.uses = self.srcab | self.srcc | EXEC
        elif mn.startswith("v_"):
            self.cls = "trans" if base in TRANS else "valu"
            self.dpp = "_dpp" in mn or "quad_perm" in mods or "row_" in mods
            self.sdwa = "_sdwa" in mn
            if base.startswith("v_cmpx"):
                self.defs = R[0] | EXEC
                self.uses = allr(R[1:])
            elif base.startswith("v_cmp"):
                self.defs = R[0]
                self.uses = allr(R[1:])
            elif base in ("v_readfirstlane_b32",):
                self.defs = R[0]
                self.uses = R[1]
            elif base == "v_readlane_b32":
                self.defs = R[0]
                self.uses = R[1] | R[2]
                self.lane_sel = R[2]
            elif base == "v_writelane_b32":
                self.defs = R[0]
                self.uses = R[0] | R[1] | R[2]
                self.lane_sel = R[2]
            elif base.startswith("v_permlane") and "swap" in base:
                self.defs = R[0] | R[1]
                self.uses = R[0] | R[1]
            elif base in ("v_add_co_u32", "v_sub_co_u32", "v_subrev_co_u32", "v_addc_co_u32", "v_subb_co_u32",
                          "v_mad_u64_u32", "v_div_scale_f32"):
                self.defs = R[0] | R[1]
                self.uses = allr(R[2:])
            elif base in ("v_fmac_f32", "v_dot2c_f32_bf16", "v_pk_fmac_f16", "v_fmac_f16"):
                self.defs = R[0]
                self.uses = allr(R)
            elif base == "v_nop":
                pass
            else:
                self.defs = R[0]
                self.uses = allr(R[1:])
                if self.dpp or self.sdwa:
                    self.uses |= R[0]
            self.uses |= EXEC
        elif mn.startswith("buffer_") or mn.startswith("global_"):
            self.cls = "vmem"
            is_lds = re.search(r"\blds\b", mods) is not None or "load_lds" in mn
            self.lds_dma = is_lds
            if mn.startswith("buffer_wbl2") or mn.startswith("buffer_inv"):
                pass
            elif "load" in mn and not is_lds:
                self.defs = R[0]
                self.uses = allr(R[1:])
            else:
                self.uses = allr(R)
                if "atomic" in mn and re.search(r"\bsc0\b", mods):
                    self.defs = R[0]
                if "store" in mn and ("x3" in mn or "x4" in mn):
                    self.wide_store_data = R[0] if mn.startswith("buffer_") else R[1]
            if is_lds:
                self.uses |= M0
            self.uses |= EXEC
        elif mn.startswith("ds_"):
            self.cls = "ds"
            if "read" in mn or "permute" in mn or "swizzle" in mn or "_rtn" in mn:
                self.defs = R[0]
                self.uses = allr(R[1:])
            else:
                self.uses = allr(R)
            self.uses |= EXEC
        elif mn.startswith("s_"):
            self.cls = "salu"
            if mn == "s_nop":
                self.states = int(ops[0], 0) + 1
                self.cls = "nop"
            elif mn in ("s_branch",) or mn.startswith("s_cbranch"):
                self.cls = "branch"
                self.target = ops[0]
            elif mn in ("s_waitcnt", "s_barrier", "s_endpgm", "s_setprio", "s_sleep"):
                self.cls = "misc"
            elif mn.startswith("s_cmp") or mn.startswith("s_bitcmp"):
                self.uses = allr(R)
            elif mn.startswith("s_load") or mn.startswith("s_buffer_load") or mn.startswith("s_mem"):
                self.cls = "smem"
                self.defs = R[0]
                self.uses = allr(R[1:])
            elif "saveexec" in mn:
                self.defs = R[0] | EXEC
                self.uses = allr(R[1:]) | EXEC
            else:
                self.defs = R[0] if R else set()
                self.uses = allr(R[1:])
                if mn in ("s_addk_i32", "s_mulk_i32"):
                    self.uses |= R[0]
        else:
            raise ValueError("unknown instruction: " + text)


def _vregs(s):
    return {r for r in s if r[0] in "va"}


def _sregs(s):
    return {r for r in s if r[0] == "s"}


def need(p, c):
    n = 0
    pv = p.cls in ("valu", "trans")
    cv = c.cls in ("valu", "trans")
    if pv:
        pd_v, pd_s = _vregs(p.defs), _sregs(p.defs)
        if c.cls == "mfma" and pd_v & (c.srcab | c.srcc):
            n = max(n, 2)
        if c.cls == "mfma" and pd_s & EXEC:
            n = max(n, 4)
        if c.cls == "vmem" and (pd_s - EXEC) & c.uses:
            n = max(n, 5)
        if cv and (pd_s - EXEC) & c.uses:
            n = max(n, 2)
        if cv and pd_s & c.lane_sel:
            n = max(n, 4)
        if cv and c.mn.startswith(("v_readlane", "v_readfirstlane")) and pd_v & c.uses:
            n = max(n, 1)
        if cv and c.mn.startswith(("v_readlane", "v_readfirstlane", "v_writelane", "v_permlane")) and pd_s & EXEC:
            n = max(n, 4)
        if p.cls == "trans" and c.cls == "valu" and pd_v & c.uses:
            n = max(n, 1)
        if p.cls == "trans" and c.cls in ("vmem", "ds") and pd_v & c.uses:
            n = max(n, 1)
        if cv and c.mn.startswith("v_permlane") and pd_v & c.uses:
            n = max(n, 2)
        if cv and c.dpp and pd_v & c.uses:
            n = max(n, 2)
        if cv and c.dpp and pd_s & EXEC:
            n = max(n, 5)
        if cv and getattr(p, "sdwa", False) and pd_v & (c.uses | c.defs):
            n = max(n, 1)
        if c.cls in ("salu", "smem") and (pd_s - EXEC) & c.uses:
            n = max(n, 1)
    if p.cls == "mfma":
        big = 12 if p.passes == 8 else 8
        if c.cls == "mfma":
            if p.defs & c.srcab:
                n = max(n, big)
            if p.defs & c.srcc:
                if not (p.defs == c.srcc and p.passes == c.passes):
                    n = max(n, p.passes + 2)
            if p.defs & c.defs and not (p.defs == c.defs and p.passes == c.passes):
                n = max(n, p.passes + 2)
            if p.defs & c.defs and not (p.defs & c.srcc):
                n = max(n, p.passes + 2)
        elif cv or c.cls in ("vmem", "ds"):
            if p.defs & (c.uses | c.defs):
                n = max(n, big)
        if (cv or c.cls in ("vmem", "ds")) and p.srcc & c.defs:
            n = max(n, 7 if p.passes == 8 else 3)
    if p.cls == "salu" and p.defs & M0 and (c.lds_dma or "addtid" in c.mn):
        n = max(n, 1)
    if p.wide_store_data and p.wide_store_data & c.defs:
        n = max(n, 2 if cv else 1)
    return n


MAXD = 13


def pad_hazards(lines):
    ins = [Ins(l) for l in lines]
    changed = True
    total = 0
    while changed:
        changed = False
        labels = {x.label: i for i, x in enumerate(ins) if x.is_label}
        br = {}
        for i, x in enumerate(ins):
            if x.cls == "branch":
                br.setdefault(labels[x.target], []).append(i)
        out = []
        for i, c in enumerate(ins):
            if c.cls in ("none", "nop", "branch", "misc"):
                out.append(c)
                continue
            short = 0
            stack = [(i - 1, 0)]
            seen = set()
            while stack:
                j, d = stack.pop()
                while j >= 0 and d < MAXD:
                    if (j, d) in seen:
                        break
                    seen.add((j, d))
                    p = ins[j]
                    if p.is_label:
                        for b in br.get(j, []):
                            stack.append((b, d))
                        j -= 1
                        continue
                    if p.is_dir or p.empty:
                        j -= 1
                        continue
                    if p.mn in ("s_branch", "s_endpgm") and not _is_edge(ins, j, br, seen, i):
                        pass
                    k = need(p, c)
                    if k > d:
                        short = max(short, k - d)
                    d += p.states
                    j -= 1
            if short:
                out.append(Ins("    s_nop %d" % (short - 1)))
                total += 1
                changed = True
            out.append(c)
        ins = out
    return [x.text for x in ins], total


def _is_edge(ins, j, br, seen, i):
    return True


class Kern:
    def __init__(self, name):
        self.name = name
        self.lines = []
        self._uid = 0

    def __call__(self, text):
        for l in text.split("\n"):
            l = l.strip()
            if l:
                self.lines.append("    " + l if not l.endswith(":") else l)

    def label(self, name):
        self.lines.append(name + ":")

    def uid(self, base):
        self._uid += 1
        return "L_%s_%s_%d" % (self.name[:6], base, self._uid)

    def comment(self, t):
        self.lines.append("    ; " + t)

    STAMPS = False
    STAMP_V = 250
    kidx = 0

    def stamp(self, i):
        if not Kern.STAMPS:
            return
        self("s_memtime s[88:89]")
        self("s_memrealtime s[90:91]")
        self("s_waitcnt lgkmcnt(0)")
        self("v_writelane_b32 v%d, s88, %d" % (self.STAMP_V, i))
        self("v_writelane_b32 v%d, s90, %d" % (self.STAMP_V, 32 + i))

    def stamp_dyn(self, sreg, base):
        if not Kern.STAMPS:
            return
        self("s_memtime s[88:89]")
        self("s_memrealtime s[90:91]")
        self("s_add_u32 s84, s%d, %d" % (sreg, base))
        self("s_add_u32 s85, s%d, %d" % (sreg, base + 32))
        self("s_mov_b32 s86, m0")
        self("s_waitcnt lgkmcnt(0)")
        self("s_mov_b32 m0, s84")
        self("v_writelane_b32 v%d, s88, m0" % self.STAMP_V)
        self("s_mov_b32 m0, s85")
        self("v_writelane_b32 v%d, s90, m0" % self.STAMP_V)
        self("s_mov_b32 m0, s86")

    def stamp_next(self, kidx):
        if not Kern.STAMPS:
            return
        old = self.kidx
        self.kidx = 1
        self.stamp_dump(31)
        self("s_waitcnt vmcnt(0)")
        self("v_lshrrev_b32 v%d, 2, v%d" % (self.STAMP_V + 1, self.STAMP_V + 1))
        self("v_mov_b32 v%d, 0" % self.STAMP_V)
        self.stamp(0)
        self.kidx = kidx

    def stamp_init(self):
        if not Kern.STAMPS:
            return
        self("v_mov_b32 v%d, 0" % self.STAMP_V)
        self("v_mov_b32 v%d, v0" % (self.STAMP_V + 1))
        self("s_load_dwordx2 s[92:93], s[0:1], 96")
        self.stamp(0)

    def stamp_dump(self, i):
        if not Kern.STAMPS:
            return
        self("s_waitcnt vmcnt(0)")
        self.stamp(i)
        self("s_mov_b64 exec, -1")
        self("s_add_u32 s84, s92, %d" % (0x8000000 + self.kidx * 0x400000))
        self("s_addc_u32 s85, s93, 0")
        self("s_mov_b32 s86, 0x400000")
        self("s_mov_b32 s87, 0x20000")
        self("s_lshl_b32 s88, s2, 12")
        self("v_lshlrev_b32 v%d, 2, v%d" % (self.STAMP_V + 1, self.STAMP_V + 1))
        self("buffer_store_dword v%d, v%d, s[84:87], s88 offen" % (self.STAMP_V, self.STAMP_V + 1))

    def finish(self, vgprs, sgprs=96, agprs=0, wg_y=False):
        if Kern.STAMPS:
            sv = vgprs
            self.lines = [l.replace("v250", "v%d" % sv).replace("v251", "v%d" % (sv + 1)) for l in self.lines]
            vgprs, sgprs = vgprs + 2, max(96, sgprs)
        lines, n = pad_hazards(self.lines)
        acc = (vgprs + 3) // 4 * 4
        nfv = acc + agprs if agprs else vgprs
        hdr = [".text", ".globl %s" % self.name, ".p2align 8", ".type %s,@function" % self.name, self.name + ":"]
        desc = [".section .rodata,\"a\"", ".p2align 6", ".amdhsa_kernel %s" % self.name,
                "  .amdhsa_next_free_vgpr %d" % nfv,
                "  .amdhsa_next_free_sgpr %d" % sgprs,
                "  .amdhsa_accum_offset %d" % acc,
                "  .amdhsa_group_segment_fixed_size 0",
                "  .amdhsa_kernarg_size 104",
                "  .amdhsa_user_sgpr_count 2",
                "  .amdhsa_user_sgpr_kernarg_segment_ptr 1",
                "  .amdhsa_system_sgpr_workgroup_id_x 1"]
        if wg_y:
            desc.append("  .amdhsa_system_sgpr_workgroup_id_y 1")
        desc += ["  .amdhsa_float_denorm_mode_32 3", "  .amdhsa_float_denorm_mode_16_64 3",
                 ".end_amdhsa_kernel"]
        for l in lines:
            x = Ins(l)
            for (k, idx) in x.defs | x.uses:
                if k == "v":
                    assert idx < vgprs, (self.name, l, vgprs)
                if k == "a":
                    assert idx < agprs, (self.name, l, agprs)
                if k == "s" and idx < 102:
                    assert idx < sgprs, (self.name, l, sgprs)
        return "\n".join(hdr + lines + ["L_%s_codeend:" % self.name] + desc) + "\n", n


def v(i, n=1):
    return "v%d" % i if n == 1 else "v[%d:%d]" % (i, i + n - 1)


def a(i, n=1):
    return "a%d" % i if n == 1 else "a[%d:%d]" % (i, i + n - 1)


def s(i, n=1):
    return "s%d" % i if n == 1 else "s[%d:%d]" % (i, i + n - 1)
```

```python
from common import *
from gemms import pack16, swap8
from sync import FL1

OOB = 0x7f000000


NSL = 8
STG = NSL * 16384
SY = STG + 24576
ATT_LDS = SY + 64
SIG_TILE = 2
O_MODS = " sc1"
P_ = {}
CODE_NEXT = ("L_mm_second", "L_mm_kernel_codeend")


QF = 8


def emit_attn(k, COMP, HELP, poll, force_slow=False, sb=8, after_comp=None, after_help=None):
    LANE, VOFF, VCUR, VNXT, VBASE = 1, 4, 5, 6, 4
    NM, S, P, KA_, KB_, VA_, VB_, O, L, SEL = (24, 40), (56, 72), 88, 96, 100, 104, 108, (112, 128), (144, 148), 152
    SRD, SRDO = 24, 28
    S_WAVE, S_HEAD, S_RT, S_KB, S_ST, S_CUR = 3, 21, 23, 43, 44, 45
    F2 = 164 - KA_

    def ids():
        k("v_lshlrev_b32 v%d, 4, v%d" % (VOFF, LANE))
        k("s_lshl_b32 s%d, s%d, 17" % (S_KB, S_HEAD))
        srd_ws(k, SRD, 6, "QKV")
    k.label(COMP)
    if P_.get("prio", 0):
        k("s_setprio 3")
    ids()
    srd_ws(k, SRDO, 6, "O")
    srd_ws(k, 32, 6, "FL")
    k("s_lshl_b32 s46, s%d, 5" % S_HEAD)
    k("s_lshl_b32 s47, s20, 2")
    k("s_add_u32 s%d, s47, s19" % S_RT)
    k("s_add_u32 s46, s46, s%d" % S_RT)
    k("s_lshl_b32 s46, s46, 7")
    k("s_add_u32 s46, s46, %d" % FL1)
    k("v_mov_b32 v156, 0")
    k("v_mov_b32 v157, 1.0")
    k("v_mov_b32 v158, %d" % SY)
    k("s_lshl_b32 s47, s19, 2")
    k("s_add_u32 s47, s47, %d" % (SY + 16))
    k("v_mov_b32 v159, s47")
    k("v_mov_b32 v160, 0")
    k("s_mov_b32 s47, 1")
    k("v_bfe_u32 v2, v%d, 2, 1" % LANE)
    k("v_bfe_u32 v3, v%d, 4, 1" % LANE)
    k("v_cmp_eq_u32 vcc, v2, v3")
    k("v_mov_b32 v2, 0x3f803f80")
    k("v_cndmask_b32 v%d, 0, v2, vcc" % SEL)
    for e in range(1, 4):
        k("v_mov_b32 v%d, v%d" % (SEL + e, SEL))
    k("v_mov_b32 v%d, v%d" % (VCUR, VBASE))
    k("v_add_u32 v%d, 16384, v%d" % (VNXT, VBASE))
    k("s_mov_b32 s%d, 16384" % S_CUR)
    k.stamp(sb + 1)
    k("s_waitcnt lgkmcnt(0)")
    k("s_barrier")
    k.stamp(sb + 2)
    k("ds_read_b128 %s, v%d" % (v(KA_, 4), VOFF))
    k("ds_read_b128 %s, v%d offset:1024" % (v(KB_, 4), VOFF))
    k("ds_read_b128 %s, v%d offset:8192" % (v(VA_, 4), VOFF))
    k("ds_read_b128 %s, v%d offset:2048" % (v(KA_ + F2, 4), VOFF))
    k("ds_read_b128 %s, v%d offset:9216" % (v(VB_, 4), VOFF))
    k("ds_read_b128 %s, v%d offset:3072" % (v(KB_ + F2, 4), VOFF))
    k("ds_read_b128 %s, v%d offset:10240" % (v(VA_ + F2, 4), VOFF))

    def zero_state(q):
        for e in range(16):
            k("v_mov_b32 v%d, 0" % (O[q] + e))
        for e in range(4):
            k("v_mov_b32 v%d, 0" % (L[q] + e))
    zero_state(0)
    zero_state(1)
    for e in range(4):
        k("v_mov_b32 v%d, 0" % (VB_ + F2 + e))
        k("v_mov_b32 v%d, 0" % (P + 4 + e))
    k("s_waitcnt lgkmcnt(0)")

    def qk(q, c, dst=None, f=0):
        d = S[q] if dst is None else dst
        return ("v_mfma_f32_32x32x16_bf16 %s, %s, %s, %s" % (v(d, 16), v(KA_ + f, 4), v(QF + 8 * q, 4), c),
                "v_mfma_f32_32x32x16_bf16 %s, %s, %s, %s" % (v(d, 16), v(KB_ + f, 4), v(QF + 8 * q + 4, 4), v(d, 16)))

    def max16(dst, src, first):
        if first:
            k("v_max3_f32 v%d, v%d, v%d, v%d" % (dst, src, src + 1, src + 2))
            k("v_max_f32 v%d, v%d, v%d" % (dst, dst, src + 3))
            r = range(4, 16, 2)
        else:
            r = range(0, 16, 2)
        for e in r:
            k("v_max3_f32 v%d, v%d, v%d, v%d" % (dst, dst, src + e, src + e + 1))

    def set_nm(q, mreg):
        k("v_mov_b32 v3, v%d" % mreg)
        k("v_permlane32_swap_b32 v%d, v3" % mreg)
        k("v_max_f32 v%d, v%d, v3" % (mreg, mreg))
        for e in range(16):
            k("v_sub_f32 v%d, 0, v%d" % (NM[q] + e, mreg))

    for q in range(2):
        for m in qk(q, "0"):
            k(m)
    for q in range(2):
        max16(2, S[q], True)
        set_nm(q, 2)
        if q == 0:
            for m in qk(0, v(NM[0], 16)):
                k(m)
    k("s_mov_b32 s%d, 0" % S_ST)

    def ex(Sx, g, lo=0, hi=4):
        for e in range(lo, hi):
            k("v_exp_f32 v%d, v%d" % (Sx + 4 * g + e, Sx + 4 * g + e))

    def cv(Sx, g):
        for e in range(2):
            k("v_cvt_pk_bf16_f32 v%d, v%d, v%d" % (P + 2 * g + e, Sx + 4 * g + 2 * e, Sx + 4 * g + 2 * e + 1))

    def pvm(q, vf, pf):
        k("v_mfma_f32_32x32x16_bf16 %s, %s, %s, %s" % (v(O[q], 16), v(vf, 4), v(pf, 4), v(O[q], 16)))

    def lsum(q, pf):
        k("v_mfma_f32_16x16x32_bf16 %s, %s, %s, %s" % (v(L[q], 4), v(SEL, 4), v(pf, 4), v(L[q], 4)))

    def addr(tt):
        return (VCUR, tt * 2048) if tt < 4 else (VNXT, (tt - 4) * 2048)

    def opt(x):
        if x:
            k(x)

    LOOP, SPIN, BACK = k.uid("loop"), k.uid("spin"), k.uid("back")
    k.label(LOOP)
    for tt in range(4):
        if tt == SIG_TILE:
            NS_ = k.uid("nosig")
            k("s_cmp_lg_u32 s%d, 0" % S_ST)
            k("s_cbranch_scc1 " + NS_)
            k("s_waitcnt vmcnt(0)")
            k("s_mov_b64 exec, 1")
            k("buffer_store_dword v157, v156, s[32:35], s46 offen sc1")
            k("s_mov_b64 exec, -1")
            k("ds_write_b32 v158, v157 offset:8")
            k.label(NS_)
        if tt == 2:
            k("s_cmp_le_u32 s42, s47")
            k("s_cbranch_scc1 " + SPIN)
            k.label(BACK)
        r1, o1 = addr(tt + 1)
        r2, o2 = addr(tt + 2)
        fc, fo = F2 * (tt & 1), F2 * (1 - (tt & 1))
        for q in range(2):
            Sc = S[q]
            m1, m3 = qk(1 - q, v(NM[1 - q], 16), None, fc if q == 0 else fo)
            rKa = rVb = rKb = rVa = w1 = w4 = None
            if q == 0:
                rKa = "ds_read_b128 %s, v%d offset:%d" % (v(KA_ + fc, 4), r2, o2)
                rVb = "ds_read_b128 %s, v%d offset:%d" % (v(VB_ + fo, 4), r1, 8192 + o1 + 1024)
                rKb = "ds_read_b128 %s, v%d offset:%d" % (v(KB_ + fc, 4), r2, o2 + 1024)
            else:
                rVa = "ds_read_b128 %s, v%d offset:%d" % (v(VA_ + fc, 4), r2, 8192 + o2)
                w1 = "s_waitcnt lgkmcnt(3)"
                if tt == 0:
                    rKa = "ds_read_b32 v161, v158"
                if tt == 1:
                    rKb = "v_readfirstlane_b32 s42, v161"
            vb = VB_ + (fo if q == 0 else fc)
            opt(w1); k(m1); opt(rKa); ex(Sc, 0)
            pvm(1 - q, vb, P + 4); opt(rVb); cv(Sc, 0); ex(Sc, 1, 0, 3); lsum(1 - q, P + 4); ex(Sc, 1, 3, 4); ex(Sc, 2, 0, 1)
            k(m3); opt(rKb); cv(Sc, 1); ex(Sc, 2, 1, 4)
            pvm(q, VA_ + fc, P); opt(rVa); ex(Sc, 3, 0, 1); cv(Sc, 2); ex(Sc, 3, 1, 3); lsum(q, P); ex(Sc, 3, 3, 4); cv(Sc, 3)
            if tt == 0 and q == 0:
                k("s_add_u32 s%d, s%d, 16384" % (S_CUR, S_CUR))
            if tt == 0 and q == 1:
                k("s_and_b32 s%d, s%d, %d" % (S_CUR, S_CUR, NSL * 16384 - 1))
    k("v_add_u32 v160, 1, v160")
    k("v_mov_b32 v%d, v%d" % (VCUR, VNXT))
    k("v_add_u32 v%d, s%d, v%d" % (VNXT, S_CUR, VBASE))
    k("ds_write_b32 v159, v160")
    k.stamp_dyn(S_ST, 14)
    k("s_add_u32 s47, s47, 1")
    k("s_add_u32 s%d, s%d, 1" % (S_ST, S_ST))
    k("s_cmp_lt_u32 s%d, 16" % S_ST)
    k("s_cbranch_scc1 " + LOOP)
    k("s_waitcnt lgkmcnt(0)")
    k.stamp(sb + 3)
    pvm(1, VB_ + F2, P + 4)
    lsum(1, P + 4)
    k("s_lshr_b32 s10, s%d, 1" % S_RT)
    k("s_lshl_b32 s10, s10, 18")
    k("s_lshl_b32 s11, s%d, 13" % S_HEAD)
    k("s_add_u32 s10, s10, s11")
    k("s_and_b32 s11, s%d, 1" % S_RT)
    k("s_lshl_b32 s11, s11, 11")
    k("s_add_u32 s10, s10, s11")
    k("s_add_u32 s11, s10, 4096")
    SLOW = [k.uid("slow"), k.uid("slow")]
    EPI = [k.uid("epi"), k.uid("epi")]
    for q in range(2):
        k("v_mov_b32 v2, v%d" % L[q])
        k("v_mov_b32 v7, 0")
        for e in range(0, 16, 2):
            k("v_fma_f32 v2, v%d, 0, v2" % (O[q] + e))
            k("v_fma_f32 v7, v%d, 0, v7" % (O[q] + e + 1))
        k("v_add_f32 v2, v2, v7")
        k("v_mov_b32 v3, %s" % fhex(2.0 ** 100 if not force_slow else -1.0))
        k("v_cmp_nlt_f32 vcc, v2, v3")
        k("s_cbranch_vccnz " + SLOW[q])
        k.label(EPI[q])
        k("v_rcp_f32 v2, v%d" % L[q])
        k("v_mov_b32 v3, v2")
        for e in range(0, 16, 2):
            k("v_pk_mul_f32 %s, %s, v[2:3]" % (v(O[q] + e, 2), v(O[q] + e, 2)))
        PP = S[0] + 8 * q
        pack16(k, PP, O[q])
        swap8(k, PP)
        for p in range(2):
            k("buffer_store_dwordx4 %s, v%d, %s, s%d offen offset:%d%s" % (v(PP + 4 * p, 4), VOFF, s(SRDO, 4), 10 + p, q * 1024, O_MODS))
    k.stamp(sb + 4)
    if after_comp:
        after_comp(k)
    else:
        k.stamp_dump(31)
        k("s_endpgm")

    k.label(SPIN)
    k("s_mov_b32 s41, 0")
    SP2 = k.uid("spin")
    k.label(SP2)
    k("ds_read_b32 v161, v158")
    k("s_add_u32 s41, s41, 1")
    k("s_waitcnt lgkmcnt(0)")
    k("v_readfirstlane_b32 s42, v161")
    k("s_cmp_gt_u32 s42, s47")
    k("s_cbranch_scc1 " + BACK)
    k("s_sleep 1")
    k("s_cmp_lt_u32 s41, 0x1000000")
    k("s_cbranch_scc1 " + SP2)
    k("s_branch " + BACK)

    for q in range(2):
        k.label(SLOW[q])
        k("s_waitcnt vmcnt(0)")
        LA, LB = k.uid("slowa"), k.uid("slowb")
        SS = S[1]
        k("s_add_u32 s16, s%d, 0x400000" % S_KB)
        k("s_mov_b32 s%d, 0" % S_ST)
        k("v_mov_b32 v2, 0xff800000")
        k.label(LA)
        k("buffer_load_dwordx4 %s, v%d, %s, s16 offen sc1" % (v(KA_, 4), VOFF, s(SRD, 4)))
        k("buffer_load_dwordx4 %s, v%d, %s, s16 offen offset:1024 sc1" % (v(KB_, 4), VOFF, s(SRD, 4)))
        k("s_waitcnt vmcnt(0)")
        for m in qk(q, "0", SS):
            k(m)
        max16(2, SS, False)
        k("s_add_u32 s16, s16, 2048")
        k("s_add_u32 s%d, s%d, 1" % (S_ST, S_ST))
        k("s_cmp_lt_u32 s%d, 64" % S_ST)
        k("s_cbranch_scc1 " + LA)
        set_nm(q, 2)
        zero_state(q)
        k("s_add_u32 s16, s%d, 0x400000" % S_KB)
        k("s_add_u32 s17, s%d, 0x800000" % S_KB)
        k("s_mov_b32 s%d, 0" % S_ST)
        k.label(LB)
        k("buffer_load_dwordx4 %s, v%d, %s, s16 offen sc1" % (v(KA_, 4), VOFF, s(SRD, 4)))
        k("buffer_load_dwordx4 %s, v%d, %s, s16 offen offset:1024 sc1" % (v(KB_, 4), VOFF, s(SRD, 4)))
        k("buffer_load_dwordx4 %s, v%d, %s, s17 offen sc1" % (v(VA_, 4), VOFF, s(SRD, 4)))
        k("buffer_load_dwordx4 %s, v%d, %s, s17 offen offset:1024 sc1" % (v(VB_, 4), VOFF, s(SRD, 4)))
        k("s_waitcnt vmcnt(0)")
        for m in qk(q, v(NM[q], 16), SS):
            k(m)
        for g in range(4):
            ex(SS, g)
            cv(SS, g)
        pvm(q, VA_, P)
        lsum(q, P)
        pvm(q, VB_, P + 4)
        lsum(q, P + 4)
        k("s_add_u32 s16, s16, 2048")
        k("s_add_u32 s17, s17, 2048")
        k("s_add_u32 s%d, s%d, 1" % (S_ST, S_ST))
        k("s_cmp_lt_u32 s%d, 64" % S_ST)
        k("s_cbranch_scc1 " + LB)
        k("s_branch " + EPI[q])

    k.label(HELP)
    SIDE, GEMV, DONE, SDONE, SD2 = k.uid("side"), k.uid("gemv"), k.uid("done"), k.uid("sdone"), k.uid("sd2")
    ids()
    k("s_sub_u32 s%d, s19, 4" % S_WAVE)
    k("v_mov_b32 v7, %d" % SY)

    def lds_wait(off, s_lim, b128=False, nap=6):
        W, G = k.uid("w"), k.uid("g")
        k("s_mov_b32 s4, 0")
        k.label(W)
        k("ds_read_%s, v7 offset:%d" % ("b128 v[100:103]" if b128 else "b32 v100", off))
        k("s_add_u32 s4, s4, 1")
        k("s_waitcnt lgkmcnt(0)")
        if b128:
            k("v_min_u32 v100, v100, v101")
            k("v_min3_u32 v100, v100, v102, v103")
        k("v_readfirstlane_b32 s5, v100")
        k("s_cmp_gt_u32 s5, s%d" % s_lim)
        k("s_cbranch_scc1 " + G)
        k("s_sleep %d" % nap)
        k("s_cmp_lt_u32 s4, 0x1000000")
        k("s_cbranch_scc1 " + W)
        k.label(G)

    k("s_cmp_lg_u32 s%d, 0" % S_WAVE)
    k("s_cbranch_scc1 " + SIDE)
    k("s_add_u32 s11, s20, 1")
    k("s_and_b32 s11, s11, 7")
    k("s_lshl_b32 s18, s11, 2")
    k("s_lshl_b32 s11, s11, 14")
    k("s_add_u32 s13, s%d, 0x400000" % S_KB)
    for e, val in enumerate((2, 0, 0, 0)):
        k("v_mov_b32 v%d, %d" % (100 + e, val))
    k("ds_write_b128 v7, v[100:103]")
    k("v_mov_b32 v100, 0")
    k("ds_write_b128 v7, v[100:103] offset:16")
    k("ds_write_b128 v7, v[100:103] offset:32")
    poll.setup(k)
    k("s_barrier")
    k("s_mov_b32 s14, 0")
    lds_wait(8, 14, nap=2)
    k("s_mov_b32 s12, 2")
    k("s_mov_b32 s15, 32768")
    k("s_mov_b32 s16, 0")

    def publish(k, cnt=0):
        k("s_waitcnt vmcnt(%d)" % cnt)
        k("v_mov_b32 v104, s12")
        if cnt > 16:
            k("v_subrev_u32 v104, %d, v104" % (cnt // 16 - 1))
        k("ds_max_u32 v7, v104")
    KV, FREE = k.uid("kv"), k.uid("free")
    k.label(KV)
    k("s_add_u32 s14, s16, 8")
    k("s_cmp_lt_u32 s12, s14")
    k("s_cbranch_scc1 " + FREE)
    k("s_sub_u32 s14, s12, 8")
    lds_wait(16, 14, True)
    k("s_mov_b32 s16, s5")
    k.label(FREE)
    poll.need(k, on_slow=publish)
    k("s_add_u32 s10, s13, s11")
    for h in range(4):
        k("s_add_u32 m0, s15, %d" % (h * 4096))
        if h:
            k("s_add_u32 s10, s10, %d" % (4096 if h != 2 else 0x400000 - 4096))
        for q in range(4):
            k("buffer_load_dwordx4 v%d, %s, s10 offen offset:%d sc1 lds" % (VOFF, s(SRD, 4), q * 1024))
    publish(k, 16 * (P_.get("infl", 3) - 1))
    k.stamp_dyn(12, 14)
    k("s_add_u32 s11, s11, 8192")
    k("s_and_b32 s11, s11, 0x1ffff")
    k("s_add_u32 s15, s15, 16384")
    k("s_and_b32 s15, s15, 0x1ffff")
    k("s_add_u32 s12, s12, 1")
    k("s_cmp_lt_u32 s12, 16")
    k("s_cbranch_scc1 " + KV)
    k("s_mov_b32 s12, 15")
    publish(k, 16)
    k("s_mov_b32 s12, 99")
    publish(k)
    k("s_load_dwordx2 s[34:35], s[0:1], %d" % KA["w_sp"])
    k("s_waitcnt lgkmcnt(0)")
    srd_in(k, 72, 34, SZ["w_sp"])
    k("v_lshlrev_b32 v16, 7, v%d" % LANE)
    k("s_lshl_b32 s41, s2, 15")
    for n in range(4):
        k("buffer_load_dword v15, v16, s[72:75], s41 offen")
        k("s_add_u32 s41, s41, 8192")
        k("s_waitcnt vmcnt(1)")
    if CODE_NEXT:
        for n in range(3):
            k("v_add_u32 v18, %d, v%d" % (64 * n, LANE))
            code_prefetch(k, CODE_NEXT[0], 18, 100, 16, CODE_NEXT[1])
    k("s_branch " + DONE)

    k.label(SIDE)
    k("s_load_dwordx2 s[8:9], s[0:1], %d" % KA["wo"])
    k("s_load_dwordx4 s[32:35], s[0:1], %d" % KA["w_in"])
    k("s_load_dwordx2 s[36:37], s[0:1], %d" % KA["w_out"])
    k("s_load_dwordx2 s[82:83], s[0:1], %d" % KA["w_mod"])
    k("s_lshl_b32 s46, s2, 1")
    k("s_add_u32 s46, s46, s%d" % S_WAVE)
    k("s_sub_u32 s46, s46, 2")
    k("s_lshl_b32 s47, s%d, 13" % S_WAVE)
    k("s_add_u32 s47, s47, %d" % (STG - 8192))
    k("v_lshrrev_b32 v9, 3, v%d" % LANE)
    k("v_and_b32 v10, 7, v%d" % LANE)
    k("v_lshlrev_b32 v10, 4, v10")
    k("v_bfe_u32 v2, v%d, 2, 2" % LANE)
    k("v_and_b32 v3, 3, v%d" % LANE)
    k("v_lshlrev_b32 v3, 3, v3")
    k("v_lshl_add_u32 v3, v2, 7, v3")
    k("v_add_u32 v3, s47, v3")
    k("v_lshrrev_b32 v2, 5, v%d" % LANE)
    k("v_lshl_add_u32 v11, v2, 10, v3")
    k("v_bfe_u32 v2, v%d, 4, 1" % LANE)
    k("v_lshl_add_u32 v11, v2, 5, v11")
    k("v_lshrrev_b32 v2, 4, v%d" % LANE)
    k("v_lshl_add_u32 v12, v2, 10, v3")
    k("v_lshlrev_b32 v13, 4, v2")
    k("v_and_b32 v2, 15, v%d" % LANE)
    k("v_lshl_add_u32 v13, v2, 7, v13")
    k("v_add_u32 v13, s47, v13")
    k("s_waitcnt lgkmcnt(0)")
    ops = []

    def wait_for(tag):
        last = max(i for i, o in enumerate(ops) if o == tag)
        k("s_waitcnt vmcnt(%d)" % min(63, len(ops) - 1 - last))

    ROUNDS = [(8, "wo", 2048, 16, 512, "WOF", 0)] + [(32, "w_in", 7168, 56, 1792, "WINF", 512 * n) for n in range(4)] + \
             [(36, "w_out", 2048, 16, 896, "WOUTF", 512 * n) for n in range(2)]
    RB = 80

    def unit_ids(r):
        ptr, nm, ld, ncg, nu, dst, u0 = ROUNDS[r]
        k("s_add_u32 s41, s46, %d" % u0)
        if ncg == 56:
            k("s_mul_i32 s38, s41, 9363")
            k("s_lshr_b32 s38, s38, 19")
            k("s_mul_i32 s39, s38, 56")
            k("s_sub_u32 s39, s41, s39")
        else:
            k("s_lshr_b32 s38, s41, %d" % (ncg.bit_length() - 1))
            k("s_and_b32 s39, s41, %d" % (ncg - 1))
        k("s_cmp_ge_u32 s41, %d" % nu)
        k("s_cselect_b32 s40, %d, 0" % OOB)

    def rp_load(r, touch=False):
        ptr, nm, ld, ncg, nu, dst, u0 = ROUNDS[r]
        unit_ids(r)
        srd_in(k, 72, ptr, SZ[nm])
        k("s_mov_b32 s42, %d" % ld)
        if touch:
            k("v_and_b32 v14, 31, v%d" % LANE)
            k("v_mul_lo_u32 v14, v14, s42")
        else:
            k("v_mul_lo_u32 v14, v9, s42")
            k("v_add_u32 v14, v14, v10")
        k("s_mul_i32 s42, s38, %d" % (32 * ld))
        k("s_lshl_b32 s41, s39, 7")
        k("s_add_u32 s42, s42, s41")
        k("s_or_b32 s42, s42, s40")
        if touch:
            k("buffer_load_dword v15, v14, s[72:75], s42 offen")
            ops.append(("tc", r))
            return
        for q in range(4):
            k("s_add_u32 m0, s47, %d" % ((r & 1) * 4096 + q * 1024))
            k("s_add_u32 s41, s42, %d" % (q * 8 * ld))
            k("buffer_load_dwordx4 v14, s[72:75], s41 offen lds")
            ops.append(("rp", r))

    def rp_store(r):
        ptr, nm, ld, ncg, nu, dst, u0 = ROUNDS[r]
        wait_for(("rp", r))
        for b in range(4):
            if dst in ("WOF", "WOUTF"):
                for rd in range(2):
                    k("ds_read_b64_tr_b16 %s, v11 offset:%d" % (v(RB + 4 * b + 2 * rd, 2), (r & 1) * 4096 + (b >> 1) * 2048 + rd * 512 + (b & 1) * 64))
            elif dst == "WINF":
                for rd in range(2):
                    k("ds_read_b64_tr_b16 %s, v12 offset:%d" % (v(RB + 4 * b + 2 * rd, 2), (r & 1) * 4096 + rd * 512 + b * 32))
            else:
                k("ds_read_b128 %s, v13 offset:%d" % (v(RB + 4 * b, 4), (r & 1) * 4096 + (b & 1) * 2048 + (b >> 1) * 64))
        unit_ids(r)
        srd_ws(k, 76, 6, dst)
        if dst in ("WOF", "WOUTF"):
            k("s_mul_i32 s42, s39, %d" % ((16 if dst == "WOF" else 28) * 8192))
            k("s_lshl_b32 s41, s38, 12")
            k("s_add_u32 s42, s42, s41")
            k("s_or_b32 s42, s42, s40")
            offs = [("s42", b * 1024) for b in range(4)]
        elif dst == "WSPF":
            k("s_lshr_b32 s42, s38, 2")
            k("s_lshl_b32 s42, s42, 5")
            k("s_add_u32 s42, s42, s39")
            k("s_lshl_b32 s42, s42, 14")
            k("s_and_b32 s41, s38, 3")
            k("s_lshl_b32 s41, s41, 11")
            k("s_add_u32 s42, s42, s41")
            k("s_or_b32 s42, s42, s40")
            k("s_add_u32 s41, s42, 8192")
            offs = [("s42", 0), ("s42", 1024), ("s41", 0), ("s41", 1024)]
        else:
            offs = []
            k("s_cmp_ge_u32 s39, 28")
            k("s_cselect_b32 s16, 28, 0")
            k("s_cselect_b32 s17, 7168, 0")
            k("s_sub_u32 s16, s39, s16")
            k("s_lshl_b32 s16, s16, 2")
            k("s_mul_i32 s41, s38, 14336")
            k("s_add_u32 s17, s17, s41")
            k("s_or_b32 s17, s17, s40")
            for b in range(4):
                k("s_add_u32 s41, s16, %d" % b)
                k("s_mul_i32 s42, s41, 147")
                k("s_lshr_b32 s42, s42, 10")
                k("s_mul_i32 s42, s42, %d" % (458752 - 7 * 1024))
                k("s_lshl_b32 s41, s41, 10")
                k("s_add_u32 s41, s41, s42")
                k("s_add_u32 s%d, s41, s17" % (28 + b))
                offs.append(("s%d" % (28 + b), 0))
        k("s_waitcnt lgkmcnt(0)")
        for b in range(4):
            k("buffer_store_dwordx4 %s, v%d, s[76:79], %s offen offset:%d sc1" % (v(RB + 4 * b, 4), VOFF, offs[b][0], offs[b][1]))
            ops.append(("st", r))

    k("s_barrier")
    k("s_mov_b32 s14, %d" % P_.get("gate", 3))
    lds_wait(0, 14, nap=24)
    k("s_cmp_eq_u32 s%d, 1" % S_WAVE)
    k("s_cbranch_scc1 " + GEMV)
    NR = len(ROUNDS)
    rp_load(0)
    rp_load(1)
    TCH = P_.get("touch", 1)
    if TCH:
        rp_load(2, True)
        rp_load(3, True)
    for r in range(NR):
        k.stamp(14 + r)
        rp_store(r)
        if r + 2 < NR:
            rp_load(r + 2)
        if TCH and r + 4 < NR:
            rp_load(r + 4, True)
    k("s_branch " + SDONE)

    k.label(GEMV)
    del ops[:]
    k("s_lshr_b32 s14, s2, 2")
    k("s_add_u32 s14, s14, 32")
    k("s_and_b32 s15, s2, 3")
    srd_in(k, 72, 82, SZ["w_mod"])
    srd_ws(k, 76, 6, "SC")
    k("s_mul_i32 s42, s15, %d" % (256 * 12288))
    k("s_lshl_b32 s41, s14, 7")
    k("s_add_u32 s42, s42, s41")
    k("s_mov_b32 s41, 12288")
    k("v_mul_lo_u32 v14, v9, s41")
    k("v_add_u32 v14, v14, v10")
    k("v_mul_lo_u32 v16, v%d, s41" % LANE)

    def gv_load(u):
        for q in range(4):
            k("s_add_u32 m0, s47, %d" % ((u & 1) * 4096 + q * 1024))
            k("s_add_u32 s41, s42, %d" % ((u * 32 + q * 8) * 12288))
            k("buffer_load_dwordx4 v14, s[72:75], s41 offen lds")
            ops.append(("gv", u))
    k("v_lshrrev_b32 v17, 4, v%d" % LANE)
    k("v_lshlrev_b32 v17, 4, v17")
    k("s_lshl_b32 s40, s15, 9")
    for u in range(8):
        k("buffer_load_dwordx4 %s, v17, s[76:79], s40 offen offset:%d" % (v(24 + 4 * u, 4), u * 64))
        ops.append(("c", u))
    gv_load(0)
    gv_load(1)
    for n in range(1, 4 if TCH else 1):
        k("s_add_u32 s41, s42, %d" % (n * 64 * 12288))
        k("buffer_load_dword v15, v16, s[72:75], s41 offen")
        ops.append(("tc", n))
    for e in range(16):
        k("v_mov_b32 v%d, 0" % (56 + e))
    for u in range(8):
        wait_for(("gv", u))
        for b in range(4):
            for rd in range(2):
                k("ds_read_b64_tr_b16 %s, v12 offset:%d" % (v(RB + 4 * b + 2 * rd, 2), (u & 1) * 4096 + rd * 512 + b * 32))
        k("s_waitcnt lgkmcnt(0)")
        if u + 2 < 8:
            gv_load(u + 2)
        for b in range(4):
            k("v_mfma_f32_16x16x32_bf16 %s, %s, %s, %s" % (v(56 + 4 * b, 4), v(RB + 4 * b, 4), v(24 + 4 * u, 4), v(56 + 4 * b, 4)))
    srd_ws(k, 76, 6, "MODP")
    k("v_and_b32 v2, 15, v%d" % LANE)
    k("v_cmp_eq_u32 vcc, 0, v2")
    k("v_mov_b32 v2, 0x7f000000")
    k("v_cndmask_b32 v17, v2, v17, vcc")
    k("s_mul_i32 s41, s15, %d" % (6144 * 4))
    k("s_lshl_b32 s42, s14, 8")
    k("s_add_u32 s41, s41, s42")
    for b in range(4):
        k("buffer_store_dwordx4 %s, v17, s[76:79], s41 offen offset:%d sc1" % (v(56 + 4 * b, 4), b * 64))
    k.label(SDONE)
    srd_ws(k, 76, 6, "HF")
    k("v_mov_b32 v2, 1")
    k("v_mov_b32 v16, 0")
    k("v_mov_b32 v17, 1.0")
    k("s_lshl_b32 s41, s2, 2")
    k("s_waitcnt vmcnt(0)")
    k("s_mov_b64 exec, 1")
    k("ds_add_rtn_u32 v3, v7, v2 offset:12")
    k("s_waitcnt lgkmcnt(0)")
    k("v_cmp_eq_u32 vcc, 2, v3")
    k("s_cbranch_vccz " + SD2)
    k("buffer_store_dword v17, v16, s[76:79], s41 offen sc1")
    k.label(SD2)
    k("s_mov_b64 exec, -1")
    k.label(DONE)
    k.stamp(sb + 5)
    if after_help:
        after_help(k, lds_wait)
    else:
        k.stamp_dump(31)
        k("s_endpgm")
```

```python
import struct
from asmlib import *

KA = dict(x=0, wqkv=8, wo=16, bx=24, w_in=32, w_sp=40, b_sp=48, w_out=56, c=64, w_mod=72, out=80, dbg=88, ws=96)
SZ = dict(x=4194304, wqkv=6291456, wo=2097152, w_in=7340032, w_sp=8388608, b_sp=4096, w_out=3670016, c=2048,
          w_mod=12582912, out=4194304)

WS = dict(
    MODP=(0x0, 98304),
        XN=(0x100000, 0x400000),
    QKV=(0x500000, 0xC00000),
    O=(0x1100000, 0x400000),
    X1=(0x1500000, 0x400000),
    Z1=(0x1900000, 0x700000),
    Z2=(0x2000000, 0x700000),
    U=(0x2700000, 0x700000),
)


def f2u(x):
    return struct.unpack("<I", struct.pack("<f", x))[0]


def fhex(x):
    return "0x%08x" % f2u(x)


def srd_in(k, dst, ptr, size):
    k("s_mov_b32 s%d, s%d" % (dst, ptr))
    k("s_mov_b32 s%d, s%d" % (dst + 1, ptr + 1))
    k("s_mov_b32 s%d, %d" % (dst + 2, size))
    k("s_mov_b32 s%d, 0x20000" % (dst + 3))


def srd_ws(k, dst, wsptr, region):
    off, size = WS[region]
    k("s_add_u32 s%d, s%d, %d" % (dst, wsptr, off))
    k("s_addc_u32 s%d, s%d, 0" % (dst + 1, wsptr + 1))
    k("s_mov_b32 s%d, %d" % (dst + 2, size))
    k("s_mov_b32 s%d, 0x20000" % (dst + 3))


def unpack_bf16(k, lo, hi, src):
    k("v_lshlrev_b32 v%d, 16, v%d" % (lo, src))
    k("v_and_b32 v%d, 0xffff0000, v%d" % (hi, src))


def srd_ws_sub(k, dst, wsptr, region, s_off, size):
    off, _ = WS[region]
    k("s_add_u32 s%d, s%d, %d" % (dst + 2, s_off, off))
    k("s_add_u32 s%d, s%d, s%d" % (dst, wsptr, dst + 2))
    k("s_addc_u32 s%d, s%d, 0" % (dst + 1, wsptr + 1))
    k("s_mov_b32 s%d, %d" % (dst + 2, size))
    k("s_mov_b32 s%d, 0x20000" % (dst + 3))


WS["EX"] = (0x3600000, 0x100000)
WS["EX2"] = (0x3600000, 0x40000)
WS["EX3"] = (0x3640000, 0x40000)
WS["FL"] = (0x3680000, 0x40000)
WS["XF"] = (0x2E00000, 0x400000)
WS["H2"] = (0x3200000, 0x400000)


LOG2E = 1.4426950408889634


class Gemv:
    def __init__(self, k, tid, s_cg, s_kc, srd_c, srd_w, srd_o, lds, V, S):
        self.__dict__.update(locals())

    def addr(self):
        k, V, S = self.k, self.V, self.S
        k("v_lshrrev_b32 v%d, 3, v%d" % (V, self.tid))
        k("v_and_b32 v%d, 7, v%d" % (V + 1, self.tid))
        k("s_mov_b32 s%d, 12288" % S)
        k("v_mul_lo_u32 v%d, v%d, s%d" % (V + 2, V, S))
        k("v_lshl_add_u32 v%d, v%d, 4, v%d" % (V + 2, V + 1, V + 2))
        k("s_mul_i32 s%d, s%d, %d" % (S + 1, self.s_kc, 256 * 12288))
        k("s_lshl_b32 s%d, s%d, 7" % (S, self.s_cg))
        k("s_add_u32 s%d, s%d, s%d" % (S + 1, S + 1, S))
        k("s_lshl_b32 s%d, s%d, 9" % (S + 2, self.s_kc))
        k("v_lshlrev_b32 v%d, 1, v%d" % (V + 3, self.tid))
        for i in range(8):
            k("s_add_u32 s%d, s%d, %d" % (S + 4 + i, S + 1, i * 32 * 12288))

    def loads(self, lo=0, hi=8):
        k, V, S = self.k, self.V, self.S
        if lo == 0:
            k("buffer_load_ushort v%d, v%d, %s, s%d offen" % (V + 4, V + 3, s(self.srd_c, 4), S + 2))
        for i in range(lo, hi):
            k("buffer_load_dwordx4 %s, v%d, %s, s%d offen" % (v(V + 8 + 4 * i, 4), V + 2, s(self.srd_w, 4), S + 4 + i))

    def silu(self):
        k, V = self.k, self.V
        k("v_lshlrev_b32 v%d, 16, v%d" % (V + 4, V + 4))
        k("v_mul_f32 v%d, %s, v%d" % (V + 5, fhex(-LOG2E), V + 4))
        k("v_exp_f32 v%d, v%d" % (V + 5, V + 5))
        k("v_add_f32 v%d, 1.0, v%d" % (V + 5, V + 5))
        k("v_rcp_f32 v%d, v%d" % (V + 5, V + 5))
        k("v_mul_f32 v%d, v%d, v%d" % (V + 4, V + 4, V + 5))
        k("v_cvt_pk_bf16_f32 v%d, v%d, v%d" % (V + 4, V + 4, V + 4))
        k("v_lshlrev_b32 v%d, 16, v%d" % (V + 4, V + 4))
        k("v_lshlrev_b32 v%d, 2, v%d" % (V + 3, self.tid))
        k("v_add_u32 v%d, %d, v%d" % (V + 3, self.lds, V + 3))
        k("ds_write_b32 v%d, v%d" % (V + 3, V + 4))
        k("s_waitcnt lgkmcnt(0)")

    def mac(self, wait=None):
        k, V = self.k, self.V
        k("v_lshlrev_b32 v%d, 2, v%d" % (V + 5, V))
        k("v_add_u32 v%d, %d, v%d" % (V + 5, self.lds, V + 5))
        for i in range(8):
            k("ds_read_b32 v%d, v%d offset:%d" % (V + 40 + i, V + 5, i * 128))
        for j in range(8):
            k("v_mov_b32 v%d, 0" % (V + 48 + j))
        k("s_waitcnt lgkmcnt(0)")
        for i in range(8):
            if wait:
                wait(i)
            for d in range(4):
                unpack_bf16(k, V + 56 + 2 * (d & 1), V + 57 + 2 * (d & 1), V + 8 + 4 * i + d)
                k("v_fmac_f32 v%d, v%d, v%d" % (V + 48 + 2 * d, V + 56 + 2 * (d & 1), V + 40 + i))
                k("v_fmac_f32 v%d, v%d, v%d" % (V + 49 + 2 * d, V + 57 + 2 * (d & 1), V + 40 + i))
        k("v_lshlrev_b32 v%d, 5, v%d" % (V + 5, self.tid))
        k("v_add_u32 v%d, %d, v%d" % (V + 5, self.lds + 1024, V + 5))
        k("ds_write_b128 v%d, %s" % (V + 5, v(V + 48, 4)))
        k("ds_write_b128 v%d, %s offset:16" % (V + 5, v(V + 52, 4)))
        k("s_waitcnt lgkmcnt(0)")

    def red1(self):
        k, V = self.k, self.V
        k("v_and_b32 v%d, 63, v%d" % (V + 5, self.tid))
        k("v_lshrrev_b32 v%d, 6, v%d" % (V + 6, self.tid))
        k("v_lshlrev_b32 v%d, 11, v%d" % (V + 6, V + 6))
        k("v_lshl_add_u32 v%d, v%d, 2, v%d" % (V + 6, V + 5, V + 6))
        k("v_add_u32 v%d, %d, v%d" % (V + 6, self.lds + 1024, V + 6))
        for i in range(8):
            k("ds_read_b32 v%d, v%d offset:%d" % (V + 40 + i, V + 6, i * 256))
        k("s_waitcnt lgkmcnt(0)")
        for st in (4, 2, 1):
            for i in range(st):
                k("v_add_f32 v%d, v%d, v%d" % (V + 40 + i, V + 40 + i, V + 40 + i + st))
        k("ds_write_b32 v%d, v%d offset:9216" % (V + 3, V + 40))
        k("s_waitcnt lgkmcnt(0)")

    def fin(self, mods=""):
        k, V, S = self.k, self.V, self.S
        k("v_lshlrev_b32 v%d, 2, v%d" % (V + 5, V + 5))
        k("v_add_u32 v%d, %d, v%d" % (V + 6, self.lds + 9216, V + 5))
        for i in range(4):
            k("ds_read_b32 v%d, v%d offset:%d" % (V + 40 + i, V + 6, i * 256))
        k("s_mul_i32 s%d, s%d, %d" % (S + 1, self.s_kc, 6144 * 4))
        k("s_lshl_b32 s%d, s%d, 8" % (S, self.s_cg))
        k("s_add_u32 s%d, s%d, s%d" % (S + 1, S + 1, S))
        k("s_waitcnt lgkmcnt(0)")
        k("v_add_f32 v%d, v%d, v%d" % (V + 40, V + 40, V + 41))
        k("v_add_f32 v%d, v%d, v%d" % (V + 42, V + 42, V + 43))
        k("v_add_f32 v%d, v%d, v%d" % (V + 40, V + 40, V + 42))
        k("buffer_store_dword v%d, v%d, %s, s%d offen%s" % (V + 40, V + 5, s(self.srd_o, 4), S + 1, mods))


WS["WOF"] = (0x3800000, 0x200000)
WS["WOUTF"] = (0x3A00000, 0x380000)
WS["WINF"] = (0x3E00000, 0x700000)
WS["WSPF"] = (0x4600000, 0x800000)
WS["H"] = (0x1500000, 0x400000)
WS["WQF"] = (0x1900000, 0x600000)


def code_prefetch(k, target, vidx, vt, st, end=None):
    PC = k.uid("pc")
    k("s_getpc_b64 s[%d:%d]" % (st, st + 1))
    k.label(PC)
    k("s_add_u32 s%d, s%d, %s-%s" % (st, st, target, PC))
    k("s_addc_u32 s%d, s%d, 0" % (st + 1, st + 1))
    k("v_lshlrev_b32 v%d, 7, v%d" % (vt, vidx))
    k("v_min_u32 v%d, %s-%s-4, v%d" % (vt, end or "L_%s_codeend" % target, target, vt))
    k("v_mov_b32 v%d, s%d" % (vt + 1, st + 1))
    k("v_add_co_u32 v%d, vcc, s%d, v%d" % (vt, st, vt))
    k("v_addc_co_u32 v%d, vcc, 0, v%d, vcc" % (vt + 1, vt + 1))
    k("global_load_dword v%d, v[%d:%d], off" % (vt + 2, vt, vt + 1))
WS["PAD"] = (0x20000, 256)
WS["SC"] = (0x21000, 2048)

WS["HF"] = (0x36C0000, 1024)
```

```python
from common import *
from gemms import stats_to_affine, BCAST
from sync import FL0


def gen_k1(name="k1_kernel", tlb=0, nxt="mm_kernel"):
    k = Kern(name)
    END, LN, RP = k.uid("end"), k.uid("ln"), k.uid("rp")
    k("s_cmp_ge_u32 s2, 385")
    k("s_cbranch_scc1 " + END)
    k.kidx = 0
    k.stamp_init()
    k("s_load_dwordx4 s[56:59], s[0:1], %d" % KA["x"])
    k("s_load_dwordx4 s[8:11], s[0:1], %d" % KA["c"])
    k("s_load_dwordx4 s[4:7], s[0:1], %d" % KA["dbg"])
    k("s_cmp_ge_u32 s2, 129")
    k("s_cbranch_scc1 " + LN)
    k("s_cmp_lt_u32 s2, 1")
    k("s_cbranch_scc1 " + RP)
    k("s_sub_u32 s13, s2, 1")

    def wait_flag(issued):
        W, GO, CH = k.uid("wait"), k.uid("go"), k.uid("chk")
        k("s_mov_b32 s16, 0")
        if issued:
            k("s_branch " + CH)
        k.label(W)
        k("buffer_load_dword v3, v2, s[48:51], 0 offen sc1")
        k.label(CH)
        k("s_waitcnt vmcnt(0)")
        k("v_cmp_eq_u32 vcc, 0, v3")
        k("s_cbranch_vccz " + GO)
        k("s_sleep 4")
        k("s_add_u32 s16, s16, 1")
        k("s_cmp_lt_u32 s16, 0x100000")
        k("s_cbranch_scc1 " + W)
        k.label(GO)
    k("s_lshr_b32 s12, s13, 2")
    k("s_and_b32 s13, s13, 3")
    g = Gemv(k, 0, 12, 13, 20, 24, 28, 0, 8, 32)
    g.addr()
    k("s_waitcnt lgkmcnt(0)")
    srd_in(k, 20, 8, SZ["c"])
    srd_in(k, 24, 10, SZ["w_mod"])
    srd_ws(k, 28, 6, "MODP")
    srd_in(k, 48, 4, 256)
    g.loads()
    k.stamp(1)
    k("s_waitcnt vmcnt(8)")
    k.stamp(2)
    g.silu()
    srd_ws(k, 52, 6, "SC")
    k("v_lshlrev_b32 v2, 1, v0")
    k("buffer_store_short_d16_hi v12, v2, s[52:55], s34 offen")
    k("s_barrier")
    g.mac(lambda i: k("s_waitcnt vmcnt(%d)" % (8 - i)))
    k.stamp(3)
    k("s_barrier")
    g.red1()
    k("s_barrier")
    k("v_cmp_gt_u32 vcc, 64, v0")
    k("s_and_saveexec_b64 s[60:61], vcc")
    k("s_cbranch_execz " + END)
    g.fin(" sc1")
    k.stamp(6)
    k("v_mov_b32 v2, 0")
    wait_flag(False)
    k(k.lines[[n for n, l in enumerate(k.lines) if "buffer_store_dword v48" in l][-1]])
    k.stamp(4)
    k.stamp_dump(5)
    k("s_endpgm")

    k.label(RP)
    k("v_lshlrev_b32 v1, 4, v0")
    for r in (4, 5, 6, 7):
        k("v_mov_b32 v%d, -1" % r)
    k("v_mov_b32 v2, 0")
    k("s_waitcnt lgkmcnt(0)")
    srd_ws(k, 28, 6, "MODP")
    srd_in(k, 48, 4, 256)
    for n in range(8):
        k("s_mov_b32 s12, %d" % ((n >> 1) * 6144 * 4 + (n & 1) * 4096))
        k("buffer_store_dwordx4 v[4:7], v1, s[28:31], s12 offen sc1")
    k.stamp(1)
    k("s_waitcnt vmcnt(0)")
    k.stamp(2)
    k("s_barrier")
    k("v_cmp_eq_u32 vcc, 0, v0")
    k("s_and_saveexec_b64 s[60:61], vcc")
    k("s_cbranch_execz " + END)
    k("buffer_store_dword v4, v2, s[48:51], 0 offen sc1")
    k.stamp(3)
    k.stamp_dump(5)
    k("s_endpgm")

    k.label(LN)
    k("s_sub_u32 s12, s2, 129")
    k("v_bfe_u32 v1, v0, 3, 3")
    k("v_and_b32 v2, 7, v0")
    k("v_lshrrev_b32 v5, 6, v0")
    k("v_lshlrev_b32 v3, 11, v1")
    k("v_lshl_add_u32 v3, v2, 4, v3")
    k("v_lshl_add_u32 v3, v5, 9, v3")
    k("s_lshl_b32 s13, s12, 14")
    k("v_lshrrev_b32 v6, 1, v2")
    k("v_lshlrev_b32 v6, 12, v6")
    k("v_lshl_add_u32 v6, v5, 16, v6")
    k("v_and_b32 v7, 1, v2")
    k("v_lshlrev_b32 v7, 9, v7")
    k("v_lshl_add_u32 v7, v1, 4, v7")
    k("v_lshl_add_u32 v64, v6, 1, v7")
    k("v_lshlrev_b32 v65, 6, v2")
    k("v_lshl_add_u32 v65, v5, 11, v65")
    k("s_and_b32 s16, s12, 3")
    k("s_lshl_b32 s16, s16, 7")
    k("s_lshr_b32 s18, s12, 5")
    k("s_lshl_b32 s18, s18, 19")
    k("s_bfe_u32 s17, s12, 0x30002")
    k("s_lshl_b32 s17, s17, 10")
    k("s_add_u32 s18, s18, s17")
    k("s_add_u32 s18, s18, s16")
    for n in range(4):
        k("s_add_u32 s%d, s18, %d" % (36 + n, n * 32768))
    k("s_waitcnt lgkmcnt(0)")
    srd_in(k, 20, 56, SZ["x"])
    for n in range(4):
        k("buffer_load_dwordx4 v[%d:%d], v3, s[20:23], s13 offen offset:%d" % (16 + 4 * n, 19 + 4 * n, n * 128))
    srd_ws(k, 24, 6, "H")
    srd_ws(k, 28, 6, "FL")
    srd_in(k, 48, 4, 256)
    srd_ws(k, 44, 6, "MODP")
    k("v_mov_b32 v8, -1.0")
    k("v_min_u32 v4, 159, v0")
    k("v_lshlrev_b32 v4, 2, v4")
    k("s_mul_i32 s14, s12, 640")
    k("s_add_u32 s14, s14, %d" % FL0)
    k("buffer_store_dword v8, v4, s[28:31], s14 offen")
    srd_ws(k, 52, 6, "HF")
    k("v_mov_b32 v4, 0")
    k("s_lshl_b32 s14, s12, 2")
    k("buffer_store_dword v8, v4, s[52:55], s14 offen")
    k("v_lshlrev_b32 v4, 4, v0")
    k("v_readfirstlane_b32 s3, v5")
    k("v_and_b32 v100, 63, v0")
    srd_in(k, 40, 58, SZ["wqkv"])
    k("v_lshrrev_b32 v2, 3, v100")
    k("s_mov_b32 s16, 6144")
    k("v_mul_lo_u32 v101, v2, s16")
    k("v_and_b32 v2, 7, v100")
    k("v_lshl_add_u32 v101, v2, 4, v101")
    k("s_lshl_b32 s19, s3, 13")
    k("s_add_u32 s19, s19, 12288")
    for u in range(2):
        k("s_mul_i32 s14, s12, 6")
        k("s_add_u32 s14, s14, s3")
        k("s_add_u32 s14, s14, %d" % (4 * u))
        k("s_mul_i32 s%d, s14, 10923" % (68 + 2 * u))
        k("s_lshr_b32 s%d, s%d, 19" % (68 + 2 * u, 68 + 2 * u))
        k("s_mul_i32 s15, s%d, 48" % (68 + 2 * u))
        k("s_sub_u32 s%d, s14, s15" % (69 + 2 * u))
        k("s_mul_i32 s15, s%d, %d" % (68 + 2 * u, 32 * 6144))
        k("s_lshl_b32 s16, s%d, 7" % (69 + 2 * u))
        k("s_add_u32 s15, s15, s16")
        if u:
            k("s_cmp_ge_u32 s3, 2")
            k("s_cselect_b32 s72, 0x7f000000, 0")
            k("s_or_b32 s15, s15, s72")
        for q in range(4):
            k("s_add_u32 m0, s19, %d" % (u * 4096 + q * 1024))
            k("s_add_u32 s16, s15, %d" % (q * 8 * 6144))
            k("buffer_load_dwordx4 v101, s[40:43], s16 offen lds")
    for r in (10, 11, 12, 13):
        k("v_mov_b32 v%d, 0" % r)
    k.stamp(1)
    for n in range(4):
        k("s_waitcnt vmcnt(%d)" % (13 - n))
        for d in range(4):
            o = 32 + 8 * n + 2 * d
            unpack_bf16(k, o, o + 1, 16 + 4 * n + d)
            k("v_pk_add_f32 v[10:11], v[10:11], v[%d:%d]" % (o, o + 1))
            k("v_pk_fma_f32 v[12:13], v[%d:%d], v[%d:%d], v[12:13]" % (o, o + 1, o, o + 1))
    k("v_add_f32 v10, v10, v11")
    k("v_add_f32 v11, v12, v13")
    for m in ("quad_perm:[1,0,3,2]", "quad_perm:[2,3,0,1]", "row_half_mirror"):
        for r in (10, 11):
            k("v_add_f32_dpp v%d, v%d, v%d %s row_mask:0xf bank_mask:0xf" % (r, r, r, m))
    k("v_lshlrev_b32 v7, 5, v1")
    k("v_lshl_add_u32 v8, v5, 3, v7")
    k("ds_write_b64 v8, v[10:11] offset:8192")
    k("s_waitcnt lgkmcnt(0)")
    code_prefetch(k, nxt, 0, 104, 74)
    if tlb:
        NT_ = k.uid("notouch")
        k("s_cmp_lg_u32 s3, 2")
        k("s_cbranch_scc1 " + NT_)
        k("s_load_dwordx2 s[60:61], s[0:1], %d" % KA["wo"])
        k("s_load_dwordx8 s[64:71], s[0:1], %d" % KA["w_in"])
        k("s_load_dwordx2 s[62:63], s[0:1], %d" % KA["out"])
        k("v_and_b32 v104, 63, v0")
        k("v_lshlrev_b32 v104, %d, v104" % tlb)
        srd_in(k, 40, 6, 0x4E00000)
        for n in range(0x4E00000 >> (tlb + 6)):
            k("s_mov_b32 s14, %d" % (n << (tlb + 6)))
            k("buffer_load_dword v107, v104, s[40:43], s14 offen")
        k("s_mov_b32 s14, %d" % ((0x4E00000 >> (tlb + 6)) << (tlb + 6)))
        k("buffer_load_dword v107, v104, s[40:43], s14 offen")
        k("s_waitcnt lgkmcnt(0)")
        for (p, nm) in ((60, "wo"), (64, "w_in"), (66, "w_sp"), (70, "w_out"), (62, "out"), (10, "w_mod")):
            srd_in(k, 40, p, SZ[nm])
            k("buffer_load_dword v107, v104, s[40:43], 0 offen")
        k.label(NT_)
    k.stamp(2)
    GO = k.uid("go")
    k("s_cmp_lg_u32 s3, 3")
    k("s_cbranch_scc1 " + GO)
    k("v_mov_b32 v2, 0")
    wait_flag(False)
    k.label(GO)
    k("s_waitcnt lgkmcnt(0)")
    k("s_barrier")
    k.stamp(3)
    T0 = 68
    for n, (idx, p) in enumerate([(1, p) for p in range(4)] + [(0, p) for p in range(4)]):
        k("s_mov_b32 s%d, %d" % (60 + n, (p * 6144 + idx * 1024) * 4))

    def par_loads():
        for n in range(8):
            k("buffer_load_dwordx4 %s, v4, s[44:47], s%d offen sc1" % (v(T0 + 4 * n, 4), 60 + n))
    par_loads()
    k("ds_read_b128 v[8:11], v7 offset:8192")
    k("ds_read_b128 v[12:15], v7 offset:8208")
    k("s_waitcnt lgkmcnt(0)")
    k("v_pk_add_f32 v[8:9], v[8:9], v[10:11]")
    k("v_pk_add_f32 v[12:13], v[12:13], v[14:15]")
    k("v_pk_add_f32 v[8:9], v[8:9], v[12:13]")
    stats_to_affine(k, 8, 1024)
    for o in range(32, 64, 2):
        k("v_pk_fma_f32 v[%d:%d], v[%d:%d], v[8:9], v[8:9] %s" % (o, o + 1, o, o + 1, BCAST))
    srd_ws(k, 40, 6, "WQF")
    k("v_bfe_u32 v2, v100, 2, 2")
    k("v_and_b32 v3, 3, v100")
    k("v_lshlrev_b32 v101, 3, v3")
    k("v_lshl_add_u32 v101, v2, 7, v101")
    k("v_lshrrev_b32 v2, 5, v100")
    k("v_lshl_add_u32 v101, v2, 10, v101")
    k("v_bfe_u32 v2, v100, 4, 1")
    k("v_lshl_add_u32 v101, v2, 5, v101")
    k("v_add_u32 v101, s19, v101")
    k("v_lshlrev_b32 v100, 4, v100")
    for u in range(2):
        k("s_and_b32 s15, s%d, 15" % (69 + 2 * u))
        k("s_mul_i32 s15, s15, %d" % (2 * 196608))
        k("s_mul_i32 s16, s%d, 6144" % (68 + 2 * u))
        k("s_add_u32 s15, s15, s16")
        k("s_lshr_b32 s16, s%d, 4" % (69 + 2 * u))
        k("s_lshl_b32 s16, s16, 10")
        k("s_add_u32 s15, s15, s16")
        if u:
            k("s_or_b32 s15, s15, s72")
        k("s_add_u32 s16, s15, 196608")
        if u == 0:
            k("s_waitcnt vmcnt(8)")
        for b in range(4):
            for rd in range(2):
                k("ds_read_b64_tr_b16 %s, v101 offset:%d" %
                  (v(108 + 16 * u + 4 * b + 2 * rd, 2), u * 4096 + (b >> 1) * 2048 + rd * 512 + (b & 1) * 64))
        for b in range(4):
            k("s_waitcnt lgkmcnt(%d)" % (6 - 2 * b))
            k("buffer_store_dwordx4 %s, v100, s[40:43], s%d offen offset:%d sc1" % (v(108 + 16 * u + 4 * b, 4), 15 + (b & 1), (b >> 1) * 3072))
    k("v_lshrrev_b32 v2, 1, v0")
    k("v_lshlrev_b32 v2, 6, v2")
    k("v_and_b32 v3, 1, v0")
    k("v_lshl_add_u32 v2, v3, 4, v2")
    RE, OK = k.uid("retry"), k.uid("ok")
    k("s_mov_b32 s16, 0")
    k("s_waitcnt vmcnt(8)")
    k.label(RE)
    k("v_max_u32 v3, v%d, v%d" % (T0, T0 + 1))
    for e in range(2, 32, 2):
        k("v_max3_u32 v3, v3, v%d, v%d" % (T0 + e, T0 + e + 1))
    k("v_cmp_eq_u32 vcc, -1, v3")
    k("s_cbranch_vccz " + OK)
    k("s_sleep 4")
    par_loads()
    k("s_add_u32 s16, s16, 1")
    k("s_cmp_lt_u32 s16, 0x100000")
    k("s_waitcnt vmcnt(0)")
    k("s_cbranch_scc1 " + RE)
    k.label(OK)
    k.stamp(6)
    for b in (T0, T0 + 16):
        for (x, y) in ((0, 4), (8, 12), (0, 8)):
            for e in (0, 2):
                k("v_pk_add_f32 %s, %s, %s" % (v(b + x + e, 2), v(b + x + e, 2), v(b + y + e, 2)))
        for e in (0, 2):
            k("v_cvt_pk_bf16_f32 v3, v%d, v%d" % (b + e, b + e + 1))
            unpack_bf16(k, b + e, b + e + 1, 3)
    for e in range(4):
        k("v_add_f32 v%d, 1.0, v%d" % (T0 + e, T0 + e))
    for e in (0, 2):
        k("v_cvt_pk_bf16_f32 v3, v%d, v%d" % (T0 + e, T0 + e + 1))
        unpack_bf16(k, T0 + e, T0 + e + 1, 3)
    k("ds_write_b128 v2, %s" % v(T0, 4))
    k("ds_write_b128 v2, %s offset:32" % v(T0 + 16, 4))
    k("s_waitcnt lgkmcnt(0)")
    k("s_barrier")
    for n in range(2):
        for q in range(4):
            k("ds_read_b128 %s, v65 offset:%d" % (v(T0 + 16 * n + 4 * q, 4), n * 512 + q * 16))
    for n in range(4):
        G = T0 + 16 * (n & 1)
        k("s_waitcnt lgkmcnt(%d)" % (4 if n < 3 else 0))
        for d in range(4):
            o = 32 + 8 * n + 2 * d
            k("v_pk_fma_f32 v[%d:%d], v[%d:%d], %s, %s" % (o, o + 1, o, o + 1, v(G + 2 * d, 2), v(G + 8 + 2 * d, 2)))
        if n < 2:
            for q in range(4):
                k("ds_read_b128 %s, v65 offset:%d" % (v(G + 4 * q, 4), (n + 2) * 512 + q * 16))
        for d in range(4):
            o = 32 + 8 * n + 2 * d
            k("v_cvt_pk_bf16_f32 v%d, v%d, v%d" % (16 + 4 * n + d, o, o + 1))
        k("buffer_store_dwordx4 v[%d:%d], v64, s[24:27], s%d offen" % (16 + 4 * n, 19 + 4 * n, 36 + n))
    k.stamp(4)
    k.stamp_dump(5)
    k.label(END)
    k("s_endpgm")
    txt, n = k.finish(vgprs=140, sgprs=80)
    return txt, "; @launch kernel=%s grid=(385,1,1) block=(256,1,1) lds=%d" % (name, 12288 + 32768)
```

```python
from sync import *
from gemms import pack16, swap8, MIXLO, MIXHI
from attn import emit_attn, ATT_LDS, SY, QF
from m2 import dep, emit_m2, M2_LDS

NS1 = 3
PAR = NS1 * 45056


def gen_m1(name="mm_kernel", force_slow=False):
    k = Kern(name)
    END, REST, PROD, COMP, HELP = [k.uid(x) for x in ("end", "rest", "prod", "comp", "help")]
    FR, ACC = 24, 64
    k("s_cmp_ge_u32 s2, 256")
    k("s_cbranch_scc1 " + END)
    k.kidx = 1
    k.stamp_init()
    k("s_load_dwordx2 s[6:7], s[0:1], %d" % KA["ws"])
    k("v_lshrrev_b32 v2, 6, v0")
    k("v_and_b32 v%d, 63, v0" % V_LANE)
    k("v_readfirstlane_b32 s19, v2")
    map_blocks(k, 2, 8, 1)
    k("s_mov_b32 s%d, s19" % S_WAVE)
    k("s_cmp_lt_u32 s19, 4")
    k("s_cbranch_scc1 " + REST)

    def ex_init(k):
        k("v_lshlrev_b32 v2, 4, v0")
        k("v_cmp_gt_u32 vcc, 2432, v2")
        k("v_mov_b32 v3, 0x7f000000")
        k("v_cndmask_b32 v2, v3, v2, vcc")
        for r in (12, 13, 14, 15):
            k("v_mov_b32 v%d, -1.0" % r)
        k("s_mul_i32 s50, s2, 2432")
        srd_ws(k, SRD_E0, 6, "EX")
        k("buffer_store_dwordx4 v[12:15], v2, %s, s50 offen sc1" % s(SRD_E0, 4))

    def epilogue(k):
        qs = 32 ** -0.5 * LOG2E
        k("v_lshlrev_b32 v2, 4, v%d" % V_LANE)
        k("s_lshl_b32 s56, s%d, 17" % S_BN)
        k("s_lshl_b32 s57, s%d, 14" % S_BM)
        k("s_add_u32 s56, s56, s57")
        k("s_lshl_b32 s59, s%d, 12" % S_WAVE)
        k("s_add_u32 s56, s56, s59")
        k("s_add_u32 s57, s56, 0x400000")
        k("s_add_u32 s58, s56, 0x800000")
        k("s_lshr_b32 s62, s%d, 1" % S_WAVE)
        k("s_lshl_b32 s62, s62, 13")
        k("s_add_u32 s62, s62, s59")
        k("v_add_u32 v3, s62, v2")
        k("s_mov_b32 s60, %s" % fhex(qs))
        k("s_mov_b32 s61, %s" % fhex(qs))
        n = 0
        for j in (1, 2, 0):
            for i in range(2):
                A = ACC + 16 * (i * 3 + j)
                P = FR + 8 * n if j else QF + 8 * i
                n += 1
                if j == 0:
                    for e in range(0, 16, 2):
                        k("v_pk_mul_f32 %s, %s, s[60:61]" % (v(A + e, 2), v(A + e, 2)))
                pack16(k, P, A)
                if j != 2:
                    swap8(k, P)
                for mf in range(2):
                    o = i * 2048 + mf * 1024
                    if j:
                        k("buffer_store_dwordx4 %s, v2, %s, s%d offen offset:%d sc1" % (v(P + 4 * mf, 4), s(SRD_E1, 4), 56 + j, o))
                        k("ds_write_b128 v3, %s offset:%d" % (v(P + 4 * mf, 4), (j - 1) * 8192 + o))

    def srds_p(k):
        srd_ws_sub(k, SRD_X, 6, "H", 81, 16 * 32768)
        srd_ws_sub(k, SRD_W, 6, "WQF", 80, 16 * 12288)

    def dma_setup(k):
        k("s_mul_i32 s50, s%d, 3072" % S_WAVE)
        k("v_lshl_add_u32 v8, v%d, 4, s50" % V_LANE)
        k("s_mul_i32 s80, s%d, %d" % (S_BN, 16 * 12288))
        k("s_lshl_b32 s81, s%d, 19" % S_BM)
        k("s_mov_b32 s82, 0")
        k("s_lshl_b32 s50, s%d, 13" % S_WAVE)
        k("v_lshl_add_u32 v5, v%d, 4, s50" % V_LANE)
        k("v_add_u32 v6, 4096, v5")
        return [Dma(SRD_X, [5, 5, 5, 5, 6, 6, 6, 6], 32768, 0, 32768, 82),
                Dma(SRD_W, [8, 8, 8], 12288, NS1 * 32768, 12288, 82)]

    cfg = dict(PD=1, T=16, MT=2, NT=3, NS=NS1, wgrid="4x1", srds_p=srds_p, x_ks=8192,
               x_ring=(0, 32768, NS1), w_ring=(NS1 * 32768, 12288, NS1), x_mode="dma_fm", w_mode="fm",
               w_wave_stride=0, swap_tile=lambda j: j == 2,
               FRAG=FR, ACC=ACC, dma_setup=dma_setup, epilogue=epilogue, cons_loads=ex_init)

    k("s_sub_u32 s%d, s19, 4" % S_WAVE)
    prod_phase(k, cfg, 0, first=True)
    k("s_branch " + HELP)

    k.label(REST)
    k("s_waitcnt lgkmcnt(0)")
    srd_ws(k, SRD_E1, 6, "QKV")
    cons_phase(k, cfg, 0)
    pr = dict(srd=96, off=94, seen=95, tmp=101, acc=100, cnt=4, va=96, vv=97, vl=98)
    C2, P2 = "L_mm_second", k.uid("p2")
    hooks = {}

    def after_comp(k):
        signal(k, FL0, S_BM, S_BN, lg=5)
        k.stamp_next(2)
        k("s_branch " + C2)

    def after_help(k, lds_wait):
        hooks["w"] = lds_wait
        k.stamp_next(2)
        k("s_branch " + P2)
    emit_attn(k, COMP, HELP, Poll(FL1, 21, 2048, 1024, regs=pr, s_rot=18, lg=5, barrier=False, lds=SY + 4),
              force_slow=force_slow, after_comp=after_comp, after_help=after_help)

    def gate(k):
        W, G, F = k.uid("hw"), k.uid("hg"), k.uid("hf")
        k("s_mov_b32 s63, 13")
        hooks["w"](16, 63, True)
        k("s_cmp_lg_u32 s%d, 0" % S_WAVE)
        k("s_cbranch_scc1 " + F)
        srd_ws(k, SRD_E1, 6, "HF")
        k("v_lshlrev_b32 v24, 4, v%d" % V_LANE)
        k("s_mov_b32 s64, 0")
        k.label(W)
        k("buffer_load_dwordx4 v[28:31], v24, %s, 0 offen sc1" % s(SRD_E1, 4))
        k("s_add_u32 s64, s64, 1")
        k("s_waitcnt vmcnt(0)")
        k("v_min_f32 v28, v28, v29")
        k("v_min3_f32 v28, v28, v30, v31")
        k("v_cmp_gt_f32 vcc, 0, v28")
        k("s_cbranch_vccz " + G)
        k("s_sleep 8")
        k("s_cmp_lt_u32 s64, 0x100000")
        k("s_cbranch_scc1 " + W)
        k.label(G)
        k("v_mov_b32 v28, 100")
        k("ds_write_b32 v7, v28 offset:32")
        k.label(F)
        k("s_mov_b32 s63, 0")
        hooks["w"](32, 63, False, 2)
    k.label(C2)
    emit_m2(k, "c")
    k.label(P2)
    emit_m2(k, "p", gate)
    k.label(END)
    k("s_endpgm")
    txt, n = k.finish(vgprs=194, sgprs=102)
    return txt, "; @launch kernel=%s grid=(256,1,1) block=(512,1,1) lds=%d" % (name, M2_LDS)
```

```python
from gemm import *
from gemms import (w_voff, pack16, swap8, ex_addr, both_halves, ex_publish, stats_to_affine, BCAST)
from sync import *
import math

S_WM, S_WN = 48, 49
P_X, P_WS, P_WSP, P_BSP, P_OUT = 4, 6, 8, 10, 16
MV = 162688
X1R, FR, Z1R, BR = 16, 32, 80, 192


def ex_collect(k, R, G, vr, srd, soff, n, nq, nb=1, bstride=0):
    L, D = k.uid("poll"), k.uid("got")
    k("s_mov_b32 s64, 0")
    offs = {}
    nxt = 65
    for b in range(nb):
        for hi in range((nq + 7) // 8):
            c = b * bstride + hi * 4096
            if c == 0:
                offs[(b, hi)] = soff
            else:
                k("s_add_u32 s%d, s%d, %d" % (nxt, soff, c))
                offs[(b, hi)] = nxt
                nxt += 1
    k.label(L)
    for b in range(nb):
        for q in range(nq):
            k("buffer_load_dwordx2 %s, v%d, %s, s%d offen offset:%d sc1" %
              (v(R[b] + 2 * q, 2), vr, s(srd, 4), offs[(b, q // 8)], (q & 7) * 512))
    k("s_waitcnt vmcnt(0)")
    k("v_mov_b32 v2, 0")
    for b in range(nb):
        for q in range(0, nq, 2):
            k("v_min3_f32 v2, v2, v%d, v%d" % (R[b] + 2 * q + 1, R[b] + 2 * q + 3))
    k("v_cmp_gt_f32 vcc, 0, v2")
    k("s_cbranch_vccz " + D)
    k("s_sleep 2")
    k("s_add_u32 s64, s64, 1")
    k("s_cmp_lt_u32 s64, 0x100000")
    k("s_cbranch_scc1 " + L)
    k.label(D)
    for b in range(nb):
        Rb = R[b]
        m = nq
        while m > 1:
            h = (m + 1) // 2
            for e in range(m - h):
                k("v_pk_add_f32 %s, %s, %s" % (v(Rb + 2 * e, 2), v(Rb + 2 * e, 2), v(Rb + 2 * (e + h), 2)))
            m = h
        both_halves(k, Rb, Rb + 2)
        both_halves(k, Rb + 1, Rb + 3)
        stats_to_affine(k, Rb, n)
        k("v_mov_b32 v%d, v%d" % (G + 2 * b, Rb))
        k("v_mov_b32 v%d, v%d" % (G + 2 * b + 1, Rb + 1))


def dep(d):
    d.dep = True
    return d


def lin_voff(k):
    k("s_mov_b32 s82, 0")
    k("s_lshl_b32 s50, s%d, 12" % S_WAVE)
    k("v_lshl_add_u32 v5, v%d, 4, s50" % V_LANE)


def cfg25(which, PD=3, NS=5, gate=None):
    T = 16 if which == 2 else 28
    ACC, GA, XR, T2 = 80, 112, 144, 160

    def srds_c(k):
        if which == 2:
            srd_in(k, SRD_E1, P_X, SZ["x"])
            srd_ws(k, SRD_E2, P_WS, "H2")
            srd_ws(k, SRD_E3, P_WS, "EX2")
        else:
            srd_in(k, SRD_E2, P_OUT, SZ["out"])

    def srds_p(k):
        srd_ws_sub(k, SRD_X, P_WS, "O" if which == 2 else "U", 81, T * 16384)
        srd_ws_sub(k, SRD_W, P_WS, "WOF" if which == 2 else "WOUTF", 80, T * 8192)
        if which == 2:
            srd_ws(k, SRD_E0, P_WS, "MODP")

    def dma_setup(k):
        k("s_lshl_b32 s50, s%d, 11" % S_WAVE)
        k("v_lshl_add_u32 v8, v%d, 4, s50" % V_LANE)
        k("s_mul_i32 s80, s%d, %d" % (S_BN, T * 8192))
        k("s_mul_i32 s81, s%d, %d" % (S_BM, T * 16384))
        lin_voff(k)
        if which == 2:
            k("s_lshl_b32 s56, s%d, 8" % S_BN)
            k("s_add_u32 s56, s56, s50")
            k("s_add_u32 s56, s56, %d" % (2 * 4096))
            for p in range(1, 4):
                k("s_add_u32 s%d, s56, %d" % (59 + p, p * 6144 * 4))
            k("v_lshlrev_b32 v12, 2, v%d" % V_LANE)
            k("s_cmp_eq_u32 s%d, 2" % S_WAVE)
            k("s_cselect_b32 s58, 1.0, 0")
            k("s_lshl_b32 s59, s%d, 8" % S_WAVE)
            k("s_add_u32 s59, s59, %d" % MV)
            k("v_add_u32 v13, s59, v12")
        x = Dma(SRD_X, [5, 5, 5, 5], 16384, 0, 16384, 82)
        w = Dma(SRD_W, [8, 8], 8192, NS * 16384, 8192, 82)
        w.sc1 = True
        return [dep(x), w]

    def prod_pre_load(k):
        gate(k)
        k("buffer_load_dword v14, v12, %s, s56 offen sc1" % s(SRD_E0, 4))
        for p in range(1, 4):
            k("buffer_load_dword v%d, v12, %s, s%d offen sc1" % (20 + p, s(SRD_E0, 4), 59 + p))
        k("s_mov_b32 s65, s58")

    def prod_pre_fin(k):
        k("v_add_f32 v14, v14, v21")
        k("v_add_f32 v22, v22, v23")
        k("v_add_f32 v14, v14, v22")
        k("v_cvt_pk_bf16_f32 v14, v14, v14")
        k("v_lshlrev_b32 v14, 16, v14")
        k("v_add_f32 v14, s65, v14")
        k("v_cvt_pk_bf16_f32 v14, v14, v14")
        k("v_lshlrev_b32 v14, 16, v14")
        k("ds_write_b32 v13, v14")
        k("s_waitcnt lgkmcnt(0)")

    def cons_pre(k):
        k("v_lshrrev_b32 v3, 5, v%d" % V_LANE)
        k("v_lshlrev_b32 v13, 4, v3")
        k("v_add_u32 v13, %d, v13" % MV)
        if which == 2:
            k("v_and_b32 v2, 31, v%d" % V_LANE)
            k("v_lshlrev_b32 v11, 11, v2")
            k("v_lshl_add_u32 v11, v3, 4, v11")
            k("s_lshl_b32 s60, s%d, 18" % S_BM)
            k("s_lshl_b32 s58, s%d, 16" % S_WAVE)
            k("s_add_u32 s60, s60, s58")
            k("s_lshl_b32 s58, s%d, 7" % S_BN)
            k("s_add_u32 s60, s60, s58")
            k("s_lshl_b32 s59, s%d, 4" % S_BM)
            k("s_add_u32 s59, s59, s%d" % S_BN)
            k("s_lshl_b32 s59, s59, 14")
            k("s_lshl_b32 s58, s%d, 11" % S_WAVE)
            k("s_add_u32 s57, s59, s58")
            k("s_add_u32 s55, s57, 8192")
            k("v_bfe_u32 v2, v%d, 4, 1" % V_LANE)
            k("v_lshlrev_b32 v12, 10, v2")
            k("v_lshl_add_u32 v12, v3, 8, v12")
            k("v_and_b32 v2, 15, v%d" % V_LANE)
            k("v_lshl_add_u32 v12, v2, 4, v12")
            ex_addr(k, 14)
            k("s_lshl_b32 s56, s%d, 2" % S_BM)
            k("s_add_u32 s56, s56, s%d" % S_WAVE)
            k("s_lshl_b32 s56, s56, 12")
            k("s_lshl_b32 s58, s%d, 8" % S_BN)
            k("s_add_u32 s58, s58, s56")
        else:
            k("v_and_b32 v2, 31, v%d" % V_LANE)
            k("v_lshlrev_b32 v12, 11, v2")
            k("v_lshl_add_u32 v12, v3, 4, v12")
            k("s_lshl_b32 s58, s%d, 18" % S_BM)
            k("s_lshl_b32 s56, s%d, 16" % S_WAVE)
            k("s_add_u32 s58, s58, s56")
            k("s_lshl_b32 s56, s%d, 7" % S_BN)
            k("s_add_u32 s58, s58, s56")

    def cons_loads(k):
        for q in range(4):
            k("buffer_load_dwordx4 %s, v11, %s, s60 offen offset:%d" % (v(XR + 4 * q, 4), s(SRD_E1, 4), q * 32))
        srd_in(k, SRD_E0, P_BSP, SZ["b_sp"])
        k("v_and_b32 v2, 15, v%d" % V_LANE)
        k("v_lshlrev_b32 v2, 1, v2")
        k("s_lshr_b32 s61, s56, 6")
        for i in range(2):
            k("buffer_load_ushort v%d, v2, %s, s61 offen offset:%d" % (BR + i, s(SRD_E0, 4), i * 32))

    def mv_read(k, R, vec):
        for jg in range(8):
            k("ds_read_b128 %s, v13 offset:%d" % (v(R + 4 * jg, 4), vec * 256 + jg * 32))

    def prework(k):
        mv_read(k, GA, 0 if which == 2 else 3)
        src = X1R
        if which == 2:
            src = XR
            k("s_waitcnt vmcnt(0)")
            swap8(k, XR)
            swap8(k, XR + 8)
            for i in range(2):
                k("v_lshlrev_b32 v%d, 16, v%d" % (BR + i, BR + i))
        for d in range(16):
            unpack_bf16(k, T2 + 2 * d, T2 + 2 * d + 1, src + d)

    def epilogue(k):
        TT = T2
        if which == 2:
            for r in (4, 5, 6, 7):
                k("v_mov_b32 v%d, 0" % r)
        for d in range(16):
            k("v_pk_fma_f32 %s, %s, %s, %s" % (v(ACC + 2 * d, 2), v(ACC + 2 * d, 2), v(GA + 2 * d, 2), v(TT + 2 * d, 2)))
        if which == 5:
            for j in range(2):
                P = FR + 8 * j
                pack16(k, P, ACC + 16 * j)
                swap8(k, P)
                for p in range(2):
                    k("buffer_store_dwordx4 %s, v12, %s, s58 offen offset:%d" % (v(P + 4 * p, 4), s(SRD_E2, 4), j * 64 + p * 32))
            return
        for d in range(16):
            k("v_pk_add_f32 v[4:5], v[4:5], %s" % v(ACC + 2 * d, 2))
            k("v_pk_fma_f32 v[6:7], %s, %s, v[6:7]" % (v(ACC + 2 * d, 2), v(ACC + 2 * d, 2)))
        ex_publish(k, 4, 14, SRD_E3, 58)
        mv_read(k, GA, 2)
        mv_read(k, TT, 1)
        for j in range(2):
            pack16(k, X1R + 8 * j, ACC + 16 * j)
        k.stamp(24)
        ex_collect(k, [FR + 16], 4, 14, SRD_E3, 56, 1024, 8)
        k.stamp(25)
        k("s_waitcnt lgkmcnt(0)")
        for j in range(2):
            for d in range(8 * j, 8 * j + 8):
                k("v_pk_fma_f32 %s, %s, v[4:5], v[4:5] %s" % (v(ACC + 2 * d, 2), v(ACC + 2 * d, 2), BCAST))
            for d in range(8 * j, 8 * j + 8):
                k("v_pk_fma_f32 %s, %s, %s, %s" % (v(ACC + 2 * d, 2), v(ACC + 2 * d, 2), v(GA + 2 * d, 2), v(TT + 2 * d, 2)))
            P = FR + 8 * j
            pack16(k, P, ACC + 16 * j)
            swap8(k, P)
            for p in range(2):
                k("buffer_store_dwordx4 %s, v12, %s, s%d offen offset:%d sc1" % (v(P + 4 * p, 4), s(SRD_E2, 4), 55 if j else 57, p * 512))
        k.stamp(26)
        signal(k, FL2, S_BM, S_BN, 5)

    c = dict(PD=PD, T=T, MT=1, NT=2, NS=NS, wgrid="4x1", srds_c=srds_c, srds_p=srds_p,
             map=lambda k: map_blocks(k, 2, 8, 2),
             x_ring=(0, 16384, NS), w_ring=(NS * 16384, 8192, NS), x_mode="dma_fm", w_mode="fm",
             w_wave_stride=0, reads_per_mfma=3,
             FRAG=FR, ACC=ACC, dma_setup=dma_setup, cons_pre=cons_pre, epilogue=epilogue)
    if which == 2:
        c.update(cons_loads=cons_loads, prod_pre_load=prod_pre_load, prod_pre_fin=prod_pre_fin, mid=(8, prework),
                 poll=Poll(FL0, 22, 2048, 1024, lg=5, lds=MV + 1024))
    else:
        c.update(cons_pre=lambda k: (cons_pre(k), prework(k), k("s_waitcnt lgkmcnt(0)")), poll=Poll(FL4, S_BM, 4 * 147, 3 * 147, lds=MV + 1024))
    return c


C0 = -2.0 * math.sqrt(2.0 / math.pi) * LOG2E
C1 = C0 * 0.044715


def gelu(k, A, n, TT):
    for e in range(0, n, 2):
        k("v_pk_mul_f32 %s, %s, %s" % (v(TT + e, 2), v(A + e, 2), v(A + e, 2)))
    for e in range(0, n, 2):
        k("v_pk_fma_f32 %s, %s, s[60:61], v[12:13]" % (v(TT + e, 2), v(TT + e, 2)))
    for e in range(0, n, 2):
        k("v_pk_mul_f32 %s, %s, %s" % (v(TT + e, 2), v(TT + e, 2), v(A + e, 2)))
    for e in range(n):
        k("v_exp_f32 v%d, v%d" % (TT + e, TT + e))
    for e in range(0, n, 2):
        k("v_pk_add_f32 %s, %s, 1.0 op_sel_hi:[1,0]" % (v(TT + e, 2), v(TT + e, 2)))
    for e in range(n):
        k("v_rcp_f32 v%d, v%d" % (TT + e, TT + e))
    for e in range(0, n, 2):
        k("v_pk_mul_f32 %s, %s, %s" % (v(A + e, 2), v(A + e, 2), v(TT + e, 2)))


def pack8(k, P, A):
    for d in range(4):
        k("v_cvt_pk_bf16_f32 v%d, v%d, v%d" % (P + d, A + 2 * d, A + 2 * d + 1))


def swap16(k, P):
    k("v_permlane16_swap_b32 v%d, v%d" % (P, P + 2))
    k("v_permlane16_swap_b32 v%d, v%d" % (P + 1, P + 3))


def cfg3():
    ACC = 80

    def srds_c(k):
        srd_ws(k, SRD_E2, P_WS, "Z2")
        srd_ws(k, SRD_E3, P_WS, "EX3")

    def srds_p(k):
        srd_ws_sub(k, SRD_X, P_WS, "H2", 81, 16 * 16384)
        srd_ws_sub(k, SRD_W, P_WS, "WINF", 80, 16 * 28672)

    def dma_setup(k):
        k("s_mul_i32 s50, s%d, 7168" % S_WAVE)
        k("v_lshl_add_u32 v8, v%d, 4, s50" % V_LANE)
        k("v_add_u32 v9, 4096, v8")
        k("s_mul_i32 s80, s%d, %d" % (S_BN, 16 * 28672))
        k("s_lshl_b32 s81, s%d, 18" % S_BM)
        lin_voff(k)
        w = Dma(SRD_W, [8, 8, 8, 8, 9, 9, 9], 28672, 69632, 28672, 82)
        w.sc1 = True
        w.start = 1
        return [dep(Dma(SRD_X, [5, 5, 5, 5], 16384, 0, 16384, 82)), w]

    def epilogue(k):
        Z2A = ACC + 56
        k("s_mov_b32 s60, %s" % fhex(C1))
        k("s_mov_b32 s61, %s" % fhex(C1))
        k("v_mov_b32 v12, %s" % fhex(C0))
        k("v_mov_b32 v13, %s" % fhex(C0))
        k("s_lshl_b32 s57, s%d, 2" % S_BM)
        k("s_add_u32 s57, s57, s%d" % S_WAVE)
        k("s_lshl_b32 s62, s57, 12")
        k("s_lshl_b32 s63, s%d, 8" % S_BN)
        k("s_add_u32 s63, s63, s62")
        ex_addr(k, 14)
        for r in range(4, 12):
            k("v_mov_b32 v%d, 0" % r)
        for (a, n) in ((0, 24), (24, 32)):
            gelu(k, Z2A + a, n, FR)
            for e in range(a, a + n, 2):
                S = 4 + 4 * ((e >> 2) & 1)
                k("v_pk_add_f32 %s, %s, %s" % (v(S, 2), v(S, 2), v(Z2A + e, 2)))
                k("v_pk_fma_f32 %s, %s, %s, %s" % (v(S + 2, 2), v(Z2A + e, 2), v(Z2A + e, 2), v(S + 2, 2)))
        for r in (4, 6, 8, 10):
            k("v_add_f32 v%d, v%d, v%d" % (r, r, r + 1))
        k("v_permlane16_swap_b32 v4, v8")
        k("v_permlane16_swap_b32 v6, v10")
        k("v_mov_b32 v5, v8")
        k("v_mov_b32 v7, v10")
        ex_publish(k, 4, 14, SRD_E3, 63)
        k.stamp(27)

        def z1(a, n):
            gelu(k, ACC + a, n, FR)
        z1(0, 32)
        k.stamp(28)
        k("v_and_b32 v2, 19, v%d" % V_LANE)
        k("v_lshlrev_b32 v15, 5, v2")
        k("v_bfe_u32 v2, v%d, 2, 1" % V_LANE)
        k("v_lshl_add_u32 v15, v2, 8, v15")
        k("v_bfe_u32 v2, v%d, 3, 1" % V_LANE)
        k("v_lshl_add_u32 v15, v2, 7, v15")
        k("v_lshrrev_b32 v2, 5, v%d" % V_LANE)
        k("v_lshl_add_u32 v15, v2, 4, v15")
        k("s_mul_i32 s56, s%d, 7168" % S_WAVE)
        k("s_add_u32 s56, s56, 65536")
        k("v_add_u32 v15, s56, v15")
        k("v_lshlrev_b32 v8, 9, v2")
        k("v_and_b32 v2, 31, v%d" % V_LANE)
        k("v_lshl_add_u32 v8, v2, 3, v8")
        k("v_add_u32 v8, s56, v8")
        k("v_lshlrev_b32 v9, 4, v%d" % V_LANE)
        k("s_lshl_b32 s56, s%d, 6" % S_BN)
        k("s_add_u32 s56, s56, s57")
        k("s_mul_i32 s56, s56, 7168")
        k("s_add_u32 s58, s56, 4096")
        ex_collect(k, [FR], 4, 14, SRD_E3, 62, 1792, 8)
        k("v_mov_b32 v6, v4")
        k("v_mov_b32 v7, v5")
        k("v_permlane16_swap_b32 v4, v6")
        k("v_permlane16_swap_b32 v5, v7")

        def back(ct):
            k("s_waitcnt lgkmcnt(%d)" % (3 if ct < 6 else 0))
            k("buffer_store_dwordx4 %s, v9, %s, s%d offen offset:%d sc1" %
              (v(Z2A + 8 * ct + 4, 4), s(SRD_E2, 4), 56 if ct < 4 else 58, (ct & 3) * 1024))
        for ct in range(7):
            A = Z2A + 8 * ct
            for e in range(0, 8, 2):
                G = v(4 + 2 * (e >> 2), 2)
                k("v_pk_fma_f32 %s, %s, %s, %s %s" % (v(A + e, 2), v(A + e, 2), G, G, BCAST))
            pack8(k, A, A)
            swap16(k, A)
            k("ds_write_b128 v15, %s offset:%d" % (v(A, 4), ct * 1024))
            for rd in range(2):
                k("ds_read_b64_tr_b16 %s, v8 offset:%d" % (v(A + 4 + 2 * rd, 2), ct * 1024 + rd * 256))
            if ct:
                back(ct - 1)
        back(6)
        k.stamp(29)
        signal(k, FL3, S_BN, S_BM, 11)
        k.stamp(12)
        z1(32, 24)

    return dict(T=16, NT=14, NS=3, srds_c=srds_c, srds_p=srds_p, m16=True,
                x_ring=(0, 16384, 3), w_ring=(69632, 28672, 3), w_start=1, w_mode="fm16", D=6, pause=2, wgroup=2,
                FRAG=FR, ACC=ACC, dma_setup=dma_setup, epilogue=epilogue, poll=Poll(FL2, S_BM, 1024, 0, lds=MV + 1024))


def cfg4(NS=4):
    WR = NS * 16384
    ACC = 136

    def srds_c(k):
        srd_ws(k, SRD_E2, P_WS, "U")

    def srds_p(k):
        srd_in(k, SRD_X, P_WSP, SZ["w_sp"])
        srd_ws_sub(k, SRD_W, P_WS, "Z2", 81, 32 * 14336)

    def dma_setup(k):
        k("s_mul_i32 s50, s%d, 3584" % S_WAVE)
        k("v_lshl_add_u32 v8, v%d, 4, s50" % V_LANE)
        k("s_lshl_b32 s80, s%d, 19" % S_BM)
        k("s_mul_i32 s81, s%d, %d" % (S_BN, 32 * 14336))
        k("s_mov_b32 s82, 0")
        k("v_lshrrev_b32 v2, 3, v%d" % V_LANE)
        k("s_lshl_b32 s50, s%d, 5" % S_WAVE)
        k("v_add_u32 v2, s50, v2")
        k("v_bfe_u32 v3, v2, 1, 3")
        k("v_and_b32 v4, 7, v%d" % V_LANE)
        k("v_xor_b32 v3, v3, v4")
        k("v_lshlrev_b32 v3, 4, v3")
        k("v_lshl_add_u32 v10, v2, 12, v3")
        k("v_xor_b32 v11, 64, v10")
        k("v_add_u32 v11, %d, v11" % (8 * 4096 - 1024))
        k("v_add_u32 v12, %d, v10" % (16 * 4096 - 2048))
        k("v_add_u32 v13, %d, v11" % (16 * 4096 - 2048))
        w = dep(Dma(SRD_W, [8, 8, 8, 8], 14336, WR, 14336, 82))
        w.half_last = True
        return [Dma(SRD_X, [10, 11, 12, 13], 128, 0, 16384, 80), w]

    def cons_pre(k):
        k("v_lshlrev_b32 v12, 4, v%d" % V_LANE)
        k("s_mul_i32 s61, s%d, %d" % (S_BM, 28 * 16384))
        k("s_mul_i32 s62, s%d, %d" % (S_BN, 7 * 4096))
        k("s_add_u32 s61, s61, s62")
        k("s_lshl_b32 s62, s%d, 10" % S_WAVE)
        k("s_add_u32 s61, s61, s62")

    def epilogue(k):
        for ct in range(7):
            A = ACC + 8 * ct
            P = FR + 4 * ct
            for e in range(0, 8, 2):
                k("v_pk_mul_f32 %s, %s, %s" % (v(A + e, 2), v(A + e, 2), v(Z1R + 8 * ct + e, 2)))
            pack8(k, P, A)
            swap16(k, P)
            k("s_add_u32 s62, s61, %d" % (ct * 4096))
            k("buffer_store_dwordx4 %s, v12, %s, s62 offen sc1" % (v(P, 4), s(SRD_E2, 4)))
        k.stamp(30)
        signal(k, FL4, S_BM, S_BN, 17)

    return dict(T=32, NT=7, NS=NS, srds_c=srds_c, srds_p=srds_p, m16=True,
                x_ring=(0, 16384, NS), w_ring=(WR, 14336, NS), w_mode="fm16", x_mode="dma_swz", D=6, pause=2,
                FRAG=FR, ACC=ACC, dma_setup=dma_setup, cons_pre=cons_pre, acc_init=lambda i: "v%d" % (BR + ((i >> 2) & 1)),
                epilogue=epilogue, poll=Poll(FL3, S_BN, 512, 0, lds=MV + 1024))


def emit_m2(k, role, gate=None, ns=(4, 4, 5), sb=0):
    phases = [cfg25(2, NS=ns[0], gate=gate), cfg3(), cfg4(ns[1]), cfg25(5, NS=ns[2])]
    k("s_load_dwordx2 s[4:5], s[0:1], %d" % KA["x"])
    k("s_load_dwordx4 s[8:11], s[0:1], %d" % KA["w_sp"])
    k("s_load_dwordx2 s[16:17], s[0:1], %d" % KA["out"])
    map_blocks(k, 2, 8, 2)
    k("s_lshr_b32 s22, s%d, 1" % S_BM)
    k("s_waitcnt lgkmcnt(0)")
    for n, c in enumerate(phases):
        if role == "c":
            c["srds_c"](k)
            (cons_phase16 if c.get("m16") else cons_phase)(k, c, 6 * n)
        elif n == 0:
            g3 = prod_phase_gen(k, phases[1], 6)
            prod_phase(k, c, 0, tail_hook=lambda: next(g3))
        elif n == 1:
            next(g3, None)
        else:
            prod_phase(k, c, 6 * n)
    k.stamp_dump(31)
    k("s_endpgm")


M2_LDS = MV + 1024 + 64
```

```python
import sys
from k1 import gen_k1
from gemms import *
from m1 import gen_m1

def gen_dbg():
    st = Kern.STAMPS
    Kern.STAMPS = False
    k = Kern("dbg_kernel")
    k("s_cmp_ge_u32 s2, 1")
    k("s_cbranch_scc1 L_dbg_end")
    k("s_load_dwordx4 s[4:7], s[0:1], 88")
    k("s_waitcnt lgkmcnt(0)")
    srd_in(k, 8, 4, 256)
    srd_in(k, 12, 6, 0x10000000)
    items = [(0, 0, 0), (0, 5, 0), (1, 0, 0), (1, 3, 0), (1, 14, 0), (1, 15, 0), (1, 21, 0), (1, 11, 0), (1, 13, 4), (1, 13, 5), (1, 31, 5),
             (1, 31, 6), (2, 0, 0), (2, 3, 0), (2, 15, 0), (2, 31, 0)]
    k("v_mov_b32 v1, 0")
    for n, (kid, st_, w) in enumerate(items):
        k("s_mov_b32 s16, %d" % (0x8000000 + kid * 0x400000 + 136 * 4096 + w * 256 + (32 + st_) * 4))
        k("v_writelane_b32 v1, s16, %d" % n)
    k("buffer_load_dword v2, v1, s[12:15], 0 offen")
    k("v_lshlrev_b32 v3, 2, v0")
    k("s_waitcnt vmcnt(0)")
    k("v_readlane_b32 s16, v2, 0")
    k("v_subrev_u32 v2, s16, v2")
    k("buffer_store_dword v2, v3, s[8:11], 0 offen")
    k.label("L_dbg_end")
    k("s_endpgm")
    r = k.finish(vgprs=8, sgprs=32)[0], "; @launch kernel=dbg_kernel grid=(1,1,1) block=(64,1,1) lds=0"
    Kern.STAMPS = st
    return r


def build(path, **opt):
    Kern.STAMPS = opt.get("stamps", False)
    for key in DBG:
        DBG[key] = opt.get(key, False)
    import gemm, gemms
    ov = opt.get("ov", {})
    gemms.gemm = lambda name, cfg: gemm.gemm(name, dict(cfg, **ov))
    g = opt.get("g", {})
    import attn
    attn.P_.clear()
    attn.P_.update(g.get("att", {}))
    parts = [gen_k1(**g.get(0, {})), gen_m1(force_slow=opt.get("force_slow", False), **g.get(1, {}))]
    if opt.get("dbgk"):
        parts.append(gen_dbg())
    ref = open("adaLN_cond__softmax_full_mha__mixer_gmlp__prompt.s.ref").read().split("\n")
    head = [l for l in ref if l.startswith(";") and "@launch" not in l and "Override" not in l and "grid=ceil" not in l]
    txt = "\n".join(head) + "\n" + "\n".join(p[1] for p in parts) + "\n"
    txt += ".amdgcn_target \"amdgcn-amd-amdhsa--gfx950\"\n" + "\n".join(p[0] for p in parts)
    open(path, "w").write(txt)

if __name__ == "__main__":
    build("adaLN_cond__softmax_full_mha__mixer_gmlp__prompt.s")
    build("slow.s", force_slow=True)
    build("stamp.s", stamps=True)
    if len(sys.argv) > 1 and sys.argv[1] == "m":
        build("stamp_a.s", stamps=True, g={"m": dict(ns=(4, 4, 4))})
        build("stamp_b.s", stamps=True, g={"m": dict(ns=(6, 3, 6))})
    if len(sys.argv) > 1 and sys.argv[1] == "x":
        build("stamp_a.s", stamps=True, fine=True)
    if len(sys.argv) > 1 and sys.argv[1] == "y":
        build("stamp_a.s", stamps=True, no_prod=True)
        build("stamp_b.s", stamps=True, l2hit=True)
        build("stamp_c.s", stamps=True, g={"m": dict(o4=dict(wgroup=2))})
    if len(sys.argv) > 1 and sys.argv[1] == "t":
        build("a.s", g={0: dict(tlb=21)})
        build("b.s", g={0: dict(tlb=18)})
    if len(sys.argv) > 1 and sys.argv[1] == "d":
        build("a.s", stamps=True, dbgk=True)
    if len(sys.argv) > 1 and sys.argv[1] == "a":
        build("a.s", g={"att": dict(touch=0, gate=5)})
        build("b.s", g={"att": dict(touch=1, p0=1)})
        build("c.s", g={"att": dict(touch=1, gate=6)})
```

```python
from common import *
from gemms import pack16, swap8
from sync import FL1

OOB = 0x7f000000


NSL = 8
STG = NSL * 16384
SY = STG + 24576
ATT_LDS = SY + 64
SIG_TILE = 2
O_MODS = " sc1"
P_ = {}
CODE_NEXT = ("L_mm_second", "L_mm_kernel_codeend")


QF = 8


def emit_attn(k, COMP, HELP, poll, force_slow=False, sb=8, after_comp=None, after_help=None):
    LANE, VOFF, VCUR, VNXT, VBASE = 1, 4, 5, 6, 4
    NM, S, P, KA_, KB_, VA_, VB_, O, L, SEL = (24, 40), (56, 72), 88, 96, 100, 104, 108, (112, 128), (144, 148), 152
    SRD, SRDO = 24, 28
    S_WAVE, S_HEAD, S_RT, S_KB, S_ST, S_CUR = 3, 21, 23, 43, 44, 45
    F2 = 164 - KA_

    def ids():
        k("v_lshlrev_b32 v%d, 4, v%d" % (VOFF, LANE))
        k("s_lshl_b32 s%d, s%d, 17" % (S_KB, S_HEAD))
        srd_ws(k, SRD, 6, "QKV")
    k.label(COMP)
    if P_.get("prio", 0):
        k("s_setprio 3")
    ids()
    srd_ws(k, SRDO, 6, "O")
    srd_ws(k, 32, 6, "FL")
    k("s_lshl_b32 s46, s%d, 5" % S_HEAD)
    k("s_lshl_b32 s47, s20, 2")
    k("s_add_u32 s%d, s47, s19" % S_RT)
    k("s_add_u32 s46, s46, s%d" % S_RT)
    k("s_lshl_b32 s46, s46, 7")
    k("s_add_u32 s46, s46, %d" % FL1)
    k("v_mov_b32 v156, 0")
    k("v_mov_b32 v157, 1.0")
    k("v_mov_b32 v158, %d" % SY)
    k("s_lshl_b32 s47, s19, 2")
    k("s_add_u32 s47, s47, %d" % (SY + 16))
    k("v_mov_b32 v159, s47")
    k("v_mov_b32 v160, 0")
    k("s_mov_b32 s47, 1")
    k("v_bfe_u32 v2, v%d, 2, 1" % LANE)
    k("v_bfe_u32 v3, v%d, 4, 1" % LANE)
    k("v_cmp_eq_u32 vcc, v2, v3")
    k("v_mov_b32 v2, 0x3f803f80")
    k("v_cndmask_b32 v%d, 0, v2, vcc" % SEL)
    for e in range(1, 4):
        k("v_mov_b32 v%d, v%d" % (SEL + e, SEL))
    k("v_mov_b32 v%d, v%d" % (VCUR, VBASE))
    k("v_add_u32 v%d, 16384, v%d" % (VNXT, VBASE))
    k("s_mov_b32 s%d, 16384" % S_CUR)
    k.stamp(sb + 1)
    k("s_waitcnt lgkmcnt(0)")
    k("s_barrier")
    k.stamp(sb + 2)
    k("ds_read_b128 %s, v%d" % (v(KA_, 4), VOFF))
    k("ds_read_b128 %s, v%d offset:1024" % (v(KB_, 4), VOFF))
    k("ds_read_b128 %s, v%d offset:8192" % (v(VA_, 4), VOFF))
    k("ds_read_b128 %s, v%d offset:2048" % (v(KA_ + F2, 4), VOFF))
    k("ds_read_b128 %s, v%d offset:9216" % (v(VB_, 4), VOFF))
    k("ds_read_b128 %s, v%d offset:3072" % (v(KB_ + F2, 4), VOFF))
    k("ds_read_b128 %s, v%d offset:10240" % (v(VA_ + F2, 4), VOFF))

    def zero_state(q):
        for e in range(16):
            k("v_mov_b32 v%d, 0" % (O[q] + e))
        for e in range(4):
            k("v_mov_b32 v%d, 0" % (L[q] + e))
    zero_state(0)
    zero_state(1)
    for e in range(4):
        k("v_mov_b32 v%d, 0" % (VB_ + F2 + e))
        k("v_mov_b32 v%d, 0" % (P + 4 + e))
    k("s_waitcnt lgkmcnt(0)")

    def qk(q, c, dst=None, f=0):
        d = S[q] if dst is None else dst
        return ("v_mfma_f32_32x32x16_bf16 %s, %s, %s, %s" % (v(d, 16), v(KA_ + f, 4), v(QF + 8 * q, 4), c),
                "v_mfma_f32_32x32x16_bf16 %s, %s, %s, %s" % (v(d, 16), v(KB_ + f, 4), v(QF + 8 * q + 4, 4), v(d, 16)))

    def max16(dst, src, first):
        if first:
            k("v_max3_f32 v%d, v%d, v%d, v%d" % (dst, src, src + 1, src + 2))
            k("v_max_f32 v%d, v%d, v%d" % (dst, dst, src + 3))
            r = range(4, 16, 2)
        else:
            r = range(0, 16, 2)
        for e in r:
            k("v_max3_f32 v%d, v%d, v%d, v%d" % (dst, dst, src + e, src + e + 1))

    def set_nm(q, mreg):
        k("v_mov_b32 v3, v%d" % mreg)
        k("v_permlane32_swap_b32 v%d, v3" % mreg)
        k("v_max_f32 v%d, v%d, v3" % (mreg, mreg))
        for e in range(16):
            k("v_sub_f32 v%d, 0, v%d" % (NM[q] + e, mreg))

    for q in range(2):
        for m in qk(q, "0"):
            k(m)
    for q in range(2):
        max16(2, S[q], True)
        set_nm(q, 2)
        if q == 0:
            for m in qk(0, v(NM[0], 16)):
                k(m)
    k("s_mov_b32 s%d, 0" % S_ST)

    def ex(Sx, g, lo=0, hi=4):
        for e in range(lo, hi):
            k("v_exp_f32 v%d, v%d" % (Sx + 4 * g + e, Sx + 4 * g + e))

    def cv(Sx, g):
        for e in range(2):
            k("v_cvt_pk_bf16_f32 v%d, v%d, v%d" % (P + 2 * g + e, Sx + 4 * g + 2 * e, Sx + 4 * g + 2 * e + 1))

    def pvm(q, vf, pf):
        k("v_mfma_f32_32x32x16_bf16 %s, %s, %s, %s" % (v(O[q], 16), v(vf, 4), v(pf, 4), v(O[q], 16)))

    def lsum(q, pf):
        k("v_mfma_f32_16x16x32_bf16 %s, %s, %s, %s" % (v(L[q], 4), v(SEL, 4), v(pf, 4), v(L[q], 4)))

    def addr(tt):
        return (VCUR, tt * 2048) if tt < 4 else (VNXT, (tt - 4) * 2048)

    def opt(x):
        if x:
            k(x)

    LOOP, SPIN, BACK = k.uid("loop"), k.uid("spin"), k.uid("back")
    k.label(LOOP)
    for tt in range(4):
        if tt == SIG_TILE:
            NS_ = k.uid("nosig")
            k("s_cmp_lg_u32 s%d, 0" % S_ST)
            k("s_cbranch_scc1 " + NS_)
            k("s_waitcnt vmcnt(0)")
            k("s_mov_b64 exec, 1")
            k("buffer_store_dword v157, v156, s[32:35], s46 offen sc1")
            k("s_mov_b64 exec, -1")
            k("ds_write_b32 v158, v157 offset:8")
            k.label(NS_)
        if tt == 2:
            k("s_cmp_le_u32 s42, s47")
            k("s_cbranch_scc1 " + SPIN)
            k.label(BACK)
        r1, o1 = addr(tt + 1)
        r2, o2 = addr(tt + 2)
        fc, fo = F2 * (tt & 1), F2 * (1 - (tt & 1))
        for q in range(2):
            Sc = S[q]
            m1, m3 = qk(1 - q, v(NM[1 - q], 16), None, fc if q == 0 else fo)
            rKa = rVb = rKb = rVa = w1 = w4 = None
            if q == 0:
                rKa = "ds_read_b128 %s, v%d offset:%d" % (v(KA_ + fc, 4), r2, o2)
                rVb = "ds_read_b128 %s, v%d offset:%d" % (v(VB_ + fo, 4), r1, 8192 + o1 + 1024)
                rKb = "ds_read_b128 %s, v%d offset:%d" % (v(KB_ + fc, 4), r2, o2 + 1024)
            else:
                rVa = "ds_read_b128 %s, v%d offset:%d" % (v(VA_ + fc, 4), r2, 8192 + o2)
                w1 = "s_waitcnt lgkmcnt(3)"
                if tt == 0:
                    rKa = "ds_read_b32 v161, v158"
                if tt == 1:
                    rKb = "v_readfirstlane_b32 s42, v161"
            vb = VB_ + (fo if q == 0 else fc)
            opt(w1); k(m1); opt(rKa); ex(Sc, 0)
            pvm(1 - q, vb, P + 4); opt(rVb); cv(Sc, 0); ex(Sc, 1, 0, 3); lsum(1 - q, P + 4); ex(Sc, 1, 3, 4); ex(Sc, 2, 0, 1)
            k(m3); opt(rKb); cv(Sc, 1); ex(Sc, 2, 1, 4)
            pvm(q, VA_ + fc, P); opt(rVa); ex(Sc, 3, 0, 1); cv(Sc, 2); ex(Sc, 3, 1, 3); lsum(q, P); ex(Sc, 3, 3, 4); cv(Sc, 3)
            if tt == 0 and q == 0:
                k("s_add_u32 s%d, s%d, 16384" % (S_CUR, S_CUR))
            if tt == 0 and q == 1:
                k("s_and_b32 s%d, s%d, %d" % (S_CUR, S_CUR, NSL * 16384 - 1))
    k("v_add_u32 v160, 1, v160")
    k("v_mov_b32 v%d, v%d" % (VCUR, VNXT))
    k("v_add_u32 v%d, s%d, v%d" % (VNXT, S_CUR, VBASE))
    k("ds_write_b32 v159, v160")
    k.stamp_dyn(S_ST, 14)
    k("s_add_u32 s47, s47, 1")
    k("s_add_u32 s%d, s%d, 1" % (S_ST, S_ST))
    k("s_cmp_lt_u32 s%d, 16" % S_ST)
    k("s_cbranch_scc1 " + LOOP)
    k("s_waitcnt lgkmcnt(0)")
    k.stamp(sb + 3)
    pvm(1, VB_ + F2, P + 4)
    lsum(1, P + 4)
    k("s_lshr_b32 s10, s%d, 1" % S_RT)
    k("s_lshl_b32 s10, s10, 18")
    k("s_lshl_b32 s11, s%d, 13" % S_HEAD)
    k("s_add_u32 s10, s10, s11")
    k("s_and_b32 s11, s%d, 1" % S_RT)
    k("s_lshl_b32 s11, s11, 11")
    k("s_add_u32 s10, s10, s11")
    k("s_add_u32 s11, s10, 4096")
    SLOW = [k.uid("slow"), k.uid("slow")]
    EPI = [k.uid("epi"), k.uid("epi")]
    for q in range(2):
        k("v_mov_b32 v2, v%d" % L[q])
        k("v_mov_b32 v7, 0")
        for e in range(0, 16, 2):
            k("v_fma_f32 v2, v%d, 0, v2" % (O[q] + e))
            k("v_fma_f32 v7, v%d, 0, v7" % (O[q] + e + 1))
        k("v_add_f32 v2, v2, v7")
        k("v_mov_b32 v3, %s" % fhex(2.0 ** 100 if not force_slow else -1.0))
        k("v_cmp_nlt_f32 vcc, v2, v3")
        k("s_cbranch_vccnz " + SLOW[q])
        k.label(EPI[q])
        k("v_rcp_f32 v2, v%d" % L[q])
        k("v_mov_b32 v3, v2")
        for e in range(0, 16, 2):
            k("v_pk_mul_f32 %s, %s, v[2:3]" % (v(O[q] + e, 2), v(O[q] + e, 2)))
        PP = S[0] + 8 * q
        pack16(k, PP, O[q])
        swap8(k, PP)
        for p in range(2):
            k("buffer_store_dwordx4 %s, v%d, %s, s%d offen offset:%d%s" % (v(PP + 4 * p, 4), VOFF, s(SRDO, 4), 10 + p, q * 1024, O_MODS))
    k.stamp(sb + 4)
    if after_comp:
        after_comp(k)
    else:
        k.stamp_dump(31)
        k("s_endpgm")

    k.label(SPIN)
    k("s_mov_b32 s41, 0")
    SP2 = k.uid("spin")
    k.label(SP2)
    k("ds_read_b32 v161, v158")
    k("s_add_u32 s41, s41, 1")
    k("s_waitcnt lgkmcnt(0)")
    k("v_readfirstlane_b32 s42, v161")
    k("s_cmp_gt_u32 s42, s47")
    k("s_cbranch_scc1 " + BACK)
    k("s_sleep 1")
    k("s_cmp_lt_u32 s41, 0x1000000")
    k("s_cbranch_scc1 " + SP2)
    k("s_branch " + BACK)

    for q in range(2):
        k.label(SLOW[q])
        k("s_waitcnt vmcnt(0)")
        LA, LB = k.uid("slowa"), k.uid("slowb")
        SS = S[1]
        k("s_add_u32 s16, s%d, 0x400000" % S_KB)
        k("s_mov_b32 s%d, 0" % S_ST)
        k("v_mov_b32 v2, 0xff800000")
        k.label(LA)
        k("buffer_load_dwordx4 %s, v%d, %s, s16 offen sc1" % (v(KA_, 4), VOFF, s(SRD, 4)))
        k("buffer_load_dwordx4 %s, v%d, %s, s16 offen offset:1024 sc1" % (v(KB_, 4), VOFF, s(SRD, 4)))
        k("s_waitcnt vmcnt(0)")
        for m in qk(q, "0", SS):
            k(m)
        max16(2, SS, False)
        k("s_add_u32 s16, s16, 2048")
        k("s_add_u32 s%d, s%d, 1" % (S_ST, S_ST))
        k("s_cmp_lt_u32 s%d, 64" % S_ST)
        k("s_cbranch_scc1 " + LA)
        set_nm(q, 2)
        zero_state(q)
        k("s_add_u32 s16, s%d, 0x400000" % S_KB)
        k("s_add_u32 s17, s%d, 0x800000" % S_KB)
        k("s_mov_b32 s%d, 0" % S_ST)
        k.label(LB)
        k("buffer_load_dwordx4 %s, v%d, %s, s16 offen sc1" % (v(KA_, 4), VOFF, s(SRD, 4)))
        k("buffer_load_dwordx4 %s, v%d, %s, s16 offen offset:1024 sc1" % (v(KB_, 4), VOFF, s(SRD, 4)))
        k("buffer_load_dwordx4 %s, v%d, %s, s17 offen sc1" % (v(VA_, 4), VOFF, s(SRD, 4)))
        k("buffer_load_dwordx4 %s, v%d, %s, s17 offen offset:1024 sc1" % (v(VB_, 4), VOFF, s(SRD, 4)))
        k("s_waitcnt vmcnt(0)")
        for m in qk(q, v(NM[q], 16), SS):
            k(m)
        for g in range(4):
            ex(SS, g)
            cv(SS, g)
        pvm(q, VA_, P)
        lsum(q, P)
        pvm(q, VB_, P + 4)
        lsum(q, P + 4)
        k("s_add_u32 s16, s16, 2048")
        k("s_add_u32 s17, s17, 2048")
        k("s_add_u32 s%d, s%d, 1" % (S_ST, S_ST))
        k("s_cmp_lt_u32 s%d, 64" % S_ST)
        k("s_cbranch_scc1 " + LB)
        k("s_branch " + EPI[q])

    k.label(HELP)
    SIDE, GEMV, DONE, SDONE, SD2 = k.uid("side"), k.uid("gemv"), k.uid("done"), k.uid("sdone"), k.uid("sd2")
    ids()
    k("s_sub_u32 s%d, s19, 4" % S_WAVE)
    k("v_mov_b32 v7, %d" % SY)

    def lds_wait(off, s_lim, b128=False, nap=6):
        W, G = k.uid("w"), k.uid("g")
        k("s_mov_b32 s4, 0")
        k.label(W)
        k("ds_read_%s, v7 offset:%d" % ("b128 v[100:103]" if b128 else "b32 v100", off))
        k("s_add_u32 s4, s4, 1")
        k("s_waitcnt lgkmcnt(0)")
        if b128:
            k("v_min_u32 v100, v100, v101")
            k("v_min3_u32 v100, v100, v102, v103")
        k("v_readfirstlane_b32 s5, v100")
        k("s_cmp_gt_u32 s5, s%d" % s_lim)
        k("s_cbranch_scc1 " + G)
        k("s_sleep %d" % nap)
        k("s_cmp_lt_u32 s4, 0x1000000")
        k("s_cbranch_scc1 " + W)
        k.label(G)

    k("s_cmp_lg_u32 s%d, 0" % S_WAVE)
    k("s_cbranch_scc1 " + SIDE)
    k("s_add_u32 s11, s20, 1")
    k("s_and_b32 s11, s11, 7")
    k("s_lshl_b32 s18, s11, 2")
    k("s_lshl_b32 s11, s11, 14")
    k("s_add_u32 s13, s%d, 0x400000" % S_KB)
    for e, val in enumerate((2, 0, 0, 0)):
        k("v_mov_b32 v%d, %d" % (100 + e, val))
    k("ds_write_b128 v7, v[100:103]")
    k("v_mov_b32 v100, 0")
    k("ds_write_b128 v7, v[100:103] offset:16")
    k("ds_write_b128 v7, v[100:103] offset:32")
    poll.setup(k)
    k("s_barrier")
    k("s_mov_b32 s14, 0")
    lds_wait(8, 14, nap=2)
    k("s_mov_b32 s12, 2")
    k("s_mov_b32 s15, 32768")
    k("s_mov_b32 s16, 0")

    def publish(k, cnt=0):
        k("s_waitcnt vmcnt(%d)" % cnt)
        k("v_mov_b32 v104, s12")
        if cnt > 16:
            k("v_subrev_u32 v104, %d, v104" % (cnt // 16 - 1))
        k("ds_max_u32 v7, v104")
    KV, FREE = k.uid("kv"), k.uid("free")
    k.label(KV)
    k("s_add_u32 s14, s16, 8")
    k("s_cmp_lt_u32 s12, s14")
    k("s_cbranch_scc1 " + FREE)
    k("s_sub_u32 s14, s12, 8")
    lds_wait(16, 14, True)
    k("s_mov_b32 s16, s5")
    k.label(FREE)
    poll.need(k, on_slow=publish)
    k("s_add_u32 s10, s13, s11")
    for h in range(4):
        k("s_add_u32 m0, s15, %d" % (h * 4096))
        if h:
            k("s_add_u32 s10, s10, %d" % (4096 if h != 2 else 0x400000 - 4096))
        for q in range(4):
            k("buffer_load_dwordx4 v%d, %s, s10 offen offset:%d sc1 lds" % (VOFF, s(SRD, 4), q * 1024))
    publish(k, 16 * (P_.get("infl", 3) - 1))
    k.stamp_dyn(12, 14)
    k("s_add_u32 s11, s11, 8192")
    k("s_and_b32 s11, s11, 0x1ffff")
    k("s_add_u32 s15, s15, 16384")
    k("s_and_b32 s15, s15, 0x1ffff")
    k("s_add_u32 s12, s12, 1")
    k("s_cmp_lt_u32 s12, 16")
    k("s_cbranch_scc1 " + KV)
    k("s_mov_b32 s12, 15")
    publish(k, 16)
    k("s_mov_b32 s12, 99")
    publish(k)
    if CODE_NEXT:
        for n in range(3):
            k("v_add_u32 v18, %d, v%d" % (64 * n, LANE))
            code_prefetch(k, CODE_NEXT[0], 18, 100, 16, CODE_NEXT[1])
    k("s_branch " + DONE)

    k.label(SIDE)
    k("s_load_dwordx2 s[8:9], s[0:1], %d" % KA["wo"])
    k("s_load_dwordx4 s[32:35], s[0:1], %d" % KA["w_in"])
    k("s_load_dwordx2 s[36:37], s[0:1], %d" % KA["w_out"])
    k("s_load_dwordx2 s[82:83], s[0:1], %d" % KA["w_mod"])
    k("s_lshl_b32 s46, s2, 1")
    k("s_add_u32 s46, s46, s%d" % S_WAVE)
    k("s_sub_u32 s46, s46, 2")
    k("s_lshl_b32 s47, s%d, 13" % S_WAVE)
    k("s_add_u32 s47, s47, %d" % (STG - 8192))
    k("v_lshrrev_b32 v9, 3, v%d" % LANE)
    k("v_and_b32 v10, 7, v%d" % LANE)
    k("v_lshlrev_b32 v10, 4, v10")
    k("v_bfe_u32 v2, v%d, 2, 2" % LANE)
    k("v_and_b32 v3, 3, v%d" % LANE)
    k("v_lshlrev_b32 v3, 3, v3")
    k("v_lshl_add_u32 v3, v2, 7, v3")
    k("v_add_u32 v3, s47, v3")
    k("v_lshrrev_b32 v2, 5, v%d" % LANE)
    k("v_lshl_add_u32 v11, v2, 10, v3")
    k("v_bfe_u32 v2, v%d, 4, 1" % LANE)
    k("v_lshl_add_u32 v11, v2, 5, v11")
    k("v_lshrrev_b32 v2, 4, v%d" % LANE)
    k("v_lshl_add_u32 v12, v2, 10, v3")
    k("v_lshlrev_b32 v13, 4, v2")
    k("v_and_b32 v2, 15, v%d" % LANE)
    k("v_lshl_add_u32 v13, v2, 7, v13")
    k("v_add_u32 v13, s47, v13")
    k("s_waitcnt lgkmcnt(0)")
    ops = []

    def wait_for(tag):
        last = max(i for i, o in enumerate(ops) if o == tag)
        k("s_waitcnt vmcnt(%d)" % min(63, len(ops) - 1 - last))

    ROUNDS = [(8, "wo", 2048, 16, 512, "WOF", 0)] + [(32, "w_in", 7168, 56, 1792, "WINF", 512 * n) for n in range(4)]
    RB = 80

    def unit_ids(r):
        ptr, nm, ld, ncg, nu, dst, u0 = ROUNDS[r]
        k("s_add_u32 s41, s46, %d" % u0)
        if ncg == 56:
            k("s_mul_i32 s38, s41, 9363")
            k("s_lshr_b32 s38, s38, 19")
            k("s_mul_i32 s39, s38, 56")
            k("s_sub_u32 s39, s41, s39")
        else:
            k("s_lshr_b32 s38, s41, %d" % (ncg.bit_length() - 1))
            k("s_and_b32 s39, s41, %d" % (ncg - 1))
        k("s_cmp_ge_u32 s41, %d" % nu)
        k("s_cselect_b32 s40, %d, 0" % OOB)

    def rp_load(r, touch=False):
        ptr, nm, ld, ncg, nu, dst, u0 = ROUNDS[r]
        unit_ids(r)
        srd_in(k, 72, ptr, SZ[nm])
        k("s_mov_b32 s42, %d" % ld)
        if touch:
            k("v_and_b32 v14, 31, v%d" % LANE)
            k("v_mul_lo_u32 v14, v14, s42")
        else:
            k("v_mul_lo_u32 v14, v9, s42")
            k("v_add_u32 v14, v14, v10")
        k("s_mul_i32 s42, s38, %d" % (32 * ld))
        k("s_lshl_b32 s41, s39, 7")
        k("s_add_u32 s42, s42, s41")
        k("s_or_b32 s42, s42, s40")
        if touch:
            k("buffer_load_dword v15, v14, s[72:75], s42 offen")
            ops.append(("tc", r))
            return
        for q in range(4):
            k("s_add_u32 m0, s47, %d" % ((r & 1) * 4096 + q * 1024))
            k("s_add_u32 s41, s42, %d" % (q * 8 * ld))
            k("buffer_load_dwordx4 v14, s[72:75], s41 offen lds")
            ops.append(("rp", r))

    def rp_store(r):
        ptr, nm, ld, ncg, nu, dst, u0 = ROUNDS[r]
        wait_for(("rp", r))
        for b in range(4):
            if dst in ("WOF", "WOUTF"):
                for rd in range(2):
                    k("ds_read_b64_tr_b16 %s, v11 offset:%d" % (v(RB + 4 * b + 2 * rd, 2), (r & 1) * 4096 + (b >> 1) * 2048 + rd * 512 + (b & 1) * 64))
            elif dst == "WINF":
                for rd in range(2):
                    k("ds_read_b64_tr_b16 %s, v12 offset:%d" % (v(RB + 4 * b + 2 * rd, 2), (r & 1) * 4096 + rd * 512 + b * 32))
            else:
                k("ds_read_b128 %s, v13 offset:%d" % (v(RB + 4 * b, 4), (r & 1) * 4096 + (b & 1) * 2048 + (b >> 1) * 64))
        unit_ids(r)
        srd_ws(k, 76, 6, dst)
        if dst in ("WOF", "WOUTF"):
            k("s_mul_i32 s42, s39, %d" % ((16 if dst == "WOF" else 28) * 8192))
            k("s_lshl_b32 s41, s38, 12")
            k("s_add_u32 s42, s42, s41")
            k("s_or_b32 s42, s42, s40")
            offs = [("s42", b * 1024) for b in range(4)]
        elif dst == "WSPF":
            k("s_lshr_b32 s42, s38, 2")
            k("s_lshl_b32 s42, s42, 5")
            k("s_add_u32 s42, s42, s39")
            k("s_lshl_b32 s42, s42, 14")
            k("s_and_b32 s41, s38, 3")
            k("s_lshl_b32 s41, s41, 11")
            k("s_add_u32 s42, s42, s41")
            k("s_or_b32 s42, s42, s40")
            k("s_add_u32 s41, s42, 8192")
            offs = [("s42", 0), ("s42", 1024), ("s41", 0), ("s41", 1024)]
        else:
            offs = []
            k("s_cmp_ge_u32 s39, 28")
            k("s_cselect_b32 s16, 28, 0")
            k("s_cselect_b32 s17, 7168, 0")
            k("s_sub_u32 s16, s39, s16")
            k("s_lshl_b32 s16, s16, 2")
            k("s_mul_i32 s41, s38, 14336")
            k("s_add_u32 s17, s17, s41")
            k("s_or_b32 s17, s17, s40")
            for b in range(4):
                k("s_add_u32 s41, s16, %d" % b)
                k("s_mul_i32 s42, s41, 147")
                k("s_lshr_b32 s42, s42, 10")
                k("s_mul_i32 s42, s42, %d" % (458752 - 7 * 1024))
                k("s_lshl_b32 s41, s41, 10")
                k("s_add_u32 s41, s41, s42")
                k("s_add_u32 s%d, s41, s17" % (28 + b))
                offs.append(("s%d" % (28 + b), 0))
        k("s_waitcnt lgkmcnt(0)")
        for b in range(4):
            k("buffer_store_dwordx4 %s, v%d, s[76:79], %s offen offset:%d sc1" % (v(RB + 4 * b, 4), VOFF, offs[b][0], offs[b][1]))
            ops.append(("st", r))

    k("s_barrier")
    k("s_mov_b32 s14, %d" % P_.get("gate", 3))
    lds_wait(0, 14, nap=24)
    k("s_cmp_eq_u32 s%d, 1" % S_WAVE)
    k("s_cbranch_scc1 " + GEMV)
    NR = len(ROUNDS)
    TCH = P_.get("touch", 1)
    P0 = P_.get("p0", -1)

    def pace(n):
        if P0 >= 0:
            k("s_mov_b32 s13, %d" % (P0 + n))
            lds_wait(16, 13, True, 12)
    for r in range(-2, NR):
        pace(r + 2)
        if r >= 0:
            k.stamp(14 + r)
            rp_store(r)
        if r + 2 < NR:
            rp_load(r + 2)
        if TCH and r + 4 < NR:
            rp_load(r + 4, True)
    k("s_branch " + SDONE)

    k.label(GEMV)
    del ops[:]
    k("s_lshr_b32 s14, s2, 2")
    k("s_add_u32 s14, s14, 32")
    k("s_and_b32 s15, s2, 3")
    srd_in(k, 72, 82, SZ["w_mod"])
    srd_ws(k, 76, 6, "SC")
    k("s_mul_i32 s42, s15, %d" % (256 * 12288))
    k("s_lshl_b32 s41, s14, 7")
    k("s_add_u32 s42, s42, s41")
    k("s_mov_b32 s41, 12288")
    k("v_mul_lo_u32 v14, v9, s41")
    k("v_add_u32 v14, v14, v10")
    k("v_mul_lo_u32 v16, v%d, s41" % LANE)

    def gv_load(u):
        for q in range(4):
            k("s_add_u32 m0, s47, %d" % ((u & 1) * 4096 + q * 1024))
            k("s_add_u32 s41, s42, %d" % ((u * 32 + q * 8) * 12288))
            k("buffer_load_dwordx4 v14, s[72:75], s41 offen lds")
            ops.append(("gv", u))
    k("v_lshrrev_b32 v17, 4, v%d" % LANE)
    k("v_lshlrev_b32 v17, 4, v17")
    k("s_lshl_b32 s40, s15, 9")
    for u in range(8):
        k("buffer_load_dwordx4 %s, v17, s[76:79], s40 offen offset:%d" % (v(24 + 4 * u, 4), u * 64))
        ops.append(("c", u))
    for e in range(16):
        k("v_mov_b32 v%d, 0" % (56 + e))
    for u in range(-2, 8):
        pace(u + 2)
        if u >= 0:
            wait_for(("gv", u))
            for b in range(4):
                for rd in range(2):
                    k("ds_read_b64_tr_b16 %s, v12 offset:%d" % (v(RB + 4 * b + 2 * rd, 2), (u & 1) * 4096 + rd * 512 + b * 32))
            k("s_waitcnt lgkmcnt(0)")
        if u + 2 < 8:
            gv_load(u + 2)
        if TCH and u % 2 == 0 and u + 4 < 8:
            k("s_add_u32 s41, s42, %d" % ((u + 4) * 32 * 12288))
            k("buffer_load_dword v15, v16, s[72:75], s41 offen")
            ops.append(("tc", u))
        if u >= 0:
            for b in range(4):
                k("v_mfma_f32_16x16x32_bf16 %s, %s, %s, %s" % (v(56 + 4 * b, 4), v(RB + 4 * b, 4), v(24 + 4 * u, 4), v(56 + 4 * b, 4)))
    srd_ws(k, 76, 6, "MODP")
    k("v_and_b32 v2, 15, v%d" % LANE)
    k("v_cmp_eq_u32 vcc, 0, v2")
    k("v_mov_b32 v2, 0x7f000000")
    k("v_cndmask_b32 v17, v2, v17, vcc")
    k("s_mul_i32 s41, s15, %d" % (6144 * 4))
    k("s_lshl_b32 s42, s14, 8")
    k("s_add_u32 s41, s41, s42")
    for b in range(4):
        k("buffer_store_dwordx4 %s, v17, s[76:79], s41 offen offset:%d sc1" % (v(56 + 4 * b, 4), b * 64))
    k.label(SDONE)
    srd_ws(k, 76, 6, "HF")
    k("v_mov_b32 v2, 1")
    k("v_mov_b32 v16, 0")
    k("v_mov_b32 v17, 1.0")
    k("s_lshl_b32 s41, s2, 2")
    k("s_waitcnt vmcnt(0)")
    k("s_mov_b64 exec, 1")
    k("ds_add_rtn_u32 v3, v7, v2 offset:12")
    k("s_waitcnt lgkmcnt(0)")
    k("v_cmp_eq_u32 vcc, 2, v3")
    k("s_cbranch_vccz " + SD2)
    k("buffer_store_dword v17, v16, s[76:79], s41 offen sc1")
    k.label(SD2)
    k("s_mov_b64 exec, -1")
    k.label(DONE)
    k.stamp(sb + 5)
    if after_help:
        after_help(k, lds_wait)
    else:
        k.stamp_dump(31)
        k("s_endpgm")
```

```python
from common import *

OOB = 0x7f000000

S_WAVE, S_BM, S_BN, S_ROT = 3, 20, 21, 22
SRD_X, SRD_W = 24, 28
SRD_E0, SRD_E1, SRD_E2, SRD_E3 = 32, 36, 40, 44
V_LANE = 1


def map_blocks(k, lg_am, an, xm_bits):
    k("s_and_b32 s48, s2, 7")
    k("s_lshr_b32 s49, s2, 3")
    k("s_and_b32 s50, s49, %d" % ((1 << lg_am) - 1))
    k("s_lshr_b32 s51, s49, %d" % lg_am)
    if DBG["fine"] and an == 8:
        k("s_xor_b32 s51, s51, 5")
    k("s_and_b32 s52, s48, %d" % ((1 << xm_bits) - 1))
    k("s_lshl_b32 s52, s52, %d" % lg_am)
    k("s_add_u32 s%d, s52, s50" % S_BM)
    k("s_lshr_b32 s52, s48, %d" % xm_bits)
    k("s_mul_i32 s52, s52, %d" % an)
    k("s_add_u32 s%d, s52, s51" % S_BN)


class Dma:
    def __init__(self, srd, pieces, stride, ring, slot, sbase):
        self.srd, self.pieces, self.stride, self.ring, self.slot, self.sbase = srd, pieces, stride, ring, slot, sbase
        self.half_last = False

    def wave_bytes(self):
        return len(self.pieces) * 1024 - (512 if self.half_last else 0)


DBG = dict(fine=False, no_dsw=False, no_valu=False, l2hit=False, no_cons=False, no_prod=False, no_xf=False, no_mfma=False, no_reads=False)


def cons_phase(k, cfg, sb=0):
    T, MT, NT = cfg["T"], cfg["MT"], cfg["NT"]
    xr, wr = cfg["x_ring"], cfg["w_ring"]
    ACC = cfg["ACC"]
    FR = cfg["FRAG"]
    fsz = 4 * (MT + NT)
    VX0, VW0, VX, VW = 4, 5, 6, 10
    if cfg["wgrid"] == "2x2":
        k("s_lshr_b32 s48, s%d, 1" % S_WAVE)
        k("s_and_b32 s49, s%d, 1" % S_WAVE)
    else:
        k("s_mov_b32 s48, s%d" % S_WAVE)
        k("s_mov_b32 s49, 0")
    S_WM, S_WN = 48, 49
    if cfg.get("table"):
        cfg["table"](k)
        k("s_waitcnt lgkmcnt(0)")
        k("s_barrier")
    if cfg.get("cons_pre"):
        cfg["cons_pre"](k)
    swz = cfg["x_mode"] == "dma_swz"
    if swz:
        k("v_and_b32 v2, 31, v%d" % V_LANE)
        k("v_lshrrev_b32 v3, 5, v%d" % V_LANE)
        k("v_bfe_u32 v%d, v%d, 1, 3" % (VX0, V_LANE))
        k("v_xor_b32 v%d, v%d, v3" % (VX0, VX0))
        k("v_lshlrev_b32 v%d, 4, v%d" % (VX0, VX0))
        k("v_lshl_add_u32 v%d, v2, 7, v%d" % (VX0, VX0))
        k("s_mul_i32 s50, s%d, %d" % (S_WM, MT * 4096))
        k("s_add_u32 s50, s50, %d" % xr[0])
        k("v_add_u32 v%d, s50, v%d" % (VX0, VX0))
    else:
        k("s_mul_i32 s50, s%d, %d" % (S_WM, MT * 1024))
        k("s_add_u32 s50, s50, %d" % xr[0])
        k("v_lshl_add_u32 v%d, v%d, 4, s50" % (VX0, V_LANE))
    blk32 = cfg.get("w_mode") == "blk32"
    wfm = cfg.get("w_mode") == "fm"
    if wfm:
        k("v_lshlrev_b32 v%d, 4, v%d" % (VW0, V_LANE))
    elif blk32:
        k("v_bfe_u32 v2, v%d, 4, 1" % V_LANE)
        k("v_mul_u32_u24 v%d, 1152, v2" % VW0)
        k("v_lshrrev_b32 v2, 5, v%d" % V_LANE)
        k("v_lshl_add_u32 v%d, v2, 8, v%d" % (VW0, VW0))
        k("v_and_b32 v2, 15, v%d" % V_LANE)
        k("v_lshl_add_u32 v%d, v2, 3, v%d" % (VW0, VW0))
    else:
        W_HH, W_RD, W_KS = cfg["w_strides"]
        k("v_lshrrev_b32 v2, 5, v%d" % V_LANE)
        k("v_mul_u32_u24 v%d, %d, v2" % (VW0, W_HH))
        k("v_bfe_u32 v2, v%d, 2, 2" % V_LANE)
        k("v_lshl_add_u32 v%d, v2, 6, v%d" % (VW0, VW0))
        k("v_bfe_u32 v2, v%d, 4, 1" % V_LANE)
        k("v_lshl_add_u32 v%d, v2, 5, v%d" % (VW0, VW0))
        k("v_and_b32 v2, 3, v%d" % V_LANE)
        k("v_lshl_add_u32 v%d, v2, 3, v%d" % (VW0, VW0))
    k("s_mul_i32 s50, s%d, %d" % (S_WN, cfg["w_wave_stride"]))
    k("s_add_u32 s50, s50, %d" % wr[0])
    k("v_add_u32 v%d, s50, v%d" % (VW0, VW0))
    for i in range(16 * MT * NT):
        k("v_mov_b32 v%d, 0" % (ACC + i))
    S_XS, S_WS, S_T = 52, 53, 54

    def set_addr():
        k("v_add_u32 v%d, s%d, v%d" % (VX, S_XS, VX0))
        k("v_add_u32 v%d, s%d, v%d" % (VW, S_WS, VW0))
        if swz:
            for ks in range(1, 4):
                k("v_xor_b32 v%d, %d, v%d" % (VX + ks, ks * 32, VX))
        if blk32:
            k("v_xor_b32 v%d, 128, v%d" % (VW + 1, VW))

    def adv_slots():
        for (sr, ring) in ((S_XS, xr), (S_WS, wr)):
            k("s_add_u32 s%d, s%d, %d" % (sr, sr, ring[1]))
            k("s_cmp_ge_u32 s%d, %d" % (sr, ring[1] * ring[2]))
            k("s_cselect_b32 s%d, 0, s%d" % (sr, sr))

    def reads(ks, f):
        o = []
        base = FR + f * fsz
        xs, ws = [], []
        for i in range(MT):
            if swz:
                xs.append("ds_read_b128 %s, v%d offset:%d" % (v(base + 4 * i, 4), VX + ks, i * 4096))
            else:
                xs.append("ds_read_b128 %s, v%d offset:%d" % (v(base + 4 * i, 4), VX, ks * cfg.get("x_ks", 4096) + i * 1024))
        if wfm:
            ws = ["ds_read_b128 %s, v%d offset:%d" % (v(base + 4 * MT + 4 * j, 4), VW, (ks * NT + j) * 1024) for j in range(NT)]
            return xs[:1] + ws[:1] + xs[1:] + ws[1:]
        for j in range(NT):
            for rd in range(2):
                if blk32:
                    reg, off = VW + rd, cfg["w_tile_off"](j) + (ks >> 1) * 8192 + (ks & 1) * 512
                else:
                    reg, off = VW, cfg["w_tile_off"](j) + ks * W_KS + rd * W_RD
                ws.append("ds_read_b64_tr_b16 %s, v%d offset:%d" % (v(base + 4 * MT + 4 * j + 2 * rd, 2), reg, off))
        o.append(xs[0])
        o += ws[0:2]
        o += xs[1:]
        o += ws[2:]
        return o

    def mfmas(f):
        o = []
        base = FR + f * fsz
        for j in range(NT):
            for i in range(MT):
                acc = v(ACC + 16 * (i * NT + j), 16)
                xf, wf = v(base + 4 * i, 4), v(base + 4 * MT + 4 * j, 4)
                if cfg.get("swap_tile", lambda j: False)(j):
                    o.append("v_mfma_f32_32x32x16_bf16 %s, %s, %s, %s" % (acc, xf, wf, acc))
                else:
                    o.append("v_mfma_f32_32x32x16_bf16 %s, %s, %s, %s" % (acc, wf, xf, acc))
        return o

    def interleave(ms, rs, per):
        rs = list(rs)
        if DBG["no_cons"]:
            return
        if DBG["no_mfma"]:
            ms = []
        if DBG["no_reads"]:
            rs = []
        for m in ms:
            k(m)
            for _ in range(per):
                if rs:
                    k(rs.pop(0))
        for r in rs:
            k(r)

    k("s_mov_b32 s%d, 0" % S_XS)
    k("s_mov_b32 s%d, 0" % S_WS)
    k("s_mov_b32 s%d, 0" % S_T)
    set_addr()
    k.stamp(sb + 1)
    k("s_barrier")
    k.stamp(sb + 2)
    PD = cfg.get("PD", 1)
    NF = 2 if PD == 1 else 4
    for ks in range(PD):
        for r in reads(ks, ks % NF):
            k(r)
    if cfg.get("cons_loads"):
        cfg["cons_loads"](k)
    LOOP = k.uid("cloop")
    nrd = MT + (NT if wfm else 2 * NT)
    per = cfg.get("reads_per_mfma", max(2, -(-nrd // max(1, MT * NT - 1))))
    nbar = cfg.get("mfma_before_barrier", 1)
    k.label(LOOP)
    for ks in range(4):
        ms = mfmas(ks % NF)
        nxt = (ks + PD) % 4
        k("s_waitcnt lgkmcnt(%d)" % min(15, nrd * (PD - 1)))
        if ks + PD == 4:
            for m in ms[:nbar]:
                k(m)
            set_addr()
            if PD > 1:
                k("s_waitcnt lgkmcnt(0)")
            k("s_barrier")
            interleave(ms[nbar:], reads(nxt, nxt % NF), per + 1)
        else:
            interleave(ms, reads(nxt, nxt % NF), per)
        if ks == 0:
            adv_slots()
            k("s_add_u32 s%d, s%d, 1" % (S_T, S_T))
    if cfg.get("mid"):
        SK = k.uid("nomid")
        k("s_cmp_lg_u32 s%d, %d" % (S_T, cfg["mid"][0]))
        k("s_cbranch_scc1 " + SK)
        cfg["mid"][1](k)
        k("s_waitcnt lgkmcnt(0)")
        k.label(SK)
    k("s_cmp_lt_u32 s%d, %d" % (S_T, T))
    k("s_cbranch_scc1 " + LOOP)
    k("s_waitcnt lgkmcnt(0)")
    k.stamp(sb + 3)
    cfg["epilogue"](k)
    k.stamp(sb + 4)


def cons_phase16(k, cfg, sb=0):
    T, NT = cfg["T"], cfg["NT"]
    xr, wr = cfg["x_ring"], cfg["w_ring"]
    ACC, FR = cfg["ACC"], cfg["FRAG"]
    tr = cfg["w_mode"] == "tr16"
    VX0, VW0, VX, VW = 4, 5, 6, 10
    XF, WF, RW = FR, FR + 16, 7
    D = cfg.get("D", 6 if tr else 7)
    PAUSE = cfg.get("pause", 3)
    NI = 2 * NT
    if cfg.get("cons_pre"):
        cfg["cons_pre"](k)
    xswz = cfg.get("x_mode") == "dma_swz"
    if xswz:
        k("v_bfe_u32 v2, v%d, 1, 3" % V_LANE)
        k("v_lshrrev_b32 v3, 4, v%d" % V_LANE)
        k("v_xor_b32 v2, v2, v3")
        k("v_lshlrev_b32 v2, 4, v2")
        k("v_and_b32 v3, 15, v%d" % V_LANE)
        k("v_lshl_add_u32 v2, v3, 7, v2")
        k("s_lshl_b32 s50, s%d, 12" % S_WAVE)
        k("s_add_u32 s50, s50, %d" % xr[0])
        k("v_add_u32 v%d, s50, v2" % VX0)
    else:
        k("s_lshl_b32 s50, s%d, 11" % S_WAVE)
        k("s_add_u32 s50, s50, %d" % xr[0])
        k("v_lshl_add_u32 v%d, v%d, 4, s50" % (VX0, V_LANE))
    if tr:
        k("v_lshrrev_b32 v2, 5, v%d" % V_LANE)
        k("v_lshlrev_b32 v%d, 9, v2" % VW0)
        k("v_and_b32 v2, 31, v%d" % V_LANE)
        k("v_lshl_add_u32 v%d, v2, 3, v%d" % (VW0, VW0))
    else:
        k("v_lshlrev_b32 v%d, 4, v%d" % (VW0, V_LANE))
    k("v_add_u32 v%d, %d, v%d" % (VW0, wr[0], VW0))
    for i in range(8 * NT):
        k("v_mov_b32 v%d, %s" % (ACC + i, cfg.get("acc_init", lambda i: "0")(i)))
    S_XS, S_WS, S_T = 52, 53, 54

    def set_addr():
        k("v_add_u32 v%d, s%d, v%d" % (VX, S_XS, VX0))
        k("v_add_u32 v%d, s%d, v%d" % (VW, S_WS, VW0))
        if xswz:
            k("v_xor_b32 v%d, 64, v%d" % (VX + 1, VX))

    def reads(n):
        ks, ct = n // NT, n % NT
        o = []
        if ct == 0:
            for rt in range(2):
                if xswz:
                    o.append("ds_read_b128 %s, v%d offset:%d" % (v(XF + 8 * ks + 4 * rt, 4), VX + ks, rt * 2048))
                else:
                    o.append("ds_read_b128 %s, v%d offset:%d" % (v(XF + 8 * ks + 4 * rt, 4), VX, ks * 8192 + rt * 1024))
        w = WF + 4 * (n % RW)
        if tr:
            for rd in range(2):
                o.append("ds_read_b64_tr_b16 %s, v%d offset:%d" % (v(w + 2 * rd, 2), VW, n * 1024 + rd * 256))
        else:
            o.append("ds_read_b128 %s, v%d offset:%d" % (v(w, 4), VW, n * 1024))
        return o

    after = [[] for _ in range(NI)]
    nb = NI - D + PAUSE
    for n in range(NI - D):
        after[n].append(n + D)
    pend = list(range(NI, NI + D))
    left = NI - nb
    for n in range(nb, NI):
        take = -(-len(pend) // (NI - n))
        after[n] += pend[:take]
        pend = pend[take:]
    for n in range(NI):
        for m in after[n]:
            assert m - RW <= n
    q = []
    for m in range(D):
        q += [m] * len(reads(m))
    waits = {}
    for rep in range(2):
        for n in range(NI):
            g = rep * NI + n
            idx = [i for i, o in enumerate(q) if o <= g]
            waits[(rep, n)] = len(q) - 1 - max(idx) if idx else None
            if idx:
                q = q[max(idx) + 1:]
            if n == nb:
                q = []
            for m in after[n]:
                q += [rep * NI + m] * len(reads(m % NI))
    k("s_mov_b32 s%d, 0" % S_XS)
    k("s_mov_b32 s%d, %d" % (S_WS, wr[1] * cfg.get("w_start", 0)))
    k("s_mov_b32 s%d, 0" % S_T)
    set_addr()
    k.stamp(sb + 1)
    k("s_barrier")
    k.stamp(sb + 2)
    for m in range(D):
        for r in reads(m):
            k(r)
    if cfg.get("cons_loads"):
        cfg["cons_loads"](k)
    book = []
    for (sr, ring) in ((S_XS, xr), (S_WS, wr)):
        book += ["s_add_u32 s%d, s%d, %d" % (sr, sr, ring[1]), "s_cmp_ge_u32 s%d, %d" % (sr, ring[1] * ring[2]),
                 "s_cselect_b32 s%d, 0, s%d" % (sr, sr)]
    book += ["s_add_u32 s%d, s%d, 1" % (S_T, S_T), "s_cmp_lt_u32 s%d, %d" % (S_T, T)]
    assert len(book) <= nb
    LOOP = k.uid("cloop")
    k.label(LOOP)
    for n in range(NI):
        ks, ct = n // NT, n % NT
        assert waits[(0, n)] == waits[(1, n)]
        if waits[(1, n)] is not None:
            assert waits[(1, n)] <= 15
            WG_ = cfg.get("wgroup", 1)
            if n % WG_ == 0:
                nr = sum(len(reads(m)) for m in range(n + 1, min(NI, n + WG_)) if waits[(1, m)] is not None)
                k("s_waitcnt lgkmcnt(%d)" % max(0, waits[(1, n)] - nr))
        rs = [r for m in after[n] for r in reads(m % NI)]
        for rt in range(2):
            acc = v(ACC + 4 * (ct * 2 + rt), 4)
            k("v_mfma_f32_16x16x32_bf16 %s, %s, %s, %s" % (acc, v(WF + 4 * (n % RW), 4), v(XF + 8 * ks + 4 * rt, 4), acc))
            if rt == 0 and n == nb:
                set_addr()
                k("s_waitcnt lgkmcnt(0)")
                k("s_barrier")
            if rt == 0 and n != nb:
                own = v(WF + 4 * (n % RW), 4)[2:].split(":")[0]
                early = [r for r in rs if all(m - RW < n for m in after[n])][:(len(rs) + 1) // 2]
                for r in early:
                    k(r)
                rs = rs[len(early):]
        for r in rs:
            k(r)
        if n < len(book):
            k(book[n])
    k("s_cbranch_scc1 " + LOOP)
    k("s_waitcnt lgkmcnt(0)")
    k.stamp(sb + 3)
    cfg["epilogue"](k)
    k.stamp(sb + 4)


def prod_phase(k, cfg, sb=0, first=False, tail_hook=None):
    g = prod_phase_gen(k, cfg, sb, first, tail_hook)
    next(g)
    next(g, None)


def prod_phase_gen(k, cfg, sb=0, first=False, tail_hook=None):
    T, NS = cfg["T"], cfg["NS"]
    dmas = cfg["dma_setup"](k)
    S_TMP, S_OFF, S_M, S_IT = 66, 68, 72, 77
    for n, d in enumerate(dmas):
        k("s_mov_b32 s%d, s%d" % (S_OFF + n, d.sbase))
        k("s_mul_i32 s%d, s%d, %d" % (S_M + n, S_WAVE, d.wave_bytes()))
        k("s_add_u32 s%d, s%d, %d" % (S_M + n, S_M + n, d.ring))
        k("s_add_u32 s%d, s%d, %d" % (S_M + 2 + n, S_M + n, d.slot * NS))
        if getattr(d, "start", 0):
            k("s_add_u32 s%d, s%d, %d" % (S_M + n, S_M + n, d.slot * d.start))
    if first:
        k("s_waitcnt lgkmcnt(0)")
    cfg["srds_p"](k)
    k.stamp(sb + 1)

    def step(which):
        cnt = 0
        for n, d in enumerate(dmas):
            if n not in which:
                continue
            for i, vreg in enumerate(d.pieces):
                if i % 4 == 0:
                    c = (i // 4) * 4096
                    k("s_add_u32 m0, s%d, %d" % (S_M + n, c) if c else "s_mov_b32 m0, s%d" % (S_M + n))
                half = d.half_last and i == len(d.pieces) - 1
                if half:
                    k("s_mov_b32 exec_hi, 0")
                k("buffer_load_dwordx4 v%d, %s, s%d offen offset:%d%s lds" %
                  (vreg, s(d.srd, 4), S_OFF + n, (i % 4) * 1024, " sc1" if getattr(d, "dep", False) or getattr(d, "sc1", False) else ""))
                if half:
                    k("s_mov_b32 exec_hi, -1")
                cnt += 1
            k("s_add_u32 s%d, s%d, %d" % (S_OFF + n, S_OFF + n, d.stride))
            k("s_add_u32 s%d, s%d, %d" % (S_M + n, S_M + n, d.slot))
            k("s_cmp_ge_u32 s%d, s%d" % (S_M + n, S_M + 2 + n))
            k("s_cselect_b32 s%d, %d, 0" % (S_TMP, d.slot * NS))
            k("s_sub_u32 s%d, s%d, s%d" % (S_M + n, S_M + n, S_TMP))
        return cnt

    allops = list(range(len(dmas)))
    nD = sum(len(d.pieces) for d in dmas)
    pl = cfg.get("poll")
    ops = []

    def issue(which, st):
        ops.extend([st] * step(which))

    def wait_step(st):
        last = max(i for i, o in enumerate(ops) if o == st)
        k("s_waitcnt vmcnt(%d)" % min(63, len(ops) - 1 - last))

    if pl:
        dep = [n for n in allops if getattr(dmas[n], "dep", False)]
        free = [n for n in allops if n not in dep]
        early = NS - 1 - min(NS - 1, cfg.get("late_free", 0))
        if cfg.get("prod_pre_load"):
            cfg["prod_pre_load"](k)
        for st in range(early):
            issue(free, st)
        yield len(ops)
        pl.setup(k)
        for st in range(early, NS - 1):
            issue(free, st)
        for st in range(NS - 1):
            pl.need(k)
            if st == 0:
                k.stamp(sb + 2)
            issue(dep, st)
    else:
        yield 0
        if cfg.get("prod_pre_load"):
            cfg["prod_pre_load"](k)
        for st in range(NS - 1):
            issue(allops, st)
        k.stamp(sb + 2)
    wait_step(0)
    if cfg.get("prod_pre_fin"):
        cfg["prod_pre_fin"](k)
    k.stamp(sb + 3)
    k("s_barrier")
    npeel = NS - 3 if pl else 0
    for t in range(npeel):
        pl.need(k)
        issue(allops, t + NS - 1)
        wait_step(t + 1)
        k("s_barrier")
    k("s_mov_b32 s%d, %d" % (S_IT, npeel))
    LOOP = k.uid("ploop")
    k.label(LOOP)
    if pl:
        pl.need(k)
    if not DBG["no_prod"]:
        step(allops)
    for (when, job) in cfg.get("prod_mid", []):
        SK = k.uid("nomid")
        k("s_cmp_lg_u32 s%d, %s" % (S_IT, when))
        k("s_cbranch_scc1 " + SK)
        job(k)
        k.label(SK)
    if DBG["l2hit"]:
        for n, d in enumerate(dmas):
            k("s_cmp_ge_u32 s%d, %d" % (S_OFF + n, 6 * d.stride))
            k("s_cselect_b32 s%d, 0, s%d" % (S_OFF + n, S_OFF + n))
    k("s_add_u32 s%d, s%d, 1" % (S_IT, S_IT))
    k("s_cmp_lt_u32 s%d, %d" % (S_IT, T - (NS - 1)))
    k("s_waitcnt vmcnt(%d)" % ((NS - 2) * nD))
    k("s_barrier")
    k("s_cbranch_scc1 " + LOOP)
    extra = tail_hook() if tail_hook else 0
    for r in range(NS - 3, -1, -1):
        k("s_waitcnt vmcnt(%d)" % (r * nD + extra))
        k("s_barrier")
    k("s_barrier")
    k.stamp(sb + 4)


def gemm(name, cfg):
    k = Kern(name)
    T, NWG = cfg["T"], cfg["NWG"]
    MT, NT = cfg["MT"], cfg["NT"]
    NS = cfg["NS"]
    NP = cfg.get("NP", 4)
    NB_ = 16 // NP
    END, PROD = k.uid("end"), k.uid("prod")
    k("s_cmp_ge_u32 s2, %d" % NWG)
    k("s_cbranch_scc1 " + END)
    k.kidx = cfg.get("kidx", 0)
    k.stamp_init()
    cfg["load_ptrs"](k)
    k("v_lshrrev_b32 v2, 6, v0")
    k("v_and_b32 v%d, 63, v0" % V_LANE)
    k("v_readfirstlane_b32 s%d, v2" % S_WAVE)
    cfg["map"](k)
    k("s_cmp_ge_u32 s%d, 4" % S_WAVE)
    k("s_cbranch_scc1 " + PROD)
    k("s_waitcnt lgkmcnt(0)")
    cfg["srds_c"](k)

    cons_phase(k, cfg)
    k.stamp_dump(5)
    k("s_endpgm")

    k.label(PROD)
    if cfg.get("pprio", 0):
        k("s_setprio %d" % cfg["pprio"])
    k("s_sub_u32 s%d, s%d, 4" % (S_WAVE, S_WAVE))
    dmas = cfg["dma_setup"](k)
    vg = cfg.get("vg")
    S_TMP, S_OFF, S_M = 66, 68, 72
    S_VOFF, S_IT = 76, 77
    nD = sum(len(d.pieces) for d in dmas)
    static_ring = NS in (2, 4)
    for n, d in enumerate(dmas):
        k("s_mov_b32 s%d, s%d" % (S_OFF + n, d.sbase))
        k("s_mul_i32 s%d, s%d, %d" % (S_M + n, S_WAVE, len(d.pieces) * 1024))
        k("s_add_u32 s%d, s%d, %d" % (S_M + n, S_M + n, d.ring))
        if not static_ring:
            k("s_add_u32 s%d, s%d, %d" % (S_M + 2 + n, S_M + n, d.slot * NS))
    if vg:
        VR, VOFF, VLDS = vg["regs"], vg["voff"], vg["vlds"]
        k("s_mul_i32 s%d, s%d, %d" % (S_TMP, S_WAVE, NB_ * 1024))
        k("v_lshl_add_u32 v%d, v%d, 4, s%d" % (VOFF, V_LANE, S_TMP))
        k("v_add_u32 v%d, %d, v%d" % (VLDS, vg["ring"], VOFF))
        k("s_mov_b32 s%d, 0" % S_VOFF)
    k("s_waitcnt lgkmcnt(0)")
    cfg["srds_p"](k)
    k.stamp(1)

    def dma_items(step):
        o = []
        for n, d in enumerate(dmas):
            for i, vreg in enumerate(d.pieces):
                g = []
                if i % 4 == 0:
                    c = (i // 4) * 4096 + ((step % NS) * d.slot if static_ring else 0)
                    g.append("s_add_u32 m0, s%d, %d" % (S_M + n, c) if c else "s_mov_b32 m0, s%d" % (S_M + n))
                g.append("buffer_load_dwordx4 v%d, %s, s%d offen offset:%d lds" % (vreg, s(d.srd, 4), S_OFF + n, (i % 4) * 1024))
                if i == len(d.pieces) - 1:
                    g.append("s_add_u32 s%d, s%d, %d" % (S_OFF + n, S_OFF + n, d.stride))
                    if not static_ring:
                        g.append("s_add_u32 s%d, s%d, %d" % (S_M + n, S_M + n, d.slot))
                        g.append("s_cmp_ge_u32 s%d, s%d" % (S_M + n, S_M + 2 + n))
                        g.append("s_cselect_b32 s%d, %d, 0" % (S_TMP, d.slot * NS))
                        g.append("s_sub_u32 s%d, s%d, s%d" % (S_M + n, S_M + n, S_TMP))
                o.append(g)
        return o

    def emit(groups):
        for g in groups:
            for l in g:
                k(l)

    if vg:
        def vg_items(set_):
            o = []
            for i in range(NB_):
                g = ["buffer_load_dwordx4 %s, v%d, %s, s%d offen offset:%d" %
                     (v(VR + 16 * set_ + 4 * i, 4), VOFF, s(vg["srd"], 4), S_VOFF, i * 1024)]
                if i == NB_ - 1:
                    g.append("s_add_u32 s%d, s%d, 16384" % (S_VOFF, S_VOFF))
                o.append(g)
            return o

        def xform_list(step):
            set_ = step % 4
            o = []
            for i in range(NB_):
                o += vg["xform"](VR + 16 * set_ + 4 * i, i, step % 2)
                o.append("ds_write_b128 v%d, %s offset:%d" % (VLDS, v(VR + 16 * set_ + 4 * i, 4), (step % 2) * 16384 + i * 1024))
            return o

        emit(vg_items(0))
        emit(dma_items(0))
        k("s_barrier")
        emit([vg["params"](0)])
        emit([vg["params"](1)])
        emit(vg_items(1))
        k("s_waitcnt vmcnt(%d) lgkmcnt(0)" % (NB_ + nD))
        k.stamp(2)
        for l in xform_list(0):
            k(l)
        for st in range(1, NS - 1):
            emit(dma_items(st))
        emit(vg_items(2))
        k("s_waitcnt vmcnt(%d) lgkmcnt(0)" % (NB_ + (NS - 2) * nD))
        k.stamp(3)
        k("s_barrier")
        k("s_mov_b32 s%d, 0" % S_IT)
        LOOP = k.uid("ploop")
        k.label(LOOP)
        for u in range(4):
            mem = vg_items((u + 3) % 4) + dma_items(u + NS - 1)
            xf = xform_list(u + 1)
            mem.append(vg["params"](u % 2))
            if DBG["no_prod"]:
                mem, xf = [["s_nop 0"]], []
            if DBG["no_xf"]:
                xf = []
            if DBG["no_dsw"]:
                xf = [l for l in xf if not l.startswith("ds_write")]
            if DBG["no_valu"]:
                xf = [l for l in xf if l.startswith("ds_write")]
            tail = cfg.get("tail", 2)
            par = mem.pop()
            xf = par + xf
            ng = max(1, len(mem) - tail)
            gap = len(xf) / float(ng)
            pos, j = 0.0, 0
            for g in mem:
                emit([g])
                pos += gap
                while j < len(xf) and j < int(pos + 0.5):
                    k(xf[j])
                    j += 1
            if u == 3 and DBG["l2hit"]:
                k("s_mov_b32 s%d, 0" % S_VOFF)
                for n, d in enumerate(dmas):
                    k("s_mov_b32 s%d, s%d" % (S_OFF + n, d.sbase))
            if u == 3:
                k("s_add_u32 s%d, s%d, 4" % (S_IT, S_IT))
                k("s_cmp_lt_u32 s%d, %d" % (S_IT, T))
            k("s_waitcnt vmcnt(%d) lgkmcnt(0)" % (NB_ + nD))
            k("s_barrier")
        k("s_cbranch_scc1 " + LOOP)
    else:
        if cfg.get("prod_pre_load"):
            cfg["prod_pre_load"](k)
        for st in range(NS - 1):
            emit(dma_items(st))
        k.stamp(2)
        k("s_waitcnt vmcnt(%d)" % ((NS - 2) * nD))
        if cfg.get("prod_pre_fin"):
            cfg["prod_pre_fin"](k)
        k.stamp(3)
        k("s_barrier")
        k("s_mov_b32 s%d, 0" % S_IT)
        LOOP = k.uid("ploop")
        k.label(LOOP)
        U = 4 if static_ring else 1
        for u in range(U):
            if not DBG["no_prod"]:
                emit(dma_items(u + NS - 1))
            if u == U - 1 and DBG["l2hit"]:
                for n, d in enumerate(dmas):
                    k("s_mov_b32 s%d, s%d" % (S_OFF + n, d.sbase))
            if u == U - 1:
                k("s_add_u32 s%d, s%d, %d" % (S_IT, S_IT, U))
                k("s_cmp_lt_u32 s%d, %d" % (S_IT, T))
            k("s_waitcnt vmcnt(%d)" % ((NS - 2) * nD))
            k("s_barrier")
        k("s_cbranch_scc1 " + LOOP)
    k("s_waitcnt vmcnt(0)")
    k.stamp_dump(5)
    k.label(END)
    k("s_endpgm")
    txt, n = k.finish(vgprs=cfg["vgprs"], sgprs=96)
    return txt, "; @launch kernel=%s grid=(%d,1,1) block=(%d,1,1) lds=%d" % (name, NWG, 256 + 64 * NP, cfg["lds"])
```

```python
from gemm import *
from gemms import (w_voff, pack16, swap8, ex_addr, both_halves, ex_publish, stats_to_affine, BCAST)
from sync import *
import math

S_WM, S_WN = 48, 49
P_X, P_WS, P_WSP, P_BSP, P_WOUT, P_OUT = 4, 6, 8, 10, 12, 16
MV = 162688
X1R, FR, Z1R, BR = 16, 32, 80, 192


def ex_collect(k, R, G, vr, srd, soff, n, nq, nb=1, bstride=0):
    L, D = k.uid("poll"), k.uid("got")
    k("s_mov_b32 s64, 0")
    offs = {}
    nxt = 65
    for b in range(nb):
        for hi in range((nq + 7) // 8):
            c = b * bstride + hi * 4096
            if c == 0:
                offs[(b, hi)] = soff
            else:
                k("s_add_u32 s%d, s%d, %d" % (nxt, soff, c))
                offs[(b, hi)] = nxt
                nxt += 1
    k.label(L)
    for b in range(nb):
        for q in range(nq):
            k("buffer_load_dwordx2 %s, v%d, %s, s%d offen offset:%d sc1" %
              (v(R[b] + 2 * q, 2), vr, s(srd, 4), offs[(b, q // 8)], (q & 7) * 512))
    k("s_waitcnt vmcnt(0)")
    k("v_mov_b32 v2, 0")
    for b in range(nb):
        for q in range(0, nq, 2):
            k("v_min3_f32 v2, v2, v%d, v%d" % (R[b] + 2 * q + 1, R[b] + 2 * q + 3))
    k("v_cmp_gt_f32 vcc, 0, v2")
    k("s_cbranch_vccz " + D)
    k("s_sleep 2")
    k("s_add_u32 s64, s64, 1")
    k("s_cmp_lt_u32 s64, 0x100000")
    k("s_cbranch_scc1 " + L)
    k.label(D)
    for b in range(nb):
        Rb = R[b]
        m = nq
        while m > 1:
            h = (m + 1) // 2
            for e in range(m - h):
                k("v_pk_add_f32 %s, %s, %s" % (v(Rb + 2 * e, 2), v(Rb + 2 * e, 2), v(Rb + 2 * (e + h), 2)))
            m = h
        both_halves(k, Rb, Rb + 2)
        both_halves(k, Rb + 1, Rb + 3)
        stats_to_affine(k, Rb, n)
        k("v_mov_b32 v%d, v%d" % (G + 2 * b, Rb))
        k("v_mov_b32 v%d, v%d" % (G + 2 * b + 1, Rb + 1))


def dep(d):
    d.dep = True
    return d


def lin_voff(k):
    k("s_mov_b32 s82, 0")
    k("s_lshl_b32 s50, s%d, 12" % S_WAVE)
    k("v_lshl_add_u32 v5, v%d, 4, s50" % V_LANE)


def cfg25(which, PD=3, NS=5, gate=None):
    T = 16 if which == 2 else 28
    ACC, GA, XR, T2 = 80, 112, 144, 160

    def srds_c(k):
        if which == 2:
            srd_in(k, SRD_E1, P_X, SZ["x"])
            srd_ws(k, SRD_E2, P_WS, "H2")
            srd_ws(k, SRD_E3, P_WS, "EX2")
        else:
            srd_in(k, SRD_E2, P_OUT, SZ["out"])

    def srds_p(k):
        srd_ws_sub(k, SRD_X, P_WS, "O" if which == 2 else "U", 81, T * 16384)
        srd_ws_sub(k, SRD_W, P_WS, "WOF" if which == 2 else "WOUTF", 80, T * 8192)
        if which == 2:
            srd_ws(k, SRD_E0, P_WS, "MODP")

    def dma_setup(k):
        k("s_lshl_b32 s50, s%d, 11" % S_WAVE)
        k("v_lshl_add_u32 v8, v%d, 4, s50" % V_LANE)
        k("s_mul_i32 s80, s%d, %d" % (S_BN, T * 8192))
        k("s_mul_i32 s81, s%d, %d" % (S_BM, T * 16384))
        lin_voff(k)
        if which == 2:
            k("s_lshl_b32 s56, s%d, 8" % S_BN)
            k("s_add_u32 s56, s56, s50")
            k("s_add_u32 s56, s56, %d" % (2 * 4096))
            for p in range(1, 4):
                k("s_add_u32 s%d, s56, %d" % (59 + p, p * 6144 * 4))
            k("v_lshlrev_b32 v12, 2, v%d" % V_LANE)
            k("s_cmp_eq_u32 s%d, 2" % S_WAVE)
            k("s_cselect_b32 s58, 1.0, 0")
            k("s_lshl_b32 s59, s%d, 8" % S_WAVE)
            k("s_add_u32 s59, s59, %d" % MV)
            k("v_add_u32 v13, s59, v12")
        x = Dma(SRD_X, [5, 5, 5, 5], 16384, 0, 16384, 82)
        w = Dma(SRD_W, [8, 8], 8192, NS * 16384, 8192, 82)
        w.sc1 = True
        return [dep(x), w]

    def prod_pre_load(k):
        gate(k)
        k("buffer_load_dword v14, v12, %s, s56 offen sc1" % s(SRD_E0, 4))
        for p in range(1, 4):
            k("buffer_load_dword v%d, v12, %s, s%d offen sc1" % (20 + p, s(SRD_E0, 4), 59 + p))
        k("s_mov_b32 s65, s58")

    def prod_pre_fin(k):
        k("v_add_f32 v14, v14, v21")
        k("v_add_f32 v22, v22, v23")
        k("v_add_f32 v14, v14, v22")
        k("v_cvt_pk_bf16_f32 v14, v14, v14")
        k("v_lshlrev_b32 v14, 16, v14")
        k("v_add_f32 v14, s65, v14")
        k("v_cvt_pk_bf16_f32 v14, v14, v14")
        k("v_lshlrev_b32 v14, 16, v14")
        k("ds_write_b32 v13, v14")
        k("s_waitcnt lgkmcnt(0)")

    def cons_pre(k):
        k("v_lshrrev_b32 v3, 5, v%d" % V_LANE)
        k("v_lshlrev_b32 v13, 4, v3")
        k("v_add_u32 v13, %d, v13" % MV)
        if which == 2:
            k("v_and_b32 v2, 31, v%d" % V_LANE)
            k("v_lshlrev_b32 v11, 11, v2")
            k("v_lshl_add_u32 v11, v3, 4, v11")
            k("s_lshl_b32 s60, s%d, 18" % S_BM)
            k("s_lshl_b32 s58, s%d, 16" % S_WAVE)
            k("s_add_u32 s60, s60, s58")
            k("s_lshl_b32 s58, s%d, 7" % S_BN)
            k("s_add_u32 s60, s60, s58")
            k("s_lshl_b32 s59, s%d, 4" % S_BM)
            k("s_add_u32 s59, s59, s%d" % S_BN)
            k("s_lshl_b32 s59, s59, 14")
            k("s_lshl_b32 s58, s%d, 11" % S_WAVE)
            k("s_add_u32 s57, s59, s58")
            k("s_add_u32 s55, s57, 8192")
            k("v_bfe_u32 v2, v%d, 4, 1" % V_LANE)
            k("v_lshlrev_b32 v12, 10, v2")
            k("v_lshl_add_u32 v12, v3, 8, v12")
            k("v_and_b32 v2, 15, v%d" % V_LANE)
            k("v_lshl_add_u32 v12, v2, 4, v12")
            ex_addr(k, 14)
            k("s_lshl_b32 s56, s%d, 2" % S_BM)
            k("s_add_u32 s56, s56, s%d" % S_WAVE)
            k("s_lshl_b32 s56, s56, 12")
            k("s_lshl_b32 s58, s%d, 8" % S_BN)
            k("s_add_u32 s58, s58, s56")
        else:
            k("v_and_b32 v2, 31, v%d" % V_LANE)
            k("v_lshlrev_b32 v12, 11, v2")
            k("v_lshl_add_u32 v12, v3, 4, v12")
            k("s_lshl_b32 s58, s%d, 18" % S_BM)
            k("s_lshl_b32 s56, s%d, 16" % S_WAVE)
            k("s_add_u32 s58, s58, s56")
            k("s_lshl_b32 s56, s%d, 7" % S_BN)
            k("s_add_u32 s58, s58, s56")

    def cons_loads(k):
        for q in range(4):
            k("buffer_load_dwordx4 %s, v11, %s, s60 offen offset:%d" % (v(XR + 4 * q, 4), s(SRD_E1, 4), q * 32))
        srd_in(k, SRD_E0, P_BSP, SZ["b_sp"])
        k("v_and_b32 v2, 15, v%d" % V_LANE)
        k("v_lshlrev_b32 v2, 1, v2")
        k("s_lshr_b32 s61, s56, 6")
        for i in range(2):
            k("buffer_load_ushort v%d, v2, %s, s61 offen offset:%d" % (BR + i, s(SRD_E0, 4), i * 32))

    def mv_read(k, R, vec):
        for jg in range(8):
            k("ds_read_b128 %s, v13 offset:%d" % (v(R + 4 * jg, 4), vec * 256 + jg * 32))

    def prework(k):
        mv_read(k, GA, 0 if which == 2 else 3)
        src = X1R
        if which == 2:
            src = XR
            k("s_waitcnt vmcnt(0)")
            swap8(k, XR)
            swap8(k, XR + 8)
            for i in range(2):
                k("v_lshlrev_b32 v%d, 16, v%d" % (BR + i, BR + i))
        for d in range(16):
            unpack_bf16(k, T2 + 2 * d, T2 + 2 * d + 1, src + d)

    def epilogue(k):
        TT = T2
        if which == 2:
            for r in (4, 5, 6, 7):
                k("v_mov_b32 v%d, 0" % r)
        for d in range(16):
            k("v_pk_fma_f32 %s, %s, %s, %s" % (v(ACC + 2 * d, 2), v(ACC + 2 * d, 2), v(GA + 2 * d, 2), v(TT + 2 * d, 2)))
        if which == 5:
            for j in range(2):
                P = FR + 8 * j
                pack16(k, P, ACC + 16 * j)
                swap8(k, P)
                for p in range(2):
                    k("buffer_store_dwordx4 %s, v12, %s, s58 offen offset:%d" % (v(P + 4 * p, 4), s(SRD_E2, 4), j * 64 + p * 32))
            return
        for d in range(16):
            k("v_pk_add_f32 v[4:5], v[4:5], %s" % v(ACC + 2 * d, 2))
            k("v_pk_fma_f32 v[6:7], %s, %s, v[6:7]" % (v(ACC + 2 * d, 2), v(ACC + 2 * d, 2)))
        ex_publish(k, 4, 14, SRD_E3, 58)
        mv_read(k, GA, 2)
        mv_read(k, TT, 1)
        for j in range(2):
            pack16(k, X1R + 8 * j, ACC + 16 * j)
        k.stamp(24)
        ex_collect(k, [FR + 16], 4, 14, SRD_E3, 56, 1024, 8)
        k.stamp(25)
        k("s_waitcnt lgkmcnt(0)")
        for j in range(2):
            for d in range(8 * j, 8 * j + 8):
                k("v_pk_fma_f32 %s, %s, v[4:5], v[4:5] %s" % (v(ACC + 2 * d, 2), v(ACC + 2 * d, 2), BCAST))
            for d in range(8 * j, 8 * j + 8):
                k("v_pk_fma_f32 %s, %s, %s, %s" % (v(ACC + 2 * d, 2), v(ACC + 2 * d, 2), v(GA + 2 * d, 2), v(TT + 2 * d, 2)))
            P = FR + 8 * j
            pack16(k, P, ACC + 16 * j)
            swap8(k, P)
            for p in range(2):
                k("buffer_store_dwordx4 %s, v12, %s, s%d offen offset:%d sc1" % (v(P + 4 * p, 4), s(SRD_E2, 4), 55 if j else 57, p * 512))
        k.stamp(26)
        signal(k, FL2, S_BM, S_BN, 5)

    c = dict(PD=PD, T=T, MT=1, NT=2, NS=NS, wgrid="4x1", srds_c=srds_c, srds_p=srds_p,
             map=lambda k: map_blocks(k, 2, 8, 2),
             x_ring=(0, 16384, NS), w_ring=(NS * 16384, 8192, NS), x_mode="dma_fm", w_mode="fm",
             w_wave_stride=0, reads_per_mfma=3,
             FRAG=FR, ACC=ACC, dma_setup=dma_setup, cons_pre=cons_pre, epilogue=epilogue)
    if which == 2:
        c.update(cons_loads=cons_loads, prod_pre_load=prod_pre_load, prod_pre_fin=prod_pre_fin, mid=(8, prework),
                 poll=Poll(FL0, 22, 2048, 1024, lg=5, lds=MV + 1024))
    else:
        c.update(cons_pre=lambda k: (cons_pre(k), prework(k), k("s_waitcnt lgkmcnt(0)")), poll=Poll(FL4, S_BM, 4 * 147, 3 * 147, lds=MV + 1024))
    return c


C0 = -2.0 * math.sqrt(2.0 / math.pi) * LOG2E
C1 = C0 * 0.044715


def gelu(k, A, n, TT):
    for e in range(0, n, 2):
        k("v_pk_mul_f32 %s, %s, %s" % (v(TT + e, 2), v(A + e, 2), v(A + e, 2)))
    for e in range(0, n, 2):
        k("v_pk_fma_f32 %s, %s, s[60:61], v[12:13]" % (v(TT + e, 2), v(TT + e, 2)))
    for e in range(0, n, 2):
        k("v_pk_mul_f32 %s, %s, %s" % (v(TT + e, 2), v(TT + e, 2), v(A + e, 2)))
    for e in range(n):
        k("v_exp_f32 v%d, v%d" % (TT + e, TT + e))
    for e in range(0, n, 2):
        k("v_pk_add_f32 %s, %s, 1.0 op_sel_hi:[1,0]" % (v(TT + e, 2), v(TT + e, 2)))
    for e in range(n):
        k("v_rcp_f32 v%d, v%d" % (TT + e, TT + e))
    for e in range(0, n, 2):
        k("v_pk_mul_f32 %s, %s, %s" % (v(A + e, 2), v(A + e, 2), v(TT + e, 2)))


def pack8(k, P, A):
    for d in range(4):
        k("v_cvt_pk_bf16_f32 v%d, v%d, v%d" % (P + d, A + 2 * d, A + 2 * d + 1))


def swap16(k, P):
    k("v_permlane16_swap_b32 v%d, v%d" % (P, P + 2))
    k("v_permlane16_swap_b32 v%d, v%d" % (P + 1, P + 3))


def cfg3():
    ACC = 80

    def srds_c(k):
        srd_ws(k, SRD_E2, P_WS, "Z2")
        srd_ws(k, SRD_E3, P_WS, "EX3")

    def srds_p(k):
        srd_ws_sub(k, SRD_X, P_WS, "H2", 81, 16 * 16384)
        srd_ws_sub(k, SRD_W, P_WS, "WINF", 80, 16 * 28672)

    def dma_setup(k):
        k("s_mul_i32 s50, s%d, 7168" % S_WAVE)
        k("v_lshl_add_u32 v8, v%d, 4, s50" % V_LANE)
        k("v_add_u32 v9, 4096, v8")
        k("s_mul_i32 s80, s%d, %d" % (S_BN, 16 * 28672))
        k("s_lshl_b32 s81, s%d, 18" % S_BM)
        lin_voff(k)
        w = Dma(SRD_W, [8, 8, 8, 8, 9, 9, 9], 28672, 69632, 28672, 82)
        w.sc1 = True
        w.start = 1
        return [dep(Dma(SRD_X, [5, 5, 5, 5], 16384, 0, 16384, 82)), w]

    STG3 = 49152

    def wo_ids(k):
        k("s_lshl_b32 s48, s2, 2")
        k("s_add_u32 s48, s48, s%d" % S_WAVE)
        k("s_lshr_b32 s49, s48, 4")
        k("s_and_b32 s50, s48, 15")
        k("s_cmp_ge_u32 s48, 896")
        k("s_cselect_b32 s51, 0x7f000000, 0")
        k("s_lshl_b32 s52, s%d, 12" % S_WAVE)
        k("s_add_u32 s52, s52, %d" % STG3)

    def wo_load(k):
        wo_ids(k)
        srd_in(k, SRD_E1, P_WOUT, SZ["w_out"])
        k("v_lshrrev_b32 v20, 3, v%d" % V_LANE)
        k("v_lshlrev_b32 v20, 11, v20")
        k("v_and_b32 v21, 7, v%d" % V_LANE)
        k("v_lshl_add_u32 v20, v21, 4, v20")
        k("s_lshl_b32 s53, s49, 16")
        k("s_lshl_b32 s54, s50, 7")
        k("s_add_u32 s53, s53, s54")
        k("s_or_b32 s53, s53, s51")
        for q in range(4):
            k("s_add_u32 m0, s52, %d" % (q * 1024))
            k("s_add_u32 s54, s53, %d" % (q * 8 * 2048))
            k("buffer_load_dwordx4 v20, %s, s54 offen lds" % s(SRD_E1, 4))
        k("s_mul_i32 s55, s%d, 3" % S_WAVE)
        k("s_add_u32 s55, s55, 3")

    def wo_store(k):
        wo_ids(k)
        k("v_bfe_u32 v20, v%d, 2, 2" % V_LANE)
        k("v_and_b32 v21, 3, v%d" % V_LANE)
        k("v_lshlrev_b32 v21, 3, v21")
        k("v_lshl_add_u32 v21, v20, 7, v21")
        k("v_lshrrev_b32 v20, 5, v%d" % V_LANE)
        k("v_lshl_add_u32 v21, v20, 10, v21")
        k("v_bfe_u32 v20, v%d, 4, 1" % V_LANE)
        k("v_lshl_add_u32 v21, v20, 5, v21")
        k("v_add_u32 v21, s52, v21")
        for b in range(4):
            for rd in range(2):
                k("ds_read_b64_tr_b16 %s, v21 offset:%d" % (v(24 + 4 * b + 2 * rd, 2), (b >> 1) * 2048 + rd * 512 + (b & 1) * 64))
        srd_ws(k, SRD_E1, P_WS, "WOUTF")
        k("s_mul_i32 s53, s50, %d" % (28 * 8192))
        k("s_lshl_b32 s54, s49, 12")
        k("s_add_u32 s53, s53, s54")
        k("s_or_b32 s53, s53, s51")
        k("v_lshlrev_b32 v20, 4, v%d" % V_LANE)
        k("s_waitcnt lgkmcnt(0)")
        for b in range(4):
            k("buffer_store_dwordx4 %s, v20, %s, s53 offen offset:%d sc1" % (v(24 + 4 * b, 4), s(SRD_E1, 4), b * 1024))

    def sp_touch(k):
        srd_in(k, SRD_E2, P_WSP, SZ["w_sp"])
        k("v_lshlrev_b32 v22, 7, v%d" % V_LANE)
        k("s_lshl_b32 s48, s2, 2")
        k("s_add_u32 s48, s48, s%d" % S_WAVE)
        k("s_lshl_b32 s48, s48, 13")
        k("buffer_load_dword v23, v22, %s, s48 offen" % s(SRD_E2, 4))

    def epilogue(k):
        Z2A = ACC + 56
        k("s_mov_b32 s60, %s" % fhex(C1))
        k("s_mov_b32 s61, %s" % fhex(C1))
        k("v_mov_b32 v12, %s" % fhex(C0))
        k("v_mov_b32 v13, %s" % fhex(C0))
        k("s_lshl_b32 s57, s%d, 2" % S_BM)
        k("s_add_u32 s57, s57, s%d" % S_WAVE)
        k("s_lshl_b32 s62, s57, 12")
        k("s_lshl_b32 s63, s%d, 8" % S_BN)
        k("s_add_u32 s63, s63, s62")
        ex_addr(k, 14)
        for r in range(4, 12):
            k("v_mov_b32 v%d, 0" % r)
        for (a, n) in ((0, 24), (24, 32)):
            gelu(k, Z2A + a, n, FR)
            for e in range(a, a + n, 2):
                S = 4 + 4 * ((e >> 2) & 1)
                k("v_pk_add_f32 %s, %s, %s" % (v(S, 2), v(S, 2), v(Z2A + e, 2)))
                k("v_pk_fma_f32 %s, %s, %s, %s" % (v(S + 2, 2), v(Z2A + e, 2), v(Z2A + e, 2), v(S + 2, 2)))
        for r in (4, 6, 8, 10):
            k("v_add_f32 v%d, v%d, v%d" % (r, r, r + 1))
        k("v_permlane16_swap_b32 v4, v8")
        k("v_permlane16_swap_b32 v6, v10")
        k("v_mov_b32 v5, v8")
        k("v_mov_b32 v7, v10")
        ex_publish(k, 4, 14, SRD_E3, 63)
        k.stamp(27)

        def z1(a, n):
            gelu(k, ACC + a, n, FR)
        z1(0, 32)
        k.stamp(28)
        k("v_and_b32 v2, 19, v%d" % V_LANE)
        k("v_lshlrev_b32 v15, 5, v2")
        k("v_bfe_u32 v2, v%d, 2, 1" % V_LANE)
        k("v_lshl_add_u32 v15, v2, 8, v15")
        k("v_bfe_u32 v2, v%d, 3, 1" % V_LANE)
        k("v_lshl_add_u32 v15, v2, 7, v15")
        k("v_lshrrev_b32 v2, 5, v%d" % V_LANE)
        k("v_lshl_add_u32 v15, v2, 4, v15")
        k("s_mul_i32 s56, s%d, 7168" % S_WAVE)
        k("s_add_u32 s56, s56, 65536")
        k("v_add_u32 v15, s56, v15")
        k("v_lshlrev_b32 v8, 9, v2")
        k("v_and_b32 v2, 31, v%d" % V_LANE)
        k("v_lshl_add_u32 v8, v2, 3, v8")
        k("v_add_u32 v8, s56, v8")
        k("v_lshlrev_b32 v9, 4, v%d" % V_LANE)
        k("s_lshl_b32 s56, s%d, 6" % S_BN)
        k("s_add_u32 s56, s56, s57")
        k("s_mul_i32 s56, s56, 7168")
        k("s_add_u32 s58, s56, 4096")
        ex_collect(k, [FR], 4, 14, SRD_E3, 62, 1792, 8)
        k("v_mov_b32 v6, v4")
        k("v_mov_b32 v7, v5")
        k("v_permlane16_swap_b32 v4, v6")
        k("v_permlane16_swap_b32 v5, v7")

        def back(ct):
            k("s_waitcnt lgkmcnt(%d)" % (3 if ct < 6 else 0))
            k("buffer_store_dwordx4 %s, v9, %s, s%d offen offset:%d sc1" %
              (v(Z2A + 8 * ct + 4, 4), s(SRD_E2, 4), 56 if ct < 4 else 58, (ct & 3) * 1024))
        for ct in range(7):
            A = Z2A + 8 * ct
            for e in range(0, 8, 2):
                G = v(4 + 2 * (e >> 2), 2)
                k("v_pk_fma_f32 %s, %s, %s, %s %s" % (v(A + e, 2), v(A + e, 2), G, G, BCAST))
            pack8(k, A, A)
            swap16(k, A)
            k("ds_write_b128 v15, %s offset:%d" % (v(A, 4), ct * 1024))
            for rd in range(2):
                k("ds_read_b64_tr_b16 %s, v8 offset:%d" % (v(A + 4 + 2 * rd, 2), ct * 1024 + rd * 256))
            if ct:
                back(ct - 1)
        back(6)
        k.stamp(29)
        signal(k, FL3, S_BN, S_BM, 11)
        k.stamp(12)
        z1(32, 24)

    return dict(T=16, NT=14, NS=3, srds_c=srds_c, srds_p=srds_p, m16=True,
                x_ring=(0, 16384, 3), w_ring=(69632, 28672, 3), w_start=1, w_mode="fm16", D=6, pause=2, wgroup=2,
                prod_mid=[("0", wo_load), ("s55", sp_touch), ("5", wo_store)],
                FRAG=FR, ACC=ACC, dma_setup=dma_setup, epilogue=epilogue, poll=Poll(FL2, S_BM, 1024, 0, lds=MV + 1024))


def cfg4(NS=4):
    WR = NS * 16384
    ACC = 136

    def srds_c(k):
        srd_ws(k, SRD_E2, P_WS, "U")

    def srds_p(k):
        srd_in(k, SRD_X, P_WSP, SZ["w_sp"])
        srd_ws_sub(k, SRD_W, P_WS, "Z2", 81, 32 * 14336)

    def dma_setup(k):
        k("s_mul_i32 s50, s%d, 3584" % S_WAVE)
        k("v_lshl_add_u32 v8, v%d, 4, s50" % V_LANE)
        k("s_lshl_b32 s80, s%d, 19" % S_BM)
        k("s_mul_i32 s81, s%d, %d" % (S_BN, 32 * 14336))
        k("s_mov_b32 s82, 0")
        k("v_lshrrev_b32 v2, 3, v%d" % V_LANE)
        k("s_lshl_b32 s50, s%d, 5" % S_WAVE)
        k("v_add_u32 v2, s50, v2")
        k("v_bfe_u32 v3, v2, 1, 3")
        k("v_and_b32 v4, 7, v%d" % V_LANE)
        k("v_xor_b32 v3, v3, v4")
        k("v_lshlrev_b32 v3, 4, v3")
        k("v_lshl_add_u32 v10, v2, 12, v3")
        k("v_xor_b32 v11, 64, v10")
        k("v_add_u32 v11, %d, v11" % (8 * 4096 - 1024))
        k("v_add_u32 v12, %d, v10" % (16 * 4096 - 2048))
        k("v_add_u32 v13, %d, v11" % (16 * 4096 - 2048))
        w = dep(Dma(SRD_W, [8, 8, 8, 8], 14336, WR, 14336, 82))
        w.half_last = True
        return [Dma(SRD_X, [10, 11, 12, 13], 128, 0, 16384, 80), w]

    def cons_pre(k):
        k("v_lshlrev_b32 v12, 4, v%d" % V_LANE)
        k("s_mul_i32 s61, s%d, %d" % (S_BM, 28 * 16384))
        k("s_mul_i32 s62, s%d, %d" % (S_BN, 7 * 4096))
        k("s_add_u32 s61, s61, s62")
        k("s_lshl_b32 s62, s%d, 10" % S_WAVE)
        k("s_add_u32 s61, s61, s62")

    def epilogue(k):
        for ct in range(7):
            A = ACC + 8 * ct
            P = FR + 4 * ct
            for e in range(0, 8, 2):
                k("v_pk_mul_f32 %s, %s, %s" % (v(A + e, 2), v(A + e, 2), v(Z1R + 8 * ct + e, 2)))
            pack8(k, P, A)
            swap16(k, P)
            k("s_add_u32 s62, s61, %d" % (ct * 4096))
            k("buffer_store_dwordx4 %s, v12, %s, s62 offen sc1" % (v(P, 4), s(SRD_E2, 4)))
        k.stamp(30)
        signal(k, FL4, S_BM, S_BN, 17)

    return dict(T=32, NT=7, NS=NS, srds_c=srds_c, srds_p=srds_p, m16=True,
                x_ring=(0, 16384, NS), w_ring=(WR, 14336, NS), w_mode="fm16", x_mode="dma_swz", D=6, pause=2,
                FRAG=FR, ACC=ACC, dma_setup=dma_setup, cons_pre=cons_pre, acc_init=lambda i: "v%d" % (BR + ((i >> 2) & 1)),
                epilogue=epilogue, poll=Poll(FL3, S_BN, 512, 0, lds=MV + 1024))


def emit_m2(k, role, gate=None, ns=(4, 4, 5), sb=0):
    phases = [cfg25(2, NS=ns[0], gate=gate), cfg3(), cfg4(ns[1]), cfg25(5, NS=ns[2])]
    k("s_load_dwordx2 s[4:5], s[0:1], %d" % KA["x"])
    k("s_load_dwordx4 s[8:11], s[0:1], %d" % KA["w_sp"])
    k("s_load_dwordx2 s[12:13], s[0:1], %d" % KA["w_out"])
    k("s_load_dwordx2 s[16:17], s[0:1], %d" % KA["out"])
    map_blocks(k, 2, 8, 2)
    k("s_lshr_b32 s22, s%d, 1" % S_BM)
    k("s_waitcnt lgkmcnt(0)")
    for n, c in enumerate(phases):
        if role == "c":
            c["srds_c"](k)
            (cons_phase16 if c.get("m16") else cons_phase)(k, c, 6 * n)
        elif n == 0:
            g3 = prod_phase_gen(k, phases[1], 6)
            prod_phase(k, c, 0, tail_hook=lambda: next(g3))
        elif n == 1:
            next(g3, None)
        else:
            prod_phase(k, c, 6 * n)
    k.stamp_dump(31)
    k("s_endpgm")


M2_LDS = MV + 1024 + 64
```

```python
from common import *
from gemms import pack16, swap8
from sync import FL1

OOB = 0x7f000000


NSL = 8
STG = NSL * 16384
SY = STG + 24576
ATT_LDS = SY + 64
SIG_TILE = 2
O_MODS = " sc1"
P_ = {}
CODE_NEXT = ("L_mm_second", "L_adaLN_cond__softmax_full_mha__mixer_gmlp__prompt_kernel_codeend")


QF = 8


def emit_attn(k, COMP, HELP, poll, force_slow=False, sb=8, after_comp=None, after_help=None):
    LANE, VOFF, VCUR, VNXT, VBASE = 1, 4, 5, 6, 4
    NM, S, P, KA_, KB_, VA_, VB_, O, L, SEL = (24, 40), (56, 72), 88, 96, 100, 104, 108, (112, 128), (144, 148), 152
    SRD, SRDO = 24, 28
    S_WAVE, S_HEAD, S_RT, S_KB, S_ST, S_CUR = 3, 21, 23, 43, 44, 45
    F2 = 164 - KA_

    def ids():
        k("v_lshlrev_b32 v%d, 4, v%d" % (VOFF, LANE))
        k("s_lshl_b32 s%d, s%d, 17" % (S_KB, S_HEAD))
        srd_ws(k, SRD, 6, "QKV")
    k.label(COMP)
    if P_.get("prio", 0):
        k("s_setprio 3")
    ids()
    srd_ws(k, SRDO, 6, "O")
    srd_ws(k, 32, 6, "FL")
    k("s_lshl_b32 s46, s%d, 5" % S_HEAD)
    k("s_lshl_b32 s47, s20, 2")
    k("s_add_u32 s%d, s47, s19" % S_RT)
    k("s_add_u32 s46, s46, s%d" % S_RT)
    k("s_lshl_b32 s46, s46, 7")
    k("s_add_u32 s46, s46, %d" % FL1)
    k("v_mov_b32 v156, 0")
    k("v_mov_b32 v157, 1.0")
    k("v_mov_b32 v158, %d" % SY)
    k("s_lshl_b32 s47, s19, 2")
    k("s_add_u32 s47, s47, %d" % (SY + 16))
    k("v_mov_b32 v159, s47")
    k("v_mov_b32 v160, 0")
    k("s_mov_b32 s47, 1")
    k("v_bfe_u32 v2, v%d, 2, 1" % LANE)
    k("v_bfe_u32 v3, v%d, 4, 1" % LANE)
    k("v_cmp_eq_u32 vcc, v2, v3")
    k("v_mov_b32 v2, 0x3f803f80")
    k("v_cndmask_b32 v%d, 0, v2, vcc" % SEL)
    for e in range(1, 4):
        k("v_mov_b32 v%d, v%d" % (SEL + e, SEL))
    k("v_mov_b32 v%d, v%d" % (VCUR, VBASE))
    k("v_add_u32 v%d, 16384, v%d" % (VNXT, VBASE))
    k("s_mov_b32 s%d, 16384" % S_CUR)
    k.stamp(sb + 1)
    k("s_waitcnt lgkmcnt(0)")
    k("s_barrier")
    k.stamp(sb + 2)
    k("ds_read_b128 %s, v%d" % (v(KA_, 4), VOFF))
    k("ds_read_b128 %s, v%d offset:1024" % (v(KB_, 4), VOFF))
    k("ds_read_b128 %s, v%d offset:8192" % (v(VA_, 4), VOFF))
    k("ds_read_b128 %s, v%d offset:2048" % (v(KA_ + F2, 4), VOFF))
    k("ds_read_b128 %s, v%d offset:9216" % (v(VB_, 4), VOFF))
    k("ds_read_b128 %s, v%d offset:3072" % (v(KB_ + F2, 4), VOFF))
    k("ds_read_b128 %s, v%d offset:10240" % (v(VA_ + F2, 4), VOFF))

    def zero_state(q):
        for e in range(16):
            k("v_mov_b32 v%d, 0" % (O[q] + e))
        for e in range(4):
            k("v_mov_b32 v%d, 0" % (L[q] + e))
    zero_state(0)
    zero_state(1)
    for e in range(4):
        k("v_mov_b32 v%d, 0" % (VB_ + F2 + e))
        k("v_mov_b32 v%d, 0" % (P + 4 + e))
    k("s_waitcnt lgkmcnt(0)")

    def kv_signal():
        k("s_waitcnt vmcnt(0)")
        k("s_mov_b64 exec, 1")
        k("buffer_store_dword v157, v156, s[32:35], s46 offen sc1")
        k("s_mov_b64 exec, -1")
        k("ds_write_b32 v158, v157 offset:8")

    def qk(q, c, dst=None, f=0):
        d = S[q] if dst is None else dst
        return ("v_mfma_f32_32x32x16_bf16 %s, %s, %s, %s" % (v(d, 16), v(KA_ + f, 4), v(QF + 8 * q, 4), c),
                "v_mfma_f32_32x32x16_bf16 %s, %s, %s, %s" % (v(d, 16), v(KB_ + f, 4), v(QF + 8 * q + 4, 4), v(d, 16)))

    def max16(dst, src, first):
        if first:
            k("v_max3_f32 v%d, v%d, v%d, v%d" % (dst, src, src + 1, src + 2))
            k("v_max_f32 v%d, v%d, v%d" % (dst, dst, src + 3))
            r = range(4, 16, 2)
        else:
            r = range(0, 16, 2)
        for e in r:
            k("v_max3_f32 v%d, v%d, v%d, v%d" % (dst, dst, src + e, src + e + 1))

    def set_nm(q, mreg, head_room=0.0):
        k("v_mov_b32 v3, v%d" % mreg)
        k("v_permlane32_swap_b32 v%d, v3" % mreg)
        k("v_max_f32 v%d, v%d, v3" % (mreg, mreg))
        if head_room:
            k("v_add_f32 v%d, %s, v%d" % (mreg, fhex(head_room), mreg))
        for e in range(16):
            k("v_sub_f32 v%d, 0, v%d" % (NM[q] + e, mreg))

    for q in range(2):
        for m in qk(q, "0"):
            k(m)
    kv_signal()
    for q in range(2):
        max16(2, S[q], True)
        set_nm(q, 2, 40.0)
        if q == 0:
            for m in qk(0, v(NM[0], 16)):
                k(m)
    k("s_mov_b32 s%d, 0" % S_ST)

    def ex(Sx, g, lo=0, hi=4):
        for e in range(lo, hi):
            k("v_exp_f32 v%d, v%d" % (Sx + 4 * g + e, Sx + 4 * g + e))

    def cv(Sx, g):
        for e in range(2):
            k("v_cvt_pk_bf16_f32 v%d, v%d, v%d" % (P + 2 * g + e, Sx + 4 * g + 2 * e, Sx + 4 * g + 2 * e + 1))

    def pvm(q, vf, pf):
        k("v_mfma_f32_32x32x16_bf16 %s, %s, %s, %s" % (v(O[q], 16), v(vf, 4), v(pf, 4), v(O[q], 16)))

    def lsum(q, pf):
        k("v_mfma_f32_16x16x32_bf16 %s, %s, %s, %s" % (v(L[q], 4), v(SEL, 4), v(pf, 4), v(L[q], 4)))

    def addr(tt):
        return (VCUR, tt * 2048) if tt < 4 else (VNXT, (tt - 4) * 2048)

    def opt(x):
        if x:
            k(x)

    LOOP, SPIN, BACK = k.uid("loop"), k.uid("spin"), k.uid("back")
    k.label(LOOP)
    for tt in range(4):
        if tt == 2:
            k("s_cmp_le_u32 s42, s47")
            k("s_cbranch_scc1 " + SPIN)
            k.label(BACK)
        r1, o1 = addr(tt + 1)
        r2, o2 = addr(tt + 2)
        fc, fo = F2 * (tt & 1), F2 * (1 - (tt & 1))
        for q in range(2):
            Sc = S[q]
            m1, m3 = qk(1 - q, v(NM[1 - q], 16), None, fc if q == 0 else fo)
            rKa = rVb = rKb = rVa = w1 = w4 = None
            if q == 0:
                rKa = "ds_read_b128 %s, v%d offset:%d" % (v(KA_ + fc, 4), r2, o2)
                rVb = "ds_read_b128 %s, v%d offset:%d" % (v(VB_ + fo, 4), r1, 8192 + o1 + 1024)
                rKb = "ds_read_b128 %s, v%d offset:%d" % (v(KB_ + fc, 4), r2, o2 + 1024)
            else:
                rVa = "ds_read_b128 %s, v%d offset:%d" % (v(VA_ + fc, 4), r2, 8192 + o2)
                w1 = "s_waitcnt lgkmcnt(3)"
                if tt == 0:
                    rKa = "ds_read_b32 v161, v158"
                if tt == 1:
                    rKb = "v_readfirstlane_b32 s42, v161"
            vb = VB_ + (fo if q == 0 else fc)
            opt(w1); k(m1); opt(rKa); ex(Sc, 0)
            pvm(1 - q, vb, P + 4); opt(rVb); cv(Sc, 0); ex(Sc, 1, 0, 3); lsum(1 - q, P + 4); ex(Sc, 1, 3, 4); ex(Sc, 2, 0, 1)
            k(m3); opt(rKb); cv(Sc, 1); ex(Sc, 2, 1, 4)
            pvm(q, VA_ + fc, P); opt(rVa); ex(Sc, 3, 0, 1); cv(Sc, 2); ex(Sc, 3, 1, 3); lsum(q, P); ex(Sc, 3, 3, 4); cv(Sc, 3)
            if tt == 0 and q == 0:
                k("s_add_u32 s%d, s%d, 16384" % (S_CUR, S_CUR))
            if tt == 0 and q == 1:
                k("s_and_b32 s%d, s%d, %d" % (S_CUR, S_CUR, NSL * 16384 - 1))
    k("v_add_u32 v160, 1, v160")
    k("v_mov_b32 v%d, v%d" % (VCUR, VNXT))
    k("v_add_u32 v%d, s%d, v%d" % (VNXT, S_CUR, VBASE))
    k("ds_write_b32 v159, v160")
    k.stamp_dyn(S_ST, 14)
    k("s_add_u32 s47, s47, 1")
    k("s_add_u32 s%d, s%d, 1" % (S_ST, S_ST))
    k("s_cmp_lt_u32 s%d, 16" % S_ST)
    k("s_cbranch_scc1 " + LOOP)
    k("s_waitcnt lgkmcnt(0)")
    k.stamp(sb + 3)
    pvm(1, VB_ + F2, P + 4)
    lsum(1, P + 4)
    k("s_lshr_b32 s10, s%d, 1" % S_RT)
    k("s_lshl_b32 s10, s10, 18")
    k("s_lshl_b32 s11, s%d, 13" % S_HEAD)
    k("s_add_u32 s10, s10, s11")
    k("s_and_b32 s11, s%d, 1" % S_RT)
    k("s_lshl_b32 s11, s11, 12")
    k("s_add_u32 s10, s10, s11")
    k("v_bfe_u32 v2, v%d, 4, 1" % LANE)
    k("v_lshlrev_b32 v5, 10, v2")
    k("v_lshrrev_b32 v2, 5, v%d" % LANE)
    k("v_lshl_add_u32 v5, v2, 8, v5")
    k("v_and_b32 v2, 15, v%d" % LANE)
    k("v_lshl_add_u32 v5, v2, 4, v5")
    SLOW = [k.uid("slow"), k.uid("slow")]
    EPI = [k.uid("epi"), k.uid("epi")]
    for q in range(2):
        k("v_mov_b32 v2, v%d" % L[q])
        k("v_mov_b32 v7, 0")
        for e in range(0, 16, 2):
            k("v_fma_f32 v2, v%d, 0, v2" % (O[q] + e))
            k("v_fma_f32 v7, v%d, 0, v7" % (O[q] + e + 1))
        k("v_add_f32 v2, v2, v7")
        k("v_mov_b32 v3, %s" % fhex(2.0 ** 120 if not force_slow else -1.0))
        k("v_cmp_nlt_f32 vcc, v2, v3")
        k("s_cbranch_vccnz " + SLOW[q])
        k.label(EPI[q])
        k("v_rcp_f32 v2, v%d" % L[q])
        k("v_mov_b32 v3, v2")
        for e in range(0, 16, 2):
            k("v_pk_mul_f32 %s, %s, v[2:3]" % (v(O[q] + e, 2), v(O[q] + e, 2)))
        PP = S[0] + 8 * q
        pack16(k, PP, O[q])
        swap8(k, PP)
        for p in range(2):
            k("buffer_store_dwordx4 %s, v5, %s, s10 offen offset:%d%s" % (v(PP + 4 * p, 4), s(SRDO, 4), q * 2048 + p * 512, O_MODS))
    k.stamp(sb + 4)
    if after_comp:
        after_comp(k)
    else:
        k.stamp_dump(31)
        k("s_endpgm")

    k.label(SPIN)
    k("s_mov_b32 s41, 0")
    SP2 = k.uid("spin")
    k.label(SP2)
    k("ds_read_b32 v161, v158")
    k("s_add_u32 s41, s41, 1")
    k("s_waitcnt lgkmcnt(0)")
    k("v_readfirstlane_b32 s42, v161")
    k("s_cmp_gt_u32 s42, s47")
    k("s_cbranch_scc1 " + BACK)
    k("s_sleep 1")
    k("s_cmp_lt_u32 s41, 0x1000000")
    k("s_cbranch_scc1 " + SP2)
    k("s_branch " + BACK)

    for q in range(2):
        k.label(SLOW[q])
        k("s_waitcnt vmcnt(0)")
        LA, LB = k.uid("slowa"), k.uid("slowb")
        SS = S[1]
        k("s_add_u32 s16, s%d, 0x400000" % S_KB)
        k("s_mov_b32 s%d, 0" % S_ST)
        k("v_mov_b32 v2, 0xff800000")
        k.label(LA)
        k("buffer_load_dwordx4 %s, v%d, %s, s16 offen sc1" % (v(KA_, 4), VOFF, s(SRD, 4)))
        k("buffer_load_dwordx4 %s, v%d, %s, s16 offen offset:1024 sc1" % (v(KB_, 4), VOFF, s(SRD, 4)))
        k("s_waitcnt vmcnt(0)")
        for m in qk(q, "0", SS):
            k(m)
        max16(2, SS, False)
        k("s_add_u32 s16, s16, 2048")
        k("s_add_u32 s%d, s%d, 1" % (S_ST, S_ST))
        k("s_cmp_lt_u32 s%d, 64" % S_ST)
        k("s_cbranch_scc1 " + LA)
        set_nm(q, 2)
        zero_state(q)
        k("s_add_u32 s16, s%d, 0x400000" % S_KB)
        k("s_add_u32 s17, s%d, 0x800000" % S_KB)
        k("s_mov_b32 s%d, 0" % S_ST)
        k.label(LB)
        k("buffer_load_dwordx4 %s, v%d, %s, s16 offen sc1" % (v(KA_, 4), VOFF, s(SRD, 4)))
        k("buffer_load_dwordx4 %s, v%d, %s, s16 offen offset:1024 sc1" % (v(KB_, 4), VOFF, s(SRD, 4)))
        k("buffer_load_dwordx4 %s, v%d, %s, s17 offen sc1" % (v(VA_, 4), VOFF, s(SRD, 4)))
        k("buffer_load_dwordx4 %s, v%d, %s, s17 offen offset:1024 sc1" % (v(VB_, 4), VOFF, s(SRD, 4)))
        k("s_waitcnt vmcnt(0)")
        for m in qk(q, v(NM[q], 16), SS):
            k(m)
        for g in range(4):
            ex(SS, g)
            cv(SS, g)
        pvm(q, VA_, P)
        lsum(q, P)
        pvm(q, VB_, P + 4)
        lsum(q, P + 4)
        k("s_add_u32 s16, s16, 2048")
        k("s_add_u32 s17, s17, 2048")
        k("s_add_u32 s%d, s%d, 1" % (S_ST, S_ST))
        k("s_cmp_lt_u32 s%d, 64" % S_ST)
        k("s_cbranch_scc1 " + LB)
        k("s_branch " + EPI[q])

    k.label(HELP)
    SIDE, GEMV, DONE, SDONE, SD2 = k.uid("side"), k.uid("gemv"), k.uid("done"), k.uid("sdone"), k.uid("sd2")
    ids()
    k("s_sub_u32 s%d, s19, 4" % S_WAVE)
    k("v_mov_b32 v7, %d" % SY)

    def lds_wait(off, s_lim, b128=False, nap=6):
        W, G = k.uid("w"), k.uid("g")
        k("s_mov_b32 s4, 0")
        k.label(W)
        k("ds_read_%s, v7 offset:%d" % ("b128 v[100:103]" if b128 else "b32 v100", off))
        k("s_add_u32 s4, s4, 1")
        k("s_waitcnt lgkmcnt(0)")
        if b128:
            k("v_min_u32 v100, v100, v101")
            k("v_min3_u32 v100, v100, v102, v103")
        k("v_readfirstlane_b32 s5, v100")
        k("s_cmp_gt_u32 s5, s%d" % s_lim)
        k("s_cbranch_scc1 " + G)
        k("s_sleep %d" % nap)
        k("s_cmp_lt_u32 s4, 0x1000000")
        k("s_cbranch_scc1 " + W)
        k.label(G)

    k("s_cmp_lg_u32 s%d, 0" % S_WAVE)
    k("s_cbranch_scc1 " + SIDE)
    k("s_add_u32 s11, s20, 1")
    k("s_and_b32 s11, s11, 7")
    k("s_lshl_b32 s18, s11, 2")
    k("s_lshl_b32 s11, s11, 14")
    k("s_add_u32 s13, s%d, 0x400000" % S_KB)
    for e, val in enumerate((2, 0, 0, 0)):
        k("v_mov_b32 v%d, %d" % (100 + e, val))
    k("ds_write_b128 v7, v[100:103]")
    k("v_mov_b32 v100, 0")
    k("ds_write_b128 v7, v[100:103] offset:16")
    k("ds_write_b128 v7, v[100:103] offset:32")
    poll.setup(k)
    k("s_barrier")
    k("s_mov_b32 s14, 0")
    lds_wait(8, 14, nap=2)
    k("s_mov_b32 s12, 2")
    k("s_mov_b32 s15, 32768")
    k("s_mov_b32 s16, 0")

    def publish(k, cnt=0):
        k("s_waitcnt vmcnt(%d)" % cnt)
        k("v_mov_b32 v104, s12")
        if cnt > 16:
            k("v_subrev_u32 v104, %d, v104" % (cnt // 16 - 1))
        k("ds_max_u32 v7, v104")
    KV, FREE = k.uid("kv"), k.uid("free")
    k.label(KV)
    k("s_add_u32 s14, s16, 8")
    k("s_cmp_lt_u32 s12, s14")
    k("s_cbranch_scc1 " + FREE)
    k("s_sub_u32 s14, s12, 8")
    lds_wait(16, 14, True)
    k("s_mov_b32 s16, s5")
    k.label(FREE)
    poll.need(k, on_slow=publish)
    k("s_add_u32 s10, s13, s11")
    for h in range(4):
        k("s_add_u32 m0, s15, %d" % (h * 4096))
        if h:
            k("s_add_u32 s10, s10, %d" % (4096 if h != 2 else 0x400000 - 4096))
        for q in range(4):
            k("buffer_load_dwordx4 v%d, %s, s10 offen offset:%d sc1 lds" % (VOFF, s(SRD, 4), q * 1024))
    publish(k, 16 * (P_.get("infl", 3) - 1))
    k.stamp_dyn(12, 14)
    k("s_add_u32 s11, s11, 8192")
    k("s_and_b32 s11, s11, 0x1ffff")
    k("s_add_u32 s15, s15, 16384")
    k("s_and_b32 s15, s15, 0x1ffff")
    k("s_add_u32 s12, s12, 1")
    k("s_cmp_lt_u32 s12, 16")
    k("s_cbranch_scc1 " + KV)
    k("s_mov_b32 s12, 15")
    publish(k, 16)
    k("s_mov_b32 s12, 99")
    publish(k)
    if CODE_NEXT:
        for n in range(3):
            k("v_add_u32 v18, %d, v%d" % (64 * n, LANE))
            code_prefetch(k, CODE_NEXT[0], 18, 100, 16, CODE_NEXT[1])
    k("s_branch " + DONE)

    k.label(SIDE)
    k("s_load_dwordx2 s[8:9], s[0:1], %d" % KA["wo"])
    k("s_load_dwordx4 s[32:35], s[0:1], %d" % KA["w_in"])
    k("s_load_dwordx2 s[36:37], s[0:1], %d" % KA["w_out"])
    k("s_load_dwordx2 s[82:83], s[0:1], %d" % KA["w_mod"])
    k("s_lshl_b32 s46, s2, 1")
    k("s_add_u32 s46, s46, s%d" % S_WAVE)
    k("s_sub_u32 s46, s46, 2")
    k("s_lshl_b32 s47, s%d, 13" % S_WAVE)
    k("s_add_u32 s47, s47, %d" % (STG - 8192))
    k("v_lshrrev_b32 v9, 3, v%d" % LANE)
    k("v_and_b32 v10, 7, v%d" % LANE)
    k("v_lshlrev_b32 v10, 4, v10")
    k("v_bfe_u32 v2, v%d, 2, 2" % LANE)
    k("v_and_b32 v3, 3, v%d" % LANE)
    k("v_lshlrev_b32 v3, 3, v3")
    k("v_lshl_add_u32 v3, v2, 7, v3")
    k("v_add_u32 v3, s47, v3")
    k("v_lshrrev_b32 v2, 5, v%d" % LANE)
    k("v_lshl_add_u32 v11, v2, 10, v3")
    k("v_bfe_u32 v2, v%d, 4, 1" % LANE)
    k("v_lshl_add_u32 v11, v2, 5, v11")
    k("v_lshrrev_b32 v2, 4, v%d" % LANE)
    k("v_lshl_add_u32 v12, v2, 10, v3")
    k("v_lshlrev_b32 v13, 4, v2")
    k("v_and_b32 v2, 15, v%d" % LANE)
    k("v_lshl_add_u32 v13, v2, 7, v13")
    k("v_add_u32 v13, s47, v13")
    k("s_waitcnt lgkmcnt(0)")
    ops = []

    def wait_for(tag):
        last = max(i for i, o in enumerate(ops) if o == tag)
        k("s_waitcnt vmcnt(%d)" % min(63, len(ops) - 1 - last))

    ROUNDS = [(8, "wo", 2048, 16, 512, "WOF", 0)] + [(32, "w_in", 7168, 56, 1792, "WINF", 512 * n) for n in range(4)]
    RB = 80

    def unit_ids(r):
        ptr, nm, ld, ncg, nu, dst, u0 = ROUNDS[r]
        k("s_add_u32 s41, s46, %d" % u0)
        if ncg == 56:
            k("s_mul_i32 s38, s41, 9363")
            k("s_lshr_b32 s38, s38, 19")
            k("s_mul_i32 s39, s38, 56")
            k("s_sub_u32 s39, s41, s39")
        else:
            k("s_lshr_b32 s38, s41, %d" % (ncg.bit_length() - 1))
            k("s_and_b32 s39, s41, %d" % (ncg - 1))
        k("s_cmp_ge_u32 s41, %d" % nu)
        k("s_cselect_b32 s40, %d, 0" % OOB)

    def rp_load(r, touch=False):
        ptr, nm, ld, ncg, nu, dst, u0 = ROUNDS[r]
        unit_ids(r)
        srd_in(k, 72, ptr, SZ[nm])
        k("s_mov_b32 s42, %d" % ld)
        if touch:
            k("v_and_b32 v14, 31, v%d" % LANE)
            k("v_mul_lo_u32 v14, v14, s42")
        else:
            k("v_mul_lo_u32 v14, v9, s42")
            k("v_add_u32 v14, v14, v10")
        k("s_mul_i32 s42, s38, %d" % (32 * ld))
        k("s_lshl_b32 s41, s39, 7")
        k("s_add_u32 s42, s42, s41")
        k("s_or_b32 s42, s42, s40")
        if touch:
            k("buffer_load_dword v15, v14, s[72:75], s42 offen")
            ops.append(("tc", r))
            return
        for q in range(4):
            k("s_add_u32 m0, s47, %d" % ((r & 1) * 4096 + q * 1024))
            k("s_add_u32 s41, s42, %d" % (q * 8 * ld))
            k("buffer_load_dwordx4 v14, s[72:75], s41 offen%s lds" % NT["side"])
            ops.append(("rp", r))

    def rp_store(r):
        ptr, nm, ld, ncg, nu, dst, u0 = ROUNDS[r]
        wait_for(("rp", r))
        for b in range(4):
            if False:
                for rd in range(2):
                    k("ds_read_b64_tr_b16 %s, v11 offset:%d" % (v(RB + 4 * b + 2 * rd, 2), (r & 1) * 4096 + (b >> 1) * 2048 + rd * 512 + (b & 1) * 64))
            elif dst in ("WINF", "WOF"):
                for rd in range(2):
                    k("ds_read_b64_tr_b16 %s, v12 offset:%d" % (v(RB + 4 * b + 2 * rd, 2), (r & 1) * 4096 + rd * 512 + b * 32))
            else:
                k("ds_read_b128 %s, v13 offset:%d" % (v(RB + 4 * b, 4), (r & 1) * 4096 + (b & 1) * 2048 + (b >> 1) * 64))
        unit_ids(r)
        srd_ws(k, 76, 6, dst)
        if dst in ("WOF", "WOUTF"):
            k("s_mul_i32 s42, s39, %d" % ((16 if dst == "WOF" else 28) * 8192))
            k("s_lshl_b32 s41, s38, 12")
            k("s_add_u32 s42, s42, s41")
            k("s_or_b32 s42, s42, s40")
            offs = [("s42", b * 1024) for b in range(4)]
        elif dst == "WSPF":
            k("s_lshr_b32 s42, s38, 2")
            k("s_lshl_b32 s42, s42, 5")
            k("s_add_u32 s42, s42, s39")
            k("s_lshl_b32 s42, s42, 14")
            k("s_and_b32 s41, s38, 3")
            k("s_lshl_b32 s41, s41, 11")
            k("s_add_u32 s42, s42, s41")
            k("s_or_b32 s42, s42, s40")
            k("s_add_u32 s41, s42, 8192")
            offs = [("s42", 0), ("s42", 1024), ("s41", 0), ("s41", 1024)]
        else:
            offs = []
            k("s_cmp_ge_u32 s39, 28")
            k("s_cselect_b32 s16, 28, 0")
            k("s_cselect_b32 s17, 7168, 0")
            k("s_sub_u32 s16, s39, s16")
            k("s_lshl_b32 s16, s16, 2")
            k("s_mul_i32 s41, s38, 14336")
            k("s_add_u32 s17, s17, s41")
            k("s_or_b32 s17, s17, s40")
            for b in range(4):
                k("s_add_u32 s41, s16, %d" % b)
                k("s_mul_i32 s42, s41, 147")
                k("s_lshr_b32 s42, s42, 10")
                k("s_mul_i32 s42, s42, %d" % (458752 - 7 * 1024))
                k("s_lshl_b32 s41, s41, 10")
                k("s_add_u32 s41, s41, s42")
                k("s_add_u32 s%d, s41, s17" % (28 + b))
                offs.append(("s%d" % (28 + b), 0))
        k("s_waitcnt lgkmcnt(0)")
        for b in range(4):
            k("buffer_store_dwordx4 %s, v%d, s[76:79], %s offen offset:%d sc1" % (v(RB + 4 * b, 4), VOFF, offs[b][0], offs[b][1]))
            ops.append(("st", r))

    k("s_barrier")
    k("s_mov_b32 s14, %d" % P_.get("gate", 3))
    lds_wait(0, 14, nap=24)
    k("s_cmp_eq_u32 s%d, 1" % S_WAVE)
    k("s_cbranch_scc1 " + GEMV)
    NR = len(ROUNDS)
    TCH = P_.get("touch", 0)
    P0 = P_.get("p0", -1)

    def pace(n):
        if P0 >= 0:
            k("s_mov_b32 s13, %d" % (P0 + n))
            lds_wait(16, 13, True, 12)
    for r in range(-2, NR):
        pace(r + 2)
        if r >= 0:
            k.stamp(14 + r)
            rp_store(r)
        if r + 2 < NR:
            rp_load(r + 2)
        if TCH == 1 and r + 4 < NR:
            rp_load(r + 4, True)
        if TCH == 2 and r == -1:
            for r2 in range(2, NR):
                rp_load(r2, True)
    k("s_branch " + SDONE)

    k.label(GEMV)
    del ops[:]
    k("s_lshr_b32 s14, s2, 2")
    k("s_add_u32 s14, s14, 32")
    k("s_and_b32 s15, s2, 3")
    srd_in(k, 72, 82, SZ["w_mod"])
    srd_ws(k, 76, 6, "SC")
    k("s_mul_i32 s42, s15, %d" % (256 * 12288))
    k("s_lshl_b32 s41, s14, 7")
    k("s_add_u32 s42, s42, s41")
    k("s_mov_b32 s41, 12288")
    k("v_mul_lo_u32 v14, v9, s41")
    k("v_add_u32 v14, v14, v10")
    k("v_mul_lo_u32 v16, v%d, s41" % LANE)

    def gv_load(u):
        for q in range(4):
            k("s_add_u32 m0, s47, %d" % ((u & 1) * 4096 + q * 1024))
            k("s_add_u32 s41, s42, %d" % ((u * 32 + q * 8) * 12288))
            k("buffer_load_dwordx4 v14, s[72:75], s41 offen%s lds" % NT["side"])
            ops.append(("gv", u))
    k("v_lshrrev_b32 v17, 4, v%d" % LANE)
    k("v_lshlrev_b32 v17, 4, v17")
    k("s_lshl_b32 s40, s15, 9")
    for u in range(8):
        k("buffer_load_dwordx4 %s, v17, s[76:79], s40 offen offset:%d sc1" % (v(24 + 4 * u, 4), u * 64))
        ops.append(("c", u))
    for e in range(16):
        k("v_mov_b32 v%d, 0" % (56 + e))
    for u in range(-2, 8):
        pace(u + 2)
        if u >= 0:
            wait_for(("gv", u))
            for b in range(4):
                for rd in range(2):
                    k("ds_read_b64_tr_b16 %s, v12 offset:%d" % (v(RB + 4 * b + 2 * rd, 2), (u & 1) * 4096 + rd * 512 + b * 32))
            k("s_waitcnt lgkmcnt(0)")
        if u + 2 < 8:
            gv_load(u + 2)
        for u2 in ([u + 4] if TCH == 1 and u % 2 == 0 and u + 4 < 8 else [2, 4, 6] if TCH == 2 and u == -1 else []):
            k("s_add_u32 s41, s42, %d" % (u2 * 32 * 12288))
            k("buffer_load_dword v15, v16, s[72:75], s41 offen")
            ops.append(("tc", u2))
        if u >= 0:
            for b in range(4):
                k("v_mfma_f32_16x16x32_bf16 %s, %s, %s, %s" % (v(56 + 4 * b, 4), v(RB + 4 * b, 4), v(24 + 4 * u, 4), v(56 + 4 * b, 4)))
    srd_ws(k, 76, 6, "MODP")
    k("v_and_b32 v2, 15, v%d" % LANE)
    k("v_cmp_eq_u32 vcc, 0, v2")
    k("v_mov_b32 v2, 0x7f000000")
    k("v_cndmask_b32 v17, v2, v17, vcc")
    k("s_mul_i32 s41, s15, %d" % (6144 * 4))
    k("s_lshl_b32 s42, s14, 8")
    k("s_add_u32 s41, s41, s42")
    for b in range(4):
        k("buffer_store_dwordx4 %s, v17, s[76:79], s41 offen offset:%d sc1" % (v(56 + 4 * b, 4), b * 64))
    k.label(SDONE)
    srd_ws(k, 76, 6, "HF")
    k("v_mov_b32 v2, 1")
    k("v_mov_b32 v16, 0")
    k("v_mov_b32 v17, 1.0")
    k("s_lshl_b32 s41, s2, 2")
    k("s_waitcnt vmcnt(0)")
    k("s_mov_b64 exec, 1")
    k("ds_add_rtn_u32 v3, v7, v2 offset:12")
    k("s_waitcnt lgkmcnt(0)")
    k("v_cmp_eq_u32 vcc, 2, v3")
    k("s_cbranch_vccz " + SD2)
    k("buffer_store_dword v17, v16, s[76:79], s41 offen sc1")
    k.label(SD2)
    k("s_mov_b64 exec, -1")
    k.label(DONE)
    LATE = k.uid("late")
    k("s_load_dwordx2 s[34:35], s[0:1], %d" % KA["w_sp"])
    k("s_load_dwordx2 s[36:37], s[0:1], %d" % KA["w_out"])
    k("ds_read_b32 v100, v7 offset:16")
    k("s_mov_b32 s83, 0")
    k("s_waitcnt lgkmcnt(0)")
    k("v_readfirstlane_b32 s5, v100")
    k("s_cmp_gt_u32 s5, %d" % P_.get("early", 11))
    k("s_cbranch_scc1 " + LATE)
    k("s_mov_b32 s83, 64")
    k("s_lshl_b32 s41, s2, 2")
    k("s_add_u32 s41, s41, s%d" % S_WAVE)
    srd_in(k, 72, 34, SZ["w_sp"])
    k("v_lshlrev_b32 v16, 7, v%d" % LANE)
    k("s_lshl_b32 s42, s41, 13")
    k("buffer_load_dword v104, v16, s[72:75], s42 offen")
    srd_in(k, 76, 36, SZ["w_out"])
    k("v_and_b32 v16, 0xfff, v16")
    k("s_lshl_b32 s42, s41, 12")
    k("buffer_load_dword v104, v16, s[76:79], s42 offen")
    k.label(LATE)
    k.stamp(sb + 5)
    if after_help:
        after_help(k, lds_wait)
    else:
        k.stamp_dump(31)
        k("s_endpgm")
```

```python
import struct
from asmlib import *

KA = dict(x=0, wqkv=8, wo=16, bx=24, w_in=32, w_sp=40, b_sp=48, w_out=56, c=64, w_mod=72, out=80, dbg=88, ws=96)
SZ = dict(x=4194304, wqkv=6291456, wo=2097152, w_in=7340032, w_sp=8388608, b_sp=4096, w_out=3670016, c=2048,
          w_mod=12582912, out=4194304)

WS = dict(
    MODP=(0x0, 98304),
        XN=(0x100000, 0x400000),
    QKV=(0x500000, 0xC00000),
    O=(0x1100000, 0x400000),
    X1=(0x1500000, 0x400000),
    Z1=(0x1900000, 0x700000),
    Z2=(0x2000000, 0x700000),
    U=(0x2700000, 0x700000),
)


def f2u(x):
    return struct.unpack("<I", struct.pack("<f", x))[0]


def fhex(x):
    return "0x%08x" % f2u(x)


def srd_in(k, dst, ptr, size):
    k("s_mov_b32 s%d, s%d" % (dst, ptr))
    k("s_mov_b32 s%d, s%d" % (dst + 1, ptr + 1))
    k("s_mov_b32 s%d, %d" % (dst + 2, size))
    k("s_mov_b32 s%d, 0x20000" % (dst + 3))


def srd_ws(k, dst, wsptr, region):
    off, size = WS[region]
    k("s_add_u32 s%d, s%d, %d" % (dst, wsptr, off))
    k("s_addc_u32 s%d, s%d, 0" % (dst + 1, wsptr + 1))
    k("s_mov_b32 s%d, %d" % (dst + 2, size))
    k("s_mov_b32 s%d, 0x20000" % (dst + 3))


def unpack_bf16(k, lo, hi, src):
    k("v_lshlrev_b32 v%d, 16, v%d" % (lo, src))
    k("v_and_b32 v%d, 0xffff0000, v%d" % (hi, src))


def srd_ws_sub(k, dst, wsptr, region, s_off, size):
    off, _ = WS[region]
    k("s_add_u32 s%d, s%d, %d" % (dst + 2, s_off, off))
    k("s_add_u32 s%d, s%d, s%d" % (dst, wsptr, dst + 2))
    k("s_addc_u32 s%d, s%d, 0" % (dst + 1, wsptr + 1))
    k("s_mov_b32 s%d, %d" % (dst + 2, size))
    k("s_mov_b32 s%d, 0x20000" % (dst + 3))


WS["EX"] = (0x3600000, 0x100000)
WS["EX2"] = (0x3600000, 0x40000)
WS["EX3"] = (0x3640000, 0x40000)
WS["FL"] = (0x3680000, 0x50000)
WS["XF"] = (0x2E00000, 0x400000)
WS["H2"] = (0x3200000, 0x400000)


LOG2E = 1.4426950408889634


NT = dict(k1=" nt", x="", side=" nt")


class Gemv:
    def __init__(self, k, tid, s_cg, s_kc, srd_c, srd_w, srd_o, lds, V, S):
        self.__dict__.update(locals())

    def addr(self):
        k, V, S = self.k, self.V, self.S
        k("v_lshrrev_b32 v%d, 3, v%d" % (V, self.tid))
        k("v_and_b32 v%d, 7, v%d" % (V + 1, self.tid))
        k("s_mov_b32 s%d, 12288" % S)
        k("v_mul_lo_u32 v%d, v%d, s%d" % (V + 2, V, S))
        k("v_lshl_add_u32 v%d, v%d, 4, v%d" % (V + 2, V + 1, V + 2))
        k("s_mul_i32 s%d, s%d, %d" % (S + 1, self.s_kc, 256 * 12288))
        k("s_lshl_b32 s%d, s%d, 7" % (S, self.s_cg))
        k("s_add_u32 s%d, s%d, s%d" % (S + 1, S + 1, S))
        k("s_lshl_b32 s%d, s%d, 9" % (S + 2, self.s_kc))
        k("v_lshlrev_b32 v%d, 1, v%d" % (V + 3, self.tid))
        for i in range(8):
            k("s_add_u32 s%d, s%d, %d" % (S + 4 + i, S + 1, i * 32 * 12288))

    def loads(self, lo=0, hi=8):
        k, V, S = self.k, self.V, self.S
        if lo == 0:
            k("buffer_load_ushort v%d, v%d, %s, s%d offen" % (V + 4, V + 3, s(self.srd_c, 4), S + 2))
        for i in range(lo, hi):
            k("buffer_load_dwordx4 %s, v%d, %s, s%d offen" % (v(V + 8 + 4 * i, 4), V + 2, s(self.srd_w, 4), S + 4 + i) + NT["k1"])

    def silu(self):
        k, V = self.k, self.V
        k("v_lshlrev_b32 v%d, 16, v%d" % (V + 4, V + 4))
        k("v_mul_f32 v%d, %s, v%d" % (V + 5, fhex(-LOG2E), V + 4))
        k("v_exp_f32 v%d, v%d" % (V + 5, V + 5))
        k("v_add_f32 v%d, 1.0, v%d" % (V + 5, V + 5))
        k("v_rcp_f32 v%d, v%d" % (V + 5, V + 5))
        k("v_mul_f32 v%d, v%d, v%d" % (V + 4, V + 4, V + 5))
        k("v_cvt_pk_bf16_f32 v%d, v%d, v%d" % (V + 4, V + 4, V + 4))
        k("v_lshlrev_b32 v%d, 16, v%d" % (V + 4, V + 4))
        k("v_lshlrev_b32 v%d, 2, v%d" % (V + 3, self.tid))
        k("v_add_u32 v%d, %d, v%d" % (V + 3, self.lds, V + 3))
        k("ds_write_b32 v%d, v%d" % (V + 3, V + 4))
        k("s_waitcnt lgkmcnt(0)")

    def mac(self, wait=None):
        k, V = self.k, self.V
        k("v_lshlrev_b32 v%d, 2, v%d" % (V + 5, V))
        k("v_add_u32 v%d, %d, v%d" % (V + 5, self.lds, V + 5))
        for i in range(8):
            k("ds_read_b32 v%d, v%d offset:%d" % (V + 40 + i, V + 5, i * 128))
        for j in range(8):
            k("v_mov_b32 v%d, 0" % (V + 48 + j))
        k("s_waitcnt lgkmcnt(0)")
        for i in range(8):
            if wait:
                wait(i)
            for d in range(4):
                unpack_bf16(k, V + 56 + 2 * (d & 1), V + 57 + 2 * (d & 1), V + 8 + 4 * i + d)
                k("v_fmac_f32 v%d, v%d, v%d" % (V + 48 + 2 * d, V + 56 + 2 * (d & 1), V + 40 + i))
                k("v_fmac_f32 v%d, v%d, v%d" % (V + 49 + 2 * d, V + 57 + 2 * (d & 1), V + 40 + i))
        k("v_lshlrev_b32 v%d, 5, v%d" % (V + 5, self.tid))
        k("v_add_u32 v%d, %d, v%d" % (V + 5, self.lds + 1024, V + 5))
        k("ds_write_b128 v%d, %s" % (V + 5, v(V + 48, 4)))
        k("ds_write_b128 v%d, %s offset:16" % (V + 5, v(V + 52, 4)))
        k("s_waitcnt lgkmcnt(0)")

    def red1(self):
        k, V = self.k, self.V
        k("v_and_b32 v%d, 63, v%d" % (V + 5, self.tid))
        k("v_lshrrev_b32 v%d, 6, v%d" % (V + 6, self.tid))
        k("v_lshlrev_b32 v%d, 11, v%d" % (V + 6, V + 6))
        k("v_lshl_add_u32 v%d, v%d, 2, v%d" % (V + 6, V + 5, V + 6))
        k("v_add_u32 v%d, %d, v%d" % (V + 6, self.lds + 1024, V + 6))
        for i in range(8):
            k("ds_read_b32 v%d, v%d offset:%d" % (V + 40 + i, V + 6, i * 256))
        k("s_waitcnt lgkmcnt(0)")
        for st in (4, 2, 1):
            for i in range(st):
                k("v_add_f32 v%d, v%d, v%d" % (V + 40 + i, V + 40 + i, V + 40 + i + st))
        k("ds_write_b32 v%d, v%d offset:9216" % (V + 3, V + 40))
        k("s_waitcnt lgkmcnt(0)")

    def fin(self, mods=""):
        k, V, S = self.k, self.V, self.S
        k("v_lshlrev_b32 v%d, 2, v%d" % (V + 5, V + 5))
        k("v_add_u32 v%d, %d, v%d" % (V + 6, self.lds + 9216, V + 5))
        for i in range(4):
            k("ds_read_b32 v%d, v%d offset:%d" % (V + 40 + i, V + 6, i * 256))
        k("s_mul_i32 s%d, s%d, %d" % (S + 1, self.s_kc, 6144 * 4))
        k("s_lshl_b32 s%d, s%d, 8" % (S, self.s_cg))
        k("s_add_u32 s%d, s%d, s%d" % (S + 1, S + 1, S))
        k("s_waitcnt lgkmcnt(0)")
        k("v_add_f32 v%d, v%d, v%d" % (V + 40, V + 40, V + 41))
        k("v_add_f32 v%d, v%d, v%d" % (V + 42, V + 42, V + 43))
        k("v_add_f32 v%d, v%d, v%d" % (V + 40, V + 40, V + 42))
        k("buffer_store_dword v%d, v%d, %s, s%d offen%s" % (V + 40, V + 5, s(self.srd_o, 4), S + 1, mods))


WS["WOF"] = (0x3800000, 0x200000)
WS["WOUTF"] = (0x3A00000, 0x380000)
WS["WINF"] = (0x3E00000, 0x700000)
WS["WSPF"] = (0x4600000, 0x800000)
WS["H"] = (0x1500000, 0x400000)
WS["WQF"] = (0x1900000, 0x600000)


def code_prefetch(k, target, vidx, vt, st, end=None):
    PC = k.uid("pc")
    k("s_getpc_b64 s[%d:%d]" % (st, st + 1))
    k.label(PC)
    k("s_add_u32 s%d, s%d, %s-%s" % (st, st, target, PC))
    k("s_addc_u32 s%d, s%d, 0" % (st + 1, st + 1))
    k("v_lshlrev_b32 v%d, 7, v%d" % (vt, vidx))
    k("v_min_u32 v%d, %s-%s-4, v%d" % (vt, end or "L_%s_codeend" % target, target, vt))
    k("v_mov_b32 v%d, s%d" % (vt + 1, st + 1))
    k("v_add_co_u32 v%d, vcc, s%d, v%d" % (vt, st, vt))
    k("v_addc_co_u32 v%d, vcc, 0, v%d, vcc" % (vt + 1, vt + 1))
    k("global_load_dword v%d, v[%d:%d], off" % (vt + 2, vt, vt + 1))
WS["PAD"] = (0x20000, 256)
WS["SC"] = (0x40000, 0x20000)

WS["HF"] = (0x36C0000, 1024)
```

```python
from common import *

OOB = 0x7f000000

S_WAVE, S_BM, S_BN, S_ROT = 3, 20, 21, 22
SRD_X, SRD_W = 24, 28
SRD_E0, SRD_E1, SRD_E2, SRD_E3 = 32, 36, 40, 44
V_LANE = 1


def map_blocks(k, lg_am, an, xm_bits):
    k("s_and_b32 s48, s2, 7")
    k("s_lshr_b32 s49, s2, 3")
    k("s_and_b32 s50, s49, %d" % ((1 << lg_am) - 1))
    k("s_lshr_b32 s51, s49, %d" % lg_am)
    if DBG["fine"] and an == 8:
        k("s_xor_b32 s51, s51, 5")
    k("s_and_b32 s52, s48, %d" % ((1 << xm_bits) - 1))
    k("s_lshl_b32 s52, s52, %d" % lg_am)
    k("s_add_u32 s%d, s52, s50" % S_BM)
    k("s_lshr_b32 s52, s48, %d" % xm_bits)
    k("s_mul_i32 s52, s52, %d" % an)
    k("s_add_u32 s%d, s52, s51" % S_BN)


class Dma:
    def __init__(self, srd, pieces, stride, ring, slot, sbase):
        self.srd, self.pieces, self.stride, self.ring, self.slot, self.sbase = srd, pieces, stride, ring, slot, sbase
        self.half_last = False

    def wave_bytes(self):
        return len(self.pieces) * 1024 - (512 if self.half_last else 0)


DBG = dict(fine=False, no_dsw=False, no_valu=False, l2hit=False, no_cons=False, no_prod=False, no_xf=False, no_mfma=False, no_reads=False)


def cons_phase(k, cfg, sb=0):
    T, MT, NT = cfg["T"], cfg["MT"], cfg["NT"]
    xr, wr = cfg["x_ring"], cfg["w_ring"]
    ACC = cfg["ACC"]
    FR = cfg["FRAG"]
    fsz = 4 * (MT + NT)
    VX0, VW0, VX, VW = 4, 5, 6, 10
    if cfg["wgrid"] == "2x2":
        k("s_lshr_b32 s48, s%d, 1" % S_WAVE)
        k("s_and_b32 s49, s%d, 1" % S_WAVE)
    else:
        k("s_mov_b32 s48, s%d" % S_WAVE)
        k("s_mov_b32 s49, 0")
    S_WM, S_WN = 48, 49
    if cfg.get("table"):
        cfg["table"](k)
        k("s_waitcnt lgkmcnt(0)")
        k("s_barrier")
    if cfg.get("cons_pre"):
        cfg["cons_pre"](k)
    swz = cfg["x_mode"] == "dma_swz"
    if swz:
        k("v_and_b32 v2, 31, v%d" % V_LANE)
        k("v_lshrrev_b32 v3, 5, v%d" % V_LANE)
        k("v_bfe_u32 v%d, v%d, 1, 3" % (VX0, V_LANE))
        k("v_xor_b32 v%d, v%d, v3" % (VX0, VX0))
        k("v_lshlrev_b32 v%d, 4, v%d" % (VX0, VX0))
        k("v_lshl_add_u32 v%d, v2, 7, v%d" % (VX0, VX0))
        k("s_mul_i32 s50, s%d, %d" % (S_WM, MT * 4096))
        k("s_add_u32 s50, s50, %d" % xr[0])
        k("v_add_u32 v%d, s50, v%d" % (VX0, VX0))
    else:
        k("s_mul_i32 s50, s%d, %d" % (S_WM, MT * 1024))
        k("s_add_u32 s50, s50, %d" % xr[0])
        k("v_lshl_add_u32 v%d, v%d, 4, s50" % (VX0, V_LANE))
    blk32 = cfg.get("w_mode") == "blk32"
    wfm = cfg.get("w_mode") == "fm"
    if wfm:
        k("v_lshlrev_b32 v%d, 4, v%d" % (VW0, V_LANE))
    elif blk32:
        k("v_bfe_u32 v2, v%d, 4, 1" % V_LANE)
        k("v_mul_u32_u24 v%d, 1152, v2" % VW0)
        k("v_lshrrev_b32 v2, 5, v%d" % V_LANE)
        k("v_lshl_add_u32 v%d, v2, 8, v%d" % (VW0, VW0))
        k("v_and_b32 v2, 15, v%d" % V_LANE)
        k("v_lshl_add_u32 v%d, v2, 3, v%d" % (VW0, VW0))
    else:
        W_HH, W_RD, W_KS = cfg["w_strides"]
        k("v_lshrrev_b32 v2, 5, v%d" % V_LANE)
        k("v_mul_u32_u24 v%d, %d, v2" % (VW0, W_HH))
        k("v_bfe_u32 v2, v%d, 2, 2" % V_LANE)
        k("v_lshl_add_u32 v%d, v2, 6, v%d" % (VW0, VW0))
        k("v_bfe_u32 v2, v%d, 4, 1" % V_LANE)
        k("v_lshl_add_u32 v%d, v2, 5, v%d" % (VW0, VW0))
        k("v_and_b32 v2, 3, v%d" % V_LANE)
        k("v_lshl_add_u32 v%d, v2, 3, v%d" % (VW0, VW0))
    k("s_mul_i32 s50, s%d, %d" % (S_WN, cfg["w_wave_stride"]))
    k("s_add_u32 s50, s50, %d" % wr[0])
    k("v_add_u32 v%d, s50, v%d" % (VW0, VW0))
    for i in range(16 * MT * NT):
        k("v_mov_b32 v%d, 0" % (ACC + i))
    S_XS, S_WS, S_T = 52, 53, 54

    def set_addr():
        k("v_add_u32 v%d, s%d, v%d" % (VX, S_XS, VX0))
        k("v_add_u32 v%d, s%d, v%d" % (VW, S_WS, VW0))
        if swz:
            for ks in range(1, 4):
                k("v_xor_b32 v%d, %d, v%d" % (VX + ks, ks * 32, VX))
        if blk32:
            k("v_xor_b32 v%d, 128, v%d" % (VW + 1, VW))

    def adv_slots():
        for (sr, ring) in ((S_XS, xr), (S_WS, wr)):
            k("s_add_u32 s%d, s%d, %d" % (sr, sr, ring[1]))
            k("s_cmp_ge_u32 s%d, %d" % (sr, ring[1] * ring[2]))
            k("s_cselect_b32 s%d, 0, s%d" % (sr, sr))

    def reads(ks, f):
        o = []
        base = FR + f * fsz
        xs, ws = [], []
        for i in range(MT):
            if swz:
                xs.append("ds_read_b128 %s, v%d offset:%d" % (v(base + 4 * i, 4), VX + ks, i * 4096))
            else:
                xs.append("ds_read_b128 %s, v%d offset:%d" % (v(base + 4 * i, 4), VX, ks * cfg.get("x_ks", 4096) + i * 1024))
        if wfm:
            ws = ["ds_read_b128 %s, v%d offset:%d" % (v(base + 4 * MT + 4 * j, 4), VW, (ks * NT + j) * 1024) for j in range(NT)]
            return xs[:1] + ws[:1] + xs[1:] + ws[1:]
        for j in range(NT):
            for rd in range(2):
                if blk32:
                    reg, off = VW + rd, cfg["w_tile_off"](j) + (ks >> 1) * 8192 + (ks & 1) * 512
                else:
                    reg, off = VW, cfg["w_tile_off"](j) + ks * W_KS + rd * W_RD
                ws.append("ds_read_b64_tr_b16 %s, v%d offset:%d" % (v(base + 4 * MT + 4 * j + 2 * rd, 2), reg, off))
        o.append(xs[0])
        o += ws[0:2]
        o += xs[1:]
        o += ws[2:]
        return o

    def mfmas(f):
        o = []
        base = FR + f * fsz
        for j in range(NT):
            for i in range(MT):
                acc = v(ACC + 16 * (i * NT + j), 16)
                xf, wf = v(base + 4 * i, 4), v(base + 4 * MT + 4 * j, 4)
                if cfg.get("swap_tile", lambda j: False)(j):
                    o.append("v_mfma_f32_32x32x16_bf16 %s, %s, %s, %s" % (acc, xf, wf, acc))
                else:
                    o.append("v_mfma_f32_32x32x16_bf16 %s, %s, %s, %s" % (acc, wf, xf, acc))
        return o

    def interleave(ms, rs, per):
        rs = list(rs)
        if DBG["no_cons"]:
            return
        if DBG["no_mfma"]:
            ms = []
        if DBG["no_reads"]:
            rs = []
        for m in ms:
            k(m)
            for _ in range(per):
                if rs:
                    k(rs.pop(0))
        for r in rs:
            k(r)

    k("s_mov_b32 s%d, 0" % S_XS)
    k("s_mov_b32 s%d, 0" % S_WS)
    k("s_mov_b32 s%d, 0" % S_T)
    set_addr()
    k.stamp(sb + 1)
    k("s_barrier")
    k.stamp(sb + 2)
    PD = cfg.get("PD", 1)
    NF = 2 if PD == 1 else 4
    for ks in range(PD):
        for r in reads(ks, ks % NF):
            k(r)
    if cfg.get("cons_loads"):
        cfg["cons_loads"](k)
    LOOP = k.uid("cloop")
    nrd = MT + (NT if wfm else 2 * NT)
    per = cfg.get("reads_per_mfma", max(2, -(-nrd // max(1, MT * NT - 1))))
    nbar = cfg.get("mfma_before_barrier", 1)
    k.label(LOOP)
    for ks in range(4):
        ms = mfmas(ks % NF)
        nxt = (ks + PD) % 4
        k("s_waitcnt lgkmcnt(%d)" % min(15, nrd * (PD - 1)))
        if ks + PD == 4:
            for m in ms[:nbar]:
                k(m)
            set_addr()
            if PD > 1:
                k("s_waitcnt lgkmcnt(0)")
            k("s_barrier")
            interleave(ms[nbar:], reads(nxt, nxt % NF), per + 1)
        else:
            interleave(ms, reads(nxt, nxt % NF), per)
        if ks == 0:
            adv_slots()
            k("s_add_u32 s%d, s%d, 1" % (S_T, S_T))
    if cfg.get("mid"):
        SK = k.uid("nomid")
        k("s_cmp_lg_u32 s%d, %d" % (S_T, cfg["mid"][0]))
        k("s_cbranch_scc1 " + SK)
        cfg["mid"][1](k)
        k("s_waitcnt lgkmcnt(0)")
        k.label(SK)
    k("s_cmp_lt_u32 s%d, %d" % (S_T, T))
    k("s_cbranch_scc1 " + LOOP)
    k("s_waitcnt lgkmcnt(0)")
    k.stamp(sb + 3)
    cfg["epilogue"](k)
    k.stamp(sb + 4)


def cons_phase16(k, cfg, sb=0):
    T, NT = cfg["T"], cfg["NT"]
    xr, wr = cfg["x_ring"], cfg["w_ring"]
    ACC, FR = cfg["ACC"], cfg["FRAG"]
    tr = cfg["w_mode"] == "tr16"
    VX0, VW0, VX, VW = 4, 5, 6, 10
    MT = cfg.get("MT", 2)
    XF, WF, RW = FR, FR + 8 * MT, cfg.get("RW", 7)
    D = cfg.get("D", 6 if tr else 7)
    PAUSE = cfg.get("pause", 3)
    NI = 2 * NT
    assert D <= NT and NI % RW == 0
    if cfg.get("cons_pre"):
        cfg["cons_pre"](k)
    xswz = cfg.get("x_mode") == "dma_swz"
    if xswz:
        k("v_bfe_u32 v2, v%d, 1, 3" % V_LANE)
        k("v_lshrrev_b32 v3, 4, v%d" % V_LANE)
        k("v_xor_b32 v2, v2, v3")
        k("v_lshlrev_b32 v2, 4, v2")
        k("v_and_b32 v3, 15, v%d" % V_LANE)
        k("v_lshl_add_u32 v2, v3, 7, v2")
        k("s_lshl_b32 s50, s%d, 12" % S_WAVE)
        k("s_add_u32 s50, s50, %d" % xr[0])
        k("v_add_u32 v%d, s50, v2" % VX0)
    else:
        k("s_mul_i32 s50, s%d, %d" % (S_WAVE, MT * 1024))
        k("s_add_u32 s50, s50, %d" % xr[0])
        k("v_lshl_add_u32 v%d, v%d, 4, s50" % (VX0, V_LANE))
    if tr:
        k("v_lshrrev_b32 v2, 5, v%d" % V_LANE)
        k("v_lshlrev_b32 v%d, 9, v2" % VW0)
        k("v_and_b32 v2, 31, v%d" % V_LANE)
        k("v_lshl_add_u32 v%d, v2, 3, v%d" % (VW0, VW0))
    else:
        k("v_lshlrev_b32 v%d, 4, v%d" % (VW0, V_LANE))
    k("v_add_u32 v%d, %d, v%d" % (VW0, wr[0], VW0))
    for i in range(4 * MT * NT):
        k("v_mov_b32 v%d, %s" % (ACC + i, cfg.get("acc_init", lambda i: "0")(i)))
    S_XS, S_WS, S_T = 52, 53, 54

    def set_addr():
        k("v_add_u32 v%d, s%d, v%d" % (VX, S_XS, VX0))
        k("v_add_u32 v%d, s%d, v%d" % (VW, S_WS, VW0))
        if xswz:
            k("v_xor_b32 v%d, 64, v%d" % (VX + 1, VX))

    def reads(n):
        ks, ct = n // NT, n % NT
        o = []
        if ct == 0:
            for rt in range(MT):
                if xswz:
                    o.append("ds_read_b128 %s, v%d offset:%d" % (v(XF + 4 * MT * ks + 4 * rt, 4), VX + ks, rt * 2048))
                else:
                    o.append("ds_read_b128 %s, v%d offset:%d" % (v(XF + 4 * MT * ks + 4 * rt, 4), VX, ks * 4096 * MT + rt * 1024))
        w = WF + 4 * (n % RW)
        if tr:
            for rd in range(2):
                o.append("ds_read_b64_tr_b16 %s, v%d offset:%d" % (v(w + 2 * rd, 2), VW, n * 1024 + rd * 256))
        else:
            o.append("ds_read_b128 %s, v%d offset:%d" % (v(w, 4), VW, n * 1024))
        return o

    after = [[] for _ in range(NI)]
    nb = NI - D + PAUSE
    for n in range(NI - D):
        after[n].append(n + D)
    pend = list(range(NI, NI + D))
    left = NI - nb
    for n in range(nb, NI):
        take = -(-len(pend) // (NI - n))
        after[n] += pend[:take]
        pend = pend[take:]
    for n in range(NI):
        for m in after[n]:
            assert m - RW <= n
    q = []
    for m in range(D):
        q += [m] * len(reads(m))
    waits = {}
    for rep in range(2):
        for n in range(NI):
            g = rep * NI + n
            idx = [i for i, o in enumerate(q) if o <= g]
            waits[(rep, n)] = len(q) - 1 - max(idx) if idx else None
            if idx:
                q = q[max(idx) + 1:]
            if n == nb:
                q = []
            for m in after[n]:
                q += [rep * NI + m] * len(reads(m % NI))
    k("s_mov_b32 s%d, 0" % S_XS)
    k("s_mov_b32 s%d, %d" % (S_WS, wr[1] * cfg.get("w_start", 0)))
    k("s_mov_b32 s%d, 0" % S_T)
    set_addr()
    k.stamp(sb + 1)
    k("s_barrier")
    k.stamp(sb + 2)
    for m in range(D):
        for r in reads(m):
            k(r)
    if cfg.get("cons_loads"):
        cfg["cons_loads"](k)
    book = []
    for (sr, ring) in ((S_XS, xr), (S_WS, wr)):
        book += ["s_add_u32 s%d, s%d, %d" % (sr, sr, ring[1]), "s_cmp_ge_u32 s%d, %d" % (sr, ring[1] * ring[2]),
                 "s_cselect_b32 s%d, 0, s%d" % (sr, sr)]
    book += ["s_add_u32 s%d, s%d, 1" % (S_T, S_T), "s_cmp_lt_u32 s%d, %d" % (S_T, T)]
    bper = -(-len(book) // nb)
    LOOP = k.uid("cloop")
    k.label(LOOP)
    for n in range(NI):
        ks, ct = n // NT, n % NT
        assert waits[(0, n)] == waits[(1, n)]
        if waits[(1, n)] is not None:
            assert waits[(1, n)] <= 15
            WG_ = cfg.get("wgroup", 1)
            if n % WG_ == 0:
                nr = sum(len(reads(m)) for m in range(n + 1, min(NI, n + WG_)) if waits[(1, m)] is not None)
                k("s_waitcnt lgkmcnt(%d)" % max(0, waits[(1, n)] - nr))
        rs = [r for m in after[n] for r in reads(m % NI)]
        free = all(m - RW < n for m in after[n])
        for rt in range(MT):
            acc = v(ACC + 4 * (ct * MT + rt), 4)
            wf, xf = v(WF + 4 * (n % RW), 4), v(XF + 4 * MT * ks + 4 * rt, 4)
            if cfg.get("swap_tile", lambda c_: False)(ct):
                wf, xf = xf, wf
            k("v_mfma_f32_16x16x32_bf16 %s, %s, %s, %s" % (acc, wf, xf, acc))
            if rt == 0 and n == nb:
                set_addr()
                k("s_waitcnt lgkmcnt(0)")
                k("s_barrier")
            elif free and rt < MT - 1:
                take = -(-len(rs) // (MT - rt))
                for r in rs[:take]:
                    k(r)
                rs = rs[take:]
        for r in rs:
            k(r)
        for l in book[n * bper:(n + 1) * bper]:
            k(l)
    if cfg.get("mid"):
        SK = k.uid("nomid")
        k("s_cmp_lg_u32 s%d, %d" % (S_T, cfg["mid"][0]))
        k("s_cbranch_scc1 " + SK)
        cfg["mid"][1](k)
        k("s_waitcnt lgkmcnt(0)")
        k.label(SK)
        k("s_cmp_lt_u32 s%d, %d" % (S_T, T))
    k("s_cbranch_scc1 " + LOOP)
    k("s_waitcnt lgkmcnt(0)")
    k.stamp(sb + 3)
    cfg["epilogue"](k)
    k.stamp(sb + 4)


def prod_phase(k, cfg, sb=0, first=False, tail_hook=None):
    g = prod_phase_gen(k, cfg, sb, first, tail_hook)
    next(g)
    next(g, None)


def prod_phase_gen(k, cfg, sb=0, first=False, tail_hook=None):
    T, NS = cfg["T"], cfg["NS"]
    dmas = cfg["dma_setup"](k)
    S_TMP, S_OFF, S_M, S_IT = 66, 68, 72, 77
    for n, d in enumerate(dmas):
        k("s_mov_b32 s%d, s%d" % (S_OFF + n, d.sbase))
        k("s_mul_i32 s%d, s%d, %d" % (S_M + n, S_WAVE, d.wave_bytes()))
        k("s_add_u32 s%d, s%d, %d" % (S_M + n, S_M + n, d.ring))
        k("s_add_u32 s%d, s%d, %d" % (S_M + 2 + n, S_M + n, d.slot * NS))
        if getattr(d, "start", 0):
            k("s_add_u32 s%d, s%d, %d" % (S_M + n, S_M + n, d.slot * d.start))
    if first:
        k("s_waitcnt lgkmcnt(0)")
    cfg["srds_p"](k)
    k.stamp(sb + 1)

    def step(which):
        cnt = 0
        for n, d in enumerate(dmas):
            if n not in which:
                continue
            for i, vreg in enumerate(d.pieces):
                if i % 4 == 0:
                    c = (i // 4) * 4096
                    k("s_add_u32 m0, s%d, %d" % (S_M + n, c) if c else "s_mov_b32 m0, s%d" % (S_M + n))
                half = d.half_last and i == len(d.pieces) - 1
                if half:
                    k("s_mov_b32 exec_hi, 0")
                k("buffer_load_dwordx4 v%d, %s, s%d offen offset:%d%s lds" %
                  (vreg, s(d.srd, 4), S_OFF + n, (i % 4) * 1024, " sc1" if getattr(d, "dep", False) or getattr(d, "sc1", False) else ""))
                if half:
                    k("s_mov_b32 exec_hi, -1")
                cnt += 1
            k("s_add_u32 s%d, s%d, %d" % (S_OFF + n, S_OFF + n, d.stride))
            k("s_add_u32 s%d, s%d, %d" % (S_M + n, S_M + n, d.slot))
            k("s_cmp_ge_u32 s%d, s%d" % (S_M + n, S_M + 2 + n))
            k("s_cselect_b32 s%d, %d, 0" % (S_TMP, d.slot * NS))
            k("s_sub_u32 s%d, s%d, s%d" % (S_M + n, S_M + n, S_TMP))
        return cnt

    allops = list(range(len(dmas)))
    nD = sum(len(d.pieces) for d in dmas)
    pl = cfg.get("poll")
    ops = []

    def issue(which, st):
        ops.extend([st] * step(which))

    def wait_step(st):
        last = max(i for i, o in enumerate(ops) if o == st)
        k("s_waitcnt vmcnt(%d)" % min(63, len(ops) - 1 - last))

    if pl:
        dep = [n for n in allops if getattr(dmas[n], "dep", False)]
        free = [n for n in allops if n not in dep]
        early = NS - 1 - min(NS - 1, cfg.get("late_free", 0))
        if cfg.get("prod_pre_load"):
            cfg["prod_pre_load"](k)
        for st in range(early):
            issue(free, st)
        yield len(ops)
        pl.setup(k)
        for st in range(early, NS - 1):
            issue(free, st)
        for st in range(NS - 1):
            pl.need(k)
            if st == 0:
                k.stamp(sb + 2)
            issue(dep, st)
    else:
        yield 0
        if cfg.get("prod_pre_load"):
            cfg["prod_pre_load"](k)
        for st in range(NS - 1):
            issue(allops, st)
        k.stamp(sb + 2)
    wait_step(0)
    if cfg.get("prod_pre_fin"):
        cfg["prod_pre_fin"](k)
    k.stamp(sb + 3)
    k("s_barrier")
    npeel = NS - 3 if pl else 0
    for t in range(npeel):
        pl.need(k)
        issue(allops, t + NS - 1)
        wait_step(t + 1)
        k("s_barrier")
    k("s_mov_b32 s%d, %d" % (S_IT, npeel))
    LOOP = k.uid("ploop")
    k.label(LOOP)
    if pl:
        pl.need(k)
    if not DBG["no_prod"]:
        step(allops)
    for (when, job) in cfg.get("prod_mid", []):
        SK = k.uid("nomid")
        k("s_cmp_lg_u32 s%d, %s" % (S_IT, when))
        k("s_cbranch_scc1 " + SK)
        job(k)
        k.label(SK)
    if DBG["l2hit"]:
        for n, d in enumerate(dmas):
            k("s_cmp_ge_u32 s%d, %d" % (S_OFF + n, 6 * d.stride))
            k("s_cselect_b32 s%d, 0, s%d" % (S_OFF + n, S_OFF + n))
    k("s_add_u32 s%d, s%d, 1" % (S_IT, S_IT))
    k("s_cmp_lt_u32 s%d, %d" % (S_IT, T - (NS - 1)))
    k("s_waitcnt vmcnt(%d)" % ((NS - 2) * nD))
    k("s_barrier")
    k("s_cbranch_scc1 " + LOOP)
    extra = tail_hook() if tail_hook else 0
    for r in range(NS - 3, -1, -1):
        k("s_waitcnt vmcnt(%d)" % (r * nD + extra))
        k("s_barrier")
    k("s_barrier")
    k.stamp(sb + 4)


def gemm(name, cfg):
    k = Kern(name)
    T, NWG = cfg["T"], cfg["NWG"]
    MT, NT = cfg["MT"], cfg["NT"]
    NS = cfg["NS"]
    NP = cfg.get("NP", 4)
    NB_ = 16 // NP
    END, PROD = k.uid("end"), k.uid("prod")
    k("s_cmp_ge_u32 s2, %d" % NWG)
    k("s_cbranch_scc1 " + END)
    k.kidx = cfg.get("kidx", 0)
    k.stamp_init()
    cfg["load_ptrs"](k)
    k("v_lshrrev_b32 v2, 6, v0")
    k("v_and_b32 v%d, 63, v0" % V_LANE)
    k("v_readfirstlane_b32 s%d, v2" % S_WAVE)
    cfg["map"](k)
    k("s_cmp_ge_u32 s%d, 4" % S_WAVE)
    k("s_cbranch_scc1 " + PROD)
    k("s_waitcnt lgkmcnt(0)")
    cfg["srds_c"](k)

    cons_phase(k, cfg)
    k.stamp_dump(5)
    k("s_endpgm")

    k.label(PROD)
    if cfg.get("pprio", 0):
        k("s_setprio %d" % cfg["pprio"])
    k("s_sub_u32 s%d, s%d, 4" % (S_WAVE, S_WAVE))
    dmas = cfg["dma_setup"](k)
    vg = cfg.get("vg")
    S_TMP, S_OFF, S_M = 66, 68, 72
    S_VOFF, S_IT = 76, 77
    nD = sum(len(d.pieces) for d in dmas)
    static_ring = NS in (2, 4)
    for n, d in enumerate(dmas):
        k("s_mov_b32 s%d, s%d" % (S_OFF + n, d.sbase))
        k("s_mul_i32 s%d, s%d, %d" % (S_M + n, S_WAVE, len(d.pieces) * 1024))
        k("s_add_u32 s%d, s%d, %d" % (S_M + n, S_M + n, d.ring))
        if not static_ring:
            k("s_add_u32 s%d, s%d, %d" % (S_M + 2 + n, S_M + n, d.slot * NS))
    if vg:
        VR, VOFF, VLDS = vg["regs"], vg["voff"], vg["vlds"]
        k("s_mul_i32 s%d, s%d, %d" % (S_TMP, S_WAVE, NB_ * 1024))
        k("v_lshl_add_u32 v%d, v%d, 4, s%d" % (VOFF, V_LANE, S_TMP))
        k("v_add_u32 v%d, %d, v%d" % (VLDS, vg["ring"], VOFF))
        k("s_mov_b32 s%d, 0" % S_VOFF)
    k("s_waitcnt lgkmcnt(0)")
    cfg["srds_p"](k)
    k.stamp(1)

    def dma_items(step):
        o = []
        for n, d in enumerate(dmas):
            for i, vreg in enumerate(d.pieces):
                g = []
                if i % 4 == 0:
                    c = (i // 4) * 4096 + ((step % NS) * d.slot if static_ring else 0)
                    g.append("s_add_u32 m0, s%d, %d" % (S_M + n, c) if c else "s_mov_b32 m0, s%d" % (S_M + n))
                g.append("buffer_load_dwordx4 v%d, %s, s%d offen offset:%d lds" % (vreg, s(d.srd, 4), S_OFF + n, (i % 4) * 1024))
                if i == len(d.pieces) - 1:
                    g.append("s_add_u32 s%d, s%d, %d" % (S_OFF + n, S_OFF + n, d.stride))
                    if not static_ring:
                        g.append("s_add_u32 s%d, s%d, %d" % (S_M + n, S_M + n, d.slot))
                        g.append("s_cmp_ge_u32 s%d, s%d" % (S_M + n, S_M + 2 + n))
                        g.append("s_cselect_b32 s%d, %d, 0" % (S_TMP, d.slot * NS))
                        g.append("s_sub_u32 s%d, s%d, s%d" % (S_M + n, S_M + n, S_TMP))
                o.append(g)
        return o

    def emit(groups):
        for g in groups:
            for l in g:
                k(l)

    if vg:
        def vg_items(set_):
            o = []
            for i in range(NB_):
                g = ["buffer_load_dwordx4 %s, v%d, %s, s%d offen offset:%d" %
                     (v(VR + 16 * set_ + 4 * i, 4), VOFF, s(vg["srd"], 4), S_VOFF, i * 1024)]
                if i == NB_ - 1:
                    g.append("s_add_u32 s%d, s%d, 16384" % (S_VOFF, S_VOFF))
                o.append(g)
            return o

        def xform_list(step):
            set_ = step % 4
            o = []
            for i in range(NB_):
                o += vg["xform"](VR + 16 * set_ + 4 * i, i, step % 2)
                o.append("ds_write_b128 v%d, %s offset:%d" % (VLDS, v(VR + 16 * set_ + 4 * i, 4), (step % 2) * 16384 + i * 1024))
            return o

        emit(vg_items(0))
        emit(dma_items(0))
        k("s_barrier")
        emit([vg["params"](0)])
        emit([vg["params"](1)])
        emit(vg_items(1))
        k("s_waitcnt vmcnt(%d) lgkmcnt(0)" % (NB_ + nD))
        k.stamp(2)
        for l in xform_list(0):
            k(l)
        for st in range(1, NS - 1):
            emit(dma_items(st))
        emit(vg_items(2))
        k("s_waitcnt vmcnt(%d) lgkmcnt(0)" % (NB_ + (NS - 2) * nD))
        k.stamp(3)
        k("s_barrier")
        k("s_mov_b32 s%d, 0" % S_IT)
        LOOP = k.uid("ploop")
        k.label(LOOP)
        for u in range(4):
            mem = vg_items((u + 3) % 4) + dma_items(u + NS - 1)
            xf = xform_list(u + 1)
            mem.append(vg["params"](u % 2))
            if DBG["no_prod"]:
                mem, xf = [["s_nop 0"]], []
            if DBG["no_xf"]:
                xf = []
            if DBG["no_dsw"]:
                xf = [l for l in xf if not l.startswith("ds_write")]
            if DBG["no_valu"]:
                xf = [l for l in xf if l.startswith("ds_write")]
            tail = cfg.get("tail", 2)
            par = mem.pop()
            xf = par + xf
            ng = max(1, len(mem) - tail)
            gap = len(xf) / float(ng)
            pos, j = 0.0, 0
            for g in mem:
                emit([g])
                pos += gap
                while j < len(xf) and j < int(pos + 0.5):
                    k(xf[j])
                    j += 1
            if u == 3 and DBG["l2hit"]:
                k("s_mov_b32 s%d, 0" % S_VOFF)
                for n, d in enumerate(dmas):
                    k("s_mov_b32 s%d, s%d" % (S_OFF + n, d.sbase))
            if u == 3:
                k("s_add_u32 s%d, s%d, 4" % (S_IT, S_IT))
                k("s_cmp_lt_u32 s%d, %d" % (S_IT, T))
            k("s_waitcnt vmcnt(%d) lgkmcnt(0)" % (NB_ + nD))
            k("s_barrier")
        k("s_cbranch_scc1 " + LOOP)
    else:
        if cfg.get("prod_pre_load"):
            cfg["prod_pre_load"](k)
        for st in range(NS - 1):
            emit(dma_items(st))
        k.stamp(2)
        k("s_waitcnt vmcnt(%d)" % ((NS - 2) * nD))
        if cfg.get("prod_pre_fin"):
            cfg["prod_pre_fin"](k)
        k.stamp(3)
        k("s_barrier")
        k("s_mov_b32 s%d, 0" % S_IT)
        LOOP = k.uid("ploop")
        k.label(LOOP)
        U = 4 if static_ring else 1
        for u in range(U):
            if not DBG["no_prod"]:
                emit(dma_items(u + NS - 1))
            if u == U - 1 and DBG["l2hit"]:
                for n, d in enumerate(dmas):
                    k("s_mov_b32 s%d, s%d" % (S_OFF + n, d.sbase))
            if u == U - 1:
                k("s_add_u32 s%d, s%d, %d" % (S_IT, S_IT, U))
                k("s_cmp_lt_u32 s%d, %d" % (S_IT, T))
            k("s_waitcnt vmcnt(%d)" % ((NS - 2) * nD))
            k("s_barrier")
        k("s_cbranch_scc1 " + LOOP)
    k("s_waitcnt vmcnt(0)")
    k.stamp_dump(5)
    k.label(END)
    k("s_endpgm")
    txt, n = k.finish(vgprs=cfg["vgprs"], sgprs=96)
    return txt, "; @launch kernel=%s grid=(%d,1,1) block=(%d,1,1) lds=%d" % (name, NWG, 256 + 64 * NP, cfg["lds"])
```

```python
from common import *
from gemms import stats_to_affine, BCAST
from sync import FL0


def gen_k1(name="k1_kernel", tlb=0, nxt="mm_kernel"):
    k = Kern(name)
    END, LN, RP = k.uid("end"), k.uid("ln"), k.uid("rp")
    k("s_cmp_ge_u32 s2, 385")
    k("s_cbranch_scc1 " + END)
    k.kidx = 0
    k.stamp_init()
    k("s_load_dwordx4 s[56:59], s[0:1], %d" % KA["x"])
    k("s_load_dwordx4 s[8:11], s[0:1], %d" % KA["c"])
    k("s_load_dwordx4 s[4:7], s[0:1], %d" % KA["dbg"])
    k("s_cmp_ge_u32 s2, 129")
    k("s_cbranch_scc1 " + LN)
    k("s_cmp_lt_u32 s2, 1")
    k("s_cbranch_scc1 " + RP)
    k("s_sub_u32 s13, s2, 1")

    def wait_flag(issued):
        W, GO, CH = k.uid("wait"), k.uid("go"), k.uid("chk")
        k("s_mov_b32 s16, 0")
        if issued:
            k("s_branch " + CH)
        k.label(W)
        k("buffer_load_dword v3, v2, s[48:51], 0 offen sc1")
        k.label(CH)
        k("s_waitcnt vmcnt(0)")
        k("v_cmp_eq_u32 vcc, 0, v3")
        k("s_cbranch_vccz " + GO)
        k("s_sleep 4")
        k("s_add_u32 s16, s16, 1")
        k("s_cmp_lt_u32 s16, 0x100000")
        k("s_cbranch_scc1 " + W)
        k.label(GO)
    k("s_lshr_b32 s12, s13, 2")
    k("s_and_b32 s13, s13, 3")
    g = Gemv(k, 0, 12, 13, 20, 24, 28, 0, 8, 32)
    g.addr()
    k("s_waitcnt lgkmcnt(0)")
    srd_in(k, 20, 8, SZ["c"])
    srd_in(k, 24, 10, SZ["w_mod"])
    srd_ws(k, 28, 6, "MODP")
    srd_in(k, 48, 4, 256)
    g.loads()
    k.stamp(1)
    k("s_waitcnt vmcnt(8)")
    k.stamp(2)
    g.silu()
    srd_ws(k, 52, 6, "SC")
    k("v_lshlrev_b32 v2, 1, v0")
    k("buffer_store_short_d16_hi v12, v2, s[52:55], s34 offen")
    k("s_barrier")
    g.mac(lambda i: k("s_waitcnt vmcnt(%d)" % (8 - i)))
    k.stamp(3)
    k("s_barrier")
    g.red1()
    k("s_barrier")
    k("v_cmp_gt_u32 vcc, 64, v0")
    k("s_and_saveexec_b64 s[60:61], vcc")
    k("s_cbranch_execz " + END)
    g.fin(" sc1")
    k.stamp(6)
    k("v_mov_b32 v2, 0")
    wait_flag(False)
    k(k.lines[[n for n, l in enumerate(k.lines) if "buffer_store_dword v48" in l][-1]])
    k.stamp(4)
    k.stamp_dump(5)
    k("s_endpgm")

    k.label(RP)
    k("v_lshlrev_b32 v1, 4, v0")
    for r in (4, 5, 6, 7):
        k("v_mov_b32 v%d, -1" % r)
    k("v_mov_b32 v2, 0")
    k("s_waitcnt lgkmcnt(0)")
    srd_ws(k, 28, 6, "MODP")
    srd_in(k, 48, 4, 256)
    for n in range(8):
        k("s_mov_b32 s12, %d" % ((n >> 1) * 6144 * 4 + (n & 1) * 4096))
        k("buffer_store_dwordx4 v[4:7], v1, s[28:31], s12 offen sc1")
    k.stamp(1)
    k("s_waitcnt vmcnt(0)")
    k.stamp(2)
    k("s_barrier")
    k("v_cmp_eq_u32 vcc, 0, v0")
    k("s_and_saveexec_b64 s[60:61], vcc")
    k("s_cbranch_execz " + END)
    k("buffer_store_dword v4, v2, s[48:51], 0 offen sc1")
    k.stamp(3)
    k.stamp_dump(5)
    k("s_endpgm")

    k.label(LN)
    k("s_sub_u32 s12, s2, 129")
    k("v_bfe_u32 v1, v0, 3, 3")
    k("v_and_b32 v2, 7, v0")
    k("v_lshrrev_b32 v5, 6, v0")
    k("v_lshlrev_b32 v3, 11, v1")
    k("v_lshl_add_u32 v3, v2, 4, v3")
    k("v_lshl_add_u32 v3, v5, 9, v3")
    k("s_lshl_b32 s13, s12, 14")
    k("v_lshrrev_b32 v6, 2, v2")
    k("v_lshlrev_b32 v6, 14, v6")
    k("v_lshl_add_u32 v6, v5, 17, v6")
    k("v_and_b32 v7, 3, v2")
    k("v_lshl_add_u32 v6, v7, 8, v6")
    k("v_lshl_add_u32 v64, v1, 4, v6")
    k("v_lshlrev_b32 v65, 6, v2")
    k("v_lshl_add_u32 v65, v5, 11, v65")
    k("s_and_b32 s16, s12, 1")
    k("s_lshl_b32 s16, s16, 7")
    k("s_lshr_b32 s18, s12, 5")
    k("s_lshl_b32 s18, s18, 19")
    k("s_bfe_u32 s17, s12, 0x40001")
    k("s_lshl_b32 s17, s17, 10")
    k("s_add_u32 s18, s18, s17")
    k("s_add_u32 s18, s18, s16")
    for n in range(4):
        k("s_add_u32 s%d, s18, %d" % (36 + n, n * 32768))
    k("s_waitcnt lgkmcnt(0)")
    srd_in(k, 20, 56, SZ["x"])
    for n in range(4):
        k("buffer_load_dwordx4 v[%d:%d], v3, s[20:23], s13 offen offset:%d" % (16 + 4 * n, 19 + 4 * n, n * 128) + NT["x"])
    srd_ws(k, 24, 6, "H")
    srd_ws(k, 28, 6, "FL")
    srd_in(k, 48, 4, 256)
    srd_ws(k, 44, 6, "MODP")
    k("v_mov_b32 v8, -1.0")
    k("v_min_u32 v4, 159, v0")
    k("v_lshlrev_b32 v4, 2, v4")
    k("s_mul_i32 s14, s12, 640")
    k("s_add_u32 s14, s14, %d" % FL0)
    k("buffer_store_dword v8, v4, s[28:31], s14 offen")
    srd_ws(k, 52, 6, "HF")
    k("v_mov_b32 v4, 0")
    k("s_lshl_b32 s14, s12, 2")
    k("buffer_store_dword v8, v4, s[52:55], s14 offen")
    k("v_lshlrev_b32 v4, 4, v0")
    k("v_readfirstlane_b32 s3, v5")
    k("v_and_b32 v100, 63, v0")
    srd_in(k, 40, 58, SZ["wqkv"])
    k("v_lshrrev_b32 v2, 3, v100")
    k("s_mov_b32 s16, 6144")
    k("v_mul_lo_u32 v101, v2, s16")
    k("v_and_b32 v2, 7, v100")
    k("v_lshl_add_u32 v101, v2, 4, v101")
    k("s_lshl_b32 s19, s3, 13")
    k("s_add_u32 s19, s19, 12288")
    for u in range(2):
        k("s_mul_i32 s14, s12, 6")
        k("s_add_u32 s14, s14, s3")
        k("s_add_u32 s14, s14, %d" % (4 * u))
        k("s_mul_i32 s%d, s14, 10923" % (68 + 2 * u))
        k("s_lshr_b32 s%d, s%d, 19" % (68 + 2 * u, 68 + 2 * u))
        k("s_mul_i32 s15, s%d, 48" % (68 + 2 * u))
        k("s_sub_u32 s%d, s14, s15" % (69 + 2 * u))
        k("s_mul_i32 s15, s%d, %d" % (68 + 2 * u, 32 * 6144))
        k("s_lshl_b32 s16, s%d, 7" % (69 + 2 * u))
        k("s_add_u32 s15, s15, s16")
        if u:
            k("s_cmp_ge_u32 s3, 2")
            k("s_cselect_b32 s72, 0x7f000000, 0")
            k("s_or_b32 s15, s15, s72")
        for q in range(4):
            k("s_add_u32 m0, s19, %d" % (u * 4096 + q * 1024))
            k("s_add_u32 s16, s15, %d" % (q * 8 * 6144))
            k("buffer_load_dwordx4 v101, s[40:43], s16 offen%s lds" % NT["k1"])
    for r in (10, 11, 12, 13):
        k("v_mov_b32 v%d, 0" % r)
    k.stamp(1)
    for n in range(4):
        k("s_waitcnt vmcnt(%d)" % (13 - n))
        for d in range(4):
            o = 32 + 8 * n + 2 * d
            unpack_bf16(k, o, o + 1, 16 + 4 * n + d)
            k("v_pk_add_f32 v[10:11], v[10:11], v[%d:%d]" % (o, o + 1))
            k("v_pk_fma_f32 v[12:13], v[%d:%d], v[%d:%d], v[12:13]" % (o, o + 1, o, o + 1))
    k("v_add_f32 v10, v10, v11")
    k("v_add_f32 v11, v12, v13")
    for m in ("quad_perm:[1,0,3,2]", "quad_perm:[2,3,0,1]", "row_half_mirror"):
        for r in (10, 11):
            k("v_add_f32_dpp v%d, v%d, v%d %s row_mask:0xf bank_mask:0xf" % (r, r, r, m))
    k("v_lshlrev_b32 v7, 5, v1")
    k("v_lshl_add_u32 v8, v5, 3, v7")
    k("ds_write_b64 v8, v[10:11] offset:8192")
    k("s_waitcnt lgkmcnt(0)")
    code_prefetch(k, nxt, 0, 104, 74)
    if tlb:
        NT_ = k.uid("notouch")
        k("s_cmp_lg_u32 s3, 2")
        k("s_cbranch_scc1 " + NT_)
        k("s_load_dwordx2 s[60:61], s[0:1], %d" % KA["wo"])
        k("s_load_dwordx8 s[64:71], s[0:1], %d" % KA["w_in"])
        k("s_load_dwordx2 s[62:63], s[0:1], %d" % KA["out"])
        k("v_and_b32 v104, 63, v0")
        k("v_lshlrev_b32 v104, %d, v104" % tlb)
        srd_in(k, 40, 6, 0x4E00000)
        for n in range(0x4E00000 >> (tlb + 6)):
            k("s_mov_b32 s14, %d" % (n << (tlb + 6)))
            k("buffer_load_dword v107, v104, s[40:43], s14 offen")
        k("s_mov_b32 s14, %d" % ((0x4E00000 >> (tlb + 6)) << (tlb + 6)))
        k("buffer_load_dword v107, v104, s[40:43], s14 offen")
        k("s_waitcnt lgkmcnt(0)")
        for (p, nm) in ((60, "wo"), (64, "w_in"), (66, "w_sp"), (70, "w_out"), (62, "out"), (10, "w_mod")):
            srd_in(k, 40, p, SZ[nm])
            k("buffer_load_dword v107, v104, s[40:43], 0 offen")
        k.label(NT_)
    k.stamp(2)
    GO = k.uid("go")
    k("s_cmp_lg_u32 s3, 3")
    k("s_cbranch_scc1 " + GO)
    k("v_mov_b32 v2, 0")
    wait_flag(False)
    k.label(GO)
    k("s_waitcnt lgkmcnt(0)")
    k("s_barrier")
    k.stamp(3)
    T0 = 68
    for n, (idx, p) in enumerate([(1, p) for p in range(4)] + [(0, p) for p in range(4)]):
        k("s_mov_b32 s%d, %d" % (60 + n, (p * 6144 + idx * 1024) * 4))

    def par_loads():
        for n in range(8):
            k("buffer_load_dwordx4 %s, v4, s[44:47], s%d offen sc1" % (v(T0 + 4 * n, 4), 60 + n))
    par_loads()
    k("ds_read_b128 v[8:11], v7 offset:8192")
    k("ds_read_b128 v[12:15], v7 offset:8208")
    k("s_waitcnt lgkmcnt(0)")
    k("v_pk_add_f32 v[8:9], v[8:9], v[10:11]")
    k("v_pk_add_f32 v[12:13], v[12:13], v[14:15]")
    k("v_pk_add_f32 v[8:9], v[8:9], v[12:13]")
    stats_to_affine(k, 8, 1024)
    for o in range(32, 64, 2):
        k("v_pk_fma_f32 v[%d:%d], v[%d:%d], v[8:9], v[8:9] %s" % (o, o + 1, o, o + 1, BCAST))
    srd_ws(k, 40, 6, "WQF")
    k("v_bfe_u32 v2, v100, 2, 2")
    k("v_and_b32 v3, 3, v100")
    k("v_lshlrev_b32 v101, 3, v3")
    k("v_lshl_add_u32 v101, v2, 7, v101")
    k("v_lshrrev_b32 v2, 4, v100")
    k("v_lshl_add_u32 v101, v2, 10, v101")
    k("v_add_u32 v101, s19, v101")
    k("v_lshlrev_b32 v100, 4, v100")
    for u in range(2):
        k("s_and_b32 s15, s%d, 15" % (69 + 2 * u))
        k("s_mul_i32 s15, s15, %d" % (2 * 196608))
        k("s_mul_i32 s16, s%d, 6144" % (68 + 2 * u))
        k("s_add_u32 s15, s15, s16")
        k("s_lshr_b32 s16, s%d, 4" % (69 + 2 * u))
        k("s_lshl_b32 s16, s16, 11")
        k("s_add_u32 s15, s15, s16")
        if u:
            k("s_or_b32 s15, s15, s72")
        k("s_add_u32 s16, s15, 196608")
        if u == 0:
            k("s_waitcnt vmcnt(8)")
        for b in range(4):
            for rd in range(2):
                k("ds_read_b64_tr_b16 %s, v101 offset:%d" %
                  (v(108 + 16 * u + 4 * b + 2 * rd, 2), u * 4096 + rd * 512 + b * 32))
        for b in range(4):
            k("s_waitcnt lgkmcnt(%d)" % (6 - 2 * b))
            k("buffer_store_dwordx4 %s, v100, s[40:43], s%d offen offset:%d sc1" % (v(108 + 16 * u + 4 * b, 4), 15 + (b >> 1), (b & 1) * 1024))
    k("v_lshrrev_b32 v2, 1, v0")
    k("v_lshlrev_b32 v2, 6, v2")
    k("v_and_b32 v3, 1, v0")
    k("v_lshl_add_u32 v2, v3, 4, v2")
    RE, OK = k.uid("retry"), k.uid("ok")
    k("s_mov_b32 s16, 0")
    k("s_waitcnt vmcnt(8)")
    k.label(RE)
    k("v_max_u32 v3, v%d, v%d" % (T0, T0 + 1))
    for e in range(2, 32, 2):
        k("v_max3_u32 v3, v3, v%d, v%d" % (T0 + e, T0 + e + 1))
    k("v_cmp_eq_u32 vcc, -1, v3")
    k("s_cbranch_vccz " + OK)
    k("s_sleep 4")
    par_loads()
    k("s_add_u32 s16, s16, 1")
    k("s_cmp_lt_u32 s16, 0x100000")
    k("s_waitcnt vmcnt(0)")
    k("s_cbranch_scc1 " + RE)
    k.label(OK)
    k.stamp(6)
    for b in (T0, T0 + 16):
        for (x, y) in ((0, 4), (8, 12), (0, 8)):
            for e in (0, 2):
                k("v_pk_add_f32 %s, %s, %s" % (v(b + x + e, 2), v(b + x + e, 2), v(b + y + e, 2)))
        for e in (0, 2):
            k("v_cvt_pk_bf16_f32 v3, v%d, v%d" % (b + e, b + e + 1))
            unpack_bf16(k, b + e, b + e + 1, 3)
    for e in range(4):
        k("v_add_f32 v%d, 1.0, v%d" % (T0 + e, T0 + e))
    for e in (0, 2):
        k("v_cvt_pk_bf16_f32 v3, v%d, v%d" % (T0 + e, T0 + e + 1))
        unpack_bf16(k, T0 + e, T0 + e + 1, 3)
    k("ds_write_b128 v2, %s" % v(T0, 4))
    k("ds_write_b128 v2, %s offset:32" % v(T0 + 16, 4))
    k("s_waitcnt lgkmcnt(0)")
    k("s_barrier")
    for n in range(2):
        for q in range(4):
            k("ds_read_b128 %s, v65 offset:%d" % (v(T0 + 16 * n + 4 * q, 4), n * 512 + q * 16))
    for n in range(4):
        G = T0 + 16 * (n & 1)
        k("s_waitcnt lgkmcnt(%d)" % (4 if n < 3 else 0))
        for d in range(4):
            o = 32 + 8 * n + 2 * d
            k("v_pk_fma_f32 v[%d:%d], v[%d:%d], %s, %s" % (o, o + 1, o, o + 1, v(G + 2 * d, 2), v(G + 8 + 2 * d, 2)))
        if n < 2:
            for q in range(4):
                k("ds_read_b128 %s, v65 offset:%d" % (v(G + 4 * q, 4), (n + 2) * 512 + q * 16))
        for d in range(4):
            o = 32 + 8 * n + 2 * d
            k("v_cvt_pk_bf16_f32 v%d, v%d, v%d" % (16 + 4 * n + d, o, o + 1))
        k("buffer_store_dwordx4 v[%d:%d], v64, s[24:27], s%d offen" % (16 + 4 * n, 19 + 4 * n, 36 + n))
    k.stamp(4)
    k.stamp_dump(5)
    k.label(END)
    k("s_endpgm")
    txt, n = k.finish(vgprs=140, sgprs=80)
    return txt, "; @launch kernel=%s grid=(385,1,1) block=(256,1,1) lds=%d" % (name, 12288 + 32768)
```

```python
from sync import *
from gemms import pack16, swap8, MIXLO, MIXHI
from attn import emit_attn, ATT_LDS, SY, QF
from m2 import dep, emit_m2, M2_LDS, swap16

NS1 = 3
PAR = NS1 * 45056


def gen_m1(name="mm_kernel", force_slow=False, **opt):
    k = Kern(name)
    END, REST, PROD, COMP, HELP = [k.uid(x) for x in ("end", "rest", "prod", "comp", "help")]
    FR, ACC = 24, 80
    k("s_cmp_ge_u32 s2, 256")
    k("s_cbranch_scc1 " + END)
    k.kidx = 1
    k.stamp_init()
    k("s_load_dwordx2 s[6:7], s[0:1], %d" % KA["ws"])
    k("v_lshrrev_b32 v2, 6, v0")
    k("v_and_b32 v%d, 63, v0" % V_LANE)
    k("v_readfirstlane_b32 s19, v2")
    map_blocks(k, 2, 8, 1)
    k("s_mov_b32 s%d, s19" % S_WAVE)
    k("s_cmp_lt_u32 s19, 4")
    k("s_cbranch_scc1 " + REST)

    def ex_init(k):
        k("v_lshlrev_b32 v2, 4, v0")
        k("v_cmp_gt_u32 vcc, 2432, v2")
        k("v_mov_b32 v3, 0x7f000000")
        k("v_cndmask_b32 v2, v3, v2, vcc")
        for r in (12, 13, 14, 15):
            k("v_mov_b32 v%d, -1.0" % r)
        k("s_mul_i32 s50, s2, 2432")
        srd_ws(k, SRD_E0, 6, "EX")
        k("buffer_store_dwordx4 v[12:15], v2, %s, s50 offen sc1" % s(SRD_E0, 4))

    def epilogue(k):
        qs = 32 ** -0.5 * LOG2E
        k("v_lshlrev_b32 v2, 4, v%d" % V_LANE)
        k("v_and_b32 v5, 0x330, v2")
        k("v_and_b32 v6, 0x40, v2")
        k("v_lshl_or_b32 v5, v6, 1, v5")
        k("v_and_b32 v6, 0x80, v2")
        k("v_lshrrev_b32 v6, 1, v6")
        k("v_or_b32 v5, v5, v6")
        k("s_lshl_b32 s56, s%d, 17" % S_BN)
        k("s_lshl_b32 s57, s%d, 14" % S_BM)
        k("s_add_u32 s56, s56, s57")
        k("s_lshl_b32 s59, s%d, 12" % S_WAVE)
        k("s_add_u32 s56, s56, s59")
        k("s_add_u32 s57, s56, 0x400000")
        k("s_add_u32 s58, s56, 0x800000")
        k("s_lshr_b32 s62, s%d, 1" % S_WAVE)
        k("s_lshl_b32 s62, s62, 13")
        k("s_add_u32 s62, s62, s59")
        k("v_add_u32 v3, s62, v2")
        k("v_add_u32 v6, s62, v5")
        k("s_mov_b32 s60, %s" % fhex(qs))
        k("s_mov_b32 s61, %s" % fhex(qs))
        n = 0
        for j in (1, 2, 0):
            for i in range(2):
                for mf in range(2):
                    P = FR + 4 * n if j else QF + 8 * i + 4 * mf
                    n += 1
                    if j == 2:
                        A0, A1 = [ACC + 4 * (ct * 4 + 2 * i + mf) for ct in (4, 5)]
                    else:
                        A0 = ACC + 4 * ((2 * j + mf) * 4 + 2 * i)
                        A1 = A0 + 4
                    if j == 0:
                        for e in range(0, 8, 2):
                            k("v_pk_mul_f32 %s, %s, s[60:61]" % (v(A0 + e, 2), v(A0 + e, 2)))
                    for d, A in enumerate((A0, A0 + 2, A1, A1 + 2)):
                        k("v_cvt_pk_bf16_f32 v%d, v%d, v%d" % (P + d, A, A + 1))
                    swap16(k, P)
                    o = i * 2048 + mf * 1024
                    if j:
                        k("buffer_store_dwordx4 %s, v%d, %s, s%d offen offset:%d sc1" % (v(P, 4), 5 if j == 1 else 2, s(SRD_E1, 4), 56 + j, o))
                        k("ds_write_b128 v%d, %s offset:%d" % (6 if j == 1 else 3, v(P, 4), (j - 1) * 8192 + o))

    def srds_p(k):
        srd_ws_sub(k, SRD_X, 6, "H", 81, 16 * 32768)
        srd_ws_sub(k, SRD_W, 6, "WQF", 80, 16 * 12288)

    def dma_setup(k):
        k("s_mul_i32 s50, s%d, 3072" % S_WAVE)
        k("v_lshl_add_u32 v8, v%d, 4, s50" % V_LANE)
        k("s_mul_i32 s80, s%d, %d" % (S_BN, 16 * 12288))
        k("s_lshl_b32 s81, s%d, 19" % S_BM)
        k("s_mov_b32 s82, 0")
        k("s_lshl_b32 s50, s%d, 13" % S_WAVE)
        k("v_lshl_add_u32 v5, v%d, 4, s50" % V_LANE)
        k("v_add_u32 v6, 4096, v5")
        return [Dma(SRD_X, [5, 5, 5, 5, 6, 6, 6, 6], 32768, 0, 32768, 82),
                Dma(SRD_W, [8, 8, 8], 12288, NS1 * 32768, 12288, 82)]

    cfg = dict(T=16, MT=4, NT=6, RW=6, D=opt.get("D", 4), pause=opt.get("pause", 1), NS=NS1, srds_p=srds_p,
               x_ring=(0, 32768, NS1), w_ring=(NS1 * 32768, 12288, NS1), w_mode="fm16", swap_tile=lambda ct: ct >= 4,
               FRAG=FR, ACC=ACC, dma_setup=dma_setup, epilogue=epilogue, cons_loads=ex_init)

    k("s_sub_u32 s%d, s19, 4" % S_WAVE)
    prod_phase(k, cfg, 0, first=True)
    k("s_branch " + HELP)

    k.label(REST)
    k("s_waitcnt lgkmcnt(0)")
    srd_ws(k, SRD_E1, 6, "QKV")
    cons_phase16(k, cfg, 0)
    pr = dict(srd=96, off=94, seen=95, tmp=101, acc=100, cnt=4, va=96, vv=97, vl=98)
    C2, P2 = "L_mm_second", k.uid("p2")
    hooks = {}

    def after_comp(k):
        signal(k, FL0, S_BM, S_BN, lg=5)
        k.stamp_next(2)
        k("s_branch " + C2)

    def after_help(k, lds_wait):
        hooks["w"] = lds_wait
        k.stamp_next(2)
        k("s_branch " + P2)
    emit_attn(k, COMP, HELP, Poll(FL1, 21, 2048, 1024, regs=pr, s_rot=18, lg=5, barrier=False, lds=SY + 4),
              force_slow=force_slow, after_comp=after_comp, after_help=after_help)

    def gate(k):
        W, G, F = k.uid("hw"), k.uid("hg"), k.uid("hf")
        k("s_mov_b32 s63, 13")
        hooks["w"](16, 63, True)
        k("s_cmp_lg_u32 s%d, 0" % S_WAVE)
        k("s_cbranch_scc1 " + F)
        srd_ws(k, SRD_E1, 6, "HF")
        k("v_lshlrev_b32 v24, 4, v%d" % V_LANE)
        k("s_mov_b32 s64, 0")
        k.label(W)
        k("buffer_load_dwordx4 v[28:31], v24, %s, 0 offen sc1" % s(SRD_E1, 4))
        k("s_add_u32 s64, s64, 1")
        k("s_waitcnt vmcnt(0)")
        k("v_min_f32 v28, v28, v29")
        k("v_min3_f32 v28, v28, v30, v31")
        k("v_cmp_gt_f32 vcc, 0, v28")
        k("s_cbranch_vccz " + G)
        k("s_sleep 8")
        k("s_cmp_lt_u32 s64, 0x100000")
        k("s_cbranch_scc1 " + W)
        k.label(G)
        k("v_mov_b32 v28, 100")
        k("ds_write_b32 v7, v28 offset:32")
        k.label(F)
        k("s_mov_b32 s63, 0")
        hooks["w"](32, 63, False, 2)
    k.label(C2)
    emit_m2(k, "c")
    k.label(P2)
    emit_m2(k, "p", gate)
    k.label(END)
    k("s_endpgm")
    txt, n = k.finish(vgprs=228, sgprs=102)
    return txt, "; @launch kernel=%s grid=(256,1,1) block=(512,1,1) lds=%d" % (name, M2_LDS)
```

```python
from gemm import *
from gemms import (w_voff, pack16, swap8, ex_addr, both_halves, ex_publish, stats_to_affine, BCAST)
from sync import *
import math

S_WM, S_WN = 48, 49
P_X, P_WS, P_WSP, P_BSP, P_WOUT, P_OUT = 4, 6, 8, 10, 12, 16
MV = 162688
X1R, FR, Z1R, BR = 16, 32, 80, 192


def ex_collect(k, R, G, vr, srd, soff, n, nq, nb=1, bstride=0):
    L, D = k.uid("poll"), k.uid("got")
    k("s_mov_b32 s64, 0")
    offs = {}
    nxt = 65
    for b in range(nb):
        for hi in range((nq + 7) // 8):
            c = b * bstride + hi * 4096
            if c == 0:
                offs[(b, hi)] = soff
            else:
                k("s_add_u32 s%d, s%d, %d" % (nxt, soff, c))
                offs[(b, hi)] = nxt
                nxt += 1
    k.label(L)
    for b in range(nb):
        for q in range(nq):
            k("buffer_load_dwordx2 %s, v%d, %s, s%d offen offset:%d sc1" %
              (v(R[b] + 2 * q, 2), vr, s(srd, 4), offs[(b, q // 8)], (q & 7) * 512))
    k("s_waitcnt vmcnt(0)")
    k("v_mov_b32 v2, 0")
    for b in range(nb):
        for q in range(0, nq, 2):
            k("v_min3_f32 v2, v2, v%d, v%d" % (R[b] + 2 * q + 1, R[b] + 2 * q + 3))
    k("v_cmp_gt_f32 vcc, 0, v2")
    k("s_cbranch_vccz " + D)
    k("s_sleep 2")
    k("s_add_u32 s64, s64, 1")
    k("s_cmp_lt_u32 s64, 0x100000")
    k("s_cbranch_scc1 " + L)
    k.label(D)
    for b in range(nb):
        Rb = R[b]
        m = nq
        while m > 1:
            h = (m + 1) // 2
            for e in range(m - h):
                k("v_pk_add_f32 %s, %s, %s" % (v(Rb + 2 * e, 2), v(Rb + 2 * e, 2), v(Rb + 2 * (e + h), 2)))
            m = h
        both_halves(k, Rb, Rb + 2)
        both_halves(k, Rb + 1, Rb + 3)
        stats_to_affine(k, Rb, n)
        k("v_mov_b32 v%d, v%d" % (G + 2 * b, Rb))
        k("v_mov_b32 v%d, v%d" % (G + 2 * b + 1, Rb + 1))


def dep(d):
    d.dep = True
    return d


def lin_voff(k):
    k("s_mov_b32 s82, 0")
    k("s_lshl_b32 s50, s%d, 12" % S_WAVE)
    k("v_lshl_add_u32 v5, v%d, 4, s50" % V_LANE)


def stats16(k, A, lo, hi):
    for e in range(lo, hi, 2):
        S = 4 + 4 * ((e >> 2) & 1)
        k("v_pk_add_f32 %s, %s, %s" % (v(S, 2), v(S, 2), v(A + e, 2)))
        k("v_pk_fma_f32 %s, %s, %s, %s" % (v(S + 2, 2), v(A + e, 2), v(A + e, 2), v(S + 2, 2)))


def publish16(k, soff):
    for r in (4, 6, 8, 10):
        k("v_add_f32 v%d, v%d, v%d" % (r, r, r + 1))
    k("v_permlane16_swap_b32 v4, v8")
    k("v_permlane16_swap_b32 v6, v10")
    k("v_mov_b32 v5, v8")
    k("v_mov_b32 v7, v10")
    ex_publish(k, 4, 14, SRD_E3, soff)


def expand16(k):
    k("v_mov_b32 v6, v4")
    k("v_mov_b32 v7, v5")
    k("v_permlane16_swap_b32 v4, v6")
    k("v_permlane16_swap_b32 v5, v7")


def cfg25(which, PD=3, NS=5, gate=None):
    T = 16 if which == 2 else 28
    ACC, GA, T2, XR = 80, 112, 144, 196

    def srds_c(k):
        if which == 2:
            srd_in(k, SRD_E1, P_X, SZ["x"])
            srd_ws(k, SRD_E2, P_WS, "H2")
            srd_ws(k, SRD_E3, P_WS, "EX2")
        else:
            srd_in(k, SRD_E2, P_OUT, SZ["out"])

    def srds_p(k):
        srd_ws_sub(k, SRD_X, P_WS, "O" if which == 2 else "U", 81, T * 16384)
        srd_ws_sub(k, SRD_W, P_WS, "WOF" if which == 2 else "WOUTF", 80, T * 8192)
        if which == 2:
            srd_ws(k, SRD_E0, P_WS, "MODP")

    def dma_setup(k):
        k("s_lshl_b32 s50, s%d, 11" % S_WAVE)
        k("v_lshl_add_u32 v8, v%d, 4, s50" % V_LANE)
        k("s_mul_i32 s80, s%d, %d" % (S_BN, T * 8192))
        k("s_mul_i32 s81, s%d, %d" % (S_BM, T * 16384))
        lin_voff(k)
        if which == 2:
            k("s_lshl_b32 s56, s%d, 8" % S_BN)
            k("s_add_u32 s56, s56, s50")
            k("s_add_u32 s56, s56, %d" % (2 * 4096))
            for p in range(1, 4):
                k("s_add_u32 s%d, s56, %d" % (59 + p, p * 6144 * 4))
            k("v_lshlrev_b32 v12, 2, v%d" % V_LANE)
            k("s_cmp_eq_u32 s%d, 2" % S_WAVE)
            k("s_cselect_b32 s58, 1.0, 0")
            k("s_lshl_b32 s59, s%d, 8" % S_WAVE)
            k("s_add_u32 s59, s59, %d" % MV)
            k("v_add_u32 v13, s59, v12")
        x = Dma(SRD_X, [5, 5, 5, 5], 16384, 0, 16384, 82)
        w = Dma(SRD_W, [8, 8], 8192, NS * 16384, 8192, 82)
        w.sc1 = True
        return [dep(x), w]

    def prod_pre_load(k):
        gate(k)
        k("buffer_load_dword v14, v12, %s, s56 offen sc1" % s(SRD_E0, 4))
        for p in range(1, 4):
            k("buffer_load_dword v%d, v12, %s, s%d offen sc1" % (20 + p, s(SRD_E0, 4), 59 + p))
        k("s_mov_b32 s65, s58")

    def prod_pre_fin(k):
        k("v_add_f32 v14, v14, v21")
        k("v_add_f32 v22, v22, v23")
        k("v_add_f32 v14, v14, v22")
        k("v_cvt_pk_bf16_f32 v14, v14, v14")
        k("v_lshlrev_b32 v14, 16, v14")
        k("v_add_f32 v14, s65, v14")
        k("v_cvt_pk_bf16_f32 v14, v14, v14")
        k("v_lshlrev_b32 v14, 16, v14")
        k("ds_write_b32 v13, v14")
        k("s_waitcnt lgkmcnt(0)")

    def cons_pre(k):
        k("v_lshrrev_b32 v3, 5, v%d" % V_LANE)
        k("v_and_b32 v13, 48, v%d" % V_LANE)
        k("v_add_u32 v13, %d, v13" % MV)
        if which == 2:
            k("v_and_b32 v2, 31, v%d" % V_LANE)
            k("v_lshlrev_b32 v11, 11, v2")
            k("v_lshl_add_u32 v11, v3, 4, v11")
            k("s_lshl_b32 s60, s%d, 18" % S_BM)
            k("s_lshl_b32 s58, s%d, 16" % S_WAVE)
            k("s_add_u32 s60, s60, s58")
            k("s_lshl_b32 s58, s%d, 7" % S_BN)
            k("s_add_u32 s60, s60, s58")
            k("s_lshl_b32 s59, s%d, 4" % S_BM)
            k("s_add_u32 s59, s59, s%d" % S_BN)
            k("s_lshl_b32 s59, s59, 14")
            k("s_lshl_b32 s58, s%d, 11" % S_WAVE)
            k("s_add_u32 s57, s59, s58")
            k("s_add_u32 s55, s57, 8192")
            k("v_bfe_u32 v2, v%d, 4, 1" % V_LANE)
            k("v_lshlrev_b32 v12, 10, v2")
            k("v_lshl_add_u32 v12, v3, 8, v12")
            k("v_and_b32 v2, 15, v%d" % V_LANE)
            k("v_lshl_add_u32 v12, v2, 4, v12")
            ex_addr(k, 14)
            k("s_lshl_b32 s56, s%d, 2" % S_BM)
            k("s_add_u32 s56, s56, s%d" % S_WAVE)
            k("s_lshl_b32 s56, s56, 12")
            k("s_lshl_b32 s58, s%d, 8" % S_BN)
            k("s_add_u32 s58, s58, s56")
        else:
            k("v_and_b32 v2, 31, v%d" % V_LANE)
            k("v_lshlrev_b32 v12, 11, v2")
            k("v_lshl_add_u32 v12, v3, 4, v12")
            k("s_lshl_b32 s58, s%d, 18" % S_BM)
            k("s_lshl_b32 s56, s%d, 16" % S_WAVE)
            k("s_add_u32 s58, s58, s56")
            k("s_lshl_b32 s56, s%d, 7" % S_BN)
            k("s_add_u32 s58, s58, s56")

    def cons_loads(k):
        for q in range(4):
            k("buffer_load_dwordx4 %s, v11, %s, s60 offen offset:%d" % (v(XR + 4 * q, 4), s(SRD_E1, 4), q * 32))
        srd_in(k, SRD_E0, P_BSP, SZ["b_sp"])
        k("v_and_b32 v2, 15, v%d" % V_LANE)
        k("v_lshlrev_b32 v2, 1, v2")
        k("s_lshr_b32 s61, s56, 6")
        for i in range(2):
            k("buffer_load_ushort v%d, v2, %s, s61 offen offset:%d" % (BR + i, s(SRD_E0, 4), i * 32))

    def mv_read(k, R, vec):
        for ct in range(4):
            k("ds_read_b128 %s, v13 offset:%d" % (v(R + 4 * ct, 4), vec * 256 + ct * 64))

    def col(R, e):
        return v(R + 4 * (e >> 3) + (e & 2), 2)

    def prework(k):
        mv_read(k, GA, 0 if which == 2 else 3)
        src = X1R
        if which == 2:
            mv_read(k, GA + 16, 2)
            mv_read(k, XR + 16, 1)
            src = XR
            k("s_waitcnt vmcnt(0)")
            for ct in range(4):
                swap16(k, XR + 4 * ct)
            for i in range(2):
                k("v_lshlrev_b32 v%d, 16, v%d" % (BR + i, BR + i))
        for d in range(16):
            unpack_bf16(k, T2 + 2 * d, T2 + 2 * d + 1, src + d)

    def epilogue(k):
        if which == 2:
            for r in range(4, 12):
                k("v_mov_b32 v%d, 0" % r)
        for e in range(0, 32, 2):
            k("v_pk_fma_f32 %s, %s, %s, %s" % (v(ACC + e, 2), v(ACC + e, 2), col(GA, e), v(T2 + e, 2)))
        if which == 5:
            for ct in range(4):
                P = FR + 4 * ct
                pack8(k, P, ACC + 8 * ct)
                swap16(k, P)
                k("buffer_store_dwordx4 %s, v12, %s, s58 offen offset:%d" % (v(P, 4), s(SRD_E2, 4), ct * 32))
            return
        stats16(k, ACC, 0, 32)
        publish16(k, 58)
        for ct in range(4):
            pack8(k, X1R + 4 * ct, ACC + 8 * ct)
        k.stamp(24)
        ex_collect(k, [FR + 16], 4, 14, SRD_E3, 56, 1024, 8)
        k.stamp(25)
        expand16(k)
        for ct in range(4):
            for e in range(8 * ct, 8 * ct + 8, 2):
                G = v(4 + 2 * ((e >> 2) & 1), 2)
                k("v_pk_fma_f32 %s, %s, %s, %s %s" % (v(ACC + e, 2), v(ACC + e, 2), G, G, BCAST))
            for e in range(8 * ct, 8 * ct + 8, 2):
                k("v_pk_fma_f32 %s, %s, %s, %s" % (v(ACC + e, 2), v(ACC + e, 2), col(GA + 16, e), col(XR + 16, e)))
            P = FR + 4 * ct
            pack8(k, P, ACC + 8 * ct)
            swap16(k, P)
            k("buffer_store_dwordx4 %s, v12, %s, s%d offen offset:%d sc1" % (v(P, 4), s(SRD_E2, 4), 55 if ct >> 1 else 57, (ct & 1) * 512))
        k.stamp(26)
        signal(k, FL2, S_BM, S_BN, 5)

    c = dict(T=T, NT=4, NS=NS, srds_c=srds_c, srds_p=srds_p, m16=True, RW=8, D=4, pause=1,
             x_ring=(0, 16384, NS), w_ring=(NS * 16384, 8192, NS), w_mode="fm16",
             FRAG=FR, ACC=ACC, dma_setup=dma_setup, cons_pre=cons_pre, epilogue=epilogue)
    if which == 2:
        c.update(cons_loads=cons_loads, prod_pre_load=prod_pre_load, prod_pre_fin=prod_pre_fin, mid=(8, prework),
                 poll=Poll(FL0, 22, 2048, 1024, lg=5, lds=MV + 1024))
    else:
        c.update(cons_pre=lambda k: (cons_pre(k), prework(k), k("s_waitcnt lgkmcnt(0)")), poll=Poll(FL4, S_BM, 4 * 147, 3 * 147, lds=MV + 1024))
    return c


C0 = -2.0 * math.sqrt(2.0 / math.pi) * LOG2E
C1 = C0 * 0.044715


def gelu(k, A, n, TT):
    for e in range(0, n, 2):
        k("v_pk_mul_f32 %s, %s, %s" % (v(TT + e, 2), v(A + e, 2), v(A + e, 2)))
    for e in range(0, n, 2):
        k("v_pk_fma_f32 %s, %s, s[60:61], v[12:13]" % (v(TT + e, 2), v(TT + e, 2)))
    for e in range(0, n, 2):
        k("v_pk_mul_f32 %s, %s, %s" % (v(TT + e, 2), v(TT + e, 2), v(A + e, 2)))
    for e in range(n):
        k("v_exp_f32 v%d, v%d" % (TT + e, TT + e))
    for e in range(0, n, 2):
        k("v_pk_add_f32 %s, %s, 1.0 op_sel_hi:[1,0]" % (v(TT + e, 2), v(TT + e, 2)))
    for e in range(n):
        k("v_rcp_f32 v%d, v%d" % (TT + e, TT + e))
    for e in range(0, n, 2):
        k("v_pk_mul_f32 %s, %s, %s" % (v(A + e, 2), v(A + e, 2), v(TT + e, 2)))


def pack8(k, P, A):
    for d in range(4):
        k("v_cvt_pk_bf16_f32 v%d, v%d, v%d" % (P + d, A + 2 * d, A + 2 * d + 1))


def swap16(k, P):
    k("v_permlane16_swap_b32 v%d, v%d" % (P, P + 2))
    k("v_permlane16_swap_b32 v%d, v%d" % (P + 1, P + 3))


def cfg3():
    ACC = 80

    def srds_c(k):
        srd_ws(k, SRD_E2, P_WS, "Z2")
        srd_ws(k, SRD_E3, P_WS, "EX3")

    def srds_p(k):
        srd_ws_sub(k, SRD_X, P_WS, "H2", 81, 16 * 16384)
        srd_ws_sub(k, SRD_W, P_WS, "WINF", 80, 16 * 28672)

    def dma_setup(k):
        k("s_mul_i32 s50, s%d, 7168" % S_WAVE)
        k("v_lshl_add_u32 v8, v%d, 4, s50" % V_LANE)
        k("v_add_u32 v9, 4096, v8")
        k("s_mul_i32 s80, s%d, %d" % (S_BN, 16 * 28672))
        k("s_lshl_b32 s81, s%d, 18" % S_BM)
        lin_voff(k)
        w = Dma(SRD_W, [8, 8, 8, 8, 9, 9, 9], 28672, 69632, 28672, 82)
        w.sc1 = True
        w.start = 1
        return [dep(Dma(SRD_X, [5, 5, 5, 5], 16384, 0, 16384, 82)), w]

    STG3 = 49152

    def wo_ids(k):
        k("s_lshl_b32 s48, s2, 2")
        k("s_add_u32 s48, s48, s%d" % S_WAVE)
        k("s_lshr_b32 s49, s48, 4")
        k("s_and_b32 s50, s48, 15")
        k("s_cmp_ge_u32 s48, 896")
        k("s_cselect_b32 s51, 0x7f000000, 0")
        k("s_lshl_b32 s52, s%d, 12" % S_WAVE)
        k("s_add_u32 s52, s52, %d" % STG3)

    def wo_load(k):
        wo_ids(k)
        srd_in(k, SRD_E1, P_WOUT, SZ["w_out"])
        k("v_lshrrev_b32 v20, 3, v%d" % V_LANE)
        k("v_lshlrev_b32 v20, 11, v20")
        k("v_and_b32 v21, 7, v%d" % V_LANE)
        k("v_lshl_add_u32 v20, v21, 4, v20")
        k("s_lshl_b32 s53, s49, 16")
        k("s_lshl_b32 s54, s50, 7")
        k("s_add_u32 s53, s53, s54")
        k("s_or_b32 s53, s53, s51")
        for q in range(4):
            k("s_add_u32 m0, s52, %d" % (q * 1024))
            k("s_add_u32 s54, s53, %d" % (q * 8 * 2048))
            k("buffer_load_dwordx4 v20, %s, s54 offen lds" % s(SRD_E1, 4))
        k("s_mul_i32 s55, s%d, 3" % S_WAVE)
        k("s_add_u32 s55, s55, 3")
        k("s_add_u32 s55, s55, s83")

    def wo_store(k):
        wo_ids(k)
        k("v_bfe_u32 v20, v%d, 2, 2" % V_LANE)
        k("v_and_b32 v21, 3, v%d" % V_LANE)
        k("v_lshlrev_b32 v21, 3, v21")
        k("v_lshl_add_u32 v21, v20, 7, v21")
        k("v_lshrrev_b32 v20, 4, v%d" % V_LANE)
        k("v_lshl_add_u32 v21, v20, 10, v21")
        k("v_add_u32 v21, s52, v21")
        for b in range(4):
            for rd in range(2):
                k("ds_read_b64_tr_b16 %s, v21 offset:%d" % (v(24 + 4 * b + 2 * rd, 2), rd * 512 + b * 32))
        srd_ws(k, SRD_E1, P_WS, "WOUTF")
        k("s_mul_i32 s53, s50, %d" % (28 * 8192))
        k("s_lshl_b32 s54, s49, 12")
        k("s_add_u32 s53, s53, s54")
        k("s_or_b32 s53, s53, s51")
        k("v_lshlrev_b32 v20, 4, v%d" % V_LANE)
        k("s_waitcnt lgkmcnt(0)")
        for b in range(4):
            k("buffer_store_dwordx4 %s, v20, %s, s53 offen offset:%d sc1" % (v(24 + 4 * b, 4), s(SRD_E1, 4), b * 1024))

    def sp_touch(k):
        srd_in(k, SRD_E2, P_WSP, SZ["w_sp"])
        k("v_lshlrev_b32 v22, 7, v%d" % V_LANE)
        k("s_lshl_b32 s48, s2, 2")
        k("s_add_u32 s48, s48, s%d" % S_WAVE)
        k("s_lshl_b32 s48, s48, 13")
        k("buffer_load_dword v23, v22, %s, s48 offen" % s(SRD_E2, 4))

    def epilogue(k):
        Z2A = ACC + 56
        k("s_mov_b32 s60, %s" % fhex(C1))
        k("s_mov_b32 s61, %s" % fhex(C1))
        k("v_mov_b32 v12, %s" % fhex(C0))
        k("v_mov_b32 v13, %s" % fhex(C0))
        k("s_lshl_b32 s57, s%d, 2" % S_BM)
        k("s_add_u32 s57, s57, s%d" % S_WAVE)
        k("s_lshl_b32 s62, s57, 12")
        k("s_lshl_b32 s63, s%d, 8" % S_BN)
        k("s_add_u32 s63, s63, s62")
        ex_addr(k, 14)
        for r in range(4, 12):
            k("v_mov_b32 v%d, 0" % r)
        for (a, n) in ((0, 24), (24, 32)):
            gelu(k, Z2A + a, n, FR)
            for e in range(a, a + n, 2):
                S = 4 + 4 * ((e >> 2) & 1)
                k("v_pk_add_f32 %s, %s, %s" % (v(S, 2), v(S, 2), v(Z2A + e, 2)))
                k("v_pk_fma_f32 %s, %s, %s, %s" % (v(S + 2, 2), v(Z2A + e, 2), v(Z2A + e, 2), v(S + 2, 2)))
        for r in (4, 6, 8, 10):
            k("v_add_f32 v%d, v%d, v%d" % (r, r, r + 1))
        k("v_permlane16_swap_b32 v4, v8")
        k("v_permlane16_swap_b32 v6, v10")
        k("v_mov_b32 v5, v8")
        k("v_mov_b32 v7, v10")
        ex_publish(k, 4, 14, SRD_E3, 63)
        k.stamp(27)

        def z1(a, n):
            gelu(k, ACC + a, n, FR)
        z1(0, 32)
        k.stamp(28)
        k("v_and_b32 v2, 19, v%d" % V_LANE)
        k("v_lshlrev_b32 v15, 5, v2")
        k("v_bfe_u32 v2, v%d, 2, 1" % V_LANE)
        k("v_lshl_add_u32 v15, v2, 8, v15")
        k("v_bfe_u32 v2, v%d, 3, 1" % V_LANE)
        k("v_lshl_add_u32 v15, v2, 7, v15")
        k("v_lshrrev_b32 v2, 5, v%d" % V_LANE)
        k("v_lshl_add_u32 v15, v2, 4, v15")
        k("s_mul_i32 s56, s%d, 7168" % S_WAVE)
        k("s_add_u32 s56, s56, 65536")
        k("v_add_u32 v15, s56, v15")
        k("v_lshlrev_b32 v8, 9, v2")
        k("v_and_b32 v2, 31, v%d" % V_LANE)
        k("v_lshl_add_u32 v8, v2, 3, v8")
        k("v_add_u32 v8, s56, v8")
        k("v_lshlrev_b32 v9, 4, v%d" % V_LANE)
        k("s_lshl_b32 s56, s%d, 6" % S_BN)
        k("s_add_u32 s56, s56, s57")
        k("s_mul_i32 s56, s56, 7168")
        k("s_add_u32 s58, s56, 4096")
        ex_collect(k, [FR], 4, 14, SRD_E3, 62, 1792, 8)
        k("v_mov_b32 v6, v4")
        k("v_mov_b32 v7, v5")
        k("v_permlane16_swap_b32 v4, v6")
        k("v_permlane16_swap_b32 v5, v7")

        def back(ct):
            k("s_waitcnt lgkmcnt(%d)" % (3 if ct < 6 else 0))
            k("buffer_store_dwordx4 %s, v9, %s, s%d offen offset:%d sc1" %
              (v(Z2A + 8 * ct + 4, 4), s(SRD_E2, 4), 56 if ct < 4 else 58, (ct & 3) * 1024))
        for ct in range(7):
            A = Z2A + 8 * ct
            for e in range(0, 8, 2):
                G = v(4 + 2 * (e >> 2), 2)
                k("v_pk_fma_f32 %s, %s, %s, %s %s" % (v(A + e, 2), v(A + e, 2), G, G, BCAST))
            pack8(k, A, A)
            swap16(k, A)
            k("ds_write_b128 v15, %s offset:%d" % (v(A, 4), ct * 1024))
            for rd in range(2):
                k("ds_read_b64_tr_b16 %s, v8 offset:%d" % (v(A + 4 + 2 * rd, 2), ct * 1024 + rd * 256))
            if ct:
                back(ct - 1)
        back(6)
        k.stamp(29)
        signal(k, FL3, S_BN, S_BM, 11)
        k.stamp(12)
        z1(32, 24)

    return dict(T=16, NT=14, NS=3, srds_c=srds_c, srds_p=srds_p, m16=True,
                x_ring=(0, 16384, 3), w_ring=(69632, 28672, 3), w_start=1, w_mode="fm16", D=6, pause=2, wgroup=2,
                prod_mid=[("0", wo_load), ("s55", sp_touch), ("5", wo_store)],
                FRAG=FR, ACC=ACC, dma_setup=dma_setup, epilogue=epilogue, poll=Poll(FL2, S_BM, 1024, 0, lds=MV + 1024))


def cfg4(NS=4):
    WR = NS * 16384
    ACC = 136

    def srds_c(k):
        srd_ws(k, SRD_E2, P_WS, "U")

    def srds_p(k):
        srd_in(k, SRD_X, P_WSP, SZ["w_sp"])
        srd_ws_sub(k, SRD_W, P_WS, "Z2", 81, 32 * 14336)

    def dma_setup(k):
        k("s_mul_i32 s50, s%d, 3584" % S_WAVE)
        k("v_lshl_add_u32 v8, v%d, 4, s50" % V_LANE)
        k("s_lshl_b32 s80, s%d, 19" % S_BM)
        k("s_mul_i32 s81, s%d, %d" % (S_BN, 32 * 14336))
        k("s_mov_b32 s82, 0")
        k("v_lshrrev_b32 v2, 3, v%d" % V_LANE)
        k("s_lshl_b32 s50, s%d, 5" % S_WAVE)
        k("v_add_u32 v2, s50, v2")
        k("v_bfe_u32 v3, v2, 1, 3")
        k("v_and_b32 v4, 7, v%d" % V_LANE)
        k("v_xor_b32 v3, v3, v4")
        k("v_lshlrev_b32 v3, 4, v3")
        k("v_lshl_add_u32 v10, v2, 12, v3")
        k("v_xor_b32 v11, 64, v10")
        k("v_add_u32 v11, %d, v11" % (8 * 4096 - 1024))
        k("v_add_u32 v12, %d, v10" % (16 * 4096 - 2048))
        k("v_add_u32 v13, %d, v11" % (16 * 4096 - 2048))
        w = dep(Dma(SRD_W, [8, 8, 8, 8], 14336, WR, 14336, 82))
        w.half_last = True
        return [Dma(SRD_X, [10, 11, 12, 13], 128, 0, 16384, 80), w]

    def cons_pre(k):
        k("v_bfe_u32 v2, v%d, 4, 1" % V_LANE)
        k("v_lshlrev_b32 v12, 10, v2")
        k("v_lshrrev_b32 v2, 5, v%d" % V_LANE)
        k("v_lshl_add_u32 v12, v2, 8, v12")
        k("v_and_b32 v2, 15, v%d" % V_LANE)
        k("v_lshl_add_u32 v12, v2, 4, v12")
        k("s_mul_i32 s61, s%d, %d" % (S_BM, 28 * 16384))
        k("s_lshl_b32 s62, s%d, 11" % S_WAVE)
        k("s_add_u32 s61, s61, s62")
        k("s_mul_i32 s62, s%d, 7" % S_BN)
        for ct in range(7):
            k("s_add_u32 s63, s62, %d" % ct)
            k("s_lshr_b32 s64, s63, 1")
            k("s_lshl_b32 s64, s64, 13")
            k("s_and_b32 s63, s63, 1")
            k("s_lshl_b32 s63, s63, 9")
            k("s_add_u32 s63, s63, s64")
            k("s_add_u32 s%d, s63, s61" % (66 + ct))

    def epilogue(k):
        for ct in range(7):
            A = ACC + 8 * ct
            P = FR + 4 * ct
            for e in range(0, 8, 2):
                k("v_pk_mul_f32 %s, %s, %s" % (v(A + e, 2), v(A + e, 2), v(Z1R + 8 * ct + e, 2)))
            pack8(k, P, A)
            swap16(k, P)
            k("buffer_store_dwordx4 %s, v12, %s, s%d offen sc1" % (v(P, 4), s(SRD_E2, 4), 66 + ct))
        k.stamp(30)
        signal(k, FL4, S_BM, S_BN, 17)

    return dict(T=32, NT=7, NS=NS, srds_c=srds_c, srds_p=srds_p, m16=True,
                x_ring=(0, 16384, NS), w_ring=(WR, 14336, NS), w_mode="fm16", x_mode="dma_swz", D=6, pause=2,
                FRAG=FR, ACC=ACC, dma_setup=dma_setup, cons_pre=cons_pre, acc_init=lambda i: "v%d" % (BR + ((i >> 2) & 1)),
                epilogue=epilogue, poll=Poll(FL3, S_BN, 512, 0, lds=MV + 1024))


def emit_m2(k, role, gate=None, ns=(4, 4, 5), sb=0):
    phases = [cfg25(2, NS=ns[0], gate=gate), cfg3(), cfg4(ns[1]), cfg25(5, NS=ns[2])]
    k("s_load_dwordx2 s[4:5], s[0:1], %d" % KA["x"])
    k("s_load_dwordx4 s[8:11], s[0:1], %d" % KA["w_sp"])
    k("s_load_dwordx2 s[12:13], s[0:1], %d" % KA["w_out"])
    k("s_load_dwordx2 s[16:17], s[0:1], %d" % KA["out"])
    map_blocks(k, 2, 8, 2)
    k("s_lshr_b32 s22, s%d, 1" % S_BM)
    k("s_waitcnt lgkmcnt(0)")
    for n, c in enumerate(phases):
        if role == "c":
            c["srds_c"](k)
            (cons_phase16 if c.get("m16") else cons_phase)(k, c, 6 * n)
        elif n == 0:
            g3 = prod_phase_gen(k, phases[1], 6)
            prod_phase(k, c, 0, tail_hook=lambda: next(g3))
        elif n == 1:
            next(g3, None)
        else:
            prod_phase(k, c, 6 * n)
    k.stamp_dump(31)
    k("s_endpgm")


M2_LDS = MV + 1024 + 64
```

```python
import sys
from k1 import gen_k1
from gemms import *
from m1 import gen_m1

def gen_dbg():
    st = Kern.STAMPS
    Kern.STAMPS = False
    k = Kern("dbg_kernel")
    k("s_cmp_ge_u32 s2, 1")
    k("s_cbranch_scc1 L_dbg_end")
    k("s_load_dwordx4 s[4:7], s[0:1], 88")
    k("s_waitcnt lgkmcnt(0)")
    srd_in(k, 8, 4, 256)
    srd_in(k, 12, 6, 0x10000000)
    items = [(0, 0, 0), (0, 5, 0), (1, 0, 0), (1, 3, 0), (1, 14, 0), (1, 15, 0), (1, 21, 0), (1, 11, 0), (1, 13, 4), (1, 13, 5), (1, 31, 5),
             (1, 31, 6), (2, 0, 0), (2, 3, 0), (2, 15, 0), (2, 31, 0)]
    k("v_mov_b32 v1, 0")
    for n, (kid, st_, w) in enumerate(items):
        k("s_mov_b32 s16, %d" % (0x8000000 + kid * 0x400000 + 136 * 4096 + w * 256 + (32 + st_) * 4))
        k("v_writelane_b32 v1, s16, %d" % n)
    k("buffer_load_dword v2, v1, s[12:15], 0 offen")
    k("v_lshlrev_b32 v3, 2, v0")
    k("s_waitcnt vmcnt(0)")
    k("v_readlane_b32 s16, v2, 0")
    k("v_subrev_u32 v2, s16, v2")
    k("buffer_store_dword v2, v3, s[8:11], 0 offen")
    k.label("L_dbg_end")
    k("s_endpgm")
    r = k.finish(vgprs=8, sgprs=32)[0], "; @launch kernel=dbg_kernel grid=(1,1,1) block=(64,1,1) lds=0"
    Kern.STAMPS = st
    return r


def build(path, **opt):
    Kern.STAMPS = opt.get("stamps", False)
    for key in DBG:
        DBG[key] = opt.get(key, False)
    import gemm, gemms
    ov = opt.get("ov", {})
    gemms.gemm = lambda name, cfg: gemm.gemm(name, dict(cfg, **ov))
    g = opt.get("g", {})
    import attn, common
    common.NT.update(dict(k1=" nt", x="", side=" nt"))
    common.NT.update(opt.get("nt", {}))
    attn.P_.clear()
    attn.P_.update(g.get("att", {}))
    parts = [gen_k1(**g.get(0, {})), gen_m1(force_slow=opt.get("force_slow", False), **g.get(1, {}))]
    if opt.get("dbgk"):
        parts.append(gen_dbg())
    ref = open("adaLN_cond__softmax_full_mha__mixer_gmlp__prompt.s.ref").read().split("\n")
    head = [l for l in ref if l.startswith(";") and "@launch" not in l and "Override" not in l and "grid=ceil" not in l]
    txt = "\n".join(head) + "\n" + "\n".join(p[1] for p in parts) + "\n"
    txt += ".amdgcn_target \"amdgcn-amd-amdhsa--gfx950\"\n" + "\n".join(p[0] for p in parts)
    open(path, "w").write(txt)

if __name__ == "__main__":
    build("adaLN_cond__softmax_full_mha__mixer_gmlp__prompt.s")
    build("slow.s", force_slow=True)
    build("stamp.s", stamps=True)
    if len(sys.argv) > 1 and sys.argv[1] == "m":
        build("stamp_a.s", stamps=True, g={"m": dict(ns=(4, 4, 4))})
        build("stamp_b.s", stamps=True, g={"m": dict(ns=(6, 3, 6))})
    if len(sys.argv) > 1 and sys.argv[1] == "x":
        build("stamp_a.s", stamps=True, fine=True)
    if len(sys.argv) > 1 and sys.argv[1] == "y":
        build("stamp_a.s", stamps=True, no_prod=True)
        build("stamp_b.s", stamps=True, l2hit=True)
        build("stamp_c.s", stamps=True, g={"m": dict(o4=dict(wgroup=2))})
    if len(sys.argv) > 1 and sys.argv[1] == "t":
        build("a.s", g={0: dict(tlb=21)})
        build("b.s", g={0: dict(tlb=18)})
    if len(sys.argv) > 1 and sys.argv[1] == "d":
        build("a.s", stamps=True, dbgk=True)
    if len(sys.argv) > 1 and sys.argv[1] == "a":
        build("a.s", nt=dict(k1="", side=""))
        build("b.s", nt=dict(side=""))
        build("c.s", nt=dict(x=" nt"))
```

```python
from sync import *
from gemms import pack16, swap8, MIXLO, MIXHI
from attn import emit_attn, ATT_LDS, SY, QF
from p0 import p0_loaders, p0_mfma
from m2 import dep, emit_m2, M2_LDS, swap16

NS1 = 3
PAR = NS1 * 45056


def gen_m1(name="adaLN_cond__softmax_full_mha__mixer_gmlp__prompt_kernel", force_slow=False, **opt):
    k = Kern(name)
    END, REST, PROD, COMP, HELP = [k.uid(x) for x in ("end", "rest", "prod", "comp", "help")]
    FR, ACC = 24, 80
    k("s_cmp_ge_u32 s2, 256")
    k("s_cbranch_scc1 " + END)
    k.kidx = 1
    k.stamp_init()
    k("s_load_dwordx4 s[56:59], s[0:1], %d" % KA["x"])
    k("s_load_dwordx4 s[8:11], s[0:1], %d" % KA["c"])
    k("s_load_dwordx4 s[4:7], s[0:1], %d" % KA["dbg"])
    k("v_lshrrev_b32 v2, 6, v0")
    k("v_and_b32 v%d, 63, v0" % V_LANE)
    k("v_readfirstlane_b32 s19, v2")
    map_blocks(k, 2, 8, 1)
    k("s_mov_b32 s%d, s19" % S_WAVE)
    k("s_cmp_lt_u32 s19, 4")
    k("s_cbranch_scc1 " + REST)

    def p_addr(k, va):
        k("v_min_u32 v2, 39, v%d" % V_LANE)
        k("v_subrev_u32 v3, 32, v2")
        k("s_or_b32 s50, s%d, 1" % S_BN)
        k("v_lshl_add_u32 v%d, v3, 5, s50" % va)
        k("s_lshl_b32 s50, s%d, 5" % S_BM)
        k("v_add_u32 v3, s50, v2")
        k("v_cmp_gt_u32 vcc, 32, v2")
        k("v_cndmask_b32 v%d, v%d, v3, vcc" % (va, va))

    def epilogue(k):
        qs = 32 ** -0.5 * LOG2E
        k("v_lshlrev_b32 v2, 4, v%d" % V_LANE)
        k("v_and_b32 v5, 0x330, v2")
        k("v_and_b32 v6, 0x40, v2")
        k("v_lshl_or_b32 v5, v6, 1, v5")
        k("v_and_b32 v6, 0x80, v2")
        k("v_lshrrev_b32 v6, 1, v6")
        k("v_or_b32 v5, v5, v6")
        k("s_lshl_b32 s56, s%d, 17" % S_BN)
        k("s_lshl_b32 s57, s%d, 14" % S_BM)
        k("s_add_u32 s56, s56, s57")
        k("s_lshl_b32 s59, s%d, 12" % S_WAVE)
        k("s_add_u32 s56, s56, s59")
        k("s_add_u32 s57, s56, 0x400000")
        k("s_add_u32 s58, s56, 0x800000")
        k("s_lshr_b32 s62, s%d, 1" % S_WAVE)
        k("s_lshl_b32 s62, s62, 13")
        k("s_add_u32 s62, s62, s59")
        k("v_add_u32 v3, s62, v2")
        k("v_add_u32 v6, s62, v5")
        k("s_mov_b32 s60, %s" % fhex(qs))
        k("s_mov_b32 s61, %s" % fhex(qs))
        n = 0
        for j in (1, 2, 0):
            for i in range(2):
                for mf in range(2):
                    P = FR + 4 * n if j else QF + 8 * i + 4 * mf
                    n += 1
                    if j == 2:
                        A0, A1 = [ACC + 4 * (ct * 4 + 2 * i + mf) for ct in (4, 5)]
                    else:
                        A0 = ACC + 4 * ((2 * j + mf) * 4 + 2 * i)
                        A1 = A0 + 4
                    if j == 0:
                        for e in range(0, 8, 2):
                            k("v_pk_mul_f32 %s, %s, s[60:61]" % (v(A0 + e, 2), v(A0 + e, 2)))
                    for d, A in enumerate((A0, A0 + 2, A1, A1 + 2)):
                        k("v_cvt_pk_bf16_f32 v%d, v%d, v%d" % (P + d, A, A + 1))
                    swap16(k, P)
                    o = i * 2048 + mf * 1024
                    if j:
                        k("buffer_store_dwordx4 %s, v%d, %s, s%d offen offset:%d sc1" % (v(P, 4), 5 if j == 1 else 2, s(SRD_E1, 4), 56 + j, o))
                        k("ds_write_b128 v%d, %s offset:%d" % (6 if j == 1 else 3, v(P, 4), (j - 1) * 8192 + o))

    def srds_p(k):
        srd_ws_sub(k, SRD_X, 6, "H", 81, 16 * 32768)
        srd_ws_sub(k, SRD_W, 6, "WQF", 80, 16 * 12288)

    def dma_setup(k):
        k("s_mul_i32 s50, s%d, 3072" % S_WAVE)
        k("v_lshl_add_u32 v8, v%d, 4, s50" % V_LANE)
        k("s_mul_i32 s80, s%d, %d" % (S_BN, 16 * 12288))
        k("s_lshl_b32 s81, s%d, 19" % S_BM)
        k("s_mov_b32 s82, 0")
        k("s_lshl_b32 s50, s%d, 13" % S_WAVE)
        k("v_lshl_add_u32 v5, v%d, 4, s50" % V_LANE)
        k("v_add_u32 v6, 4096, v5")
        return [dep(Dma(SRD_X, [5, 5, 5, 5, 6, 6, 6, 6], 32768, 0, 32768, 82)),
                dep(Dma(SRD_W, [8, 8, 8], 12288, NS1 * 32768, 12288, 82))]

    cfg = dict(T=16, MT=4, NT=6, RW=6, D=opt.get("D", 4), pause=opt.get("pause", 1), NS=NS1, srds_p=srds_p,
               x_ring=(0, 32768, NS1), w_ring=(NS1 * 32768, 12288, NS1), w_mode="fm16", swap_tile=lambda ct: ct >= 4,
               FRAG=FR, ACC=ACC, dma_setup=dma_setup, epilogue=epilogue,
               poll=Poll(FLP, S_BM, 512, 32 * 1024, lds=SY + 4, addr=p_addr))

    k("s_sub_u32 s%d, s19, 4" % S_WAVE)
    p0_loaders(k)
    prod_phase(k, cfg, 0)
    k("s_branch " + HELP)

    k.label(REST)
    G1L = k.uid("g1")
    p0_mfma(k, lambda k: code_prefetch(k, G1L, 0, 104, 74, "L_%s_codeend" % name))
    k.label(G1L)
    srd_ws(k, SRD_E1, 6, "QKV")
    cons_phase16(k, cfg, 0)
    pr = dict(srd=96, off=94, seen=95, tmp=101, acc=100, cnt=4, va=96, vv=97, vl=98)
    C2, P2 = "L_mm_second", k.uid("p2")
    hooks = {}

    def after_comp(k):
        signal(k, FL0, S_BM, S_BN, lg=5)
        k.stamp_next(2)
        k("s_branch " + C2)

    def after_help(k, lds_wait):
        hooks["w"] = lds_wait
        k.stamp_next(2)
        k("s_branch " + P2)
    emit_attn(k, COMP, HELP, Poll(FL1, 21, 2048, 1024, regs=pr, s_rot=18, lg=5, barrier=False, lds=SY + 4),
              force_slow=force_slow, after_comp=after_comp, after_help=after_help)

    def gate(k):
        W, G, F = k.uid("hw"), k.uid("hg"), k.uid("hf")
        k("s_mov_b32 s63, 13")
        hooks["w"](16, 63, True)
        k("s_cmp_lg_u32 s%d, 0" % S_WAVE)
        k("s_cbranch_scc1 " + F)
        srd_ws(k, SRD_E1, 6, "HF")
        k("v_lshlrev_b32 v24, 4, v%d" % V_LANE)
        k("s_mov_b32 s64, 0")
        k.label(W)
        k("buffer_load_dwordx4 v[28:31], v24, %s, 0 offen sc1" % s(SRD_E1, 4))
        k("s_add_u32 s64, s64, 1")
        k("s_waitcnt vmcnt(0)")
        k("v_min_f32 v28, v28, v29")
        k("v_min3_f32 v28, v28, v30, v31")
        k("v_cmp_gt_f32 vcc, 0, v28")
        k("s_cbranch_vccz " + G)
        k("s_sleep 8")
        k("s_cmp_lt_u32 s64, 0x100000")
        k("s_cbranch_scc1 " + W)
        k.label(G)
        k("v_mov_b32 v28, 100")
        k("ds_write_b32 v7, v28 offset:32")
        k.label(F)
        k("s_mov_b32 s63, 0")
        hooks["w"](32, 63, False, 2)
    k.label(C2)
    emit_m2(k, "c")
    k.label(P2)
    emit_m2(k, "p", gate)
    k.label(END)
    k("s_endpgm")
    txt, n = k.finish(vgprs=228, sgprs=102)
    return txt, "; @launch %sgrid=(256,1,1) block=(512,1,1) lds=%d" % ("kernel=%s " % name if opt.get("aslist") else "", M2_LDS)
```

```python
from sync import *
from gemms import stats_to_affine, BCAST

GV_LDS = 12288
NAP = 2


def wait_flag(k, issued, vz, vd):
    W, GO, CH = k.uid("wait"), k.uid("go"), k.uid("chk")
    k("s_mov_b32 s16, 0")
    if issued:
        k("s_branch " + CH)
    k.label(W)
    k("buffer_load_dword v%d, v%d, s[48:51], 0 offen sc1" % (vd, vz))
    k("s_waitcnt vmcnt(0)")
    k.label(CH)
    k("v_cmp_eq_u32 vcc, 0, v%d" % vd)
    k("s_cbranch_vccz " + GO)
    k("s_sleep 4")
    k("s_add_u32 s16, s16, 1")
    k("s_cmp_lt_u32 s16, 0x100000")
    k("s_cbranch_scc1 " + W)
    k.label(GO)


PW = 61440


def lds_spin(k, va, off, lim, vt, nap=1):
    W, G = k.uid("w"), k.uid("g")
    k("s_mov_b32 s16, 0")
    k.label(W)
    k("ds_read_b32 v%d, v%d offset:%d" % (vt, va, off))
    k("s_add_u32 s16, s16, 1")
    k("s_waitcnt lgkmcnt(0)")
    k("v_cmp_lt_u32 vcc, %d, v%d" % (lim, vt))
    k("s_cbranch_vccnz " + G)
    k("s_sleep %d" % nap)
    k("s_cmp_lt_u32 s16, 0x1000000")
    k("s_cbranch_scc1 " + W)
    k.label(G)


def unit_ids(k):
    k("s_lshl_b32 s12, s20, 2")
    k("s_lshr_b32 s13, s21, 3")
    k("s_add_u32 s12, s12, s13")
    k("s_bfe_u32 s13, s21, 0x20001")


def p0_loaders(k):
    SK, RP = k.uid("nofin"), k.uid("rp")
    k("s_bitcmp1_b32 s21, 0")
    k("s_cbranch_scc1 " + RP)
    unit_ids(k)
    k("s_lshl_b32 s14, s13, 2")
    k("s_add_u32 s14, s14, s%d" % S_WAVE)
    k("v_lshrrev_b32 v2, 3, v1")
    k("s_mov_b32 s15, 12288")
    k("v_mul_lo_u32 v4, v2, s15")
    k("v_and_b32 v3, 7, v1")
    k("v_lshl_add_u32 v4, v3, 4, v4")
    k("s_mul_i32 s32, s14, %d" % (64 * 12288))
    k("s_lshl_b32 s15, s12, 7")
    k("s_add_u32 s32, s32, s15")
    for i in range(1, 8):
        k("s_add_u32 s%d, s32, %d" % (32 + i, i * 8 * 12288))
    k("s_lshl_b32 s14, s14, 7")
    k("v_lshlrev_b32 v5, 1, v1")
    k("s_lshl_b32 s15, s%d, 8" % S_WAVE)
    k("s_add_u32 s15, s15, %d" % GV_LDS)
    k("v_lshl_add_u32 v6, v1, 2, s15")
    k("v_lshl_add_u32 v7, v2, 2, s15")
    k("v_mov_b32 v9, %d" % PW)
    k("s_waitcnt lgkmcnt(0)")
    srd_in(k, 24, 8, SZ["c"])
    srd_in(k, 28, 10, SZ["w_mod"])
    k("buffer_load_ushort v12, v5, s[24:27], s14 offen")
    for i in range(8):
        k("buffer_load_dwordx4 %s, v4, s[28:31], s%d offen" % (v(16 + 4 * i, 4), 32 + i))
    k("s_barrier")
    srd_ws(k, 44, 6, "MODP")
    srd_ws(k, 52, 6, "SC")
    k("s_waitcnt vmcnt(8)")
    k("v_lshlrev_b32 v12, 16, v12")
    k("v_mul_f32 v13, %s, v12" % fhex(-LOG2E))
    k("v_exp_f32 v13, v13")
    k("v_add_f32 v13, 1.0, v13")
    k("v_rcp_f32 v13, v13")
    k("v_mul_f32 v12, v12, v13")
    k("v_cvt_pk_bf16_f32 v12, v12, v12")
    k("buffer_store_short v12, v5, s[52:55], s14 offen sc1")
    k("v_lshlrev_b32 v12, 16, v12")
    k("ds_write_b32 v6, v12")
    for i in range(8):
        k("ds_read_b32 v%d, v7 offset:%d" % (48 + i, i * 32))
    for j in range(8):
        k("v_mov_b32 v%d, 0" % (56 + j))
    k("s_waitcnt lgkmcnt(0)")
    for i in range(8):
        k("s_waitcnt vmcnt(%d)" % (8 - i))
        for d in range(4):
            t = 64 + 2 * (d & 1)
            unpack_bf16(k, t, t + 1, 16 + 4 * i + d)
            k("v_fmac_f32 v%d, v%d, v%d" % (56 + 2 * d, t, 48 + i))
            k("v_fmac_f32 v%d, v%d, v%d" % (57 + 2 * d, t + 1, 48 + i))
    k.stamp(5)
    for j in range(4):
        k("v_permlane32_swap_b32 v%d, v%d" % (56 + j, 60 + j))
    for j in range(4):
        k("v_add_f32 v%d, v%d, v%d" % (56 + j, 56 + j, 60 + j))
    for j in range(2):
        k("v_permlane16_swap_b32 v%d, v%d" % (56 + j, 58 + j))
    for j in range(2):
        k("v_add_f32 v%d, v%d, v%d" % (56 + j, 56 + j, 58 + j))
    for j in range(2):
        k("v_add_f32_dpp v%d, v%d, v%d row_ror:8 row_mask:0xf bank_mask:0xf" % (56 + j, 56 + j, 56 + j))
    k("v_lshlrev_b32 v10, 5, v3")
    k("v_lshrrev_b32 v2, 4, v1")
    k("v_lshl_add_u32 v10, v2, 3, v10")
    k("s_lshl_b32 s15, s%d, 8" % S_WAVE)
    k("s_add_u32 s15, s15, %d" % (GV_LDS + 1024))
    k("v_add_u32 v10, s15, v10")
    k("ds_write_b64 v10, v[56:57]")
    k("v_mov_b32 v11, 1")
    k("s_mov_b64 exec, 1")
    k("ds_add_rtn_u32 v13, v9, v11")
    k("s_mov_b64 exec, -1")
    k("v_lshlrev_b32 v5, 2, v1")
    k("v_add_u32 v6, %d, v5" % (GV_LDS + 1024))
    k("s_mul_i32 s14, s13, %d" % (6144 * 4))
    k("s_lshl_b32 s15, s12, 8")
    k("s_add_u32 s14, s14, s15")
    k("s_waitcnt lgkmcnt(0)")
    k("v_readfirstlane_b32 s15, v13")
    k("s_cmp_lg_u32 s15, 3")
    k("s_cbranch_scc1 " + SK)
    for i in range(4):
        k("ds_read_b32 v%d, v6 offset:%d" % (48 + i, i * 256))
    k("ds_read_b32 v13, v9 offset:8")
    k("s_waitcnt lgkmcnt(0)")
    k("v_add_f32 v48, v48, v49")
    k("v_add_f32 v50, v50, v51")
    k("v_add_f32 v48, v48, v50")
    k("buffer_store_dword v48, v5, s[44:47], s14 offen sc1")
    k("v_cmp_lt_u32 vcc, 0, v13")
    k("s_cbranch_vccnz " + SK)
    lds_spin(k, 9, 8, 0, 13)
    k("buffer_store_dword v48, v5, s[44:47], s14 offen sc1")
    k("s_branch " + SK)

    k.label(RP)
    k("v_lshrrev_b32 v2, 3, v1")
    k("s_mov_b32 s16, 6144")
    k("v_mul_lo_u32 v4, v2, s16")
    k("v_and_b32 v2, 7, v1")
    k("v_lshl_add_u32 v4, v2, 4, v4")
    k("s_mul_i32 s12, s%d, 12288" % S_WAVE)
    k("s_add_u32 s12, s12, 12288")
    k("s_lshl_b32 s13, s20, 2")
    k("s_add_u32 s13, s13, s%d" % S_WAVE)
    k("s_mul_i32 s14, s13, %d" % (32 * 6144))
    k("s_lshr_b32 s15, s21, 1")
    k("s_lshl_b32 s15, s15, 7")
    k("s_add_u32 s14, s14, s15")
    k("s_waitcnt lgkmcnt(0)")
    srd_in(k, 24, 58, SZ["wqkv"])
    k("s_barrier")
    for u in range(3):
        for q in range(4):
            k("s_add_u32 m0, s12, %d" % (u * 4096 + q * 1024))
            k("s_add_u32 s16, s14, %d" % (u * 2048 + q * 8 * 6144))
            k("buffer_load_dwordx4 v4, s[24:27], s16 offen lds")
    srd_ws(k, 28, 6, "WQF")
    k("v_bfe_u32 v2, v1, 2, 2")
    k("v_and_b32 v3, 3, v1")
    k("v_lshlrev_b32 v5, 3, v3")
    k("v_lshl_add_u32 v5, v2, 7, v5")
    k("v_lshrrev_b32 v2, 4, v1")
    k("v_lshl_add_u32 v5, v2, 10, v5")
    k("v_add_u32 v5, s12, v5")
    k("v_lshlrev_b32 v6, 4, v1")
    k("s_and_b32 s15, s21, 30")
    k("s_mul_i32 s15, s15, 196608")
    k("s_mul_i32 s16, s13, 6144")
    k("s_add_u32 s14, s15, s16")
    k("s_add_u32 s15, s14, 196608")
    for u in range(3):
        k("s_waitcnt vmcnt(8)")
        for b in range(4):
            for rd in range(2):
                k("ds_read_b64_tr_b16 %s, v5 offset:%d" % (v(16 + 16 * u + 4 * b + 2 * rd, 2), u * 4096 + rd * 512 + b * 32))
        for b in range(4):
            k("s_waitcnt lgkmcnt(%d)" % (6 - 2 * b))
            k("buffer_store_dwordx4 %s, v6, s[28:31], s%d offen offset:%d sc1" % (v(16 + 16 * u + 4 * b, 4), 14 + (b >> 1), (b & 1) * 1024))
        k("s_add_u32 s14, s14, 2048")
        k("s_add_u32 s15, s15, 2048")
    k.stamp(5)
    k.label(SK)
    k.stamp(6)
    k("s_waitcnt vmcnt(0) lgkmcnt(0)")


def p0_mfma(k, code):
    NOMARK, NOFLAG = k.uid("nomark"), k.uid("noflag")
    k("s_lshl_b32 s12, s20, 5")
    k("s_add_u32 s12, s12, s21")
    k("v_bfe_u32 v66, v0, 3, 3")
    k("v_and_b32 v2, 7, v0")
    k("v_lshrrev_b32 v5, 6, v0")
    k("v_lshlrev_b32 v67, 11, v66")
    k("v_lshl_add_u32 v67, v2, 4, v67")
    k("v_lshl_add_u32 v67, v5, 9, v67")
    k("s_lshl_b32 s13, s12, 14")
    k("v_lshrrev_b32 v6, 2, v2")
    k("v_lshlrev_b32 v6, 14, v6")
    k("v_lshl_add_u32 v6, v5, 17, v6")
    k("v_and_b32 v7, 3, v2")
    k("v_lshl_add_u32 v6, v7, 8, v6")
    k("v_lshl_add_u32 v64, v66, 4, v6")
    k("v_lshlrev_b32 v65, 6, v2")
    k("v_lshl_add_u32 v65, v5, 11, v65")
    k("s_and_b32 s16, s21, 1")
    k("s_lshl_b32 s16, s16, 7")
    k("s_lshl_b32 s18, s20, 19")
    k("s_lshr_b32 s17, s21, 1")
    k("s_lshl_b32 s17, s17, 10")
    k("s_add_u32 s18, s18, s17")
    k("s_add_u32 s18, s18, s16")
    for n in range(4):
        k("s_add_u32 s%d, s18, %d" % (36 + n, n * 32768))
    k("v_lshlrev_b32 v4, 4, v0")
    for r in (8, 9, 10, 11):
        k("v_mov_b32 v%d, -1" % r)
    for r in (12, 13, 14, 15):
        k("v_mov_b32 v%d, -1.0" % r)
    k("v_mov_b32 v102, 0")
    k("v_mov_b32 v103, 0")
    k("v_mov_b32 v99, %d" % PW)
    k("ds_write_b64 v99, v[102:103]")
    k("ds_write_b64 v99, v[102:103] offset:8")
    k("s_waitcnt lgkmcnt(0)")
    srd_in(k, 24, 56, SZ["x"])
    srd_ws(k, 44, 6, "MODP")
    srd_ws(k, 32, 6, "FL")
    srd_in(k, 48, 4, 256)
    k("s_cmp_lg_u32 s2, 32")
    k("s_cbranch_scc1 " + NOMARK)
    for n in range(8):
        k("s_mov_b32 s14, %d" % ((n >> 1) * 6144 * 4 + (n & 1) * 4096))
        k("buffer_store_dwordx4 v[8:11], v4, s[44:47], s14 offen sc1")
    k("v_lshlrev_b32 v3, 7, v0")
    k("s_mov_b32 s14, %d" % FLP)
    k("buffer_store_dword v12, v3, s[32:35], s14 offen sc1")
    k("s_waitcnt vmcnt(0)")
    k.label(NOMARK)
    for n in range(4):
        k("buffer_load_dwordx4 v[%d:%d], v67, s[24:27], s13 offen offset:%d" % (16 + 4 * n, 19 + 4 * n, n * 128))
    k("s_barrier")
    k("s_lshl_b32 s14, s19, 8")
    k("s_add_u32 s14, s14, s2")
    k("s_cmp_lg_u32 s14, 32")
    k("s_cbranch_scc1 " + NOFLAG)
    k("buffer_store_dword v12, v102, s[48:51], 0 offen sc1")
    k("s_waitcnt vmcnt(0)")
    k.label(NOFLAG)
    srd_ws(k, 28, 6, "H")
    for r in (8, 9, 10, 11):
        k("v_mov_b32 v%d, 0" % r)
    for n in range(4):
        k("s_waitcnt vmcnt(%d)" % (3 - n))
        for d in range(4):
            o = 32 + 8 * n + 2 * d
            unpack_bf16(k, o, o + 1, 16 + 4 * n + d)
            k("v_pk_add_f32 v[8:9], v[8:9], v[%d:%d]" % (o, o + 1))
            k("v_pk_fma_f32 v[10:11], v[%d:%d], v[%d:%d], v[10:11]" % (o, o + 1, o, o + 1))
    k("v_add_f32 v8, v8, v9")
    k("v_add_f32 v9, v10, v11")
    for m in ("quad_perm:[1,0,3,2]", "quad_perm:[2,3,0,1]", "row_half_mirror"):
        for r in (8, 9):
            k("v_add_f32_dpp v%d, v%d, v%d %s row_mask:0xf bank_mask:0xf" % (r, r, r, m))
    k("v_lshlrev_b32 v7, 5, v66")
    k("v_lshl_add_u32 v10, v5, 3, v7")
    k("ds_write_b64 v10, v[8:9] offset:8192")
    k("v_mov_b32 v11, 1")
    k("s_mov_b64 exec, 1")
    k("ds_add_u32 v99, v11 offset:4")
    k("s_mov_b64 exec, -1")
    k.stamp(5)
    NP_ = k.uid("nopoll")
    k("s_cmp_lg_u32 s19, 3")
    k("s_cbranch_scc1 " + NP_)
    wait_flag(k, False, 102, 103)
    k("ds_write_b32 v99, v11 offset:8")
    k.label(NP_)
    lds_spin(k, 99, 4, 3, 103)
    k("ds_read_b128 v[8:11], v7 offset:8192")
    k("ds_read_b128 v[68:71], v7 offset:8208")
    k("s_waitcnt lgkmcnt(0)")
    k("v_pk_add_f32 v[8:9], v[8:9], v[10:11]")
    k("v_pk_add_f32 v[68:69], v[68:69], v[70:71]")
    k("v_pk_add_f32 v[8:9], v[8:9], v[68:69]")
    stats_to_affine(k, 8, 1024)
    for o in range(32, 64, 2):
        k("v_pk_fma_f32 v[%d:%d], v[%d:%d], v[8:9], v[8:9] %s" % (o, o + 1, o, o + 1, BCAST))
    k("s_lshl_b32 s14, s21, 5")
    k("s_lshl_b32 s15, s20, 2")
    k("s_add_u32 s14, s14, s15")
    k("s_add_u32 s14, s14, s19")
    k("s_lshl_b32 s14, s14, 7")
    k("s_add_u32 s14, s14, %d" % FL1)
    k("s_lshl_b32 s15, s12, 7")
    k("s_add_u32 s15, s15, %d" % FL0)
    k("s_lshl_b32 s16, s2, 2")
    k("s_add_u32 s16, s16, %d" % FLH)
    k("v_mov_b32 v3, 0x7f000000")
    k("v_cmp_gt_u32 vcc, 2432, v4")
    k("v_cndmask_b32 v2, v3, v4, vcc")
    k("s_sub_u32 s17, s14, 4096")
    k("s_bitcmp1_b32 s21, 0")
    k("s_cselect_b32 s14, s14, 0x7f000000")
    k("s_cselect_b32 s17, s17, 0x7f000000")
    for n in range(4):
        k("v_writelane_b32 v3, s%d, %d" % (14 + n, n))
    k("buffer_store_dword v12, v3, s[32:35], 0 offen sc1")
    srd_ws(k, 52, 6, "EX")
    k("s_mul_i32 s17, s2, 2432")
    k("buffer_store_dwordx4 v[12:15], v2, s[52:55], s17 offen sc1")
    code(k)
    lds_spin(k, 99, 8, 0, 103)
    unit_ids(k)
    k("s_mul_i32 s14, s13, %d" % (6144 * 4))
    k("s_lshl_b32 s15, s12, 8")
    k("s_add_u32 s14, s14, s15")
    PB, PG = k.uid("probe"), k.uid("pg")
    k("s_mov_b32 s16, 0")
    k.label(PB)
    k("buffer_load_dword v103, v102, s[44:47], s14 offen sc1")
    k("s_add_u32 s16, s16, 1")
    k("s_waitcnt vmcnt(0)")
    k("v_cmp_eq_u32 vcc, -1, v103")
    k("s_cbranch_vccz " + PG)
    k("s_sleep 3")
    k("s_cmp_lt_u32 s16, 0x100000")
    k("s_cbranch_scc1 " + PB)
    k.label(PG)
    T0 = 68
    for n, (idx, p) in enumerate([(1, p) for p in range(4)] + [(0, p) for p in range(4)]):
        k("s_mov_b32 s%d, %d" % (60 + n, (p * 6144 + idx * 1024) * 4))
    k("v_lshrrev_b32 v2, 1, v0")
    k("v_lshlrev_b32 v2, 6, v2")
    k("v_and_b32 v3, 1, v0")
    k("v_lshl_add_u32 v2, v3, 4, v2")
    RE, OK = k.uid("retry"), k.uid("ok")
    k("s_mov_b32 s16, 0")
    k.stamp(6)
    k.label(RE)
    k("s_sleep %d" % NAP)
    for n in range(8):
        k("buffer_load_dwordx4 %s, v4, s[44:47], s%d offen sc1" % (v(T0 + 4 * n, 4), 60 + n))
    k("s_add_u32 s16, s16, 1")
    k("s_waitcnt vmcnt(0)")
    k("v_max_u32 v3, v%d, v%d" % (T0, T0 + 1))
    for e in range(2, 32, 2):
        k("v_max3_u32 v3, v3, v%d, v%d" % (T0 + e, T0 + e + 1))
    k("v_cmp_eq_u32 vcc, -1, v3")
    k("s_cbranch_vccz " + OK)
    k("s_cmp_lt_u32 s16, 0x100000")
    k("s_cbranch_scc1 " + RE)
    k.label(OK)
    k.stamp(7)
    for b in (T0, T0 + 16):
        for (x, y) in ((0, 4), (8, 12), (0, 8)):
            for e in (0, 2):
                k("v_pk_add_f32 %s, %s, %s" % (v(b + x + e, 2), v(b + x + e, 2), v(b + y + e, 2)))
        for e in (0, 2):
            k("v_cvt_pk_bf16_f32 v3, v%d, v%d" % (b + e, b + e + 1))
            unpack_bf16(k, b + e, b + e + 1, 3)
    for e in range(4):
        k("v_add_f32 v%d, 1.0, v%d" % (T0 + e, T0 + e))
    for e in (0, 2):
        k("v_cvt_pk_bf16_f32 v3, v%d, v%d" % (T0 + e, T0 + e + 1))
        unpack_bf16(k, T0 + e, T0 + e + 1, 3)
    k("ds_write_b128 v2, %s" % v(T0, 4))
    k("ds_write_b128 v2, %s offset:32" % v(T0 + 16, 4))
    PR = 108
    for hf in range(2):
        for n in range(2 * hf, 2 * hf + 2):
            for q in range(4):
                k("ds_read_b128 %s, v65 offset:%d" % (v(PR + 16 * n + 4 * q, 4), n * 512 + q * 16))
        if hf == 0:
            k("s_waitcnt lgkmcnt(4)")
    for n in range(4):
        G = PR + 16 * n
        k("s_waitcnt lgkmcnt(%d)" % (12 - 4 * n))
        for d in range(4):
            o = 32 + 8 * n + 2 * d
            k("v_pk_fma_f32 v[%d:%d], v[%d:%d], %s, %s" % (o, o + 1, o, o + 1, v(G + 2 * d, 2), v(G + 8 + 2 * d, 2)))
        for d in range(4):
            o = 32 + 8 * n + 2 * d
            k("v_cvt_pk_bf16_f32 v%d, v%d, v%d" % (16 + 4 * n + d, o, o + 1))
        k("buffer_store_dwordx4 v[%d:%d], v64, s[28:31], s%d offen sc1" % (16 + 4 * n, 19 + 4 * n, 36 + n))
    signal(k, FLP, 20, 21, 8, lg=5)
```

```python
from gemm import *

FL2, FL3, FL4, FL0, FL1 = 0, 32768, 65536, 98304, 131072
FLH, FLP = 0x40000, 0x48000
P_WS = 6


def signal(k, base, s_group, s_member, st=None, s_wave=S_WAVE, lg=4):
    SK = k.uid("nosig")
    srd_ws(k, SRD_E0, P_WS, "FL")
    k("s_lshl_b32 s56, s%d, %d" % (s_group, 7 + lg))
    k("s_lshl_b32 s57, s%d, 7" % s_member)
    k("s_add_u32 s56, s56, s57")
    k("s_add_u32 s56, s56, %d" % base)
    k("v_mov_b32 v2, 0")
    k("v_mov_b32 v3, 1.0")
    k("s_waitcnt vmcnt(0)")
    if st:
        k.stamp(st)
    k("s_barrier")
    k("s_cmp_lg_u32 s%d, 0" % s_wave)
    k("s_cbranch_scc1 " + SK)
    k("s_mov_b64 exec, 1")
    k("buffer_store_dword v3, v2, %s, s56 offen sc1" % s(SRD_E0, 4))
    k("s_mov_b64 exec, -1")
    k.label(SK)


class Poll:
    def __init__(self, base, s_group, a, b, regs=None, s_rot=None, before=None, lg=4, barrier=True, lds=None, addr=None):
        self.base, self.s_group, self.a, self.b, self.s_rot, self.before = base, s_group, a, b, s_rot, before
        self.lg, self.barrier, self.lds, self.addr = lg, barrier, lds, addr
        self.r = regs or dict(srd=SRD_E0, off=56, seen=58, tmp=59, acc=60, cnt=64, va=16, vv=17, vl=18)

    def setup(self, k):
        r = self.r
        if self.before:
            self.before(k)
        srd_ws(k, r["srd"], P_WS, "FL")
        n1 = (1 << self.lg) - 1
        k("s_lshl_b32 s%d, s%d, %d" % (r["off"], self.s_group, 7 + self.lg))
        k("s_add_u32 s%d, s%d, %d" % (r["off"], r["off"], self.base))
        k("v_min_u32 v%d, %d, v%d" % (r["va"], n1, V_LANE))
        if self.s_rot is not None:
            k("v_add_u32 v%d, s%d, v%d" % (r["va"], self.s_rot, r["va"]))
            k("v_and_b32 v%d, %d, v%d" % (r["va"], n1, r["va"]))
        if self.addr:
            k("s_mov_b32 s%d, %d" % (r["off"], self.base))
            self.addr(k, r["va"])
        k("v_lshlrev_b32 v%d, 7, v%d" % (r["va"], r["va"]))
        k("s_mov_b32 s%d, 0" % r["seen"])
        k("s_mov_b32 s%d, %d" % (r["acc"], self.b))
        k("v_mov_b32 v%d, %d" % (r["vl"], self.lds))
        k("v_mov_b32 v%d, 0" % r["vv"])
        k("ds_write_b32 v%d, v%d" % (r["vl"], r["vv"]))
        k("s_waitcnt lgkmcnt(0)")
        if self.barrier:
            k("s_barrier")

    def need_count(self, k, n):
        k("s_mov_b32 s%d, %d" % (self.r["acc"], (n - 1) << 10))
        self.need(k)

    def need(self, k, on_slow=None):
        r = self.r
        L, D = k.uid("wait"), k.uid("go")
        k("s_lshr_b32 s%d, s%d, 10" % (r["tmp"], r["acc"]))
        k("s_add_u32 s%d, s%d, %d" % (r["acc"], r["acc"], self.a))
        k("s_cmp_gt_u32 s%d, s%d" % (r["seen"], r["tmp"]))
        k("s_cbranch_scc1 " + D)
        if on_slow:
            on_slow(k)
        k("s_mov_b32 s%d, 0" % r["cnt"])
        F = k.uid("follow")
        k("s_cmp_lg_u32 s%d, 0" % S_WAVE)
        k("s_cbranch_scc1 " + F)
        k.label(L)
        k("buffer_load_dword v%d, v%d, %s, s%d offen sc1" % (r["vv"], r["va"], s(r["srd"], 4), r["off"]))
        k("s_waitcnt vmcnt(0)")
        k("v_cmp_gt_f32 vcc, 0, v%d" % r["vv"])
        k("s_add_u32 s%d, s%d, 1" % (r["cnt"], r["cnt"]))
        k("s_nop 3")
        k("s_ff1_i32_b64 s%d, vcc" % r["seen"])
        k("v_mov_b32 v%d, s%d" % (r["vv"], r["seen"]))
        k("ds_write_b32 v%d, v%d" % (r["vl"], r["vv"]))
        k("s_cmp_gt_u32 s%d, s%d" % (r["seen"], r["tmp"]))
        k("s_cbranch_scc1 " + D)
        k("s_sleep 3")
        k("s_cmp_lt_u32 s%d, 0x100000" % r["cnt"])
        k("s_cbranch_scc1 " + L)
        k("s_branch " + D)
        k.label(F)
        k("ds_read_b32 v%d, v%d" % (r["vv"], r["vl"]))
        k("s_add_u32 s%d, s%d, 1" % (r["cnt"], r["cnt"]))
        k("s_waitcnt lgkmcnt(0)")
        k("v_readfirstlane_b32 s%d, v%d" % (r["seen"], r["vv"]))
        k("s_nop 3")
        k("s_cmp_gt_u32 s%d, s%d" % (r["seen"], r["tmp"]))
        k("s_cbranch_scc1 " + D)
        k("s_sleep 1")
        k("s_cmp_lt_u32 s%d, 0x1000000" % r["cnt"])
        k("s_cbranch_scc1 " + F)
        k.label(D)
```

```python
import sys
from k1 import gen_k1
from gemms import *
from m1 import gen_m1

def gen_dbg():
    st = Kern.STAMPS
    Kern.STAMPS = False
    k = Kern("dbg_kernel")
    k("s_cmp_ge_u32 s2, 1")
    k("s_cbranch_scc1 L_dbg_end")
    k("s_load_dwordx4 s[4:7], s[0:1], 88")
    k("s_waitcnt lgkmcnt(0)")
    srd_in(k, 8, 4, 256)
    srd_in(k, 12, 6, 0x10000000)
    items = [(0, 0, 0), (0, 5, 0), (1, 0, 0), (1, 3, 0), (1, 14, 0), (1, 15, 0), (1, 21, 0), (1, 11, 0), (1, 13, 4), (1, 13, 5), (1, 31, 5),
             (1, 31, 6), (2, 0, 0), (2, 3, 0), (2, 15, 0), (2, 31, 0)]
    k("v_mov_b32 v1, 0")
    for n, (kid, st_, w) in enumerate(items):
        k("s_mov_b32 s16, %d" % (0x8000000 + kid * 0x400000 + 136 * 4096 + w * 256 + (32 + st_) * 4))
        k("v_writelane_b32 v1, s16, %d" % n)
    k("buffer_load_dword v2, v1, s[12:15], 0 offen")
    k("v_lshlrev_b32 v3, 2, v0")
    k("s_waitcnt vmcnt(0)")
    k("v_readlane_b32 s16, v2, 0")
    k("v_subrev_u32 v2, s16, v2")
    k("buffer_store_dword v2, v3, s[8:11], 0 offen")
    k.label("L_dbg_end")
    k("s_endpgm")
    r = k.finish(vgprs=8, sgprs=32)[0], "; @launch kernel=dbg_kernel grid=(1,1,1) block=(64,1,1) lds=0"
    Kern.STAMPS = st
    return r


def gen_spin(a, b, mult=10):
    st = Kern.STAMPS
    Kern.STAMPS = False
    k = Kern("dbg_kernel")
    k("s_cmp_ge_u32 s2, 1")
    k("s_cbranch_scc1 L_dbg_end")
    k("s_load_dwordx4 s[4:7], s[0:1], 88")
    k("s_waitcnt lgkmcnt(0)")
    srd_in(k, 12, 6, 0x10000000)
    k("v_mov_b32 v1, 0")
    for n, (kid, st_, w) in enumerate((a, b)):
        k("s_mov_b32 s16, %d" % (0x8000000 + kid * 0x400000 + 136 * 4096 + w * 256 + (32 + st_) * 4))
        k("v_writelane_b32 v1, s16, %d" % n)
    k("buffer_load_dword v2, v1, s[12:15], 0 offen")
    k("s_waitcnt vmcnt(0)")
    k("v_readlane_b32 s16, v2, 0")
    k("v_readlane_b32 s17, v2, 1")
    k("s_sub_u32 s16, s17, s16")
    k("s_min_u32 s16, s16, 20000")
    k("s_mul_i32 s16, s16, %d" % mult)
    k("s_memrealtime s[18:19]")
    k("s_waitcnt lgkmcnt(0)")
    k.label("L_dbg_spin")
    k("s_memrealtime s[20:21]")
    k("s_waitcnt lgkmcnt(0)")
    k("s_sub_u32 s22, s20, s18")
    k("s_cmp_lt_u32 s22, s16")
    k("s_cbranch_scc1 L_dbg_spin")
    k.label("L_dbg_end")
    k("s_endpgm")
    r = k.finish(vgprs=8, sgprs=32)[0], "; @launch kernel=dbg_kernel grid=(1,1,1) block=(64,1,1) lds=0"
    Kern.STAMPS = st
    return r


def build(path, **opt):
    Kern.STAMPS = opt.get("stamps", False)
    for key in DBG:
        DBG[key] = opt.get(key, False)
    import gemm, gemms
    ov = opt.get("ov", {})
    gemms.gemm = lambda name, cfg: gemm.gemm(name, dict(cfg, **ov))
    g = opt.get("g", {})
    import attn, common
    common.NT.update(dict(k1=" nt", x="", side=" nt"))
    common.NT.update(opt.get("nt", {}))
    attn.P_.clear()
    attn.P_.update(g.get("att", {}))
    parts = [gen_m1(aslist=opt.get("aslist", True), force_slow=opt.get("force_slow", False), **g.get(1, {}))]
    if opt.get("spin"):
        parts.append(gen_spin(*opt["spin"]))
    if opt.get("dbgk"):
        parts.append(gen_dbg())
    ref = open("adaLN_cond__softmax_full_mha__mixer_gmlp__prompt.s.ref").read().split("\n")
    head = [l for l in ref if l.startswith(";") and "@launch" not in l and "Override" not in l and "grid=ceil" not in l]
    txt = "\n".join(head) + "\n" + "\n".join(p[1] for p in parts) + "\n"
    txt += ".amdgcn_target \"amdgcn-amd-amdhsa--gfx950\"\n" + "\n".join(p[0] for p in parts)
    open(path, "w").write(txt)

if __name__ == "__main__":
    build("adaLN_cond__softmax_full_mha__mixer_gmlp__prompt.s", aslist=False)
    build("cur.s")
    build("slow.s", force_slow=True)
    build("stamp.s", stamps=True)
    if len(sys.argv) > 1 and sys.argv[1] == "m":
        build("stamp_a.s", stamps=True, g={"m": dict(ns=(4, 4, 4))})
        build("stamp_b.s", stamps=True, g={"m": dict(ns=(6, 3, 6))})
    if len(sys.argv) > 1 and sys.argv[1] == "x":
        build("stamp_a.s", stamps=True, fine=True)
    if len(sys.argv) > 1 and sys.argv[1] == "y":
        build("stamp_a.s", stamps=True, no_prod=True)
        build("stamp_b.s", stamps=True, l2hit=True)
        build("stamp_c.s", stamps=True, g={"m": dict(o4=dict(wgroup=2))})
    if len(sys.argv) > 1 and sys.argv[1] == "t":
        build("a.s", g={0: dict(tlb=21)})
        build("b.s", g={0: dict(tlb=18)})
    if len(sys.argv) > 1 and sys.argv[1] == "d":
        build("a.s", stamps=True, dbgk=True)
    if len(sys.argv) > 1 and sys.argv[1] == "a":
        build("a.s", nt=dict(k1="", side=""))
        build("b.s", nt=dict(side=""))
        build("c.s", nt=dict(x=" nt"))
    if len(sys.argv) > 1 and sys.argv[1] == "s":
        iv = [((0, 0, 0), (0, 0, 0)), ((0, 0, 0), (0, 5, 0)), ((0, 0, 0), (1, 0, 0)), ((1, 0, 0), (1, 11, 0)), ((1, 11, 0), (2, 8, 0)), ((2, 8, 0), (2, 31, 0))]
        for n, x in enumerate(iv):
            build("s%d.s" % n, stamps=True, spin=x)
```
